```python
import torch

def _softmax(x, axis=-1):
    return torch.softmax(x, dim=axis)
def _gelu(x):
    return torch.nn.functional.gelu(x, approximate="tanh")
def _silu(x):
    return torch.nn.functional.silu(x)
def _sigmoid(x):
    return torch.sigmoid(x)
def _layernorm(x, axis=-1, eps=1e-5):
    m = x.mean(dim=axis, keepdim=True)
    v = x.var(dim=axis, keepdim=True, unbiased=False)
    return (x - m) / torch.sqrt(v + eps)
def _scatter_add(tgt, idx, src, axis=0):
    return tgt.clone().index_add_(axis, idx, src)
def _segment_sum(src, seg, n):
    out = torch.zeros((n,) + src.shape[1:], dtype=src.dtype)
    return out.index_add_(0, seg, src)
def _pad(x, pw):
    flat = tuple(v for pair in reversed(pw) for v in pair)
    return torch.nn.functional.pad(x, flat)

kernel_name = 'gated_mix__ssm_conv_h3__mixer_s_mlp__prompt'

def setup_inputs():

    _w = (lambda a: (lambda t: t.to(torch.bfloat16) if t.is_floating_point() else t)(torch.as_tensor(a)))
    def _A_setup():
        B, S, D = 1, 2048, 512
        ks = 4
        return {
            "q": _w((lambda *s: torch.randn(*s, dtype=torch.bfloat16) * 0.05)(B, S, D)),
            "k": _w((lambda *s: torch.randn(*s, dtype=torch.bfloat16) * 1.6)(B, S, D)),
            "v": _w((lambda *s: torch.randn(*s, dtype=torch.bfloat16) * 1.6)(B, S, D)),
            "shift_k": _w((lambda *s: torch.randn(*s, dtype=torch.bfloat16) * 1.6)(D, ks) * 0.5),
            "ssm_k": _w((lambda *s: torch.randn(*s, dtype=torch.bfloat16) * 3.2)(D, S) * (1.0 / S ** 0.5)),
            "ssm_D": _w((lambda *s: torch.randn(*s, dtype=torch.bfloat16) * 1.6)(D)),
        }
    _A_in = _A_setup()

    def _B_setup():
        B, S, D, F = 1, 2048, 512, 1792
        return {
            "x":  _w((lambda *s: torch.randn(*s, dtype=torch.bfloat16) * 0.05)(B, S, D)),
            "w1": _w((lambda *s: torch.randn(*s, dtype=torch.bfloat16) * 3.2)(D, D) * (D ** -0.5)),
            "w2": _w((lambda *s: torch.randn(*s, dtype=torch.bfloat16) * 3.2)(D, D) * (D ** -0.5)),
            "w3": _w((lambda *s: torch.randn(*s, dtype=torch.bfloat16) * 3.2)(D, F) * (D ** -0.5)),
            "w4": _w((lambda *s: torch.randn(*s, dtype=torch.bfloat16) * 1.6)(F, D) * (F ** -0.5)),
        }
    _B_in = _B_setup()

    return {
        "A_q": _A_in["q"],
        "A_k": _A_in["k"],
        "A_v": _A_in["v"],
        "A_shift_k": _A_in["shift_k"],
        "A_ssm_k": _A_in["ssm_k"],
        "A_ssm_D": _A_in["ssm_D"],
        "B_x": _B_in["x"],
        "B_w1": _B_in["w1"],
        "B_w2": _B_in["w2"],
        "B_w3": _B_in["w3"],
        "B_w4": _B_in["w4"],
        "gate_w": _w((lambda *s: torch.randn(*s, dtype=torch.bfloat16) * 0.05)(512) * 16.0),
    }

def reference(A_q, A_k, A_v, A_shift_k, A_ssm_k, A_ssm_D, B_x, B_w1, B_w2, B_w3, B_w4, gate_w):
    def _A_ref(q, k, v, shift_k, ssm_k, ssm_D):
        B, S, D = q.shape
        ks = shift_k.shape[-1]
        k_pad = _pad(k, ((0, 0), (ks - 1, 0), (0, 0)))
        k_shift = torch.zeros_like(k)
        for t in range(ks):
            k_shift = k_shift + k_pad[:, t:t + S, :] * shift_k[:, ks - 1 - t][None, None, :]
        kv = k_shift * v
        L = 2 * S
        kv_pad = _pad(kv, ((0, 0), (0, S), (0, 0)))
        kf_pad = _pad(ssm_k, ((0, 0), (0, S)))
        kv_f = (lambda x, axes=(-2,-1): torch.fft.rfft2(x.float(), dim=axes))(kv_pad[:, None, :, :], axes=(1, 2))
        kf_f = (lambda x, axes=(-2,-1): torch.fft.rfft2(x.float(), dim=axes))(kf_pad[:, None, :], axes=(1, 2))
        kf_f = (lambda x, *d: x.permute(*d))(kf_f, 1, 2, 0)
        y_f = kv_f * kf_f[None, :, :, :]
        y = (lambda x, s, axes=(-2,-1): torch.fft.irfft2(x, s=s, dim=axes).to(torch.bfloat16))(y_f, (1, L), axes=(1, 2))[:, 0, :S, :]
        y = y + kv * ssm_D[None, None, :]
        return q * y

    def _B_ref(x, w1, w2, w3, w4):
        B, S, D = x.shape
        h = _gelu(_layernorm(x, axis=-1) @ w1)
        c = D // 4
        g0 = _pad(h[:, :, 0*c:1*c], ((0, 0), (1, 0), (0, 0)))[:, :S, :]
        g1 = _pad(h[:, :, 1*c:2*c], ((0, 0), (0, 1), (0, 0)))[:, 1:, :]
        g2 = _pad(h[:, :, 2*c:3*c], ((0, 0), (2, 0), (0, 0)))[:, :S, :]
        g3 = _pad(h[:, :, 3*c:   ], ((0, 0), (0, 2), (0, 0)))[:, 2:, :]
        hs = torch.concatenate([g0, g1, g2, g3], axis=-1) @ w2
        x1 = x + hs
        h2 = _gelu(_layernorm(x1, axis=-1) @ w3) @ w4
        return x1 + h2

    x = A_q
    g = _sigmoid((x * gate_w).sum(-1, keepdims=True))
    a = _A_ref(x, A_k, A_v, A_shift_k, A_ssm_k, A_ssm_D)
    b = _B_ref(x, B_w1, B_w2, B_w3, B_w4)
    return g * a + (1 - g) * b
```

```python
import re

REG_RE = re.compile(r"^(-|\|)?([vas])(\d+)\|?$")
RNG_RE = re.compile(r"^(-|\|)?([vas])\[(\d+):(\d+)\]\|?$")
TRANS = ("v_exp_f32", "v_log_f32", "v_rcp_f32", "v_rsq_f32", "v_sqrt_f32", "v_sin_f32", "v_cos_f32")


def regs_of(tok):
    tok = tok.strip()
    m = REG_RE.match(tok)
    if m:
        return [(m.group(2), int(m.group(3)))]
    m = RNG_RE.match(tok)
    if m:
        return [(m.group(2), i) for i in range(int(m.group(3)), int(m.group(4)) + 1)]
    if tok == "vcc":
        return [("s", "vcc")]
    if tok == "exec":
        return [("s", "exec")]
    if tok == "m0":
        return [("s", "m0")]
    return []


def split_ops(s):
    out, depth, cur = [], 0, ""
    for ch in s:
        if ch == "[":
            depth += 1
        if ch == "]":
            depth -= 1
        if ch == "," and depth == 0:
            out.append(cur.strip())
            cur = ""
        else:
            cur += ch
    if cur.strip():
        out.append(cur.strip())
    return out


class Ins:
    __slots__ = ("text", "op", "kind", "dst", "src", "srcc", "count", "vm", "lg", "wide", "note")

    def __init__(self, text, count=True):
        self.text = text.strip()
        self.count = count
        self.vm = None
        self.lg = None
        self.srcc = set()
        self.wide = set()
        self.note = None
        t = self.text
        if t.endswith(":"):
            self.op, self.kind, self.dst, self.src = t, "label", set(), set()
            return
        if t.startswith(";") or t.startswith("."):
            self.op, self.kind, self.dst, self.src = t, "meta", set(), set()
            return
        parts = t.split(None, 1)
        op = parts[0]
        self.op = op
        rest = parts[1] if len(parts) > 1 else ""
        ops = split_ops(rest)
        mods = ""
        if ops:
            last = ops[-1].split(None, 1)
            ops[-1] = last[0]
            mods = last[1] if len(last) > 1 else ""
        R = [regs_of(o) for o in ops]
        flat = lambda xs: set(r for x in xs for r in x)
        dst, src = set(), set()
        if op.startswith("v_mfma"):
            self.kind = "mfma32" if "32x32" in op else "mfma16"
            dst, src = flat(R[:1]), flat(R[1:])
            self.srcc = flat(R[3:4])
        elif op.startswith("buffer_load") or op.startswith("global_load"):
            if re.search(r"\blds\b", mods):
                self.kind = "dma"
                src = flat(R) | {("s", "m0")}
            else:
                self.kind = "vld"
                dst, src = flat(R[:1]), flat(R[1:])
        elif op.startswith("buffer_store"):
            self.kind = "vst"
            src = flat(R)
            if "x4" in op or "x3" in op:
                self.wide = flat(R[:1])
        elif op.startswith("global_store"):
            self.kind = "vst"
            src = flat(R)
            if "x4" in op or "x3" in op:
                self.wide = flat(R[1:2])
        elif op.startswith("ds_read") or op.startswith("ds_bpermute"):
            self.kind = "dsr"
            dst, src = flat(R[:1]), flat(R[1:])
        elif op.startswith("ds_write"):
            self.kind = "dsw"
            src = flat(R)
        elif op.startswith("s_load") or op.startswith("s_memtime") or op.startswith("s_memrealtime"):
            self.kind = "smem"
            dst, src = flat(R[:1]), flat(R[1:])
        elif op == "s_waitcnt":
            self.kind = "rawwait"
        elif op == "s_barrier":
            self.kind = "barrier"
        elif op == "s_nop":
            self.kind = "nop"
        elif op.startswith("s_cbranch") or op == "s_branch":
            self.kind = "branch"
            if "vcc" in op:
                src = {("s", "vcc")}
        elif op in ("s_endpgm", "s_sleep", "s_setprio"):
            self.kind = "salu"
        elif op.startswith("s_cmp") or op.startswith("s_bitcmp"):
            self.kind = "salu"
            src = flat(R)
        elif op.startswith("s_"):
            self.kind = "salu"
            dst, src = flat(R[:1]), flat(R[1:])
            if "saveexec" in op:
                dst |= {("s", "exec")}
        elif op.startswith("v_"):
            base = op.replace("_e32", "").replace("_e64", "")
            self.kind = "trans" if base in TRANS else "valu"
            dst, src = flat(R[:1]), flat(R[1:])
            if "permlane" in op and "swap" in op:
                dst, src = flat(R[:2]), flat(R[:2])
            if op.startswith("v_fmac") or op.startswith("v_dot2c") or op.startswith("v_pk_fmac"):
                src |= dst
            if op.startswith("v_add_co") or op.startswith("v_addc_co"):
                dst, src = flat(R[:2]), flat(R[2:])
            if op.startswith("v_cndmask") and len(ops) == 3:
                src |= {("s", "vcc")}
        else:
            raise ValueError("unknown instruction: " + t)
        self.dst, self.src = dst, src


class Wait:
    kind = "wait"

    def __init__(self, vm=(), lg=(), vm0=False, lg0=False):
        self.vm, self.lg, self.vm0, self.lg0 = list(vm), list(lg), vm0, lg0


class Drained:
    kind = "drained"

    def __init__(self, vm=True, lg=True):
        self.vm, self.lg = vm, lg


class Seq:
    def __init__(self):
        self.items = []

    def __call__(self, text, count=True):
        last = None
        for line in text.strip().split("\n"):
            line = line.strip()
            if not line:
                continue
            last = Ins(line, count)
            self.items.append(last)
        return last

    def wait(self, vm=(), lg=(), vm0=False, lg0=False):
        if isinstance(vm, Ins):
            vm = [vm]
        if isinstance(lg, Ins):
            lg = [lg]
        self.items.append(Wait(vm, lg, vm0, lg0))

    def drained(self, vm=True, lg=True):
        self.items.append(Drained(vm, lg))

    def extend(self, other):
        self.items.extend(other.items)

    def groups(self):
        out, cur = [], []
        for it in self.items:
            cur.append(it)
            if it.kind in ("salu", "wait", "meta"):
                continue
            out.append(cur)
            cur = []
        if cur:
            out.append(cur)
        return out


def interleave(fg, bg, slots, start=0):
    out = Seq()
    groups = bg.groups()
    gi, n = 0, 0
    for it in fg.items:
        out.items.append(it)
        if it.kind in ("mfma32", "mfma16"):
            n += 1
            if n <= start:
                continue
            budget = slots(n) if callable(slots) else slots
            used = 0
            while gi < len(groups) and used < budget:
                g = groups[gi]
                out.items.extend(g)
                used += sum(2 if x.kind == "trans" else 1 for x in g if x.kind not in ("meta",))
                gi += 1
    for g in groups[gi:]:
        out.items.extend(g)
    return out


VM_KINDS = ("vld", "vst", "dma")
LG_KINDS = ("dsr", "dsw")


def resolve_waits(items):
    out = []
    vm_n, vm_done = 0, 0
    lg_n, lg_done = 0, 0
    smem_pending = False
    pend = {}

    def emit(need_vm, need_lg, lg0=False):
        nonlocal vm_done, lg_done, smem_pending
        parts = []
        if need_vm > vm_done:
            n = min(vm_n - need_vm, 63)
            parts.append(f"vmcnt({n})")
            vm_done = vm_n - n
        if lg0 or (need_lg > lg_done and smem_pending):
            if smem_pending or lg_done < lg_n:
                parts.append("lgkmcnt(0)")
            lg_done, smem_pending = lg_n, False
        elif need_lg > lg_done:
            n = min(lg_n - need_lg, 15)
            parts.append(f"lgkmcnt({n})")
            lg_done = lg_n - n
        if parts:
            out.append(Ins("s_waitcnt " + " ".join(parts)))

    for it in items:
        if it.kind == "wait":
            nv = vm_n if it.vm0 else max([t.vm for t in it.vm], default=0)
            nl = max([t.lg for t in it.lg], default=0)
            if it.vm0:
                parts = ["vmcnt(0)"]
                vm_done = vm_n
                if it.lg0:
                    parts.append("lgkmcnt(0)")
                    lg_done, smem_pending = lg_n, False
                out.append(Ins("s_waitcnt " + " ".join(parts)))
                if not it.lg0:
                    emit(0, nl)
            else:
                emit(nv, nl, it.lg0)
            continue
        if it.kind == "drained":
            if it.vm:
                vm_done = vm_n
            if it.lg:
                lg_done, smem_pending = lg_n, False
            continue
        if it.kind not in ("label", "meta"):
            nv, nl, l0 = 0, 0, False
            for r in it.src | it.dst:
                p = pend.get(r)
                if p is None:
                    continue
                if p.kind == "vld":
                    if p.count:
                        nv = max(nv, p.vm)
                elif p.kind == "dsr":
                    if it.kind == "dsr" and r in it.dst and r not in it.src:
                        continue
                    nl = max(nl, p.lg)
                elif p.kind == "smem" and smem_pending:
                    l0 = True
            emit(nv, nl, l0)
        out.append(it)
        if it.kind in VM_KINDS:
            if it.count:
                vm_n += 1
            it.vm = vm_n
        if it.kind in LG_KINDS:
            lg_n += 1
            it.lg = lg_n
        if it.kind == "smem":
            smem_pending = True
        if it.kind in ("vld", "dsr", "smem"):
            for r in it.dst:
                pend[r] = it
        else:
            for r in it.dst:
                pend.pop(r, None)
    return out


def states(it):
    if it.kind == "nop":
        return int(it.text.split()[1]) + 1
    if it.kind in ("label", "meta"):
        return 0
    return 1


def is_valu(it):
    return it.kind in ("valu", "trans")


def need_gap(p, c):
    g = 0
    pv = {r for r in p.dst if r[0] in "va"}
    ps = {r for r in p.dst if r[0] == "s"}
    c_mfma = c.kind in ("mfma32", "mfma16")
    if is_valu(p):
        if c_mfma and pv & c.src:
            g = max(g, 2)
        if ps & c.src and c.kind in VM_KINDS:
            g = max(g, 5)
        if ps & c.src and is_valu(c):
            g = max(g, 4 if ("readlane" in c.op or "writelane" in c.op) else 2)
        if pv & c.src and ("readfirstlane" in c.op or "readlane" in c.op):
            g = max(g, 1)
        if pv & c.src and ("permlane" in c.op or "dpp" in c.text or "row_" in c.text):
            g = max(g, 2)
        if p.kind == "trans" and pv & c.src and c.kind == "valu":
            g = max(g, 1)
        if p.op.startswith("v_dot") and pv & (c.src | c.dst):
            same_acc = c.op == p.op and not (pv & (c.src - _dot_acc(c)))
            if not same_acc:
                g = max(g, 3)
        if ("s", "exec") in p.dst and c_mfma:
            g = max(g, 4)
    if p.kind == "salu" and ("s", "m0") in p.dst and c.kind == "dma":
        g = max(g, 1)
    if p.kind in ("mfma32", "mfma16"):
        big = p.kind == "mfma32"
        if c_mfma:
            if pv & (c.src - c.srcc):
                g = max(g, 12 if big else 8)
            if pv & c.srcc and not (c.srcc == pv and c.kind == p.kind):
                g = max(g, 10 if big else 6)
            if pv & c.dst and not (pv & c.srcc):
                g = max(g, 12 if big else 8)
        else:
            if pv & (c.src | c.dst):
                g = max(g, 12 if big else 8)
            if is_valu(c) and p.srcc & c.dst:
                g = max(g, 7 if big else 3)
    if p.wide and p.wide & c.dst:
        g = max(g, 2)
    return g


def _dot_acc(c):
    ops = split_ops(c.text.split(None, 1)[1])
    if c.op.startswith("v_dot2c"):
        return set(regs_of(ops[0]))
    return set(regs_of(ops[3].split()[0])) if len(ops) > 3 else set()


def pad_hazards(items):
    out = []
    for it in items:
        if it.kind not in ("label", "meta", "nop"):
            need, dist = 0, 0
            for p in reversed(out):
                if dist >= 12:
                    break
                if p.kind not in ("label", "meta", "nop", "rawwait"):
                    need = max(need, need_gap(p, it) - dist)
                dist += states(p)
            if need > 0:
                out.append(Ins(f"s_nop {need - 1}"))
        out.append(it)
    return out


def finalize(seq):
    items = pad_hazards(resolve_waits(seq.items))
    lines = []
    for it in items:
        if it.kind == "label":
            lines.append(it.text)
        else:
            lines.append("    " + it.text)
    return "\n".join(lines) + "\n", items
```

```python
import math
import struct
import sys

from asmdsl import Seq, finalize, interleave

NAME = "gated_mix__ssm_conv_h3__mixer_s_mlp__prompt"

FLAG0, FLAG1 = 0x0, 0x8000
WS_H, WS_X1, WS_H2, WS_KVT, WS_YT = 0x100000, 0x300000, 0x500000, 0xC00000, 0xE00000
WS_STATS, WS_GATE, WS_STAMP = 0x1000000, 0x1080000, 0x1100000
WS_SIZE = 0x1200000

R0, R1, R2, R3, R4 = 0, 32768, 65536, 98304, 131072
KB, VB, A1R = R4, R4 + 9216, R4 + 17408
EX1 = R4
ST = R4 + 28672
ST_STAT, ST_CS, ST_CS3 = ST, ST + 1024, ST + 1536
KCOPY, KCH = 4288, 8576
CK, CU, UCH = R4, R4 + 17152, 4672
YB = R4
LDS_SIZE = 163840

sX, sK, sV, sSK, sW1, sW2, sW3, sW4, sOUT, sWS, sDBG = [f"s[{4 + 4 * i}:{7 + 4 * i}]" for i in range(11)]
pSH, pD, pG = "s[48:49]", "s[50:51]", "s[52:53]"
sw, sth, skh, snh, sc, sj, sm, ssc = [f"s{i}" for i in range(54, 62)]
srot, sOneLo, sOneHi, sOnes, sHi = "s62", "s63", "s64", "s65", "s66"
sT0, sT1, sT2, sT3, sCnt = "s67", "s68", "s69", "s70", "s71"
sU = [f"s{i}" for i in range(72, 79)]
sFlag, sPriv = "s79", "s80"

vL, vL16, vTrX, vTrY, vTr0, vTr1, vWs, vW3s = [f"v{i}" for i in range(1, 9)]
vXs = [f"v{i}" for i in range(9, 13)]
vXr = [f"v{i}" for i in range(13, 17)]
vPoll, vP2, vZero, vCsA = "v17", "v18", "v19", "v20"
vT = [f"v{i}" for i in range(21, 28)]
V_KK, V_SM = 28, 30
V_XRES, V_X1P = 32, 40
V_B, V_ACC, V_A, V_TMP = 48, 112, 176, 208
V_ONES = 244
V_SSM = 232
A_W2, A_W4 = 0, 128


def vr(b, n=1):
    return f"v{b}" if n == 1 else f"v[{b}:{b + n - 1}]"


def ar(b, n=1):
    return f"a{b}" if n == 1 else f"a[{b}:{b + n - 1}]"


def fbits(x):
    return "0x%08x" % struct.unpack("<I", struct.pack("<f", x))[0]


C0 = math.sqrt(2.0 / math.pi)
GK1 = -2.0 * C0 * math.log2(math.e)
GK2 = GK1 * 0.044715
SPIN_LIMIT = 400000


class Gen:
    def __init__(self, profile=False):
        self.profile = profile
        self.p = Seq()
        self.nlabel = 0
        self.stamps = []

    def label(self, base):
        self.nlabel += 1
        return f"L_{base}_{self.nlabel}"

    def stamp(self, p, name):
        if not self.profile:
            return
        i = len(self.stamps)
        self.stamps.append(name)
        p("s_memtime s[100:101]")
        p.wait(lg0=True)
        p(f"v_writelane_b32 v254, s100, {i + 2}")

    def dma(self, p, vaddr, srd, soff, imm=0, flags="", count=True):
        off = f" offset:{imm}" if imm else ""
        return p(f"buffer_load_dwordx4 {vaddr}, {srd}, {soff} offen{off} {flags} lds", count)

    def dma_rows(self, p, vsrc, srd, s_src, lds_base, n, row_step):
        toks = []
        for i in range(n):
            if i % 4 == 0:
                base, add = lds_base
                if base is None:
                    p(f"s_mov_b32 m0, {add + i * 1024}")
                else:
                    p(f"s_add_u32 m0, {base}, {add + i * 1024}")
            toks.append(self.dma(p, vsrc, srd, s_src, (i % 4) * 1024))
            if i + 1 < n:
                step = row_step - 1024 if (i + 1) % 4 else row_step + 3072
                p(f"s_add_u32 {s_src}, {s_src}, {step}")
        return toks

    def poll(self, p, vaddr, soff, need, srd=sWS):
        a, b = self.label("poll"), self.label("pdone")
        p(f"s_mov_b32 {sCnt}, {SPIN_LIMIT}")
        p(f"{a}:")
        p(f"buffer_load_dword {vP2}, {vaddr}, {srd}, {soff} offen sc1", count=False)
        p("s_waitcnt vmcnt(0)")
        p(f"v_cmp_gt_u32 vcc, {need}, {vP2}")
        p(f"s_cbranch_vccz {b}")
        p("s_sleep 2")
        p(f"s_sub_u32 {sCnt}, {sCnt}, 1")
        p(f"s_cmp_lg_u32 {sCnt}, 0")
        p(f"s_cbranch_scc1 {a}")
        p(f"{b}:")
        p.drained(vm=True, lg=False)

    def publish(self, p, toks, value, area):
        p.wait(vm=toks)
        p(f"v_mov_b32 {vP2}, {value}")
        p("s_mov_b64 exec, 1")
        off = f"s_add_u32 {sT3}, {sFlag}, {area}"
        p(off)
        t = p(f"buffer_store_dword {vP2}, {vZero}, {sWS}, {sT3} offen sc1")
        p("s_mov_b64 exec, -1")
        return t

    def half_sum(self, p, reg, tmp):
        p(f"v_mov_b32 {tmp}, {reg}")
        p(f"v_permlane32_swap_b32 {reg}, {tmp}")
        p(f"v_add_f32 {reg}, {reg}, {tmp}")

    def a_reads(self, p, dst, vaddr, off, areg=False):
        f = ar if areg else vr
        p(f"ds_read_b64_tr_b16 {f(dst, 2)}, {vaddr} offset:{off}")
        return p(f"ds_read_b64_tr_b16 {f(dst + 2, 2)}, {vaddr} offset:{off + 512}")

    def ln_consts(self, p, vsum, vsq):
        p(f"v_mul_f32 {vr(V_SM + 1)}, {fbits(-1.0 / 512)}, {vsum}")
        p(f"v_mul_f32 {vsq}, {fbits(1.0 / 512)}, {vsq}")
        p(f"v_fma_f32 {vsq}, -{vr(V_SM + 1)}, {vr(V_SM + 1)}, {vsq}")
        p(f"v_max_f32 {vsq}, 0, {vsq}")
        p(f"v_add_f32 {vsq}, {fbits(1e-5)}, {vsq}")
        p(f"v_rsq_f32 {vsum}, {vsq}")
        p(f"v_sqrt_f32 {vr(V_SM)}, {vsq}")
        p(f"v_mul_f32 {vr(V_KK)}, {fbits(GK1)}, {vsum}")
        p(f"v_mul_f32 {vsq}, {vsum}, {vsum}")
        p(f"v_mul_f32 {vsq}, {vsq}, {vsum}")
        p(f"v_mul_f32 {vr(V_KK + 1)}, {fbits(GK2)}, {vsq}")

    def gelu_packed(self, p, acc, cs, tmp, out, n=16):
        KK, SM = vr(V_KK, 2), vr(V_SM, 2)
        for b in range(0, n, 8):
            pr = [b + 2 * i for i in range(4)]
            t = lambda x: tmp + (x - b)
            for x in pr:
                p(f"v_pk_fma_f32 {vr(acc + x, 2)}, {vr(cs + x, 2)}, {SM}, {vr(acc + x, 2)} op_sel:[0,1,0] op_sel_hi:[1,1,1]")
            for x in pr:
                p(f"v_pk_mul_f32 {vr(t(x), 2)}, {vr(acc + x, 2)}, {vr(acc + x, 2)}")
            for x in pr:
                p(f"v_pk_fma_f32 {vr(t(x), 2)}, {vr(t(x), 2)}, {KK}, {KK} op_sel:[0,1,0] op_sel_hi:[1,1,0]")
            for x in pr:
                p(f"v_pk_mul_f32 {vr(t(x), 2)}, {vr(t(x), 2)}, {vr(acc + x, 2)}")
            for x in range(b, b + 8):
                p(f"v_exp_f32 {vr(t(x))}, {vr(t(x))}")
            for x in pr:
                p(f"v_pk_fma_f32 {vr(t(x), 2)}, {vr(t(x), 2)}, {SM}, {SM} op_sel:[0,0,0] op_sel_hi:[1,0,0]")
            for x in range(b, b + 8):
                p(f"v_rcp_f32 {vr(t(x))}, {vr(t(x))}")
            for x in pr:
                p(f"v_pk_mul_f32 {vr(t(x), 2)}, {vr(t(x), 2)}, {vr(acc + x, 2)}")
            for x in pr:
                p(f"v_cvt_pk_bf16_f32 {vr(out + x // 2)}, {vr(t(x))}, {vr(t(x) + 1)}")

    def prologue(self, p):
        p("s_cmp_ge_u32 s2, 256")
        p("s_cbranch_scc1 L_end")
        if self.profile:
            p("v_mov_b32 v254, 0")
            p("s_memrealtime s[100:101]")
            p.wait(lg0=True)
            p("v_writelane_b32 v254, s100, 0")
        self.stamp(p, "start")
        for i, off in enumerate((0, 8, 16, 32, 56, 64, 72, 80, 96, 112, 104)):
            p(f"s_load_dwordx2 s[{4 + 4 * i}:{5 + 4 * i}], s[0:1], {off}")
        p(f"s_load_dwordx2 {pSH}, s[0:1], 24")
        p(f"s_load_dwordx2 {pD}, s[0:1], 40")
        p(f"s_load_dwordx2 {pG}, s[0:1], 88")
        skip = self.label("nopf")
        p("s_cmp_ge_u32 s2, 16")
        p(f"s_cbranch_scc1 {skip}")
        p("s_getpc_b64 s[68:69]")
        p("s_lshr_b32 s70, s2, 3")
        p("s_lshl_b32 s70, s70, 15")
        p("v_lshlrev_b32 v1, 7, v0")
        p("v_add_u32 v1, s70, v1")
        p("v_cmp_gt_u32 vcc, CODE_BYTES, v1")
        p("s_and_saveexec_b64 s[72:73], vcc")
        p(f"s_cbranch_execz {skip}_r")
        p("global_load_dword v255, v1, s[68:69]", count=False)
        p(f"{skip}_r:")
        p("s_mov_b64 exec, s[72:73]")
        p(f"{skip}:")
        p(f"v_lshrrev_b32 {vT[0]}, 6, v0")
        p(f"v_and_b32 {vL}, 63, v0")
        p(f"v_readfirstlane_b32 {sw}, {vT[0]}")
        p(f"v_lshlrev_b32 {vL16}, 4, {vL}")
        p(f"v_mov_b32 {vZero}, 0")
        p(f"""
        s_and_b32 {sT0}, s2, 7
        s_lshr_b32 {sT1}, s2, 6
        s_lshl_b32 {sc}, {sT0}, 2
        s_add_u32 {sc}, {sc}, {sT1}
        s_lshr_b32 {sj}, s2, 3
        s_and_b32 {sj}, {sj}, 7
        s_add_u32 {srot}, {sj}, {sT1}
        s_and_b32 {srot}, {srot}, 3
        s_lshr_b32 {ssc}, {sc}, 1
        s_and_b32 {sm}, {sc}, 1
        s_lshl_b32 {sm}, {sm}, 3
        s_add_u32 {sm}, {sm}, {sj}
        s_and_b32 {sth}, {sw}, 1
        s_lshr_b32 {skh}, {sw}, 1
        s_xor_b32 {snh}, {sth}, {skh}
        s_mov_b32 {sOneLo}, 0x00003f80
        s_mov_b32 {sOneHi}, 0x3f800000
        s_mov_b32 {sOnes}, 0x3f803f80
        s_mov_b32 {sHi}, 0xffff0000
        s_lshl_b32 {sFlag}, {sc}, 3
        s_add_u32 {sFlag}, {sFlag}, {sj}
        s_lshl_b32 {sFlag}, {sFlag}, 7
        s_lshl_b32 {sT0}, {sw}, 2
        s_add_u32 {sFlag}, {sFlag}, {sT0}
        s_lshl_b32 {sPriv}, {sw}, 14
        """)
        row, t1, t2 = vT[0], vT[1], vT[2]
        p(f"""
        v_lshrrev_b32 {row}, 3, {vL}
        v_lshrrev_b32 {t1}, 2, {vL}
        v_and_b32 {t1}, 4, {t1}
        v_and_b32 {t2}, 7, {vL}
        v_xor_b32 {t1}, {t1}, {t2}
        v_lshlrev_b32 {t1}, 4, {t1}
        v_lshl_add_u32 {vWs}, {row}, 10, {t1}
        v_mul_u32_u24 {vW3s}, 3584, {row}
        v_add_u32 {vW3s}, {vW3s}, {t1}
        """)
        p(f"""
        s_lshl_b32 {sT0}, {sc}, 16
        s_lshl_b32 {sT1}, {sj}, 7
        s_add_u32 {sT0}, {sT0}, {sT1}
        v_lshlrev_b32 {vT[3]}, 4, {t2}
        v_lshl_add_u32 {vT[3]}, {row}, 10, {vT[3]}
        v_add_u32 {vT[3]}, {sT0}, {vT[3]}
        v_subrev_u32 {vT[4]}, 8192, {vT[3]}
        """)
        p(f"""
        s_lshr_b32 {sT0}, {sj}, 2
        s_add_u32 {sT0}, {sT0}, 1
        s_sub_u32 {sT1}, 0, {sT0}
        s_bitcmp1_b32 {sj}, 1
        s_cselect_b32 {sT0}, {sT0}, {sT1}
        s_lshl_b32 {sT1}, {sc}, 6
        s_add_u32 {sT0}, {sT0}, {sT1}
        s_lshl_b32 {sT1}, {sth}, 5
        s_add_u32 {sT0}, {sT0}, {sT1}
        s_lshl_b32 {sT0}, {sT0}, 10
        s_lshl_b32 {sT1}, {skh}, 9
        s_add_u32 {sT0}, {sT0}, {sT1}
        v_lshrrev_b32 {t1}, 1, {row}
        v_xor_b32 {t1}, {t1}, {t2}
        v_lshlrev_b32 {t1}, 4, {t1}
        v_lshl_add_u32 {t1}, {row}, 10, {t1}
        v_add_u32 {vXs[0]}, {sT0}, {t1}
        v_xor_b32 {t1}, 64, {t1}
        v_add_u32 {t1}, {sT0}, {t1}
        v_add_u32 {vXs[1]}, 8192, {t1}
        v_add_u32 {vXs[2]}, 16384, {vXs[0]}
        v_add_u32 {vXs[3]}, 24576, {t1}
        """)
        sizes = (1 << 21, 1 << 21, 1 << 21, 1 << 21, 1 << 19, 1 << 19, 512 * 3584, 1792 * 1024, 1 << 21, WS_SIZE, 256)
        p.wait(lg0=True)
        for i, n in enumerate(sizes):
            p(f"s_mov_b32 s{6 + 4 * i}, {n}")
            p(f"s_mov_b32 s{7 + 4 * i}, 0x20000")
        p(f"s_cmp_ge_u32 {sm}, 14")
        p(f"s_cselect_b32 s30, 0, s30")

    def initial_loads(self, p):
        t = {}
        skip = self.label("noclr")
        p(f"s_or_b32 {sT0}, s2, {sw}")
        p(f"s_cmp_lg_u32 {sT0}, 0")
        p(f"s_cbranch_scc1 {skip}")
        for i in range(4):
            p(f"v_mov_b32 {vr(V_TMP + i)}, 0")
        p(f"v_lshlrev_b32 {vT[5]}, 7, {vL}")
        for i in range(8):
            p(f"s_mov_b32 {sT0}, {i * 8192}")
            p(f"buffer_store_dwordx4 {vr(V_TMP, 4)}, {vT[5]}, {sWS}, {sT0} offen sc1", count=False)
        p(f"{skip}:")
        skip = self.label("nohalo")
        p(f"s_cmp_lg_u32 {sw}, 0")
        p(f"s_cbranch_scc1 {skip}")
        p(f"s_mov_b32 m0, {KB}")
        self.dma(p, vT[4], sK, "0", count=False)
        p(f"{skip}:")
        p(f"""
        s_lshl_b32 {sT0}, {sj}, 6
        s_lshl_b32 {sT1}, {sw}, 4
        s_add_u32 {sT0}, {sT0}, {sT1}
        v_and_b32 {vT[5]}, 15, {vL}
        v_add_u32 {vT[5]}, {sT0}, {vT[5]}
        v_lshlrev_b32 {vT[5]}, 3, {vT[5]}
        """)
        mark = p(f"global_load_dwordx2 {vr(V_A, 2)}, {vT[5]}, {pSH}")
        t["first"] = mark
        p(f"s_lshl_b32 {sT0}, {sw}, 13")
        p(f"s_lshl_b32 {sT1}, {sw}, 10")
        p(f"s_add_u32 {sT2}, {sT0}, 32768")
        kv = []
        p(f"s_add_u32 m0, {sT1}, {KB + 1024}")
        kv.append(self.dma(p, vT[3], sK, sT0))
        p(f"s_add_u32 m0, {sT1}, {KB + 1024 + 4096}")
        kv.append(self.dma(p, vT[3], sK, sT2))
        p(f"s_add_u32 m0, {sT1}, {VB}")
        kv.append(self.dma(p, vT[3], sV, sT0))
        p(f"s_add_u32 m0, {sT1}, {VB + 4096}")
        kv.append(self.dma(p, vT[3], sV, sT2))
        t["kv"] = kv
        xs = []
        for pos in range(4):
            p(f"s_add_u32 {sT0}, {srot}, {pos}")
            p(f"s_and_b32 {sT0}, {sT0}, 3")
            p(f"s_lshl_b32 {sT0}, {sT0}, 7")
            for a in range(4):
                p(f"s_add_u32 m0, {sPriv}, {R2 + (pos * 4 + a) * 1024}")
                xs.append(self.dma(p, vXs[a], sX, sT0))
        t["x"] = xs
        t["w1"] = self.w12_dma(p, sW1, R0)
        return t

    def w12_dma(self, p, srd, lds):
        toks = []
        p(f"""
        s_lshl_b32 {sT2}, {skh}, 15
        s_lshl_b32 {sT1}, {sth}, 12
        s_add_u32 {sT2}, {sT2}, {sT1}
        s_lshl_b32 {sT3}, {skh}, 18
        s_lshl_b32 {sT1}, {sth}, 15
        s_add_u32 {sT3}, {sT3}, {sT1}
        s_lshl_b32 {sT1}, {sj}, 7
        s_add_u32 {sT3}, {sT3}, {sT1}
        """)
        for pos in range(4):
            p(f"s_add_u32 {sT0}, {srot}, {pos}")
            p(f"s_and_b32 {sT0}, {sT0}, 3")
            p(f"s_lshl_b32 {sT0}, {sT0}, 16")
            p(f"s_add_u32 {sT0}, {sT0}, {sT3}")
            toks.append(self.dma_rows(p, vWs, srd, sT0, (sT2, lds + pos * 8192), 4, 8192))
        return toks

    def small_loads(self, p):
        p(f"""
        s_lshl_b32 {sT0}, {sc}, 6
        s_lshl_b32 {sT1}, {sth}, 5
        s_add_u32 {sT0}, {sT0}, {sT1}
        s_lshl_b32 {sT0}, {sT0}, 10
        s_lshl_b32 {sT1}, {sj}, 7
        s_lshl_b32 {sT2}, {snh}, 6
        s_add_u32 {sT1}, {sT1}, {sT2}
        v_and_b32 {vT[0]}, 31, {vL}
        v_lshrrev_b32 {vT[1]}, 5, {vL}
        v_lshlrev_b32 {vT[1]}, 4, {vT[1]}
        v_add_u32 {vT[1]}, {sT1}, {vT[1]}
        v_lshl_add_u32 {vXs[0]}, {vT[0]}, 10, {vT[1]}
        v_add_u32 {vXs[0]}, {sT0}, {vXs[0]}
        """)
        p(f"buffer_load_dwordx4 {vr(V_XRES, 4)}, {vXs[0]}, {sX}, 0 offen")
        p(f"buffer_load_dwordx4 {vr(V_XRES + 4, 4)}, {vXs[0]}, {sX}, 0 offen offset:32")
        p(f"global_load_dwordx4 {vr(V_X1P, 4)}, {vT[1]}, {pG}")
        p(f"global_load_dwordx4 {vr(V_X1P + 4, 4)}, {vT[1]}, {pG} offset:32")
        p(f"""
        s_lshl_b32 {sT0}, {sj}, 6
        s_lshl_b32 {sT1}, {sc}, 1
        s_add_u32 {sT0}, {sT0}, {sT1}
        s_add_u32 {sT0}, {sT0}, {sth}
        s_lshl_b32 {sT1}, {sT0}, 1
        v_mov_b32 {vT[2]}, {sT1}
        s_lshl_b32 {sT0}, {sT0}, 12
        s_lshl_b32 {sT1}, {skh}, 11
        s_add_u32 {sT0}, {sT0}, {sT1}
        """)
        p(f"buffer_load_dwordx4 {vr(V_SSM, 4)}, {vL16}, {sSK}, {sT0} offen")
        p(f"buffer_load_dword {vr(V_SSM + 4)}, {vL16}, {sSK}, {sT0} offen offset:16")
        p(f"buffer_load_dwordx4 {vr(V_SSM + 6, 4)}, {vL16}, {sSK}, {sT0} offen offset:1024")
        p(f"buffer_load_dword {vr(V_SSM + 10)}, {vL16}, {sSK}, {sT0} offen offset:1040")
        p(f"global_load_ushort {vr(V_SSM + 5)}, {vT[2]}, {pD}")

    def lds_addrs(self, p):
        a, b, c = vT[0], vT[1], vT[2]
        p(f"""
        v_lshrrev_b32 {a}, 5, {vL}
        v_lshlrev_b32 {vTr0}, 10, {a}
        v_bfe_u32 {a}, {vL}, 2, 2
        v_lshl_add_u32 {vTr0}, {a}, 7, {vTr0}
        v_lshrrev_b32 {a}, 1, {a}
        v_lshl_add_u32 {vTr0}, {a}, 6, {vTr0}
        v_bfe_u32 {a}, {vL}, 4, 1
        v_lshl_add_u32 {vTr0}, {a}, 5, {vTr0}
        v_and_b32 {a}, 1, {vL}
        v_lshl_add_u32 {vTr0}, {a}, 4, {vTr0}
        v_bfe_u32 {a}, {vL}, 1, 1
        v_lshl_add_u32 {vTr0}, {a}, 3, {vTr0}
        v_xor_b32 {vTr1}, 64, {vTr0}
        s_lshl_b32 {sT0}, {snh}, 6
        s_lshl_b32 {sT1}, {skh}, 15
        v_xor_b32 {vTrX}, {sT0}, {vTr0}
        v_add_u32 {vTrX}, {sT1}, {vTrX}
        v_xor_b32 {vTrY}, 64, {vTrX}
        v_bfe_u32 {a}, {vL}, 3, 2
        v_lshlrev_b32 {a}, 10, {a}
        v_and_b32 {b}, 7, {vL}
        v_lshl_add_u32 {a}, {b}, 7, {a}
        s_add_u32 {sT0}, {sPriv}, {R2}
        v_add_u32 {a}, {sT0}, {a}
        v_bfe_u32 {b}, {vL}, 1, 3
        v_lshrrev_b32 {c}, 5, {vL}
        v_xor_b32 {b}, {b}, {c}
        """)
        for s in range(4):
            p(f"v_xor_b32 {c}, {2 * s}, {b}")
            p(f"v_lshl_add_u32 {vXr[s]}, {c}, 4, {a}")
        p(f"""
        v_and_b32 {a}, 3, {vL}
        v_bfe_u32 {b}, {vL}, 2, 1
        v_bfe_u32 {c}, {vL}, 4, 1
        v_xor_b32 {b}, {b}, {c}
        v_or_b32 {a}, {a}, {b}
        v_cmp_eq_u32 vcc, 0, {a}
        v_mov_b32 {b}, {sOnes}
        v_cndmask_b32 {vr(V_ONES)}, 0, {b}, vcc
        v_cndmask_b32 {vr(V_ONES + 1)}, 0, {b}, vcc
        v_cndmask_b32 {vr(V_ONES + 2)}, 0, {b}, vcc
        v_cndmask_b32 {vr(V_ONES + 3)}, 0, {b}, vcc
        v_lshrrev_b32 {a}, 5, {vL}
        v_lshlrev_b32 {vCsA}, 4, {a}
        """)

    def gate_open(self, p, t):
        skip = self.label("nogate")
        p(f"s_or_b32 {sT0}, s2, {sw}")
        p(f"s_cmp_lg_u32 {sT0}, 0")
        p(f"s_cbranch_scc1 {skip}")
        p(f"v_mov_b32 {vP2}, 1")
        p("s_mov_b64 exec, 1")
        p(f"buffer_store_dword {vP2}, {vZero}, {sDBG}, 0 offen sc1", count=False)
        p("s_mov_b64 exec, -1")
        p(f"{skip}:")

    def a1(self, p, t):
        kk, vv, o = V_B, V_B + 12, V_B + 24
        sk = V_A
        a, b = vT[0], vT[1]
        p(f"""
        v_lshrrev_b32 {a}, 4, {vL}
        v_lshlrev_b32 {a}, 11, {a}
        v_bfe_u32 {b}, {vL}, 2, 2
        v_lshl_add_u32 {a}, {b}, 7, {a}
        v_and_b32 {b}, 3, {vL}
        v_lshl_add_u32 {a}, {b}, 3, {a}
        s_lshl_b32 {sT0}, {sw}, 5
        s_add_u32 {sT0}, {sT0}, {R4}
        v_add_u32 {a}, {sT0}, {a}
        """)
        c10, c32, c0, c21, c3 = V_TMP, V_TMP + 1, V_TMP + 2, V_TMP + 3, V_TMP + 4
        p(f"v_alignbit_b32 {vr(c10)}, {vr(sk)}, {vr(sk)}, 16")
        p(f"v_alignbit_b32 {vr(c32)}, {vr(sk + 1)}, {vr(sk + 1)}, 16")
        p(f"v_and_b32 {vr(c0)}, 0xffff, {vr(sk)}")
        p(f"v_and_b32 {vr(c3)}, {sHi}, {vr(sk + 1)}")
        p(f"v_and_b32 {vr(c21)}, 0xffff, {vr(sk + 1)}")
        p(f"v_and_or_b32 {vr(c21)}, {vr(sk)}, {sHi}, {vr(c21)}")
        p.wait(vm=t["kv"])
        self.gate_open(p, t)
        p("s_barrier")
        for rd in range(5):
            p(f"ds_read_b64_tr_b16 {vr(kk + 2 * rd, 2)}, {a} offset:{(KB - R4) + (4 + 4 * rd) * 128}")
        for rd in range(4):
            p(f"ds_read_b64_tr_b16 {vr(vv + 2 * rd, 2)}, {a} offset:{(VB - R4) + 4 * rd * 128}")
        f = V_ACC
        for i in range(8):
            p(f"v_dot2_f32_bf16 {vr(f + 2 * i)}, {vr(kk + i)}, {vr(c3)}, 0")
            p(f"v_dot2_f32_bf16 {vr(f + 2 * i + 1)}, {vr(kk + i + 1)}, {vr(c32)}, 0")
        for i in range(8):
            p(f"v_dot2_f32_bf16 {vr(f + 2 * i)}, {vr(kk + i + 1)}, {vr(c21)}, {vr(f + 2 * i)}")
            p(f"v_dot2_f32_bf16 {vr(f + 2 * i + 1)}, {vr(kk + i + 2)}, {vr(c10)}, {vr(f + 2 * i + 1)}")
        for i in range(8):
            p(f"v_dot2_f32_bf16 {vr(f + 2 * i)}, {vr(kk + i + 2)}, {vr(c0)}, {vr(f + 2 * i)}")
        for i in range(8):
            p(f"v_lshlrev_b32 {vr(f + 16 + 2 * i)}, 16, {vr(vv + i)}")
            p(f"v_and_b32 {vr(f + 17 + 2 * i)}, {sHi}, {vr(vv + i)}")
        for i in range(8):
            p(f"v_pk_mul_f32 {vr(f + 2 * i, 2)}, {vr(f + 2 * i, 2)}, {vr(f + 16 + 2 * i, 2)}")
        for i in range(8):
            p(f"v_cvt_pk_bf16_f32 {vr(o + i)}, {vr(f + 15 - 2 * i)}, {vr(f + 14 - 2 * i)}")
        p(f"""
        v_and_b32 {a}, 15, {vL}
        v_mul_u32_u24 {a}, 144, {a}
        v_lshrrev_b32 {b}, 4, {vL}
        v_sub_u32 {b}, 3, {b}
        v_lshl_add_u32 {a}, {b}, 5, {a}
        s_mul_i32 {sT0}, {sw}, 2304
        s_add_u32 {sT0}, {sT0}, {A1R}
        v_add_u32 {a}, {sT0}, {a}
        """)
        p(f"ds_write_b128 {a}, {vr(o, 4)}")
        w2 = p(f"ds_write_b128 {a}, {vr(o + 4, 4)} offset:16")
        p(f"""
        v_lshrrev_b32 {a}, 3, {vL}
        v_and_b32 {b}, 7, {vL}
        v_lshlrev_b32 {b}, 4, {b}
        v_lshl_add_u32 {vT[2]}, {a}, 12, {b}
        v_mul_u32_u24 {a}, 144, {a}
        v_add3_u32 {a}, {a}, {b}, {sT0}
        s_lshl_b32 {sT0}, {sj}, 18
        s_lshl_b32 {sT1}, {sw}, 16
        s_add_u32 {sT0}, {sT0}, {sT1}
        s_sub_u32 {sT1}, 31, {sc}
        s_lshl_b32 {sT1}, {sT1}, 7
        s_add_u32 {sT0}, {sT0}, {sT1}
        s_add_u32 {sT0}, {sT0}, {WS_KVT}
        s_add_u32 {sT1}, {sT0}, 32768
        """)
        p.wait(lg=w2)
        p(f"ds_read_b128 {vr(o + 8, 4)}, {a}")
        p(f"ds_read_b128 {vr(o + 12, 4)}, {a} offset:{8 * 144}")
        s0 = p(f"buffer_store_dwordx4 {vr(o + 8, 4)}, {vT[2]}, {sWS}, {sT0} offen sc1")
        s1 = p(f"buffer_store_dwordx4 {vr(o + 12, 4)}, {vT[2]}, {sWS}, {sT1} offen sc1")
        t["kvt"] = [s0, s1]

    def p1(self, p, t):
        S, Q, S2, Q2 = vr(V_TMP), vr(V_TMP + 1), vr(V_TMP + 2), vr(V_TMP + 3)
        for pos in range(4):
            p.wait(vm=t["x"][4 * pos + 3])
            for s in range(4):
                p(f"ds_read_b128 {vr(V_B + 16 * pos + 4 * s, 4)}, {vXr[s]} offset:{pos * 4096}")
        first = True
        for d in range(0, 64, 2):
            c = ["0"] * 4 if first else [S, Q, S2, Q2]
            p(f"v_dot2_f32_bf16 {S}, {vr(V_B + d)}, {sOnes}, {c[0]}")
            p(f"v_dot2_f32_bf16 {Q}, {vr(V_B + d)}, {vr(V_B + d)}, {c[1]}")
            p(f"v_dot2_f32_bf16 {S2}, {vr(V_B + d + 1)}, {sOnes}, {c[2]}")
            p(f"v_dot2_f32_bf16 {Q2}, {vr(V_B + d + 1)}, {vr(V_B + d + 1)}, {c[3]}")
            first = False
        p(f"v_add_f32 {S}, {S}, {S2}")
        p(f"v_add_f32 {Q}, {Q}, {Q2}")
        self.half_sum(p, S, S2)
        self.half_sum(p, Q, Q2)
        p(f"""
        v_and_b32 {vT[0]}, 31, {vL}
        s_lshl_b32 {sT0}, {sw}, 8
        s_add_u32 {sT0}, {sT0}, {ST_STAT}
        v_lshl_add_u32 {vT[1]}, {vT[0]}, 3, {sT0}
        """)
        p(f"ds_write_b64 {vT[1]}, {vr(V_TMP, 2)}")
        self.stamp(p, "x stats")
        accX, accY, cs = V_ACC, V_ACC + 16, V_ACC + 32
        for pos in range(4):
            p.wait(vm=t["w1"][pos][-1], lg0=(pos == 0))
            p("s_barrier")
            if pos == 0:
                t["w2"] = self.w12_dma(p, sW2, R2)
            for s in range(4):
                A = V_A + 8 * s
                self.a_reads(p, A, vTrX, pos * 8192 + s * 2048)
                self.a_reads(p, A + 4, vTrY, pos * 8192 + s * 2048)
            for s in range(4):
                A, B = V_A + 8 * s, V_B + 16 * pos + 4 * s
                z = pos == 0 and s == 0
                p(f"v_mfma_f32_32x32x16_bf16 {vr(accY, 16)}, {vr(A + 4, 4)}, {vr(B, 4)}, {'0' if z else vr(accY, 16)}")
                p(f"v_mfma_f32_16x16x32_bf16 {vr(cs, 4)}, {vr(V_ONES, 4)}, {vr(A, 4)}, {'0' if z else vr(cs, 4)}")
                p(f"v_mfma_f32_32x32x16_bf16 {vr(accX, 16)}, {vr(A, 4)}, {vr(B, 4)}, {'0' if z else vr(accX, 16)}")
        self.stamp(p, "p1 mfma")
        p(f"""
        s_lshl_b32 {sT0}, {sw}, 12
        s_add_u32 {sT0}, {sT0}, {EX1}
        v_add_u32 {vT[2]}, {sT0}, {vL16}
        s_lshl_b32 {sT0}, {snh}, 8
        s_lshl_b32 {sT1}, {skh}, 7
        s_add_u32 {sT1}, {sT1}, {sT0}
        s_add_u32 {sT1}, {sT1}, {ST_CS}
        v_lshl_add_u32 {vT[3]}, {vT[0]}, 2, {sT1}
        s_add_u32 {sT0}, {sT0}, {ST_CS}
        v_add_u32 {vT[4]}, {sT0}, {vCsA}
        """)
        for g in range(4):
            p(f"ds_write_b128 {vT[2]}, {vr(accY + 4 * g, 4)} offset:{g * 1024}")
        p(f"ds_write_b32 {vT[3]}, {vr(cs)}")
        p(f"v_xor_b32 {vT[2]}, 8192, {vT[2]}")
        p(f"v_xor_b32 {vT[1]}, 512, {vT[1]}")
        p.wait(lg0=True)
        p("s_barrier")
        p(f"ds_read_b64 {vr(V_TMP + 2, 2)}, {vT[1]}")
        c0, c1 = V_A, V_A + 16
        for g in range(4):
            p(f"ds_read_b128 {vr(c0 + 4 * g, 4)}, {vT[4]} offset:{g * 32}")
            p(f"ds_read_b128 {vr(c1 + 4 * g, 4)}, {vT[4]} offset:{128 + g * 32}")
        for g in range(4):
            p(f"ds_read_b128 {vr(accY + 4 * g, 4)}, {vT[2]} offset:{g * 1024}")
        t["w3a"] = self.w3_dma(p, 0, R0)
        p(f"v_add_f32 {S}, {S}, {S2}")
        p(f"v_add_f32 {Q}, {Q}, {Q2}")
        self.ln_consts(p, S, Q)
        for x in range(0, 16, 2):
            p(f"v_pk_add_f32 {vr(c0 + x, 2)}, {vr(c0 + x, 2)}, {vr(c1 + x, 2)}")
        for x in range(0, 16, 2):
            p(f"v_pk_add_f32 {vr(accX + x, 2)}, {vr(accX + x, 2)}, {vr(accY + x, 2)}")
        out = V_TMP + 8
        self.gelu_packed(p, accX, c0, V_TMP + 16, out)
        p(f"""
        s_lshl_b32 {sT0}, {sc}, 1
        s_add_u32 {sT0}, {sT0}, {sth}
        s_lshl_b32 {sT0}, {sT0}, 15
        s_lshl_b32 {sT1}, {sj}, 12
        s_add_u32 {sT0}, {sT0}, {sT1}
        s_lshl_b32 {sT1}, {snh}, 11
        s_add_u32 {sT0}, {sT0}, {sT1}
        s_add_u32 {sT0}, {sT0}, {WS_H}
        """)
        s0 = p(f"buffer_store_dwordx4 {vr(out, 4)}, {vL16}, {sWS}, {sT0} offen sc1")
        s1 = p(f"buffer_store_dwordx4 {vr(out + 4, 4)}, {vL16}, {sWS}, {sT0} offen offset:1024 sc1")
        t["h"] = [s0, s1]
        self.stamp(p, "h stored")

    def w3_dma(self, p, line, lds):
        p(f"""
        s_mul_i32 {sT0}, {sw}, {128 * 3584}
        s_lshl_b32 {sT1}, {sm}, 8
        s_add_u32 {sT0}, {sT0}, {sT1}
        s_add_u32 {sT0}, {sT0}, {line * 128}
        """)
        return self.dma_rows(p, vW3s, sW3, sT0, (sPriv, lds), 16, 8 * 3584)

    def w4_offsets(self, p):
        p(f"s_mul_i32 {sT0}, {sw}, 7")
        p(f"s_lshl_b32 {sT2}, {sj}, 7")
        for u in range(7):
            p(f"""
            s_add_u32 {sT1}, {sT0}, {u}
            s_lshr_b32 {sU[u]}, {sT1}, 1
            s_lshl_b32 {sU[u]}, {sU[u]}, 17
            s_and_b32 {sT1}, {sT1}, 1
            s_lshl_b32 {sT1}, {sT1}, 14
            s_add_u32 {sU[u]}, {sU[u]}, {sT1}
            s_add_u32 {sU[u]}, {sU[u]}, {sT2}
            """)

    def w4_dma(self, p, piece, lds):
        toks = []
        for u in range(7):
            p(f"s_add_u32 m0, {sPriv}, {lds + u * 2048}")
            p(f"s_add_u32 {sT0}, {sU[u]}, {piece * 32768}")
            self.dma(p, vWs, sW4, sT0)
            p(f"s_add_u32 {sT0}, {sT0}, 7168")
            toks.append(self.dma(p, vWs, sW4, sT0, 1024))
        return toks

    def gate_partial(self, p):
        g, g2 = vr(V_TMP), vr(V_TMP + 1)
        for i in range(0, 8, 2):
            p(f"v_dot2_f32_bf16 {g}, {vr(V_XRES + i)}, {vr(V_X1P + i)}, {'0' if i == 0 else g}")
            p(f"v_dot2_f32_bf16 {g2}, {vr(V_XRES + i + 1)}, {vr(V_X1P + i + 1)}, {'0' if i == 0 else g2}")
        p(f"v_add_f32 {g}, {g}, {g2}")
        self.half_sum(p, g, g2)
        p(f"""
        s_lshl_b32 {sT0}, {sc}, 1
        s_add_u32 {sT0}, {sT0}, {sth}
        s_lshl_b32 {sT0}, {sT0}, 11
        s_lshr_b32 {sT1}, {sj}, 1
        s_lshl_b32 {sT1}, {sT1}, 9
        s_add_u32 {sT0}, {sT0}, {sT1}
        s_and_b32 {sT1}, {sj}, 1
        s_lshl_b32 {sT1}, {sT1}, 1
        s_add_u32 {sT1}, {sT1}, {snh}
        s_lshl_b32 {sT1}, {sT1}, 2
        s_add_u32 {sT0}, {sT0}, {sT1}
        s_add_u32 {sT0}, {sT0}, {WS_GATE}
        s_mov_b64 exec, 0xffffffff
        """)
        s = p(f"buffer_store_dword {g}, {vL16}, {sWS}, {sT0} offen sc1")
        p("s_mov_b64 exec, -1")
        return s

    def window1(self, p, t):
        gs = self.gate_partial(p)
        self.poll(p, vZero, "0", 1, srd=sDBG)
        self.publish(p, t["h"] + [gs], 1, FLAG0)
        self.publish(p, t["kvt"], 1, FLAG1)
        self.stamp(p, "h flag")
        p(f"v_add_u32 {vTrX}, {R2}, {vTrX}")
        p(f"v_add_u32 {vTrY}, {R2}, {vTrY}")
        p("s_barrier")
        for ks in range(16):
            self.a_reads(p, A_W2 + 8 * ks, vTrX, ks * 2048, areg=True)
            self.a_reads(p, A_W2 + 8 * ks + 4, vTrY, ks * 2048, areg=True)
        p.wait(lg0=True)
        p("s_barrier")
        self.w4_offsets(p)
        w4 = self.w4_dma(p, 0, R2)
        self.stage_conv_k(p)
        p(f"""
        s_lshl_b32 {sT0}, {skh}, 15
        s_sub_u32 {sT0}, {sPriv}, {sT0}
        v_add_u32 {vTrX}, {sT0}, {vTrX}
        v_add_u32 {vTrY}, {sT0}, {vTrY}
        """)
        self.w4_bounce(p, w4, 0)
        self.stamp(p, "w4p0")

    def w4_bounce(self, p, toks, piece):
        for u in range(7):
            p.wait(vm=toks[u])
            self.a_reads(p, A_W4 + 56 * piece + 8 * u, vTrX, u * 2048, areg=True)
            self.a_reads(p, A_W4 + 56 * piece + 8 * u + 4, vTrY, u * 2048, areg=True)

    def stage_conv_k(self, p):
        a, b = vT[0], vT[1]
        d = V_SSM
        o = V_TMP
        p(f"""
        s_mul_i32 {sT0}, {sth}, {KCH}
        s_add_u32 {sT0}, {sT0}, {CK}
        s_lshl_b32 {sT1}, {skh}, 11
        s_add_u32 {sT1}, {sT1}, {sT0}
        v_add_u32 {a}, {sT1}, {vL16}
        v_cmp_eq_u32 vcc, 63, {vL}
        s_cmp_eq_u32 {skh}, 1
        s_cselect_b64 vcc, vcc, 0
        v_cndmask_b32 {vr(d + 10)}, {vr(d + 10)}, {vZero}, vcc
        """)
        for i in range(4):
            p(f"v_alignbit_b32 {vr(o + i)}, {vr(d + i + 1)}, {vr(d + i)}, 16")
            p(f"v_alignbit_b32 {vr(o + 4 + i)}, {vr(d + 7 + i)}, {vr(d + 6 + i)}, 16")
        p(f"ds_write_b128 {a}, {vr(d, 4)} offset:64")
        p(f"ds_write_b128 {a}, {vr(d + 6, 4)} offset:{64 + 1024}")
        p(f"ds_write_b128 {a}, {vr(o, 4)} offset:{KCOPY + 64}")
        p(f"ds_write_b128 {a}, {vr(o + 4, 4)} offset:{KCOPY + 64 + 1024}")
        p(f"""
        s_mul_i32 {sT1}, {skh}, {64 + 4096}
        s_add_u32 {sT1}, {sT1}, {sT0}
        v_and_b32 {b}, 15, {vL}
        v_lshl_add_u32 {a}, {b}, 2, {sT1}
        v_readfirstlane_b32 {sT2}, {vr(d)}
        s_lshl_b32 {sT2}, {sT2}, 16
        s_cmp_eq_u32 {skh}, 0
        s_cselect_b32 {sT2}, {sT2}, 0
        v_cmp_eq_u32 vcc, 15, {b}
        v_mov_b32 {b}, {sT2}
        v_cndmask_b32 {b}, 0, {b}, vcc
        """)
        p(f"ds_write_b32 {a}, {vZero}")
        p(f"ds_write_b32 {a}, {b} offset:{KCOPY}")
        p(f"""
        s_mul_i32 {sT0}, {sth}, {UCH}
        s_add_u32 {sT0}, {sT0}, {CU}
        s_lshl_b32 {sT1}, {skh}, 8
        s_add_u32 {sT1}, {sT1}, {sT0}
        v_lshl_add_u32 {a}, {vL}, 2, {sT1}
        v_and_b32 {b}, 7, {vL}
        v_lshl_add_u32 {b}, {b}, 2, {sT0}
        """)
        p(f"ds_write_b32 {a}, {vZero} offset:{32 + 4096}")
        p(f"ds_write_b32 {b}, {vZero}")

    def p2(self, p, t):
        p(f"""
        v_and_b32 {vT[0]}, 3, {vL}
        v_bfe_u32 {vT[1]}, {vL}, 2, 1
        v_lshlrev_b32 {vT[0]}, 7, {vT[0]}
        v_lshl_add_u32 {vPoll}, {vT[1]}, 3, {vT[0]}
        s_lshl_b32 {sT0}, {sc}, 10
        s_lshl_b32 {sT1}, {skh}, 9
        s_add_u32 {sT0}, {sT0}, {sT1}
        s_lshl_b32 {sT1}, {sth}, 2
        s_add_u32 {sT0}, {sT0}, {sT1}
        """)
        self.poll(p, vPoll, sT0, 1)
        self.stamp(p, "h seen")
        p(f"""
        s_lshl_b32 {sT1}, {sc}, 1
        s_add_u32 {sT1}, {sT1}, {sth}
        s_lshl_b32 {sT1}, {sT1}, 15
        s_lshl_b32 {sT0}, {skh}, 14
        s_add_u32 {sT1}, {sT1}, {sT0}
        s_add_u32 {sT1}, {sT1}, {WS_H}
        """)
        for pos in range(4):
            p(f"s_add_u32 {sT0}, {srot}, {pos}")
            p(f"s_and_b32 {sT0}, {sT0}, 3")
            p(f"s_lshl_b32 {sT0}, {sT0}, 12")
            p(f"s_add_u32 {sT0}, {sT0}, {sT1}")
            for s in range(4):
                p(f"buffer_load_dwordx4 {vr(V_B + 16 * pos + 4 * s, 4)}, {vL16}, {sWS}, {sT0} offen offset:{s * 1024} sc1")
        accX, accY = V_ACC, V_ACC + 16
        for ks in range(16):
            z = ks == 0
            B = V_B + 4 * ks
            p(f"v_mfma_f32_32x32x16_bf16 {vr(accY, 16)}, {ar(A_W2 + 8 * ks + 4, 4)}, {vr(B, 4)}, {'0' if z else vr(accY, 16)}")
            p(f"v_mfma_f32_32x32x16_bf16 {vr(accX, 16)}, {ar(A_W2 + 8 * ks, 4)}, {vr(B, 4)}, {'0' if z else vr(accX, 16)}")
        self.stamp(p, "p2 mfma")
        p(f"s_add_u32 {sT0}, {sPriv}, {R2}")
        p(f"v_add_u32 {vT[2]}, {sT0}, {vL16}")
        for g in range(4):
            p(f"ds_write_b128 {vT[2]}, {vr(accY + 4 * g, 4)} offset:{g * 1024}")
        p(f"v_xor_b32 {vT[2]}, 32768, {vT[2]}")
        for i in range(8):
            p(f"v_dot2_f32_bf16 {vr(accX + 2 * i)}, {vr(V_XRES + i)}, {sOneLo}, {vr(accX + 2 * i)}")
            p(f"v_dot2_f32_bf16 {vr(accX + 2 * i + 1)}, {vr(V_XRES + i)}, {sOneHi}, {vr(accX + 2 * i + 1)}")
        p.wait(lg0=True)
        p("s_barrier")
        for g in range(4):
            p(f"ds_read_b128 {vr(accY + 4 * g, 4)}, {vT[2]} offset:{g * 1024}")
        p(f"""
        s_lshl_b32 {sT2}, {sc}, 1
        s_add_u32 {sT2}, {sT2}, {sth}
        s_lshl_b32 {sT0}, {sT2}, 15
        s_lshl_b32 {sT1}, {sj}, 12
        s_add_u32 {sT0}, {sT0}, {sT1}
        s_lshl_b32 {sT1}, {snh}, 11
        s_add_u32 {sT0}, {sT0}, {sT1}
        s_add_u32 {sT0}, {sT0}, {WS_X1}
        s_lshl_b32 {sT2}, {sT2}, 12
        s_lshl_b32 {sT1}, {sj}, 9
        s_add_u32 {sT2}, {sT2}, {sT1}
        s_lshl_b32 {sT1}, {snh}, 3
        s_add_u32 {sT2}, {sT2}, {sT1}
        s_add_u32 {sT2}, {sT2}, {WS_STATS}
        """)
        for x in range(0, 16, 2):
            p(f"v_pk_add_f32 {vr(accX + x, 2)}, {vr(accX + x, 2)}, {vr(accY + x, 2)}")
        for i in range(8):
            p(f"v_cvt_pk_bf16_f32 {vr(V_X1P + i)}, {vr(accX + 2 * i)}, {vr(accX + 2 * i + 1)}")
        s0 = p(f"buffer_store_dwordx4 {vr(V_X1P, 4)}, {vL16}, {sWS}, {sT0} offen sc1")
        s1 = p(f"buffer_store_dwordx4 {vr(V_X1P + 4, 4)}, {vL16}, {sWS}, {sT0} offen offset:1024 sc1")
        S, Q, S2, Q2 = vr(V_TMP), vr(V_TMP + 1), vr(V_TMP + 2), vr(V_TMP + 3)
        for i in range(0, 8, 2):
            c = ["0"] * 4 if i == 0 else [S, Q, S2, Q2]
            p(f"v_dot2_f32_bf16 {S}, {vr(V_X1P + i)}, {sOnes}, {c[0]}")
            p(f"v_dot2_f32_bf16 {Q}, {vr(V_X1P + i)}, {vr(V_X1P + i)}, {c[1]}")
            p(f"v_dot2_f32_bf16 {S2}, {vr(V_X1P + i + 1)}, {sOnes}, {c[2]}")
            p(f"v_dot2_f32_bf16 {Q2}, {vr(V_X1P + i + 1)}, {vr(V_X1P + i + 1)}, {c[3]}")
        p(f"v_add_f32 {S}, {S}, {S2}")
        p(f"v_add_f32 {Q}, {Q}, {Q2}")
        self.half_sum(p, S, S2)
        self.half_sum(p, Q, Q2)
        p("s_mov_b64 exec, 0xffffffff")
        s2 = p(f"buffer_store_dwordx2 {vr(V_TMP, 2)}, {vL16}, {sWS}, {sT2} offen sc1")
        p("s_mov_b64 exec, -1")
        self.stamp(p, "x1 stored")
        self.publish(p, [s0, s1, s2], 2, FLAG0)
        self.stamp(p, "x1 flag")

    def conv(self, p, t):
        p(f"""
        v_and_b32 {vPoll}, 31, {vL}
        v_lshlrev_b32 {vPoll}, 10, {vPoll}
        s_lshl_b32 {sT0}, {sj}, 7
        s_lshr_b32 {sT1}, {sc}, 3
        s_lshl_b32 {sT1}, {sT1}, 2
        s_add_u32 {sT0}, {sT0}, {sT1}
        s_add_u32 {sT0}, {sT0}, {FLAG1}
        """)
        self.poll(p, vPoll, sT0, 1)
        p(f"""
        s_lshl_b32 {sT0}, {sj}, 6
        s_lshl_b32 {sT1}, {sc}, 1
        s_add_u32 {sT0}, {sT0}, {sT1}
        s_add_u32 {sT0}, {sT0}, {sth}
        s_lshl_b32 {sT0}, {sT0}, 12
        s_lshl_b32 {sT1}, {skh}, 11
        s_add_u32 {sT0}, {sT0}, {sT1}
        s_add_u32 {sT0}, {sT0}, {WS_KVT}
        s_mul_i32 {sT2}, {sth}, {UCH}
        s_add_u32 {sT1}, {sT1}, {sT2}
        s_add_u32 m0, {sT1}, {CU + 32}
        """)
        self.dma(p, vL16, sWS, sT0, 0, "sc1")
        u = self.dma(p, vL16, sWS, sT0, 1024, "sc1")
        vA = [vXs[1], vXs[2], vXs[3], vXr[0], vXr[1]]
        vB = vXr[2]
        a, b = vT[0], vT[1]
        p(f"""
        v_and_b32 {a}, 15, {vL}
        v_lshrrev_b32 {b}, 4, {vL}
        v_lshlrev_b32 {b}, 4, {b}
        s_lshl_b32 {sT1}, {skh}, 8
        s_add_u32 {sT2}, {sT2}, {sT1}
        s_add_u32 {sT2}, {sT2}, {CU + 480}
        v_lshlrev_b32 {vB}, 5, {a}
        v_sub_u32 {vB}, {b}, {vB}
        v_add_u32 {vB}, {sT2}, {vB}
        v_add_u32 {vA[0]}, 1, {a}
        v_and_b32 {vA[0]}, 30, {vA[0]}
        v_lshl_add_u32 {vA[0]}, {vA[0]}, 1, {b}
        v_and_b32 {a}, 1, {a}
        v_xor_b32 {a}, 1, {a}
        v_mul_u32_u24 {a}, {KCOPY}, {a}
        s_mul_i32 {sT0}, {sth}, {KCH}
        s_add_u32 {sT0}, {sT0}, {sT1}
        s_add_u32 {sT0}, {sT0}, {CK}
        v_add3_u32 {vA[0]}, {vA[0]}, {a}, {sT0}
        """)
        for i in range(1, 5):
            p(f"v_add_u32 {vA[i]}, {1024 * i}, {vA[0]}")
        p.wait(vm=u, lg0=True)
        p("s_barrier")
        t["w4p1"] = self.w4_dma(p, 1, R2)
        acc, BF, AF = V_ACC, V_B, V_B + 36

        def rdA(slot, rho, aa):
            o = (64 * rho + 512 * (aa & 1)) // 4
            p(f"ds_read2_b32 {vr(AF + 4 * slot, 2)}, {vA[aa >> 1]} offset0:{o} offset1:{o + 1}")
            p(f"ds_read2_b32 {vr(AF + 4 * slot + 2, 2)}, {vA[aa >> 1]} offset0:{o + 2} offset1:{o + 3}")

        def rdB(bb, rho):
            p(f"ds_read_b128 {vr(BF + 4 * (bb if bb >= 0 else 8), 4)}, {vB} offset:{3584 - 512 * bb + 64 * rho}")

        for bb in range(7, -1, -1):
            rdB(bb, 0)
        rdA(0, 0, 0)
        rdA(1, 0, 1)
        n = 0
        for rho in range(4):
            for aa in range(8):
                nx = n + 2
                if nx < 32:
                    rdA(nx % 3, nx // 8, nx % 8)
                for bb in range(7 - aa, -1, -1):
                    z = rho == 0 and aa == 0
                    d = vr(acc + 4 * (aa + bb), 4)
                    p(f"v_mfma_f32_16x16x32_bf16 {d}, {vr(AF + 4 * (n % 3), 4)}, {vr(BF + 4 * bb, 4)}, {'0' if z else d}")
                    if bb == 7 - aa and rho < 3:
                        rdB(bb, rho + 1)
                n += 1
        skip = self.label("noextra")
        p(f"s_cmp_lg_u32 {skh}, 0")
        p(f"s_cbranch_scc1 {skip}")
        rdB(-1, 0)
        for aa in range(1, 9):
            o = (512 * (aa & 1)) // 4
            p(f"ds_read2_b32 {vr(BF + 4 * (aa - 1), 2)}, {vA[aa >> 1]} offset0:{o} offset1:{o + 1}")
            p(f"ds_read2_b32 {vr(BF + 4 * (aa - 1) + 2, 2)}, {vA[aa >> 1]} offset0:{o + 2} offset1:{o + 3}")
        for aa in range(1, 9):
            d = vr(acc + 4 * (aa - 1), 4)
            p(f"v_mfma_f32_16x16x32_bf16 {d}, {vr(BF + 4 * (aa - 1), 4)}, {vr(BF + 32, 4)}, {d}")
        p(f"{skip}:")
        p.wait(lg0=True)
        p("s_nop 7")
        self.stamp(p, "conv mfma")
        p("s_barrier")
        p(f"""
        s_lshl_b32 {sT0}, {sw}, 12
        s_add_u32 {sT0}, {sT0}, {CK}
        v_add_u32 {a}, {sT0}, {vL16}
        """)
        hi, join = self.label("convhi"), self.label("convjoin")
        p(f"s_cmp_lg_u32 {skh}, 0")
        p(f"s_cbranch_scc1 {hi}")
        for g in range(4):
            p(f"ds_write_b128 {a}, {vr(acc + 16 + 4 * g, 4)} offset:{g * 1024}")
        p(f"s_branch {join}")
        p(f"{hi}:")
        for g in range(4):
            p(f"ds_write_b128 {a}, {vr(acc + 4 * g, 4)} offset:{g * 1024}")
        p("s_waitcnt lgkmcnt(0)")
        for i in range(16):
            p(f"v_mov_b32 {vr(acc + i)}, {vr(acc + 16 + i)}")
        p(f"{join}:")
        p("s_waitcnt lgkmcnt(0)")
        p.drained(vm=False, lg=True)
        p(f"""
        v_xor_b32 {a}, 8192, {a}
        v_and_b32 {b}, 15, {vL}
        v_lshlrev_b32 {b}, 5, {b}
        v_lshrrev_b32 {vT[2]}, 4, {vL}
        v_lshl_add_u32 {b}, {vT[2]}, 3, {b}
        s_mul_i32 {sT1}, {sth}, {UCH}
        s_add_u32 {sT1}, {sT1}, {CU + 4120 - 1536}
        s_lshl_b32 {sT2}, {skh}, 11
        s_sub_u32 {sT1}, {sT1}, {sT2}
        v_sub_u32 {vT[2]}, {sT1}, {b}
        s_xor_b32 {sT0}, {sT0}, 8192
        v_add_u32 {b}, {sT0}, {b}
        v_lshlrev_b32 {vr(V_SSM + 5)}, 16, {vr(V_SSM + 5)}
        """)
        p("s_barrier")
        uu = V_B
        for g in range(4):
            p(f"ds_read_b128 {vr(acc + 16 + 4 * g, 4)}, {a} offset:{g * 1024}")
            p(f"ds_read_b64 {vr(uu + 2 * g, 2)}, {vT[2]} offset:{1536 - 512 * g}")
        for x in range(0, 16, 2):
            p(f"v_pk_add_f32 {vr(acc + x, 2)}, {vr(acc + x, 2)}, {vr(acc + 16 + x, 2)}")
        e = acc + 16
        for g in range(4):
            p(f"v_and_b32 {vr(e + 4 * g)}, {sHi}, {vr(uu + 2 * g + 1)}")
            p(f"v_lshlrev_b32 {vr(e + 4 * g + 1)}, 16, {vr(uu + 2 * g + 1)}")
            p(f"v_and_b32 {vr(e + 4 * g + 2)}, {sHi}, {vr(uu + 2 * g)}")
            p(f"v_lshlrev_b32 {vr(e + 4 * g + 3)}, 16, {vr(uu + 2 * g)}")
        for x in range(16):
            p(f"v_fmac_f32 {vr(acc + x)}, {vr(V_SSM + 5)}, {vr(e + x)}")
        for i in range(8):
            p(f"v_cvt_pk_bf16_f32 {vr(uu + i)}, {vr(acc + 2 * i)}, {vr(acc + 2 * i + 1)}")
        last = None
        for g in range(4):
            last = p(f"ds_write_b64 {b}, {vr(uu + 2 * g, 2)} offset:{g * 512}")
        p(f"""
        v_lshrrev_b32 {b}, 3, {vL}
        v_and_b32 {vT[2]}, 7, {vL}
        v_lshlrev_b32 {vT[2]}, 4, {vT[2]}
        v_lshl_add_u32 {b}, {b}, 13, {vT[2]}
        s_lshl_b32 {sT0}, {sj}, 18
        s_lshl_b32 {sT1}, {skh}, 17
        s_add_u32 {sT0}, {sT0}, {sT1}
        s_lshl_b32 {sT1}, {sc}, 1
        s_add_u32 {sT1}, {sT1}, {sth}
        s_lshl_b32 {sT1}, {sT1}, 7
        s_add_u32 {sT0}, {sT0}, {sT1}
        s_add_u32 {sT0}, {sT0}, {WS_YT}
        s_add_u32 {sT1}, {sT0}, 65536
        """)
        p.wait(lg=last)
        p(f"ds_read_b128 {vr(uu + 8, 4)}, {a}")
        p(f"ds_read_b128 {vr(uu + 12, 4)}, {a} offset:1024")
        s0 = p(f"buffer_store_dwordx4 {vr(uu + 8, 4)}, {b}, {sWS}, {sT0} offen sc1")
        s1 = p(f"buffer_store_dwordx4 {vr(uu + 12, 4)}, {b}, {sWS}, {sT1} offen sc1")
        self.w4_bounce(p, t["w4p1"], 1)
        p.wait(lg0=True)
        p("s_barrier")
        t["w3b"] = self.w3_dma(p, 1, R2)
        self.publish(p, [s0, s1], 2, FLAG1)
        self.stamp(p, "conv done")

    def p3(self, p, t):
        idle = self.label("p3idle")
        done = self.label("p3done")
        p(f"s_cmp_ge_u32 {sm}, 14")
        p(f"s_cbranch_scc1 {idle}")
        p(f"""
        v_and_b32 {vT[0]}, 7, {vL}
        v_bfe_u32 {vT[1]}, {vL}, 3, 1
        v_lshlrev_b32 {vT[0]}, 7, {vT[0]}
        v_lshl_add_u32 {vPoll}, {vT[1]}, 3, {vT[0]}
        s_lshl_b32 {sT2}, {ssc}, 1
        s_add_u32 {sT2}, {sT2}, {skh}
        s_lshl_b32 {sT0}, {sT2}, 10
        s_lshl_b32 {sT1}, {sth}, 2
        s_add_u32 {sT0}, {sT0}, {sT1}
        """)
        self.poll(p, vPoll, sT0, 2)
        self.stamp(p, "x1 seen")
        p(f"""
        s_lshl_b32 {sT2}, {ssc}, 2
        s_add_u32 {sT2}, {sT2}, {sw}
        s_lshl_b32 {sT0}, {sT2}, 15
        s_add_u32 {sT0}, {sT0}, {WS_X1}
        s_lshl_b32 {sT2}, {sT2}, 12
        s_add_u32 {sT2}, {sT2}, {WS_STATS}
        """)
        for ks in range(32):
            p(f"buffer_load_dwordx4 {ar(4 * ks, 4)}, {vL16}, {sWS}, {sT0} offen offset:{(ks % 4) * 1024} sc1")
            if ks % 4 == 3 and ks < 31:
                p(f"s_add_u32 {sT0}, {sT0}, 4096")
        stt = V_B
        for i in range(4):
            p(f"buffer_load_dwordx4 {vr(stt + 4 * i, 4)}, {vL16}, {sWS}, {sT2} offen offset:{i * 1024} sc1")
        p(f"""
        s_lshl_b32 {sT0}, {sth}, 6
        s_lshl_b32 {sT1}, {skh}, 16
        v_xor_b32 {vT[0]}, {sT0}, {vTr0}
        v_add_u32 {vT[0]}, {sT1}, {vT[0]}
        """)
        p("s_barrier")
        cs = V_TMP
        for ks in range(32):
            A = V_A + 4 * (ks % 8)
            self.a_reads(p, A, vT[0], ks * 2048)
            if ks >= 4:
                k2 = ks - 4
                p(f"v_mfma_f32_16x16x32_bf16 {vr(cs, 4)}, {vr(V_ONES, 4)}, {vr(V_A + 4 * (k2 % 8), 4)}, {'0' if k2 == 0 else vr(cs, 4)}")
        for k2 in range(28, 32):
            p(f"v_mfma_f32_16x16x32_bf16 {vr(cs, 4)}, {vr(V_ONES, 4)}, {vr(V_A + 4 * (k2 % 8), 4)}, {vr(cs, 4)}")
        p(f"""
        v_and_b32 {vT[1]}, 31, {vL}
        s_lshl_b32 {sT0}, {sw}, 7
        s_add_u32 {sT0}, {sT0}, {ST_CS3}
        v_lshl_add_u32 {vT[1]}, {vT[1]}, 2, {sT0}
        """)
        p(f"ds_write_b32 {vT[1]}, {vr(cs)}")
        p(f"v_add_u32 {vCsA}, {ST_CS3}, {vCsA}")
        acc = [V_ACC + 16 * i for i in range(4)]
        for ks in range(2):
            self.a_reads(p, V_A + 8 * ks, vTr0, ks * 2048)
            self.a_reads(p, V_A + 8 * ks + 4, vTr1, ks * 2048)
        for ks in range(32):
            if ks + 2 < 32:
                A2 = V_A + 8 * ((ks + 2) % 4)
                self.a_reads(p, A2, vTr0, (ks + 2) * 2048)
                self.a_reads(p, A2 + 4, vTr1, (ks + 2) * 2048)
            A = V_A + 8 * (ks % 4)
            z = ks == 0
            p(f"v_mfma_f32_32x32x16_bf16 {vr(acc[0], 16)}, {vr(A, 4)}, {ar(4 * ks, 4)}, {'0' if z else vr(acc[0], 16)}")
            p(f"v_mfma_f32_32x32x16_bf16 {vr(acc[1], 16)}, {vr(A + 4, 4)}, {ar(4 * ks, 4)}, {'0' if z else vr(acc[1], 16)}")
        self.stamp(p, "p3 t01")
        p.wait(lg0=True)
        p("s_barrier")
        t["w4p2"] = self.w4_dma(p, 2, R0)
        for x in (0, 1):
            p(f"v_add_f32 {vr(stt + x)}, {vr(stt + x)}, {vr(stt + 2 + x)}")
        for i in range(1, 4):
            for x in (0, 1):
                p(f"v_add_f32 {vr(stt + x)}, {vr(stt + x)}, {vr(stt + 4 * i + x)}")
                p(f"v_add_f32 {vr(stt + x)}, {vr(stt + x)}, {vr(stt + 4 * i + 2 + x)}")
        self.half_sum(p, vr(stt), vr(stt + 2))
        self.half_sum(p, vr(stt + 1), vr(stt + 3))
        self.ln_consts(p, vr(stt), vr(stt + 1))
        p(f"""
        s_lshl_b32 {sT2}, {ssc}, 1
        s_add_u32 {sT2}, {sT2}, {skh}
        s_mul_i32 {sT2}, {sT2}, 229376
        s_lshl_b32 {sT1}, {sm}, 12
        s_add_u32 {sT2}, {sT2}, {sT1}
        s_lshl_b32 {sT1}, {sth}, 10
        s_add_u32 {sT2}, {sT2}, {sT1}
        s_add_u32 {sT2}, {sT2}, {WS_H2}
        v_add_u32 {vTr0}, {R2}, {vTr0}
        v_add_u32 {vTr1}, {R2}, {vTr1}
        """)

        def epilogue(tile):
            cs16 = V_B + 16
            for g in range(4):
                p(f"ds_read_b128 {vr(cs16 + 4 * g, 4)}, {vCsA} offset:{tile * 128 + g * 32}")
            out = V_TMP + 8 * (tile % 2)
            self.gelu_packed(p, acc[tile], cs16, V_TMP + 16, out)
            s0 = p(f"buffer_store_dwordx4 {vr(out, 4)}, {vL16}, {sWS}, {sT2} offen sc1")
            s1 = p(f"buffer_store_dwordx4 {vr(out + 4, 4)}, {vL16}, {sWS}, {sT2} offen offset:2048 sc1")
            p(f"s_add_u32 {sT2}, {sT2}, 57344")
            return [s0, s1]

        def tile_mfma(tile):
            va = vTr0 if tile % 2 == 0 else vTr1
            for ks in range(4):
                self.a_reads(p, V_A + 4 * ks, va, ks * 2048)
            for ks in range(32):
                if ks + 4 < 32:
                    self.a_reads(p, V_A + 4 * ((ks + 4) % 8), va, (ks + 4) * 2048)
                p(f"v_mfma_f32_32x32x16_bf16 {vr(acc[tile], 16)}, {vr(V_A + 4 * (ks % 8), 4)}, {ar(4 * ks, 4)}, {'0' if ks == 0 else vr(acc[tile], 16)}")

        st0 = epilogue(0)
        st1 = epilogue(1)
        self.publish(p, st0, 3, FLAG0)
        self.stamp(p, "h2 p0 flag")
        tile_mfma(2)
        self.publish(p, st1, 4, FLAG0)
        st2 = epilogue(2)
        tile_mfma(3)
        self.publish(p, st2, 5, FLAG0)
        st3 = epilogue(3)
        self.publish(p, st3, 6, FLAG0)
        p.wait(vm0=True, lg0=True)
        p(f"s_branch {done}")
        p(f"{idle}:")
        p("s_waitcnt vmcnt(0) lgkmcnt(0)")
        p("s_barrier")
        self.w4_dma(p, 2, R0)
        p("s_waitcnt vmcnt(0) lgkmcnt(0)")
        p(f"{done}:")
        p.drained()
        self.stamp(p, "p3 done")

    def p4(self, p, t):
        p("s_barrier")
        w4p3 = self.w4_dma(p, 3, R2)
        p(f"""
        v_and_b32 {vPoll}, 31, {vL}
        v_lshlrev_b32 {vPoll}, 10, {vPoll}
        v_lshrrev_b32 {vT[0]}, 5, {vL}
        v_lshl_add_u32 {vPoll}, {vT[0]}, 2, {vPoll}
        s_lshl_b32 {sT0}, {sj}, 7
        s_lshr_b32 {sT1}, {sc}, 4
        s_lshl_b32 {sT1}, {sT1}, 3
        s_add_u32 {sT0}, {sT0}, {sT1}
        s_add_u32 {sT0}, {sT0}, {FLAG1}
        """)
        self.poll(p, vPoll, sT0, 2)
        p(f"""
        s_lshl_b32 {sT0}, {sj}, 5
        s_add_u32 {sT0}, {sT0}, {sc}
        s_lshl_b32 {sT0}, {sT0}, 13
        s_lshl_b32 {sT1}, {sw}, 11
        s_add_u32 {sT0}, {sT0}, {sT1}
        s_add_u32 {sT0}, {sT0}, {WS_YT}
        s_add_u32 m0, {sT1}, {YB}
        """)
        self.dma(p, vL16, sWS, sT0, 0, "sc1")
        y = self.dma(p, vL16, sWS, sT0, 1024, "sc1")
        p(f"""
        s_lshl_b32 {sT0}, {sc}, 1
        s_add_u32 {sT0}, {sT0}, {sth}
        s_lshl_b32 {sT0}, {sT0}, 11
        s_add_u32 {sT0}, {sT0}, {WS_GATE}
        """)
        gt = V_TMP + 16
        p(f"buffer_load_dwordx4 {vr(gt, 4)}, {vL16}, {sWS}, {sT0} offen sc1")
        p(f"buffer_load_dwordx4 {vr(gt + 4, 4)}, {vL16}, {sWS}, {sT0} offen offset:1024 sc1")
        a, b = vT[0], vT[1]
        p(f"""
        v_lshrrev_b32 {a}, 5, {vL}
        v_lshlrev_b32 {a}, 10, {a}
        v_bfe_u32 {b}, {vL}, 2, 2
        v_lshl_add_u32 {a}, {b}, 7, {a}
        v_bfe_u32 {b}, {vL}, 4, 1
        v_lshl_add_u32 {a}, {b}, 5, {a}
        v_and_b32 {b}, 3, {vL}
        v_lshl_add_u32 {a}, {b}, 3, {a}
        s_lshl_b32 {sT0}, {snh}, 12
        s_lshl_b32 {sT1}, {sth}, 6
        s_add_u32 {sT0}, {sT0}, {sT1}
        s_add_u32 {sT0}, {sT0}, {YB}
        v_add_u32 {a}, {sT0}, {a}
        """)
        p.wait(vm=y)
        p("s_barrier")
        yy = V_TMP + 24
        for i in range(4):
            p(f"ds_read_b64_tr_b16 {vr(yy + 2 * i, 2)}, {a} offset:{(i >> 1) * 2048 + (i & 1) * 512}")
        for i in range(1, 8):
            p(f"v_add_f32 {vr(gt)}, {vr(gt)}, {vr(gt + i)}")
        self.half_sum(p, vr(gt), vr(gt + 1))
        G, OM = V_KK, V_KK + 1
        p(f"v_mul_f32 {vr(gt)}, {fbits(-math.log2(math.e))}, {vr(gt)}")
        p(f"v_exp_f32 {vr(gt)}, {vr(gt)}")
        p(f"v_add_f32 {vr(gt)}, 1.0, {vr(gt)}")
        p(f"v_rcp_f32 {vr(G)}, {vr(gt)}")
        p(f"v_sub_f32 {vr(OM)}, 1.0, {vr(G)}")
        base = V_TMP
        for i in range(8):
            p(f"v_and_b32 {vr(gt)}, 0xffff, {vr(yy + i)}")
            p(f"v_and_b32 {vr(gt + 1)}, {sHi}, {vr(yy + i)}")
            p(f"v_dot2_f32_bf16 {vr(gt + 2)}, {vr(V_XRES + i)}, {vr(gt)}, 0")
            p(f"v_dot2_f32_bf16 {vr(gt + 3)}, {vr(V_XRES + i)}, {vr(gt + 1)}, 0")
            p(f"v_lshlrev_b32 {vr(gt + 4)}, 16, {vr(V_X1P + i)}")
            p(f"v_and_b32 {vr(gt + 5)}, {sHi}, {vr(V_X1P + i)}")
            p(f"v_pk_mul_f32 {vr(gt + 4, 2)}, {vr(gt + 4, 2)}, {vr(V_KK, 2)} op_sel:[0,1] op_sel_hi:[1,1]")
            p(f"v_pk_fma_f32 {vr(base + 2 * i, 2)}, {vr(gt + 2, 2)}, {vr(V_KK, 2)}, {vr(gt + 4, 2)} op_sel:[0,0,0] op_sel_hi:[1,0,1]")
        self.stamp(p, "y ready")
        p(f"""
        v_and_b32 {a}, 3, {vL}
        v_bfe_u32 {b}, {vL}, 2, 1
        v_lshlrev_b32 {a}, 7, {a}
        v_lshl_add_u32 {vPoll}, {b}, 2, {a}
        s_mul_i32 {sT0}, {sw}, 7
        s_lshr_b32 {sT1}, {sT0}, 1
        s_lshl_b32 {sT2}, {ssc}, 4
        s_add_u32 {sT1}, {sT1}, {sT2}
        s_lshl_b32 {sT1}, {sT1}, 7
        s_and_b32 {sT2}, {sc}, 1
        s_lshl_b32 {sT2}, {sT2}, 3
        s_add_u32 {sU[0]}, {sT1}, {sT2}
        s_mul_i32 {sT1}, {sc}, 229376
        s_lshl_b32 {sT0}, {sT0}, 11
        s_add_u32 {sT1}, {sT1}, {sT0}
        s_add_u32 {sU[1]}, {sT1}, {WS_H2}
        s_lshl_b32 {sT0}, {sth}, 10
        v_add_u32 {vT[2]}, {sT0}, {vL16}
        v_xor_b32 {vT[3]}, 1024, {vT[2]}
        """)
        acc = [V_ACC + 16 * i for i in range(4)]
        for piece in range(4):
            self.poll(p, vPoll, sU[0], 3 + piece)
            if piece == 0:
                self.stamp(p, "h2 seen")
            p(f"s_add_u32 {sT0}, {sU[1]}, {piece * 57344}")
            for u in range(7):
                p(f"buffer_load_dwordx4 {ar(8 * u, 4)}, {vT[2]}, {sWS}, {sT0} offen offset:{(u % 2) * 2048} sc1")
                p(f"buffer_load_dwordx4 {ar(8 * u + 4, 4)}, {vT[3]}, {sWS}, {sT0} offen offset:{(u % 2) * 2048} sc1")
                if u % 2 == 1:
                    p(f"s_add_u32 {sT0}, {sT0}, 4096")
            if piece == 2:
                p(f"v_subrev_u32 {vTrX}, {R2}, {vTrX}")
                p(f"v_subrev_u32 {vTrY}, {R2}, {vTrY}")
            if piece == 3:
                p(f"v_add_u32 {vTrX}, {R2}, {vTrX}")
                p(f"v_add_u32 {vTrY}, {R2}, {vTrY}")
            for u in range(7):
                if piece < 2:
                    AX, AY = ar(A_W4 + 56 * piece + 8 * u, 4), ar(A_W4 + 56 * piece + 8 * u + 4, 4)
                else:
                    A = V_A + 8 * (u % 4)
                    self.a_reads(p, A, vTrX, u * 2048)
                    self.a_reads(p, A + 4, vTrY, u * 2048)
                    AX, AY = vr(A, 4), vr(A + 4, 4)
                z = piece == 0 and u == 0
                for slot, (Aop, Bop) in enumerate(((AX, ar(8 * u, 4)), (AY, ar(8 * u, 4)), (AX, ar(8 * u + 4, 4)), (AY, ar(8 * u + 4, 4)))):
                    p(f"v_mfma_f32_32x32x16_bf16 {vr(acc[slot], 16)}, {Aop}, {Bop}, {'0' if z else vr(acc[slot], 16)}")
        self.stamp(p, "p4 mfma")
        p(f"v_add_u32 {a}, {sPriv}, {vL16}")
        for s in range(1, 4):
            for g in range(4):
                p(f"ds_write_b128 {a}, {vr(acc[s] + 4 * g, 4)} offset:{(s - 1) * 4096 + g * 1024}")
        p(f"v_xor_b32 {vT[2]}, {2 << 14}, {a}")
        p(f"v_xor_b32 {vT[3]}, {3 << 14}, {a}")
        p(f"v_xor_b32 {vT[4]}, {1 << 14}, {a}")
        p.wait(lg0=True)
        p("s_barrier")
        for s in range(1, 4):
            for g in range(4):
                p(f"ds_read_b128 {vr(acc[s] + 4 * g, 4)}, {vT[1 + s]} offset:{(s - 1) * 4096 + g * 1024}")
        for s in range(1, 4):
            for x in range(0, 16, 2):
                p(f"v_pk_add_f32 {vr(acc[0] + x, 2)}, {vr(acc[0] + x, 2)}, {vr(acc[s] + x, 2)}")
        for x in range(0, 16, 2):
            p(f"v_pk_fma_f32 {vr(acc[0] + x, 2)}, {vr(acc[0] + x, 2)}, {vr(V_KK, 2)}, {vr(base + x, 2)} op_sel:[0,1,0] op_sel_hi:[1,1,1]")
        for i in range(8):
            p(f"v_cvt_pk_bf16_f32 {vr(base + i)}, {vr(acc[0] + 2 * i)}, {vr(acc[0] + 2 * i + 1)}")
        p(f"buffer_store_dwordx4 {vr(base, 4)}, {vXs[0]}, {sOUT}, 0 offen")
        p(f"buffer_store_dwordx4 {vr(base + 4, 4)}, {vXs[0]}, {sOUT}, 0 offen offset:32")
        self.stamp(p, "out issued")

    def write_stamps(self, p):
        if not self.profile:
            return
        p.wait(vm0=True)
        self.stamp(p, "end")
        p("s_memrealtime s[100:101]")
        p.wait(lg0=True)
        p("v_writelane_b32 v254, s100, 1")
        p(f"""
        s_lshl_b32 {sT0}, s2, 2
        s_add_u32 {sT0}, {sT0}, {sw}
        s_lshl_b32 {sT0}, {sT0}, 8
        s_add_u32 {sT0}, {sT0}, {WS_STAMP}
        v_lshlrev_b32 {vP2}, 2, {vL}
        """)
        p(f"buffer_store_dword v254, {vP2}, {sWS}, {sT0} offen")

    def build(self):
        p = self.p
        self.prologue(p)
        t = self.initial_loads(p)
        self.small_loads(p)
        self.lds_addrs(p)
        self.stamp(p, "issued")
        self.a1(p, t)
        self.p1(p, t)
        self.window1(p, t)
        self.p2(p, t)
        self.conv(p, t)
        self.p3(p, t)
        self.p4(p, t)
        self.write_stamps(p)
        p("L_end:")
        p("s_endpgm")
        assert len(self.stamps) <= 62, len(self.stamps)
        body, items = finalize(p)
        head = open(__file__.replace("gen.py", "header.txt")).read()
        text = head + f"; @launch grid=(256,1,1) block=(256,1,1) lds={LDS_SIZE}\n"
        text += f""".amdgcn_target "amdgcn-amd-amdhsa--gfx950"
.text
.globl {NAME}_kernel
.p2align 8
.type {NAME}_kernel,@function
{NAME}_kernel:
.set CODE_BYTES, L_code_end - {NAME}_kernel - 256
"""
        text += body
        text += f"""L_code_end:
.section .rodata,"a"
.p2align 6
.amdhsa_kernel {NAME}_kernel
  .amdhsa_next_free_vgpr 512
  .amdhsa_next_free_sgpr 102
  .amdhsa_accum_offset 256
  .amdhsa_group_segment_fixed_size 0
  .amdhsa_kernarg_size 120
  .amdhsa_user_sgpr_count 2
  .amdhsa_user_sgpr_kernarg_segment_ptr 1
  .amdhsa_system_sgpr_workgroup_id_x 1
.end_amdhsa_kernel
"""
        return text


if __name__ == "__main__":
    prof = "--profile" in sys.argv
    out = [a for a in sys.argv[1:] if not a.startswith("--")]
    g = Gen(profile=prof)
    text = g.build()
    path = out[0] if out else f"cdna_kernels/{NAME}.s"
    open(path, "w").write(text)
    if prof:
        open(path + ".stamps", "w").write("\n".join(g.stamps))
    print("wrote", path, len(text), "bytes")
```

```python
import math
import struct
import sys

from asmdsl import Seq, finalize, interleave

NAME = "gated_mix__ssm_conv_h3__mixer_s_mlp__prompt"

FLAG0, FLAG1 = 0x0, 0x8000
WS_H, WS_X1, WS_H2, WS_KVT, WS_YT = 0x100000, 0x300000, 0x500000, 0xC00000, 0xE00000
WS_STATS, WS_GATE, WS_STAMP = 0x1000000, 0x1080000, 0x1100000
WS_SIZE = 0x1200000

R0, R1, R2, R3, R4 = 0, 32768, 65536, 98304, 131072
KB, VB, A1R = R4, R4 + 9216, R4 + 17408
EX1 = R4
ST = R4 + 28672
ST_STAT, ST_CS, ST_CS3 = ST, ST + 1024, ST + 1536
KCOPY, KCH = 4288, 8576
CK, CU, UCH = R4, R4 + 17152, 4672
YB = R4
LDS_SIZE = 163840

sX, sK, sV, sSK, sW1, sW2, sW3, sW4, sOUT, sWS, sDBG = [f"s[{4 + 4 * i}:{7 + 4 * i}]" for i in range(11)]
pSH, pD, pG = "s[48:49]", "s[50:51]", "s[52:53]"
sw, sth, skh, snh, sc, sj, sm, ssc = [f"s{i}" for i in range(54, 62)]
srot, sOneLo, sOneHi, sOnes, sHi = "s62", "s63", "s64", "s65", "s66"
sT0, sT1, sT2, sT3, sCnt = "s67", "s68", "s69", "s70", "s71"
sU = [f"s{i}" for i in range(72, 79)]
sFlag, sPriv = "s79", "s80"

vL, vL16, vTrX, vTrY, vTr0, vTr1, vWs, vW3s = [f"v{i}" for i in range(1, 9)]
vXs = [f"v{i}" for i in range(9, 13)]
vXr = [f"v{i}" for i in range(13, 17)]
vPoll, vP2, vZero, vCsA = "v17", "v18", "v19", "v20"
vT = [f"v{i}" for i in range(21, 28)]
V_KK, V_SM = 28, 30
V_XRES, V_X1P = 32, 40
V_B, V_ACC, V_A, V_TMP = 48, 112, 176, 208
V_ONES = 244
V_SSM = 232
A_W2, A_W4 = 0, 128


def vr(b, n=1):
    return f"v{b}" if n == 1 else f"v[{b}:{b + n - 1}]"


def ar(b, n=1):
    return f"a{b}" if n == 1 else f"a[{b}:{b + n - 1}]"


def fbits(x):
    return "0x%08x" % struct.unpack("<I", struct.pack("<f", x))[0]


C0 = math.sqrt(2.0 / math.pi)
GK1 = -2.0 * C0 * math.log2(math.e)
GK2 = GK1 * 0.044715
SPIN_LIMIT = 400000


class Gen:
    def __init__(self, profile=False, diag=None):
        self.profile = profile
        self.diag = diag
        self.p = Seq()
        self.nlabel = 0
        self.stamps = []

    def label(self, base):
        self.nlabel += 1
        return f"L_{base}_{self.nlabel}"

    def stamp(self, p, name):
        if self.diag and name in self.diag[:2]:
            r = 96 + 2 * self.diag.index(name)
            p(f"s_memrealtime s[{r}:{r + 1}]")
            p.wait(lg0=True)
        if not self.profile:
            return
        i = len(self.stamps)
        self.stamps.append(name)
        p("s_memtime s[100:101]")
        p.wait(lg0=True)
        p(f"v_writelane_b32 v254, s100, {i + 2}")

    def dma(self, p, vaddr, srd, soff, imm=0, flags="", count=True):
        off = f" offset:{imm}" if imm else ""
        return p(f"buffer_load_dwordx4 {vaddr}, {srd}, {soff} offen{off} {flags} lds", count)

    def dma_rows(self, p, vsrc, srd, s_src, lds_base, n, row_step):
        toks = []
        for i in range(n):
            if i % 4 == 0:
                base, add = lds_base
                if base is None:
                    p(f"s_mov_b32 m0, {add + i * 1024}")
                else:
                    p(f"s_add_u32 m0, {base}, {add + i * 1024}")
            toks.append(self.dma(p, vsrc, srd, s_src, (i % 4) * 1024))
            if i + 1 < n:
                step = row_step - 1024 if (i + 1) % 4 else row_step + 3072
                p(f"s_add_u32 {s_src}, {s_src}, {step}")
        return toks

    def poll(self, p, vaddr, soff, need, srd=sWS):
        a, b = self.label("poll"), self.label("pdone")
        p(f"s_mov_b32 {sCnt}, {SPIN_LIMIT}")
        p(f"{a}:")
        p(f"buffer_load_dword {vP2}, {vaddr}, {srd}, {soff} offen sc1", count=False)
        p("s_waitcnt vmcnt(0)")
        p(f"v_cmp_gt_u32 vcc, {need}, {vP2}")
        p(f"s_cbranch_vccz {b}")
        p("s_sleep 2")
        p(f"s_sub_u32 {sCnt}, {sCnt}, 1")
        p(f"s_cmp_lg_u32 {sCnt}, 0")
        p(f"s_cbranch_scc1 {a}")
        p(f"{b}:")
        p.drained(vm=True, lg=False)

    def publish(self, p, toks, value, area):
        p.wait(vm=toks)
        p(f"v_mov_b32 {vP2}, {value}")
        p("s_mov_b64 exec, 1")
        off = f"s_add_u32 {sT3}, {sFlag}, {area}"
        p(off)
        t = p(f"buffer_store_dword {vP2}, {vZero}, {sWS}, {sT3} offen sc1")
        p("s_mov_b64 exec, -1")
        return t

    def half_sum(self, p, reg, tmp):
        p(f"v_mov_b32 {tmp}, {reg}")
        p(f"v_permlane32_swap_b32 {reg}, {tmp}")
        p(f"v_add_f32 {reg}, {reg}, {tmp}")

    def a_reads(self, p, dst, vaddr, off, areg=False):
        f = ar if areg else vr
        p(f"ds_read_b64_tr_b16 {f(dst, 2)}, {vaddr} offset:{off}")
        return p(f"ds_read_b64_tr_b16 {f(dst + 2, 2)}, {vaddr} offset:{off + 512}")

    def ln_consts(self, p, vsum, vsq):
        p(f"v_mul_f32 {vr(V_SM + 1)}, {fbits(-1.0 / 512)}, {vsum}")
        p(f"v_mul_f32 {vsq}, {fbits(1.0 / 512)}, {vsq}")
        p(f"v_fma_f32 {vsq}, -{vr(V_SM + 1)}, {vr(V_SM + 1)}, {vsq}")
        p(f"v_max_f32 {vsq}, 0, {vsq}")
        p(f"v_add_f32 {vsq}, {fbits(1e-5)}, {vsq}")
        p(f"v_rsq_f32 {vsum}, {vsq}")
        p(f"v_sqrt_f32 {vr(V_SM)}, {vsq}")
        p(f"v_mul_f32 {vr(V_KK)}, {fbits(GK1)}, {vsum}")
        p(f"v_mul_f32 {vsq}, {vsum}, {vsum}")
        p(f"v_mul_f32 {vsq}, {vsq}, {vsum}")
        p(f"v_mul_f32 {vr(V_KK + 1)}, {fbits(GK2)}, {vsq}")

    def gelu_packed(self, p, acc, cs, tmp, out, n=16):
        KK, SM = vr(V_KK, 2), vr(V_SM, 2)
        for b in range(0, n, 8):
            pr = [b + 2 * i for i in range(4)]
            t = lambda x: tmp + (x - b)
            for x in pr:
                p(f"v_pk_fma_f32 {vr(acc + x, 2)}, {vr(cs + x, 2)}, {SM}, {vr(acc + x, 2)} op_sel:[0,1,0] op_sel_hi:[1,1,1]")
            for x in pr:
                p(f"v_pk_mul_f32 {vr(t(x), 2)}, {vr(acc + x, 2)}, {vr(acc + x, 2)}")
            for x in pr:
                p(f"v_pk_fma_f32 {vr(t(x), 2)}, {vr(t(x), 2)}, {KK}, {KK} op_sel:[0,1,0] op_sel_hi:[1,1,0]")
            for x in pr:
                p(f"v_pk_mul_f32 {vr(t(x), 2)}, {vr(t(x), 2)}, {vr(acc + x, 2)}")
            for x in range(b, b + 8):
                p(f"v_exp_f32 {vr(t(x))}, {vr(t(x))}")
            for x in pr:
                p(f"v_pk_fma_f32 {vr(t(x), 2)}, {vr(t(x), 2)}, {SM}, {SM} op_sel:[0,0,0] op_sel_hi:[1,0,0]")
            for x in range(b, b + 8):
                p(f"v_rcp_f32 {vr(t(x))}, {vr(t(x))}")
            for x in pr:
                p(f"v_pk_mul_f32 {vr(t(x), 2)}, {vr(t(x), 2)}, {vr(acc + x, 2)}")
            for x in pr:
                p(f"v_cvt_pk_bf16_f32 {vr(out + x // 2)}, {vr(t(x))}, {vr(t(x) + 1)}")

    def prologue(self, p):
        p("s_cmp_ge_u32 s2, 256")
        p("s_cbranch_scc1 L_end")
        if self.profile:
            p("v_mov_b32 v254, 0")
            p("s_memrealtime s[100:101]")
            p.wait(lg0=True)
            p("v_writelane_b32 v254, s100, 0")
        self.stamp(p, "start")
        for i, off in enumerate((0, 8, 16, 32, 56, 64, 72, 80, 96, 112, 104)):
            p(f"s_load_dwordx2 s[{4 + 4 * i}:{5 + 4 * i}], s[0:1], {off}")
        p(f"s_load_dwordx2 {pSH}, s[0:1], 24")
        p(f"s_load_dwordx2 {pD}, s[0:1], 40")
        p(f"s_load_dwordx2 {pG}, s[0:1], 88")
        skip = self.label("nopf")
        p("s_cmp_ge_u32 s2, 16")
        p(f"s_cbranch_scc1 {skip}")
        p("s_getpc_b64 s[68:69]")
        p("s_lshr_b32 s70, s2, 3")
        p("s_lshl_b32 s70, s70, 15")
        p("v_lshlrev_b32 v1, 7, v0")
        p("v_add_u32 v1, s70, v1")
        p("v_cmp_gt_u32 vcc, CODE_BYTES, v1")
        p("s_and_saveexec_b64 s[72:73], vcc")
        p(f"s_cbranch_execz {skip}_r")
        p("global_load_dword v255, v1, s[68:69]", count=False)
        p(f"{skip}_r:")
        p("s_mov_b64 exec, s[72:73]")
        p(f"{skip}:")
        p(f"v_lshrrev_b32 {vT[0]}, 6, v0")
        p(f"v_and_b32 {vL}, 63, v0")
        p(f"v_readfirstlane_b32 {sw}, {vT[0]}")
        p(f"v_lshlrev_b32 {vL16}, 4, {vL}")
        p(f"v_mov_b32 {vZero}, 0")
        p(f"""
        s_and_b32 {sT0}, s2, 7
        s_lshr_b32 {sT1}, s2, 6
        s_lshl_b32 {sc}, {sT0}, 2
        s_add_u32 {sc}, {sc}, {sT1}
        s_lshr_b32 {sj}, s2, 3
        s_and_b32 {sj}, {sj}, 7
        s_add_u32 {srot}, {sj}, {sT1}
        s_and_b32 {srot}, {srot}, 3
        s_lshr_b32 {ssc}, {sc}, 1
        s_and_b32 {sm}, {sc}, 1
        s_lshl_b32 {sm}, {sm}, 3
        s_add_u32 {sm}, {sm}, {sj}
        s_and_b32 {sth}, {sw}, 1
        s_lshr_b32 {skh}, {sw}, 1
        s_xor_b32 {snh}, {sth}, {skh}
        s_mov_b32 {sOneLo}, 0x00003f80
        s_mov_b32 {sOneHi}, 0x3f800000
        s_mov_b32 {sOnes}, 0x3f803f80
        s_mov_b32 {sHi}, 0xffff0000
        s_lshl_b32 {sFlag}, {sc}, 3
        s_add_u32 {sFlag}, {sFlag}, {sj}
        s_lshl_b32 {sFlag}, {sFlag}, 7
        s_lshl_b32 {sT0}, {sw}, 2
        s_add_u32 {sFlag}, {sFlag}, {sT0}
        s_lshl_b32 {sPriv}, {sw}, 14
        """)
        row, t1, t2 = vT[0], vT[1], vT[2]
        p(f"""
        v_lshrrev_b32 {row}, 3, {vL}
        v_lshrrev_b32 {t1}, 2, {vL}
        v_and_b32 {t1}, 4, {t1}
        v_and_b32 {t2}, 7, {vL}
        v_xor_b32 {t1}, {t1}, {t2}
        v_lshlrev_b32 {t1}, 4, {t1}
        v_lshl_add_u32 {vWs}, {row}, 10, {t1}
        v_mul_u32_u24 {vW3s}, 3584, {row}
        v_add_u32 {vW3s}, {vW3s}, {t1}
        """)
        p(f"""
        s_lshl_b32 {sT0}, {sc}, 16
        s_lshl_b32 {sT1}, {sj}, 7
        s_add_u32 {sT0}, {sT0}, {sT1}
        v_lshlrev_b32 {vT[3]}, 4, {t2}
        v_lshl_add_u32 {vT[3]}, {row}, 10, {vT[3]}
        v_add_u32 {vT[3]}, {sT0}, {vT[3]}
        v_subrev_u32 {vT[4]}, 8192, {vT[3]}
        """)
        p(f"""
        s_lshr_b32 {sT0}, {sj}, 2
        s_add_u32 {sT0}, {sT0}, 1
        s_sub_u32 {sT1}, 0, {sT0}
        s_bitcmp1_b32 {sj}, 1
        s_cselect_b32 {sT0}, {sT0}, {sT1}
        s_lshl_b32 {sT1}, {sc}, 6
        s_add_u32 {sT0}, {sT0}, {sT1}
        s_lshl_b32 {sT1}, {sth}, 5
        s_add_u32 {sT0}, {sT0}, {sT1}
        s_lshl_b32 {sT0}, {sT0}, 10
        s_lshl_b32 {sT1}, {skh}, 9
        s_add_u32 {sT0}, {sT0}, {sT1}
        v_lshrrev_b32 {t1}, 1, {row}
        v_xor_b32 {t1}, {t1}, {t2}
        v_lshlrev_b32 {t1}, 4, {t1}
        v_lshl_add_u32 {t1}, {row}, 10, {t1}
        v_add_u32 {vXs[0]}, {sT0}, {t1}
        v_xor_b32 {t1}, 64, {t1}
        v_add_u32 {t1}, {sT0}, {t1}
        v_add_u32 {vXs[1]}, 8192, {t1}
        v_add_u32 {vXs[2]}, 16384, {vXs[0]}
        v_add_u32 {vXs[3]}, 24576, {t1}
        """)
        sizes = (1 << 21, 1 << 21, 1 << 21, 1 << 21, 1 << 19, 1 << 19, 512 * 3584, 1792 * 1024, 1 << 21, WS_SIZE, 256)
        p.wait(lg0=True)
        for i, n in enumerate(sizes):
            p(f"s_mov_b32 s{6 + 4 * i}, {n}")
            p(f"s_mov_b32 s{7 + 4 * i}, 0x20000")
        p(f"s_cmp_ge_u32 {sm}, 14")
        p(f"s_cselect_b32 s30, 0, s30")

    def initial_loads(self, p):
        t = {}
        skip = self.label("noclr")
        p(f"s_or_b32 {sT0}, s2, {sw}")
        p(f"s_cmp_lg_u32 {sT0}, 0")
        p(f"s_cbranch_scc1 {skip}")
        for i in range(4):
            p(f"v_mov_b32 {vr(V_TMP + i)}, 0")
        p(f"v_lshlrev_b32 {vT[5]}, 7, {vL}")
        for i in range(8):
            p(f"s_mov_b32 {sT0}, {i * 8192}")
            p(f"buffer_store_dwordx4 {vr(V_TMP, 4)}, {vT[5]}, {sWS}, {sT0} offen sc1", count=False)
        p(f"{skip}:")
        skip = self.label("nohalo")
        p(f"s_cmp_lg_u32 {sw}, 0")
        p(f"s_cbranch_scc1 {skip}")
        p(f"s_mov_b32 m0, {KB}")
        self.dma(p, vT[4], sK, "0", count=False)
        p(f"{skip}:")
        p(f"""
        s_lshl_b32 {sT0}, {sj}, 6
        s_lshl_b32 {sT1}, {sw}, 4
        s_add_u32 {sT0}, {sT0}, {sT1}
        v_and_b32 {vT[5]}, 15, {vL}
        v_add_u32 {vT[5]}, {sT0}, {vT[5]}
        v_lshlrev_b32 {vT[5]}, 3, {vT[5]}
        """)
        mark = p(f"global_load_dwordx2 {vr(V_A, 2)}, {vT[5]}, {pSH}")
        t["first"] = mark
        p(f"s_lshl_b32 {sT0}, {sw}, 13")
        p(f"s_lshl_b32 {sT1}, {sw}, 10")
        p(f"s_add_u32 {sT2}, {sT0}, 32768")
        kv = []
        p(f"s_add_u32 m0, {sT1}, {KB + 1024}")
        kv.append(self.dma(p, vT[3], sK, sT0))
        p(f"s_add_u32 m0, {sT1}, {KB + 1024 + 4096}")
        kv.append(self.dma(p, vT[3], sK, sT2))
        p(f"s_add_u32 m0, {sT1}, {VB}")
        kv.append(self.dma(p, vT[3], sV, sT0))
        p(f"s_add_u32 m0, {sT1}, {VB + 4096}")
        kv.append(self.dma(p, vT[3], sV, sT2))
        t["kv"] = kv
        xs = []
        for pos in range(4):
            p(f"s_add_u32 {sT0}, {srot}, {pos}")
            p(f"s_and_b32 {sT0}, {sT0}, 3")
            p(f"s_lshl_b32 {sT0}, {sT0}, 7")
            for a in range(4):
                p(f"s_add_u32 m0, {sPriv}, {R2 + (pos * 4 + a) * 1024}")
                xs.append(self.dma(p, vXs[a], sX, sT0))
        t["x"] = xs
        t["w1"] = self.w12_dma(p, sW1, R0)
        return t

    def w12_dma(self, p, srd, lds):
        toks = []
        p(f"""
        s_lshl_b32 {sT2}, {skh}, 15
        s_lshl_b32 {sT1}, {sth}, 12
        s_add_u32 {sT2}, {sT2}, {sT1}
        s_lshl_b32 {sT3}, {skh}, 18
        s_lshl_b32 {sT1}, {sth}, 15
        s_add_u32 {sT3}, {sT3}, {sT1}
        s_lshl_b32 {sT1}, {sj}, 7
        s_add_u32 {sT3}, {sT3}, {sT1}
        """)
        for pos in range(4):
            p(f"s_add_u32 {sT0}, {srot}, {pos}")
            p(f"s_and_b32 {sT0}, {sT0}, 3")
            p(f"s_lshl_b32 {sT0}, {sT0}, 16")
            p(f"s_add_u32 {sT0}, {sT0}, {sT3}")
            toks.append(self.dma_rows(p, vWs, srd, sT0, (sT2, lds + pos * 8192), 4, 8192))
        return toks

    def small_loads(self, p):
        p(f"""
        s_lshl_b32 {sT0}, {sc}, 6
        s_lshl_b32 {sT1}, {sth}, 5
        s_add_u32 {sT0}, {sT0}, {sT1}
        s_lshl_b32 {sT0}, {sT0}, 10
        s_lshl_b32 {sT1}, {sj}, 7
        s_lshl_b32 {sT2}, {snh}, 6
        s_add_u32 {sT1}, {sT1}, {sT2}
        v_and_b32 {vT[0]}, 31, {vL}
        v_lshrrev_b32 {vT[1]}, 5, {vL}
        v_lshlrev_b32 {vT[1]}, 4, {vT[1]}
        v_add_u32 {vT[1]}, {sT1}, {vT[1]}
        v_lshl_add_u32 {vXs[0]}, {vT[0]}, 10, {vT[1]}
        v_add_u32 {vXs[0]}, {sT0}, {vXs[0]}
        """)
        p(f"buffer_load_dwordx4 {vr(V_XRES, 4)}, {vXs[0]}, {sX}, 0 offen")
        p(f"buffer_load_dwordx4 {vr(V_XRES + 4, 4)}, {vXs[0]}, {sX}, 0 offen offset:32")
        p(f"global_load_dwordx4 {vr(V_X1P, 4)}, {vT[1]}, {pG}")
        p(f"global_load_dwordx4 {vr(V_X1P + 4, 4)}, {vT[1]}, {pG} offset:32")
        p(f"""
        s_lshl_b32 {sT0}, {sj}, 6
        s_lshl_b32 {sT1}, {sc}, 1
        s_add_u32 {sT0}, {sT0}, {sT1}
        s_add_u32 {sT0}, {sT0}, {sth}
        s_lshl_b32 {sT1}, {sT0}, 1
        v_mov_b32 {vT[2]}, {sT1}
        s_lshl_b32 {sT0}, {sT0}, 12
        s_lshl_b32 {sT1}, {skh}, 11
        s_add_u32 {sT0}, {sT0}, {sT1}
        """)
        p(f"buffer_load_dwordx4 {vr(V_SSM, 4)}, {vL16}, {sSK}, {sT0} offen")
        p(f"buffer_load_dword {vr(V_SSM + 4)}, {vL16}, {sSK}, {sT0} offen offset:16")
        p(f"buffer_load_dwordx4 {vr(V_SSM + 6, 4)}, {vL16}, {sSK}, {sT0} offen offset:1024")
        p(f"buffer_load_dword {vr(V_SSM + 10)}, {vL16}, {sSK}, {sT0} offen offset:1040")
        p(f"global_load_ushort {vr(V_SSM + 5)}, {vT[2]}, {pD}")

    def lds_addrs(self, p):
        a, b, c = vT[0], vT[1], vT[2]
        p(f"""
        v_lshrrev_b32 {a}, 5, {vL}
        v_lshlrev_b32 {vTr0}, 10, {a}
        v_bfe_u32 {a}, {vL}, 2, 2
        v_lshl_add_u32 {vTr0}, {a}, 7, {vTr0}
        v_lshrrev_b32 {a}, 1, {a}
        v_lshl_add_u32 {vTr0}, {a}, 6, {vTr0}
        v_bfe_u32 {a}, {vL}, 4, 1
        v_lshl_add_u32 {vTr0}, {a}, 5, {vTr0}
        v_and_b32 {a}, 1, {vL}
        v_lshl_add_u32 {vTr0}, {a}, 4, {vTr0}
        v_bfe_u32 {a}, {vL}, 1, 1
        v_lshl_add_u32 {vTr0}, {a}, 3, {vTr0}
        v_xor_b32 {vTr1}, 64, {vTr0}
        s_lshl_b32 {sT0}, {snh}, 6
        s_lshl_b32 {sT1}, {skh}, 15
        v_xor_b32 {vTrX}, {sT0}, {vTr0}
        v_add_u32 {vTrX}, {sT1}, {vTrX}
        v_xor_b32 {vTrY}, 64, {vTrX}
        v_bfe_u32 {a}, {vL}, 3, 2
        v_lshlrev_b32 {a}, 10, {a}
        v_and_b32 {b}, 7, {vL}
        v_lshl_add_u32 {a}, {b}, 7, {a}
        s_add_u32 {sT0}, {sPriv}, {R2}
        v_add_u32 {a}, {sT0}, {a}
        v_bfe_u32 {b}, {vL}, 1, 3
        v_lshrrev_b32 {c}, 5, {vL}
        v_xor_b32 {b}, {b}, {c}
        """)
        for s in range(4):
            p(f"v_xor_b32 {c}, {2 * s}, {b}")
            p(f"v_lshl_add_u32 {vXr[s]}, {c}, 4, {a}")
        p(f"""
        v_and_b32 {a}, 3, {vL}
        v_bfe_u32 {b}, {vL}, 2, 1
        v_bfe_u32 {c}, {vL}, 4, 1
        v_xor_b32 {b}, {b}, {c}
        v_or_b32 {a}, {a}, {b}
        v_cmp_eq_u32 vcc, 0, {a}
        v_mov_b32 {b}, {sOnes}
        v_cndmask_b32 {vr(V_ONES)}, 0, {b}, vcc
        v_cndmask_b32 {vr(V_ONES + 1)}, 0, {b}, vcc
        v_cndmask_b32 {vr(V_ONES + 2)}, 0, {b}, vcc
        v_cndmask_b32 {vr(V_ONES + 3)}, 0, {b}, vcc
        v_lshrrev_b32 {a}, 5, {vL}
        v_lshlrev_b32 {vCsA}, 4, {a}
        """)

    def gate_open(self, p, t):
        skip = self.label("nogate")
        p(f"s_or_b32 {sT0}, s2, {sw}")
        p(f"s_cmp_lg_u32 {sT0}, 0")
        p(f"s_cbranch_scc1 {skip}")
        p(f"v_mov_b32 {vP2}, 1")
        p("s_mov_b64 exec, 1")
        p(f"buffer_store_dword {vP2}, {vZero}, {sDBG}, 0 offen sc1", count=False)
        p("s_mov_b64 exec, -1")
        p(f"{skip}:")

    def a1(self, p, t):
        kk, vv, o = V_B, V_B + 12, V_B + 24
        sk = V_A
        a, b = vT[0], vT[1]
        p(f"""
        v_lshrrev_b32 {a}, 4, {vL}
        v_lshlrev_b32 {a}, 11, {a}
        v_bfe_u32 {b}, {vL}, 2, 2
        v_lshl_add_u32 {a}, {b}, 7, {a}
        v_and_b32 {b}, 3, {vL}
        v_lshl_add_u32 {a}, {b}, 3, {a}
        s_lshl_b32 {sT0}, {sw}, 5
        s_add_u32 {sT0}, {sT0}, {R4}
        v_add_u32 {a}, {sT0}, {a}
        """)
        c10, c32, c0, c21, c3 = V_TMP, V_TMP + 1, V_TMP + 2, V_TMP + 3, V_TMP + 4
        p(f"v_alignbit_b32 {vr(c10)}, {vr(sk)}, {vr(sk)}, 16")
        p(f"v_alignbit_b32 {vr(c32)}, {vr(sk + 1)}, {vr(sk + 1)}, 16")
        p(f"v_and_b32 {vr(c0)}, 0xffff, {vr(sk)}")
        p(f"v_and_b32 {vr(c3)}, {sHi}, {vr(sk + 1)}")
        p(f"v_and_b32 {vr(c21)}, 0xffff, {vr(sk + 1)}")
        p(f"v_and_or_b32 {vr(c21)}, {vr(sk)}, {sHi}, {vr(c21)}")
        p.wait(vm=t["kv"])
        self.gate_open(p, t)
        p("s_barrier")
        for rd in range(5):
            p(f"ds_read_b64_tr_b16 {vr(kk + 2 * rd, 2)}, {a} offset:{(KB - R4) + (4 + 4 * rd) * 128}")
        for rd in range(4):
            p(f"ds_read_b64_tr_b16 {vr(vv + 2 * rd, 2)}, {a} offset:{(VB - R4) + 4 * rd * 128}")
        f = V_ACC
        for i in range(8):
            p(f"v_dot2_f32_bf16 {vr(f + 2 * i)}, {vr(kk + i)}, {vr(c3)}, 0")
            p(f"v_dot2_f32_bf16 {vr(f + 2 * i + 1)}, {vr(kk + i + 1)}, {vr(c32)}, 0")
        for i in range(8):
            p(f"v_dot2_f32_bf16 {vr(f + 2 * i)}, {vr(kk + i + 1)}, {vr(c21)}, {vr(f + 2 * i)}")
            p(f"v_dot2_f32_bf16 {vr(f + 2 * i + 1)}, {vr(kk + i + 2)}, {vr(c10)}, {vr(f + 2 * i + 1)}")
        for i in range(8):
            p(f"v_dot2_f32_bf16 {vr(f + 2 * i)}, {vr(kk + i + 2)}, {vr(c0)}, {vr(f + 2 * i)}")
        for i in range(8):
            p(f"v_lshlrev_b32 {vr(f + 16 + 2 * i)}, 16, {vr(vv + i)}")
            p(f"v_and_b32 {vr(f + 17 + 2 * i)}, {sHi}, {vr(vv + i)}")
        for i in range(8):
            p(f"v_pk_mul_f32 {vr(f + 2 * i, 2)}, {vr(f + 2 * i, 2)}, {vr(f + 16 + 2 * i, 2)}")
        for i in range(8):
            p(f"v_cvt_pk_bf16_f32 {vr(o + i)}, {vr(f + 15 - 2 * i)}, {vr(f + 14 - 2 * i)}")
        p(f"""
        v_and_b32 {a}, 15, {vL}
        v_mul_u32_u24 {a}, 144, {a}
        v_lshrrev_b32 {b}, 4, {vL}
        v_sub_u32 {b}, 3, {b}
        v_lshl_add_u32 {a}, {b}, 5, {a}
        s_mul_i32 {sT0}, {sw}, 2304
        s_add_u32 {sT0}, {sT0}, {A1R}
        v_add_u32 {a}, {sT0}, {a}
        """)
        p(f"ds_write_b128 {a}, {vr(o, 4)}")
        w2 = p(f"ds_write_b128 {a}, {vr(o + 4, 4)} offset:16")
        p(f"""
        v_lshrrev_b32 {a}, 3, {vL}
        v_and_b32 {b}, 7, {vL}
        v_lshlrev_b32 {b}, 4, {b}
        v_lshl_add_u32 {vT[2]}, {a}, 12, {b}
        v_mul_u32_u24 {a}, 144, {a}
        v_add3_u32 {a}, {a}, {b}, {sT0}
        s_lshl_b32 {sT0}, {sj}, 18
        s_lshl_b32 {sT1}, {sw}, 16
        s_add_u32 {sT0}, {sT0}, {sT1}
        s_sub_u32 {sT1}, 31, {sc}
        s_lshl_b32 {sT1}, {sT1}, 7
        s_add_u32 {sT0}, {sT0}, {sT1}
        s_add_u32 {sT0}, {sT0}, {WS_KVT}
        s_add_u32 {sT1}, {sT0}, 32768
        """)
        p.wait(lg=w2)
        p(f"ds_read_b128 {vr(o + 8, 4)}, {a}")
        p(f"ds_read_b128 {vr(o + 12, 4)}, {a} offset:{8 * 144}")
        s0 = p(f"buffer_store_dwordx4 {vr(o + 8, 4)}, {vT[2]}, {sWS}, {sT0} offen sc1")
        s1 = p(f"buffer_store_dwordx4 {vr(o + 12, 4)}, {vT[2]}, {sWS}, {sT1} offen sc1")
        t["kvt"] = [s0, s1]

    def p1(self, p, t):
        S, Q, S2, Q2 = vr(V_TMP), vr(V_TMP + 1), vr(V_TMP + 2), vr(V_TMP + 3)
        for pos in range(4):
            p.wait(vm=t["x"][4 * pos + 3])
            for s in range(4):
                p(f"ds_read_b128 {vr(V_B + 16 * pos + 4 * s, 4)}, {vXr[s]} offset:{pos * 4096}")
        first = True
        for d in range(0, 64, 2):
            c = ["0"] * 4 if first else [S, Q, S2, Q2]
            p(f"v_dot2_f32_bf16 {S}, {vr(V_B + d)}, {sOnes}, {c[0]}")
            p(f"v_dot2_f32_bf16 {Q}, {vr(V_B + d)}, {vr(V_B + d)}, {c[1]}")
            p(f"v_dot2_f32_bf16 {S2}, {vr(V_B + d + 1)}, {sOnes}, {c[2]}")
            p(f"v_dot2_f32_bf16 {Q2}, {vr(V_B + d + 1)}, {vr(V_B + d + 1)}, {c[3]}")
            first = False
        p(f"v_add_f32 {S}, {S}, {S2}")
        p(f"v_add_f32 {Q}, {Q}, {Q2}")
        self.half_sum(p, S, S2)
        self.half_sum(p, Q, Q2)
        p(f"""
        v_and_b32 {vT[0]}, 31, {vL}
        s_lshl_b32 {sT0}, {sw}, 8
        s_add_u32 {sT0}, {sT0}, {ST_STAT}
        v_lshl_add_u32 {vT[1]}, {vT[0]}, 3, {sT0}
        """)
        p(f"ds_write_b64 {vT[1]}, {vr(V_TMP, 2)}")
        self.stamp(p, "x stats")
        accX, accY, cs = V_ACC, V_ACC + 16, V_ACC + 32
        for pos in range(4):
            p.wait(vm=t["w1"][pos][-1], lg0=(pos == 0))
            p("s_barrier")
            if pos == 0:
                t["w2"] = self.w12_dma(p, sW2, R2)
            for s in range(4):
                A = V_A + 8 * s
                self.a_reads(p, A, vTrX, pos * 8192 + s * 2048)
                self.a_reads(p, A + 4, vTrY, pos * 8192 + s * 2048)
            for s in range(4):
                A, B = V_A + 8 * s, V_B + 16 * pos + 4 * s
                z = pos == 0 and s == 0
                p(f"v_mfma_f32_32x32x16_bf16 {vr(accY, 16)}, {vr(A + 4, 4)}, {vr(B, 4)}, {'0' if z else vr(accY, 16)}")
                p(f"v_mfma_f32_16x16x32_bf16 {vr(cs, 4)}, {vr(V_ONES, 4)}, {vr(A, 4)}, {'0' if z else vr(cs, 4)}")
                p(f"v_mfma_f32_32x32x16_bf16 {vr(accX, 16)}, {vr(A, 4)}, {vr(B, 4)}, {'0' if z else vr(accX, 16)}")
        self.stamp(p, "p1 mfma")
        p(f"""
        s_lshl_b32 {sT0}, {sw}, 12
        s_add_u32 {sT0}, {sT0}, {EX1}
        v_add_u32 {vT[2]}, {sT0}, {vL16}
        s_lshl_b32 {sT0}, {snh}, 8
        s_lshl_b32 {sT1}, {skh}, 7
        s_add_u32 {sT1}, {sT1}, {sT0}
        s_add_u32 {sT1}, {sT1}, {ST_CS}
        v_lshl_add_u32 {vT[3]}, {vT[0]}, 2, {sT1}
        s_add_u32 {sT0}, {sT0}, {ST_CS}
        v_add_u32 {vT[4]}, {sT0}, {vCsA}
        """)
        for g in range(4):
            p(f"ds_write_b128 {vT[2]}, {vr(accY + 4 * g, 4)} offset:{g * 1024}")
        p(f"ds_write_b32 {vT[3]}, {vr(cs)}")
        p(f"v_xor_b32 {vT[2]}, 8192, {vT[2]}")
        p(f"v_xor_b32 {vT[1]}, 512, {vT[1]}")
        p.wait(lg0=True)
        p("s_barrier")
        p(f"ds_read_b64 {vr(V_TMP + 2, 2)}, {vT[1]}")
        c0, c1 = V_A, V_A + 16
        for g in range(4):
            p(f"ds_read_b128 {vr(c0 + 4 * g, 4)}, {vT[4]} offset:{g * 32}")
            p(f"ds_read_b128 {vr(c1 + 4 * g, 4)}, {vT[4]} offset:{128 + g * 32}")
        for g in range(4):
            p(f"ds_read_b128 {vr(accY + 4 * g, 4)}, {vT[2]} offset:{g * 1024}")
        t["w3a"] = self.w3_dma(p, 0, R0)
        p(f"v_add_f32 {S}, {S}, {S2}")
        p(f"v_add_f32 {Q}, {Q}, {Q2}")
        self.ln_consts(p, S, Q)
        for x in range(0, 16, 2):
            p(f"v_pk_add_f32 {vr(c0 + x, 2)}, {vr(c0 + x, 2)}, {vr(c1 + x, 2)}")
        for x in range(0, 16, 2):
            p(f"v_pk_add_f32 {vr(accX + x, 2)}, {vr(accX + x, 2)}, {vr(accY + x, 2)}")
        out = V_TMP + 8
        self.gelu_packed(p, accX, c0, V_TMP + 16, out)
        p(f"""
        s_lshl_b32 {sT0}, {sc}, 1
        s_add_u32 {sT0}, {sT0}, {sth}
        s_lshl_b32 {sT0}, {sT0}, 15
        s_lshl_b32 {sT1}, {sj}, 12
        s_add_u32 {sT0}, {sT0}, {sT1}
        s_lshl_b32 {sT1}, {snh}, 11
        s_add_u32 {sT0}, {sT0}, {sT1}
        s_add_u32 {sT0}, {sT0}, {WS_H}
        """)
        s0 = p(f"buffer_store_dwordx4 {vr(out, 4)}, {vL16}, {sWS}, {sT0} offen sc1")
        s1 = p(f"buffer_store_dwordx4 {vr(out + 4, 4)}, {vL16}, {sWS}, {sT0} offen offset:1024 sc1")
        t["h"] = [s0, s1]
        self.stamp(p, "h stored")

    def w3_dma(self, p, line, lds):
        p(f"""
        s_mul_i32 {sT0}, {sw}, {128 * 3584}
        s_lshl_b32 {sT1}, {sm}, 8
        s_add_u32 {sT0}, {sT0}, {sT1}
        s_add_u32 {sT0}, {sT0}, {line * 128}
        """)
        return self.dma_rows(p, vW3s, sW3, sT0, (sPriv, lds), 16, 8 * 3584)

    def w4_offsets(self, p):
        p(f"s_mul_i32 {sT0}, {sw}, 7")
        p(f"s_lshl_b32 {sT2}, {sj}, 7")
        for u in range(7):
            p(f"""
            s_add_u32 {sT1}, {sT0}, {u}
            s_lshr_b32 {sU[u]}, {sT1}, 1
            s_lshl_b32 {sU[u]}, {sU[u]}, 17
            s_and_b32 {sT1}, {sT1}, 1
            s_lshl_b32 {sT1}, {sT1}, 14
            s_add_u32 {sU[u]}, {sU[u]}, {sT1}
            s_add_u32 {sU[u]}, {sU[u]}, {sT2}
            """)

    def w4_dma(self, p, piece, lds):
        toks = []
        for u in range(7):
            p(f"s_add_u32 m0, {sPriv}, {lds + u * 2048}")
            p(f"s_add_u32 {sT0}, {sU[u]}, {piece * 32768}")
            self.dma(p, vWs, sW4, sT0)
            p(f"s_add_u32 {sT0}, {sT0}, 7168")
            toks.append(self.dma(p, vWs, sW4, sT0, 1024))
        return toks

    def gate_partial(self, p):
        g, g2 = vr(V_TMP), vr(V_TMP + 1)
        for i in range(0, 8, 2):
            p(f"v_dot2_f32_bf16 {g}, {vr(V_XRES + i)}, {vr(V_X1P + i)}, {'0' if i == 0 else g}")
            p(f"v_dot2_f32_bf16 {g2}, {vr(V_XRES + i + 1)}, {vr(V_X1P + i + 1)}, {'0' if i == 0 else g2}")
        p(f"v_add_f32 {g}, {g}, {g2}")
        self.half_sum(p, g, g2)
        p(f"""
        s_lshl_b32 {sT0}, {sc}, 1
        s_add_u32 {sT0}, {sT0}, {sth}
        s_lshl_b32 {sT0}, {sT0}, 11
        s_lshr_b32 {sT1}, {sj}, 1
        s_lshl_b32 {sT1}, {sT1}, 9
        s_add_u32 {sT0}, {sT0}, {sT1}
        s_and_b32 {sT1}, {sj}, 1
        s_lshl_b32 {sT1}, {sT1}, 1
        s_add_u32 {sT1}, {sT1}, {snh}
        s_lshl_b32 {sT1}, {sT1}, 2
        s_add_u32 {sT0}, {sT0}, {sT1}
        s_add_u32 {sT0}, {sT0}, {WS_GATE}
        s_mov_b64 exec, 0xffffffff
        """)
        s = p(f"buffer_store_dword {g}, {vL16}, {sWS}, {sT0} offen sc1")
        p("s_mov_b64 exec, -1")
        return s

    def window1(self, p, t):
        gs = self.gate_partial(p)
        self.poll(p, vZero, "0", 1, srd=sDBG)
        self.publish(p, t["h"] + [gs], 1, FLAG0)
        self.publish(p, t["kvt"], 1, FLAG1)
        self.stamp(p, "h flag")
        p(f"v_add_u32 {vTrX}, {R2}, {vTrX}")
        p(f"v_add_u32 {vTrY}, {R2}, {vTrY}")
        p("s_barrier")
        for ks in range(16):
            self.a_reads(p, A_W2 + 8 * ks, vTrX, ks * 2048, areg=True)
            self.a_reads(p, A_W2 + 8 * ks + 4, vTrY, ks * 2048, areg=True)
        p.wait(lg0=True)
        p("s_barrier")
        self.w4_offsets(p)
        w4 = self.w4_dma(p, 0, R2)
        self.stage_conv_k(p)
        p(f"""
        s_lshl_b32 {sT0}, {skh}, 15
        s_sub_u32 {sT0}, {sPriv}, {sT0}
        v_add_u32 {vTrX}, {sT0}, {vTrX}
        v_add_u32 {vTrY}, {sT0}, {vTrY}
        """)
        self.w4_bounce(p, w4, 0)
        self.stamp(p, "w4p0")

    def w4_bounce(self, p, toks, piece):
        for u in range(7):
            p.wait(vm=toks[u])
            self.a_reads(p, A_W4 + 56 * piece + 8 * u, vTrX, u * 2048, areg=True)
            self.a_reads(p, A_W4 + 56 * piece + 8 * u + 4, vTrY, u * 2048, areg=True)

    def stage_conv_k(self, p):
        a, b = vT[0], vT[1]
        d = V_SSM
        o = V_TMP
        p(f"""
        s_mul_i32 {sT0}, {sth}, {KCH}
        s_add_u32 {sT0}, {sT0}, {CK}
        s_lshl_b32 {sT1}, {skh}, 11
        s_add_u32 {sT1}, {sT1}, {sT0}
        v_add_u32 {a}, {sT1}, {vL16}
        v_cmp_eq_u32 vcc, 63, {vL}
        s_cmp_eq_u32 {skh}, 1
        s_cselect_b64 vcc, vcc, 0
        v_cndmask_b32 {vr(d + 10)}, {vr(d + 10)}, {vZero}, vcc
        """)
        for i in range(4):
            p(f"v_alignbit_b32 {vr(o + i)}, {vr(d + i + 1)}, {vr(d + i)}, 16")
            p(f"v_alignbit_b32 {vr(o + 4 + i)}, {vr(d + 7 + i)}, {vr(d + 6 + i)}, 16")
        p(f"ds_write_b128 {a}, {vr(d, 4)} offset:64")
        p(f"ds_write_b128 {a}, {vr(d + 6, 4)} offset:{64 + 1024}")
        p(f"ds_write_b128 {a}, {vr(o, 4)} offset:{KCOPY + 64}")
        p(f"ds_write_b128 {a}, {vr(o + 4, 4)} offset:{KCOPY + 64 + 1024}")
        p(f"""
        s_mul_i32 {sT1}, {skh}, {64 + 4096}
        s_add_u32 {sT1}, {sT1}, {sT0}
        v_and_b32 {b}, 15, {vL}
        v_lshl_add_u32 {a}, {b}, 2, {sT1}
        v_readfirstlane_b32 {sT2}, {vr(d)}
        s_lshl_b32 {sT2}, {sT2}, 16
        s_cmp_eq_u32 {skh}, 0
        s_cselect_b32 {sT2}, {sT2}, 0
        v_cmp_eq_u32 vcc, 15, {b}
        v_mov_b32 {b}, {sT2}
        v_cndmask_b32 {b}, 0, {b}, vcc
        """)
        p(f"ds_write_b32 {a}, {vZero}")
        p(f"ds_write_b32 {a}, {b} offset:{KCOPY}")
        p(f"""
        s_mul_i32 {sT0}, {sth}, {UCH}
        s_add_u32 {sT0}, {sT0}, {CU}
        s_lshl_b32 {sT1}, {skh}, 8
        s_add_u32 {sT1}, {sT1}, {sT0}
        v_lshl_add_u32 {a}, {vL}, 2, {sT1}
        v_and_b32 {b}, 7, {vL}
        v_lshl_add_u32 {b}, {b}, 2, {sT0}
        """)
        p(f"ds_write_b32 {a}, {vZero} offset:{32 + 4096}")
        p(f"ds_write_b32 {b}, {vZero}")

    def p2(self, p, t):
        p(f"""
        v_and_b32 {vT[0]}, 3, {vL}
        v_bfe_u32 {vT[1]}, {vL}, 2, 1
        v_lshlrev_b32 {vT[0]}, 7, {vT[0]}
        v_lshl_add_u32 {vPoll}, {vT[1]}, 3, {vT[0]}
        s_lshl_b32 {sT0}, {sc}, 10
        s_lshl_b32 {sT1}, {skh}, 9
        s_add_u32 {sT0}, {sT0}, {sT1}
        s_lshl_b32 {sT1}, {sth}, 2
        s_add_u32 {sT0}, {sT0}, {sT1}
        """)
        self.poll(p, vPoll, sT0, 1)
        self.stamp(p, "h seen")
        p(f"""
        s_lshl_b32 {sT1}, {sc}, 1
        s_add_u32 {sT1}, {sT1}, {sth}
        s_lshl_b32 {sT1}, {sT1}, 15
        s_lshl_b32 {sT0}, {skh}, 14
        s_add_u32 {sT1}, {sT1}, {sT0}
        s_add_u32 {sT1}, {sT1}, {WS_H}
        """)
        for pos in range(4):
            p(f"s_add_u32 {sT0}, {srot}, {pos}")
            p(f"s_and_b32 {sT0}, {sT0}, 3")
            p(f"s_lshl_b32 {sT0}, {sT0}, 12")
            p(f"s_add_u32 {sT0}, {sT0}, {sT1}")
            for s in range(4):
                p(f"buffer_load_dwordx4 {vr(V_B + 16 * pos + 4 * s, 4)}, {vL16}, {sWS}, {sT0} offen offset:{s * 1024} sc1")
        accX, accY = V_ACC, V_ACC + 16
        for ks in range(16):
            z = ks == 0
            B = V_B + 4 * ks
            p(f"v_mfma_f32_32x32x16_bf16 {vr(accY, 16)}, {ar(A_W2 + 8 * ks + 4, 4)}, {vr(B, 4)}, {'0' if z else vr(accY, 16)}")
            p(f"v_mfma_f32_32x32x16_bf16 {vr(accX, 16)}, {ar(A_W2 + 8 * ks, 4)}, {vr(B, 4)}, {'0' if z else vr(accX, 16)}")
        self.stamp(p, "p2 mfma")
        p(f"s_add_u32 {sT0}, {sPriv}, {R2}")
        p(f"v_add_u32 {vT[2]}, {sT0}, {vL16}")
        for g in range(4):
            p(f"ds_write_b128 {vT[2]}, {vr(accY + 4 * g, 4)} offset:{g * 1024}")
        p(f"v_xor_b32 {vT[2]}, 32768, {vT[2]}")
        for i in range(8):
            p(f"v_dot2_f32_bf16 {vr(accX + 2 * i)}, {vr(V_XRES + i)}, {sOneLo}, {vr(accX + 2 * i)}")
            p(f"v_dot2_f32_bf16 {vr(accX + 2 * i + 1)}, {vr(V_XRES + i)}, {sOneHi}, {vr(accX + 2 * i + 1)}")
        p.wait(lg0=True)
        p("s_barrier")
        for g in range(4):
            p(f"ds_read_b128 {vr(accY + 4 * g, 4)}, {vT[2]} offset:{g * 1024}")
        p(f"""
        s_lshl_b32 {sT2}, {sc}, 1
        s_add_u32 {sT2}, {sT2}, {sth}
        s_lshl_b32 {sT0}, {sT2}, 15
        s_lshl_b32 {sT1}, {sj}, 12
        s_add_u32 {sT0}, {sT0}, {sT1}
        s_lshl_b32 {sT1}, {snh}, 11
        s_add_u32 {sT0}, {sT0}, {sT1}
        s_add_u32 {sT0}, {sT0}, {WS_X1}
        s_lshl_b32 {sT2}, {sT2}, 12
        s_lshl_b32 {sT1}, {sj}, 9
        s_add_u32 {sT2}, {sT2}, {sT1}
        s_lshl_b32 {sT1}, {snh}, 3
        s_add_u32 {sT2}, {sT2}, {sT1}
        s_add_u32 {sT2}, {sT2}, {WS_STATS}
        """)
        for x in range(0, 16, 2):
            p(f"v_pk_add_f32 {vr(accX + x, 2)}, {vr(accX + x, 2)}, {vr(accY + x, 2)}")
        for i in range(8):
            p(f"v_cvt_pk_bf16_f32 {vr(V_X1P + i)}, {vr(accX + 2 * i)}, {vr(accX + 2 * i + 1)}")
        s0 = p(f"buffer_store_dwordx4 {vr(V_X1P, 4)}, {vL16}, {sWS}, {sT0} offen sc1")
        s1 = p(f"buffer_store_dwordx4 {vr(V_X1P + 4, 4)}, {vL16}, {sWS}, {sT0} offen offset:1024 sc1")
        S, Q, S2, Q2 = vr(V_TMP), vr(V_TMP + 1), vr(V_TMP + 2), vr(V_TMP + 3)
        for i in range(0, 8, 2):
            c = ["0"] * 4 if i == 0 else [S, Q, S2, Q2]
            p(f"v_dot2_f32_bf16 {S}, {vr(V_X1P + i)}, {sOnes}, {c[0]}")
            p(f"v_dot2_f32_bf16 {Q}, {vr(V_X1P + i)}, {vr(V_X1P + i)}, {c[1]}")
            p(f"v_dot2_f32_bf16 {S2}, {vr(V_X1P + i + 1)}, {sOnes}, {c[2]}")
            p(f"v_dot2_f32_bf16 {Q2}, {vr(V_X1P + i + 1)}, {vr(V_X1P + i + 1)}, {c[3]}")
        p(f"v_add_f32 {S}, {S}, {S2}")
        p(f"v_add_f32 {Q}, {Q}, {Q2}")
        self.half_sum(p, S, S2)
        self.half_sum(p, Q, Q2)
        p("s_mov_b64 exec, 0xffffffff")
        s2 = p(f"buffer_store_dwordx2 {vr(V_TMP, 2)}, {vL16}, {sWS}, {sT2} offen sc1")
        p("s_mov_b64 exec, -1")
        self.stamp(p, "x1 stored")
        self.publish(p, [s0, s1, s2], 2, FLAG0)
        self.stamp(p, "x1 flag")

    def conv(self, p, t):
        p(f"""
        v_and_b32 {vPoll}, 31, {vL}
        v_lshlrev_b32 {vPoll}, 10, {vPoll}
        s_lshl_b32 {sT0}, {sj}, 7
        s_lshr_b32 {sT1}, {sc}, 3
        s_lshl_b32 {sT1}, {sT1}, 2
        s_add_u32 {sT0}, {sT0}, {sT1}
        s_add_u32 {sT0}, {sT0}, {FLAG1}
        """)
        self.poll(p, vPoll, sT0, 1)
        p(f"""
        s_lshl_b32 {sT0}, {sj}, 6
        s_lshl_b32 {sT1}, {sc}, 1
        s_add_u32 {sT0}, {sT0}, {sT1}
        s_add_u32 {sT0}, {sT0}, {sth}
        s_lshl_b32 {sT0}, {sT0}, 12
        s_lshl_b32 {sT1}, {skh}, 11
        s_add_u32 {sT0}, {sT0}, {sT1}
        s_add_u32 {sT0}, {sT0}, {WS_KVT}
        s_mul_i32 {sT2}, {sth}, {UCH}
        s_add_u32 {sT1}, {sT1}, {sT2}
        s_add_u32 m0, {sT1}, {CU + 32}
        """)
        self.dma(p, vL16, sWS, sT0, 0, "sc1")
        u = self.dma(p, vL16, sWS, sT0, 1024, "sc1")
        vA = [vXs[1], vXs[2], vXs[3], vXr[0], vXr[1]]
        vB = vXr[2]
        a, b = vT[0], vT[1]
        p(f"""
        v_and_b32 {a}, 15, {vL}
        v_lshrrev_b32 {b}, 4, {vL}
        v_lshlrev_b32 {b}, 4, {b}
        s_lshl_b32 {sT1}, {skh}, 8
        s_add_u32 {sT2}, {sT2}, {sT1}
        s_add_u32 {sT2}, {sT2}, {CU + 480}
        v_lshlrev_b32 {vB}, 5, {a}
        v_sub_u32 {vB}, {b}, {vB}
        v_add_u32 {vB}, {sT2}, {vB}
        v_add_u32 {vA[0]}, 1, {a}
        v_and_b32 {vA[0]}, 30, {vA[0]}
        v_lshl_add_u32 {vA[0]}, {vA[0]}, 1, {b}
        v_and_b32 {a}, 1, {a}
        v_xor_b32 {a}, 1, {a}
        v_mul_u32_u24 {a}, {KCOPY}, {a}
        s_mul_i32 {sT0}, {sth}, {KCH}
        s_add_u32 {sT0}, {sT0}, {sT1}
        s_add_u32 {sT0}, {sT0}, {CK}
        v_add3_u32 {vA[0]}, {vA[0]}, {a}, {sT0}
        """)
        for i in range(1, 5):
            p(f"v_add_u32 {vA[i]}, {1024 * i}, {vA[0]}")
        p.wait(vm=u, lg0=True)
        p("s_barrier")
        t["w4p1"] = self.w4_dma(p, 1, R2)
        acc, BF, AF = V_ACC, V_B, V_B + 36

        def rdA(slot, rho, aa):
            o = (64 * rho + 512 * (aa & 1)) // 4
            p(f"ds_read2_b32 {vr(AF + 4 * slot, 2)}, {vA[aa >> 1]} offset0:{o} offset1:{o + 1}")
            p(f"ds_read2_b32 {vr(AF + 4 * slot + 2, 2)}, {vA[aa >> 1]} offset0:{o + 2} offset1:{o + 3}")

        def rdB(bb, rho):
            p(f"ds_read_b128 {vr(BF + 4 * (bb if bb >= 0 else 8), 4)}, {vB} offset:{3584 - 512 * bb + 64 * rho}")

        for bb in range(7, -1, -1):
            rdB(bb, 0)
        rdA(0, 0, 0)
        rdA(1, 0, 1)
        n = 0
        for rho in range(4):
            for aa in range(8):
                nx = n + 2
                if nx < 32:
                    rdA(nx % 3, nx // 8, nx % 8)
                for bb in range(7 - aa, -1, -1):
                    z = rho == 0 and aa == 0
                    d = vr(acc + 4 * (aa + bb), 4)
                    p(f"v_mfma_f32_16x16x32_bf16 {d}, {vr(AF + 4 * (n % 3), 4)}, {vr(BF + 4 * bb, 4)}, {'0' if z else d}")
                    if bb == 7 - aa and rho < 3:
                        rdB(bb, rho + 1)
                n += 1
        skip = self.label("noextra")
        p(f"s_cmp_lg_u32 {skh}, 0")
        p(f"s_cbranch_scc1 {skip}")
        rdB(-1, 0)
        for aa in range(1, 9):
            o = (512 * (aa & 1)) // 4
            p(f"ds_read2_b32 {vr(BF + 4 * (aa - 1), 2)}, {vA[aa >> 1]} offset0:{o} offset1:{o + 1}")
            p(f"ds_read2_b32 {vr(BF + 4 * (aa - 1) + 2, 2)}, {vA[aa >> 1]} offset0:{o + 2} offset1:{o + 3}")
        for aa in range(1, 9):
            d = vr(acc + 4 * (aa - 1), 4)
            p(f"v_mfma_f32_16x16x32_bf16 {d}, {vr(BF + 4 * (aa - 1), 4)}, {vr(BF + 32, 4)}, {d}")
        p(f"{skip}:")
        p.wait(lg0=True)
        p("s_nop 7")
        self.stamp(p, "conv mfma")
        p("s_barrier")
        p(f"""
        s_lshl_b32 {sT0}, {sw}, 12
        s_add_u32 {sT0}, {sT0}, {CK}
        v_add_u32 {a}, {sT0}, {vL16}
        """)
        hi, join = self.label("convhi"), self.label("convjoin")
        p(f"s_cmp_lg_u32 {skh}, 0")
        p(f"s_cbranch_scc1 {hi}")
        for g in range(4):
            p(f"ds_write_b128 {a}, {vr(acc + 16 + 4 * g, 4)} offset:{g * 1024}")
        p(f"s_branch {join}")
        p(f"{hi}:")
        for g in range(4):
            p(f"ds_write_b128 {a}, {vr(acc + 4 * g, 4)} offset:{g * 1024}")
        p("s_waitcnt lgkmcnt(0)")
        for i in range(16):
            p(f"v_mov_b32 {vr(acc + i)}, {vr(acc + 16 + i)}")
        p(f"{join}:")
        p("s_waitcnt lgkmcnt(0)")
        p.drained(vm=False, lg=True)
        p(f"""
        v_xor_b32 {a}, 8192, {a}
        v_and_b32 {b}, 15, {vL}
        v_lshlrev_b32 {b}, 5, {b}
        v_lshrrev_b32 {vT[2]}, 4, {vL}
        v_lshl_add_u32 {b}, {vT[2]}, 3, {b}
        s_mul_i32 {sT1}, {sth}, {UCH}
        s_add_u32 {sT1}, {sT1}, {CU + 4120 - 1536}
        s_lshl_b32 {sT2}, {skh}, 11
        s_sub_u32 {sT1}, {sT1}, {sT2}
        v_sub_u32 {vT[2]}, {sT1}, {b}
        s_xor_b32 {sT0}, {sT0}, 8192
        v_add_u32 {b}, {sT0}, {b}
        v_lshlrev_b32 {vr(V_SSM + 5)}, 16, {vr(V_SSM + 5)}
        """)
        p("s_barrier")
        uu = V_B
        for g in range(4):
            p(f"ds_read_b128 {vr(acc + 16 + 4 * g, 4)}, {a} offset:{g * 1024}")
            p(f"ds_read_b64 {vr(uu + 2 * g, 2)}, {vT[2]} offset:{1536 - 512 * g}")
        for x in range(0, 16, 2):
            p(f"v_pk_add_f32 {vr(acc + x, 2)}, {vr(acc + x, 2)}, {vr(acc + 16 + x, 2)}")
        e = acc + 16
        for g in range(4):
            p(f"v_and_b32 {vr(e + 4 * g)}, {sHi}, {vr(uu + 2 * g + 1)}")
            p(f"v_lshlrev_b32 {vr(e + 4 * g + 1)}, 16, {vr(uu + 2 * g + 1)}")
            p(f"v_and_b32 {vr(e + 4 * g + 2)}, {sHi}, {vr(uu + 2 * g)}")
            p(f"v_lshlrev_b32 {vr(e + 4 * g + 3)}, 16, {vr(uu + 2 * g)}")
        for x in range(16):
            p(f"v_fmac_f32 {vr(acc + x)}, {vr(V_SSM + 5)}, {vr(e + x)}")
        for i in range(8):
            p(f"v_cvt_pk_bf16_f32 {vr(uu + i)}, {vr(acc + 2 * i)}, {vr(acc + 2 * i + 1)}")
        last = None
        for g in range(4):
            last = p(f"ds_write_b64 {b}, {vr(uu + 2 * g, 2)} offset:{g * 512}")
        p(f"""
        v_lshrrev_b32 {b}, 3, {vL}
        v_and_b32 {vT[2]}, 7, {vL}
        v_lshlrev_b32 {vT[2]}, 4, {vT[2]}
        v_lshl_add_u32 {b}, {b}, 13, {vT[2]}
        s_lshl_b32 {sT0}, {sj}, 18
        s_lshl_b32 {sT1}, {skh}, 17
        s_add_u32 {sT0}, {sT0}, {sT1}
        s_lshl_b32 {sT1}, {sc}, 1
        s_add_u32 {sT1}, {sT1}, {sth}
        s_lshl_b32 {sT1}, {sT1}, 7
        s_add_u32 {sT0}, {sT0}, {sT1}
        s_add_u32 {sT0}, {sT0}, {WS_YT}
        s_add_u32 {sT1}, {sT0}, 65536
        """)
        p.wait(lg=last)
        p(f"ds_read_b128 {vr(uu + 8, 4)}, {a}")
        p(f"ds_read_b128 {vr(uu + 12, 4)}, {a} offset:1024")
        s0 = p(f"buffer_store_dwordx4 {vr(uu + 8, 4)}, {b}, {sWS}, {sT0} offen sc1")
        s1 = p(f"buffer_store_dwordx4 {vr(uu + 12, 4)}, {b}, {sWS}, {sT1} offen sc1")
        self.w4_bounce(p, t["w4p1"], 1)
        p.wait(lg0=True)
        p("s_barrier")
        t["w3b"] = self.w3_dma(p, 1, R2)
        self.publish(p, [s0, s1], 2, FLAG1)
        self.stamp(p, "conv done")

    def p3(self, p, t):
        idle = self.label("p3idle")
        done = self.label("p3done")
        p(f"s_cmp_ge_u32 {sm}, 14")
        p(f"s_cbranch_scc1 {idle}")
        p(f"""
        v_and_b32 {vT[0]}, 7, {vL}
        v_bfe_u32 {vT[1]}, {vL}, 3, 1
        v_lshlrev_b32 {vT[0]}, 7, {vT[0]}
        v_lshl_add_u32 {vPoll}, {vT[1]}, 3, {vT[0]}
        s_lshl_b32 {sT2}, {ssc}, 1
        s_add_u32 {sT2}, {sT2}, {skh}
        s_lshl_b32 {sT0}, {sT2}, 10
        s_lshl_b32 {sT1}, {sth}, 2
        s_add_u32 {sT0}, {sT0}, {sT1}
        """)
        self.poll(p, vPoll, sT0, 2)
        self.stamp(p, "x1 seen")
        p(f"""
        s_lshl_b32 {sT2}, {ssc}, 2
        s_add_u32 {sT2}, {sT2}, {sw}
        s_lshl_b32 {sT0}, {sT2}, 15
        s_add_u32 {sT0}, {sT0}, {WS_X1}
        s_lshl_b32 {sT2}, {sT2}, 12
        s_add_u32 {sT2}, {sT2}, {WS_STATS}
        """)
        for ks in range(32):
            p(f"buffer_load_dwordx4 {ar(4 * ks, 4)}, {vL16}, {sWS}, {sT0} offen offset:{(ks % 4) * 1024} sc1")
            if ks % 4 == 3 and ks < 31:
                p(f"s_add_u32 {sT0}, {sT0}, 4096")
        stt = V_B
        for i in range(4):
            p(f"buffer_load_dwordx4 {vr(stt + 4 * i, 4)}, {vL16}, {sWS}, {sT2} offen offset:{i * 1024} sc1")
        p(f"""
        s_lshl_b32 {sT0}, {sth}, 6
        s_lshl_b32 {sT1}, {skh}, 16
        v_xor_b32 {vT[0]}, {sT0}, {vTr0}
        v_add_u32 {vT[0]}, {sT1}, {vT[0]}
        """)
        p("s_barrier")
        cs = V_TMP
        for ks in range(32):
            A = V_A + 4 * (ks % 8)
            self.a_reads(p, A, vT[0], ks * 2048)
            if ks >= 4:
                k2 = ks - 4
                p(f"v_mfma_f32_16x16x32_bf16 {vr(cs, 4)}, {vr(V_ONES, 4)}, {vr(V_A + 4 * (k2 % 8), 4)}, {'0' if k2 == 0 else vr(cs, 4)}")
        for k2 in range(28, 32):
            p(f"v_mfma_f32_16x16x32_bf16 {vr(cs, 4)}, {vr(V_ONES, 4)}, {vr(V_A + 4 * (k2 % 8), 4)}, {vr(cs, 4)}")
        p(f"""
        v_and_b32 {vT[1]}, 31, {vL}
        s_lshl_b32 {sT0}, {sw}, 7
        s_add_u32 {sT0}, {sT0}, {ST_CS3}
        v_lshl_add_u32 {vT[1]}, {vT[1]}, 2, {sT0}
        """)
        p(f"ds_write_b32 {vT[1]}, {vr(cs)}")
        p(f"v_add_u32 {vCsA}, {ST_CS3}, {vCsA}")
        acc = [V_ACC + 16 * i for i in range(4)]
        for ks in range(2):
            self.a_reads(p, V_A + 8 * ks, vTr0, ks * 2048)
            self.a_reads(p, V_A + 8 * ks + 4, vTr1, ks * 2048)
        for ks in range(32):
            if ks + 2 < 32:
                A2 = V_A + 8 * ((ks + 2) % 4)
                self.a_reads(p, A2, vTr0, (ks + 2) * 2048)
                self.a_reads(p, A2 + 4, vTr1, (ks + 2) * 2048)
            A = V_A + 8 * (ks % 4)
            z = ks == 0
            p(f"v_mfma_f32_32x32x16_bf16 {vr(acc[0], 16)}, {vr(A, 4)}, {ar(4 * ks, 4)}, {'0' if z else vr(acc[0], 16)}")
            p(f"v_mfma_f32_32x32x16_bf16 {vr(acc[1], 16)}, {vr(A + 4, 4)}, {ar(4 * ks, 4)}, {'0' if z else vr(acc[1], 16)}")
        self.stamp(p, "p3 t01")
        p.wait(lg0=True)
        p("s_barrier")
        t["w4p2"] = self.w4_dma(p, 2, R0)
        for x in (0, 1):
            p(f"v_add_f32 {vr(stt + x)}, {vr(stt + x)}, {vr(stt + 2 + x)}")
        for i in range(1, 4):
            for x in (0, 1):
                p(f"v_add_f32 {vr(stt + x)}, {vr(stt + x)}, {vr(stt + 4 * i + x)}")
                p(f"v_add_f32 {vr(stt + x)}, {vr(stt + x)}, {vr(stt + 4 * i + 2 + x)}")
        self.half_sum(p, vr(stt), vr(stt + 2))
        self.half_sum(p, vr(stt + 1), vr(stt + 3))
        self.ln_consts(p, vr(stt), vr(stt + 1))
        p(f"""
        s_lshl_b32 {sT2}, {ssc}, 1
        s_add_u32 {sT2}, {sT2}, {skh}
        s_mul_i32 {sT2}, {sT2}, 229376
        s_lshl_b32 {sT1}, {sm}, 12
        s_add_u32 {sT2}, {sT2}, {sT1}
        s_lshl_b32 {sT1}, {sth}, 10
        s_add_u32 {sT2}, {sT2}, {sT1}
        s_add_u32 {sT2}, {sT2}, {WS_H2}
        v_add_u32 {vTr0}, {R2}, {vTr0}
        v_add_u32 {vTr1}, {R2}, {vTr1}
        """)

        def epilogue(tile):
            cs16 = V_B + 16
            for g in range(4):
                p(f"ds_read_b128 {vr(cs16 + 4 * g, 4)}, {vCsA} offset:{tile * 128 + g * 32}")
            out = V_TMP + 8 * (tile % 2)
            self.gelu_packed(p, acc[tile], cs16, V_TMP + 16, out)
            s0 = p(f"buffer_store_dwordx4 {vr(out, 4)}, {vL16}, {sWS}, {sT2} offen sc1")
            s1 = p(f"buffer_store_dwordx4 {vr(out + 4, 4)}, {vL16}, {sWS}, {sT2} offen offset:2048 sc1")
            p(f"s_add_u32 {sT2}, {sT2}, 57344")
            return [s0, s1]

        def tile_mfma(tile):
            va = vTr0 if tile % 2 == 0 else vTr1
            for ks in range(4):
                self.a_reads(p, V_A + 4 * ks, va, ks * 2048)
            for ks in range(32):
                if ks + 4 < 32:
                    self.a_reads(p, V_A + 4 * ((ks + 4) % 8), va, (ks + 4) * 2048)
                p(f"v_mfma_f32_32x32x16_bf16 {vr(acc[tile], 16)}, {vr(V_A + 4 * (ks % 8), 4)}, {ar(4 * ks, 4)}, {'0' if ks == 0 else vr(acc[tile], 16)}")

        st0 = epilogue(0)
        st1 = epilogue(1)
        self.publish(p, st0, 3, FLAG0)
        self.stamp(p, "h2 p0 flag")
        tile_mfma(2)
        self.publish(p, st1, 4, FLAG0)
        st2 = epilogue(2)
        tile_mfma(3)
        self.publish(p, st2, 5, FLAG0)
        st3 = epilogue(3)
        self.publish(p, st3, 6, FLAG0)
        p.wait(vm0=True, lg0=True)
        p(f"s_branch {done}")
        p(f"{idle}:")
        p("s_waitcnt vmcnt(0) lgkmcnt(0)")
        p("s_barrier")
        self.w4_dma(p, 2, R0)
        p("s_waitcnt vmcnt(0) lgkmcnt(0)")
        p(f"{done}:")
        p.drained()
        self.stamp(p, "p3 done")

    def p4(self, p, t):
        p("s_barrier")
        w4p3 = self.w4_dma(p, 3, R2)
        p(f"""
        v_and_b32 {vPoll}, 31, {vL}
        v_lshlrev_b32 {vPoll}, 10, {vPoll}
        v_lshrrev_b32 {vT[0]}, 5, {vL}
        v_lshl_add_u32 {vPoll}, {vT[0]}, 2, {vPoll}
        s_lshl_b32 {sT0}, {sj}, 7
        s_lshr_b32 {sT1}, {sc}, 4
        s_lshl_b32 {sT1}, {sT1}, 3
        s_add_u32 {sT0}, {sT0}, {sT1}
        s_add_u32 {sT0}, {sT0}, {FLAG1}
        """)
        self.poll(p, vPoll, sT0, 2)
        p(f"""
        s_lshl_b32 {sT0}, {sj}, 5
        s_add_u32 {sT0}, {sT0}, {sc}
        s_lshl_b32 {sT0}, {sT0}, 13
        s_lshl_b32 {sT1}, {sw}, 11
        s_add_u32 {sT0}, {sT0}, {sT1}
        s_add_u32 {sT0}, {sT0}, {WS_YT}
        s_add_u32 m0, {sT1}, {YB}
        """)
        self.dma(p, vL16, sWS, sT0, 0, "sc1")
        y = self.dma(p, vL16, sWS, sT0, 1024, "sc1")
        p(f"""
        s_lshl_b32 {sT0}, {sc}, 1
        s_add_u32 {sT0}, {sT0}, {sth}
        s_lshl_b32 {sT0}, {sT0}, 11
        s_add_u32 {sT0}, {sT0}, {WS_GATE}
        """)
        gt = V_TMP + 16
        p(f"buffer_load_dwordx4 {vr(gt, 4)}, {vL16}, {sWS}, {sT0} offen sc1")
        p(f"buffer_load_dwordx4 {vr(gt + 4, 4)}, {vL16}, {sWS}, {sT0} offen offset:1024 sc1")
        a, b = vT[0], vT[1]
        p(f"""
        v_lshrrev_b32 {a}, 5, {vL}
        v_lshlrev_b32 {a}, 10, {a}
        v_bfe_u32 {b}, {vL}, 2, 2
        v_lshl_add_u32 {a}, {b}, 7, {a}
        v_bfe_u32 {b}, {vL}, 4, 1
        v_lshl_add_u32 {a}, {b}, 5, {a}
        v_and_b32 {b}, 3, {vL}
        v_lshl_add_u32 {a}, {b}, 3, {a}
        s_lshl_b32 {sT0}, {snh}, 12
        s_lshl_b32 {sT1}, {sth}, 6
        s_add_u32 {sT0}, {sT0}, {sT1}
        s_add_u32 {sT0}, {sT0}, {YB}
        v_add_u32 {a}, {sT0}, {a}
        """)
        p.wait(vm=y)
        p("s_barrier")
        yy = V_TMP + 24
        for i in range(4):
            p(f"ds_read_b64_tr_b16 {vr(yy + 2 * i, 2)}, {a} offset:{(i >> 1) * 2048 + (i & 1) * 512}")
        for i in range(1, 8):
            p(f"v_add_f32 {vr(gt)}, {vr(gt)}, {vr(gt + i)}")
        self.half_sum(p, vr(gt), vr(gt + 1))
        G, OM = V_KK, V_KK + 1
        p(f"v_mul_f32 {vr(gt)}, {fbits(-math.log2(math.e))}, {vr(gt)}")
        p(f"v_exp_f32 {vr(gt)}, {vr(gt)}")
        p(f"v_add_f32 {vr(gt)}, 1.0, {vr(gt)}")
        p(f"v_rcp_f32 {vr(G)}, {vr(gt)}")
        p(f"v_sub_f32 {vr(OM)}, 1.0, {vr(G)}")
        base = V_TMP
        for i in range(8):
            p(f"v_and_b32 {vr(gt)}, 0xffff, {vr(yy + i)}")
            p(f"v_and_b32 {vr(gt + 1)}, {sHi}, {vr(yy + i)}")
            p(f"v_dot2_f32_bf16 {vr(gt + 2)}, {vr(V_XRES + i)}, {vr(gt)}, 0")
            p(f"v_dot2_f32_bf16 {vr(gt + 3)}, {vr(V_XRES + i)}, {vr(gt + 1)}, 0")
            p(f"v_lshlrev_b32 {vr(gt + 4)}, 16, {vr(V_X1P + i)}")
            p(f"v_and_b32 {vr(gt + 5)}, {sHi}, {vr(V_X1P + i)}")
            p(f"v_pk_mul_f32 {vr(gt + 4, 2)}, {vr(gt + 4, 2)}, {vr(V_KK, 2)} op_sel:[0,1] op_sel_hi:[1,1]")
            p(f"v_pk_fma_f32 {vr(base + 2 * i, 2)}, {vr(gt + 2, 2)}, {vr(V_KK, 2)}, {vr(gt + 4, 2)} op_sel:[0,0,0] op_sel_hi:[1,0,1]")
        self.stamp(p, "y ready")
        p(f"""
        v_and_b32 {a}, 3, {vL}
        v_bfe_u32 {b}, {vL}, 2, 1
        v_lshlrev_b32 {a}, 7, {a}
        v_lshl_add_u32 {vPoll}, {b}, 2, {a}
        s_mul_i32 {sT0}, {sw}, 7
        s_lshr_b32 {sT1}, {sT0}, 1
        s_lshl_b32 {sT2}, {ssc}, 4
        s_add_u32 {sT1}, {sT1}, {sT2}
        s_lshl_b32 {sT1}, {sT1}, 7
        s_and_b32 {sT2}, {sc}, 1
        s_lshl_b32 {sT2}, {sT2}, 3
        s_add_u32 {sU[0]}, {sT1}, {sT2}
        s_mul_i32 {sT1}, {sc}, 229376
        s_lshl_b32 {sT0}, {sT0}, 11
        s_add_u32 {sT1}, {sT1}, {sT0}
        s_add_u32 {sU[1]}, {sT1}, {WS_H2}
        s_lshl_b32 {sT0}, {sth}, 10
        v_add_u32 {vT[2]}, {sT0}, {vL16}
        v_xor_b32 {vT[3]}, 1024, {vT[2]}
        """)
        acc = [V_ACC + 16 * i for i in range(4)]
        for piece in range(4):
            self.poll(p, vPoll, sU[0], 3 + piece)
            if piece == 0:
                self.stamp(p, "h2 seen")
            p(f"s_add_u32 {sT0}, {sU[1]}, {piece * 57344}")
            for u in range(7):
                p(f"buffer_load_dwordx4 {ar(8 * u, 4)}, {vT[2]}, {sWS}, {sT0} offen offset:{(u % 2) * 2048} sc1")
                p(f"buffer_load_dwordx4 {ar(8 * u + 4, 4)}, {vT[3]}, {sWS}, {sT0} offen offset:{(u % 2) * 2048} sc1")
                if u % 2 == 1:
                    p(f"s_add_u32 {sT0}, {sT0}, 4096")
            if piece == 2:
                p(f"v_subrev_u32 {vTrX}, {R2}, {vTrX}")
                p(f"v_subrev_u32 {vTrY}, {R2}, {vTrY}")
            if piece == 3:
                p(f"v_add_u32 {vTrX}, {R2}, {vTrX}")
                p(f"v_add_u32 {vTrY}, {R2}, {vTrY}")
            for u in range(7):
                if piece < 2:
                    AX, AY = ar(A_W4 + 56 * piece + 8 * u, 4), ar(A_W4 + 56 * piece + 8 * u + 4, 4)
                else:
                    A = V_A + 8 * (u % 4)
                    self.a_reads(p, A, vTrX, u * 2048)
                    self.a_reads(p, A + 4, vTrY, u * 2048)
                    AX, AY = vr(A, 4), vr(A + 4, 4)
                z = piece == 0 and u == 0
                for slot, (Aop, Bop) in enumerate(((AX, ar(8 * u, 4)), (AY, ar(8 * u, 4)), (AX, ar(8 * u + 4, 4)), (AY, ar(8 * u + 4, 4)))):
                    p(f"v_mfma_f32_32x32x16_bf16 {vr(acc[slot], 16)}, {Aop}, {Bop}, {'0' if z else vr(acc[slot], 16)}")
        self.stamp(p, "p4 mfma")
        p(f"v_add_u32 {a}, {sPriv}, {vL16}")
        for s in range(1, 4):
            for g in range(4):
                p(f"ds_write_b128 {a}, {vr(acc[s] + 4 * g, 4)} offset:{(s - 1) * 4096 + g * 1024}")
        p(f"v_xor_b32 {vT[2]}, {2 << 14}, {a}")
        p(f"v_xor_b32 {vT[3]}, {3 << 14}, {a}")
        p(f"v_xor_b32 {vT[4]}, {1 << 14}, {a}")
        p.wait(lg0=True)
        p("s_barrier")
        for s in range(1, 4):
            for g in range(4):
                p(f"ds_read_b128 {vr(acc[s] + 4 * g, 4)}, {vT[1 + s]} offset:{(s - 1) * 4096 + g * 1024}")
        for s in range(1, 4):
            for x in range(0, 16, 2):
                p(f"v_pk_add_f32 {vr(acc[0] + x, 2)}, {vr(acc[0] + x, 2)}, {vr(acc[s] + x, 2)}")
        for x in range(0, 16, 2):
            p(f"v_pk_fma_f32 {vr(acc[0] + x, 2)}, {vr(acc[0] + x, 2)}, {vr(V_KK, 2)}, {vr(base + x, 2)} op_sel:[0,1,0] op_sel_hi:[1,1,1]")
        for i in range(8):
            p(f"v_cvt_pk_bf16_f32 {vr(base + i)}, {vr(acc[0] + 2 * i)}, {vr(acc[0] + 2 * i + 1)}")
        p(f"buffer_store_dwordx4 {vr(base, 4)}, {vXs[0]}, {sOUT}, 0 offen")
        p(f"buffer_store_dwordx4 {vr(base + 4, 4)}, {vXs[0]}, {sOUT}, 0 offen offset:32")
        self.stamp(p, "out issued")

    def write_stamps(self, p):
        if self.diag:
            p.wait(vm0=True)
            self.stamp(p, "end")
            p(f"""
            s_cmp_lg_u32 s2, 9
            s_cbranch_scc1 L_end
            s_sub_u32 s98, s98, s96
            s_mul_i32 s98, s98, {self.diag[2]}
            s_memrealtime s[96:97]
            s_waitcnt lgkmcnt(0)
            L_diag:
            s_memrealtime s[100:101]
            s_waitcnt lgkmcnt(0)
            s_sub_u32 s100, s100, s96
            s_cmp_lt_u32 s100, s98
            s_cbranch_scc1 L_diag
            """)
        if not self.profile:
            return
        p.wait(vm0=True)
        self.stamp(p, "end")
        p("s_memrealtime s[100:101]")
        p.wait(lg0=True)
        p("v_writelane_b32 v254, s100, 1")
        p(f"""
        s_lshl_b32 {sT0}, s2, 2
        s_add_u32 {sT0}, {sT0}, {sw}
        s_lshl_b32 {sT0}, {sT0}, 8
        s_add_u32 {sT0}, {sT0}, {WS_STAMP}
        v_lshlrev_b32 {vP2}, 2, {vL}
        """)
        p(f"buffer_store_dword v254, {vP2}, {sWS}, {sT0} offen")

    def build(self):
        p = self.p
        self.prologue(p)
        t = self.initial_loads(p)
        self.small_loads(p)
        self.lds_addrs(p)
        self.stamp(p, "issued")
        self.a1(p, t)
        self.p1(p, t)
        self.window1(p, t)
        self.p2(p, t)
        self.conv(p, t)
        self.p3(p, t)
        self.p4(p, t)
        self.write_stamps(p)
        p("L_end:")
        p("s_endpgm")
        assert len(self.stamps) <= 62, len(self.stamps)
        body, items = finalize(p)
        head = open(__file__.replace("gen.py", "header.txt")).read()
        text = head + f"; @launch grid=(256,1,1) block=(256,1,1) lds={LDS_SIZE}\n"
        text += f""".amdgcn_target "amdgcn-amd-amdhsa--gfx950"
.text
.globl {NAME}_kernel
.p2align 8
.type {NAME}_kernel,@function
{NAME}_kernel:
.set CODE_BYTES, L_code_end - {NAME}_kernel - 256
"""
        text += body
        text += f"""L_code_end:
.section .rodata,"a"
.p2align 6
.amdhsa_kernel {NAME}_kernel
  .amdhsa_next_free_vgpr 512
  .amdhsa_next_free_sgpr 102
  .amdhsa_accum_offset 256
  .amdhsa_group_segment_fixed_size 0
  .amdhsa_kernarg_size 120
  .amdhsa_user_sgpr_count 2
  .amdhsa_user_sgpr_kernarg_segment_ptr 1
  .amdhsa_system_sgpr_workgroup_id_x 1
.end_amdhsa_kernel
"""
        return text


if __name__ == "__main__":
    prof = "--profile" in sys.argv
    out = [a for a in sys.argv[1:] if not a.startswith("--")]
    diag = [a[7:].split(",") for a in sys.argv if a.startswith("--diag=")]
    g = Gen(profile=prof, diag=diag[0] if diag else None)
    text = g.build()
    path = out[0] if out else f"cdna_kernels/{NAME}.s"
    open(path, "w").write(text)
    if prof:
        open(path + ".stamps", "w").write("\n".join(g.stamps))
    print("wrote", path, len(text), "bytes")
```

```python
import re

REG_RE = re.compile(r"^(-|\|)?([vas])(\d+)\|?$")
RNG_RE = re.compile(r"^(-|\|)?([vas])\[(\d+):(\d+)\]\|?$")
TRANS = ("v_exp_f32", "v_log_f32", "v_rcp_f32", "v_rsq_f32", "v_sqrt_f32", "v_sin_f32", "v_cos_f32")


def regs_of(tok):
    tok = tok.strip()
    m = REG_RE.match(tok)
    if m:
        return [(m.group(2), int(m.group(3)))]
    m = RNG_RE.match(tok)
    if m:
        return [(m.group(2), i) for i in range(int(m.group(3)), int(m.group(4)) + 1)]
    if tok == "vcc":
        return [("s", "vcc")]
    if tok == "exec":
        return [("s", "exec")]
    if tok == "m0":
        return [("s", "m0")]
    return []


def split_ops(s):
    out, depth, cur = [], 0, ""
    for ch in s:
        if ch == "[":
            depth += 1
        if ch == "]":
            depth -= 1
        if ch == "," and depth == 0:
            out.append(cur.strip())
            cur = ""
        else:
            cur += ch
    if cur.strip():
        out.append(cur.strip())
    return out


class Ins:
    __slots__ = ("text", "op", "kind", "dst", "src", "srcc", "count", "vm", "lg", "wide", "note")

    def __init__(self, text, count=True):
        self.text = text.strip()
        self.count = count
        self.vm = None
        self.lg = None
        self.srcc = set()
        self.wide = set()
        self.note = None
        t = self.text
        if t.endswith(":"):
            self.op, self.kind, self.dst, self.src = t, "label", set(), set()
            return
        if t.startswith(";") or t.startswith("."):
            self.op, self.kind, self.dst, self.src = t, "meta", set(), set()
            return
        parts = t.split(None, 1)
        op = parts[0]
        self.op = op
        rest = parts[1] if len(parts) > 1 else ""
        ops = split_ops(rest)
        mods = ""
        if ops:
            last = ops[-1].split(None, 1)
            ops[-1] = last[0]
            mods = last[1] if len(last) > 1 else ""
        R = [regs_of(o) for o in ops]
        flat = lambda xs: set(r for x in xs for r in x)
        dst, src = set(), set()
        if op.startswith("v_mfma"):
            self.kind = "mfma32" if "32x32" in op else "mfma16"
            dst, src = flat(R[:1]), flat(R[1:])
            self.srcc = flat(R[3:4])
        elif op.startswith("buffer_load") or op.startswith("global_load"):
            if re.search(r"\blds\b", mods):
                self.kind = "dma"
                src = flat(R) | {("s", "m0")}
            else:
                self.kind = "vld"
                dst, src = flat(R[:1]), flat(R[1:])
        elif op.startswith("buffer_store"):
            self.kind = "vst"
            src = flat(R)
            if "x4" in op or "x3" in op:
                self.wide = flat(R[:1])
        elif op.startswith("global_store"):
            self.kind = "vst"
            src = flat(R)
            if "x4" in op or "x3" in op:
                self.wide = flat(R[1:2])
        elif op.startswith("ds_read") or op.startswith("ds_bpermute"):
            self.kind = "dsr"
            dst, src = flat(R[:1]), flat(R[1:])
        elif op.startswith("ds_write"):
            self.kind = "dsw"
            src = flat(R)
        elif op.startswith("s_load") or op.startswith("s_memtime") or op.startswith("s_memrealtime"):
            self.kind = "smem"
            dst, src = flat(R[:1]), flat(R[1:])
        elif op == "s_waitcnt":
            self.kind = "rawwait"
        elif op == "s_barrier":
            self.kind = "barrier"
        elif op == "s_nop":
            self.kind = "nop"
        elif op.startswith("s_cbranch") or op == "s_branch":
            self.kind = "branch"
            if "vcc" in op:
                src = {("s", "vcc")}
        elif op in ("s_endpgm", "s_sleep", "s_setprio"):
            self.kind = "salu"
        elif op.startswith("s_cmp") or op.startswith("s_bitcmp"):
            self.kind = "salu"
            src = flat(R)
        elif op.startswith("s_"):
            self.kind = "salu"
            dst, src = flat(R[:1]), flat(R[1:])
            if "saveexec" in op:
                dst |= {("s", "exec")}
        elif op.startswith("v_"):
            base = op.replace("_e32", "").replace("_e64", "")
            self.kind = "trans" if base in TRANS else "valu"
            dst, src = flat(R[:1]), flat(R[1:])
            if "permlane" in op and "swap" in op:
                dst, src = flat(R[:2]), flat(R[:2])
            if op.startswith("v_fmac") or op.startswith("v_dot2c") or op.startswith("v_pk_fmac"):
                src |= dst
            if op.startswith("v_add_co") or op.startswith("v_addc_co"):
                dst, src = flat(R[:2]), flat(R[2:])
            if op.startswith("v_cndmask") and len(ops) == 3:
                src |= {("s", "vcc")}
        else:
            raise ValueError("unknown instruction: " + t)
        self.dst, self.src = dst, src


class Wait:
    kind = "wait"

    def __init__(self, vm=(), lg=(), vm0=False, lg0=False):
        self.vm, self.lg, self.vm0, self.lg0 = list(vm), list(lg), vm0, lg0


class Drained:
    kind = "drained"

    def __init__(self, vm=True, lg=True):
        self.vm, self.lg = vm, lg


class Seq:
    def __init__(self):
        self.items = []

    def __call__(self, text, count=True):
        last = None
        for line in text.strip().split("\n"):
            line = line.strip()
            if not line:
                continue
            last = Ins(line, count)
            self.items.append(last)
        return last

    def wait(self, vm=(), lg=(), vm0=False, lg0=False):
        if isinstance(vm, Ins):
            vm = [vm]
        if isinstance(lg, Ins):
            lg = [lg]
        self.items.append(Wait(vm, lg, vm0, lg0))

    def drained(self, vm=True, lg=True):
        self.items.append(Drained(vm, lg))

    def extend(self, other):
        self.items.extend(other.items)

    def groups(self):
        out, cur = [], []
        for it in self.items:
            cur.append(it)
            if it.kind in ("salu", "wait", "meta"):
                continue
            out.append(cur)
            cur = []
        if cur:
            out.append(cur)
        return out


def weave(fg, plan, kinds=("mfma32", "mfma16")):
    out = Seq()
    plan = sorted(enumerate(plan), key=lambda e: (e[1][0], e[0]))
    plan = [e[1] for e in plan]
    gi, n = 0, 0
    while gi < len(plan) and plan[gi][0] <= 0:
        out.extend(plan[gi][1])
        gi += 1
    for it in fg.items:
        out.items.append(it)
        if it.kind in kinds:
            n += 1
            while gi < len(plan) and plan[gi][0] <= n:
                out.extend(plan[gi][1])
                gi += 1
    for _, g in plan[gi:]:
        out.extend(g)
    return out


def spread(groups, first, last):
    n = len(groups)
    return [(first + (last - first) * i // max(n - 1, 1), g) for i, g in enumerate(groups)]


def split(seq):
    out = []
    for g in seq.groups():
        q = Seq()
        q.items = list(g)
        out.append(q)
    return out


VM_KINDS = ("vld", "vst", "dma")
LG_KINDS = ("dsr", "dsw")


def resolve_waits(items):
    out = []
    vm_n, vm_done = 0, 0
    lg_n, lg_done = 0, 0
    smem_pending = False
    pend = {}

    def emit(need_vm, need_lg, lg0=False):
        nonlocal vm_done, lg_done, smem_pending
        parts = []
        if need_vm > vm_done:
            n = min(vm_n - need_vm, 63)
            parts.append(f"vmcnt({n})")
            vm_done = vm_n - n
        if lg0 or (need_lg > lg_done and smem_pending):
            if smem_pending or lg_done < lg_n:
                parts.append("lgkmcnt(0)")
            lg_done, smem_pending = lg_n, False
        elif need_lg > lg_done:
            n = min(lg_n - need_lg, 15)
            parts.append(f"lgkmcnt({n})")
            lg_done = lg_n - n
        if parts:
            out.append(Ins("s_waitcnt " + " ".join(parts)))

    for it in items:
        if it.kind == "wait":
            nv = vm_n if it.vm0 else max([t.vm for t in it.vm], default=0)
            nl = max([t.lg for t in it.lg], default=0)
            if it.vm0:
                parts = ["vmcnt(0)"]
                vm_done = vm_n
                if it.lg0:
                    parts.append("lgkmcnt(0)")
                    lg_done, smem_pending = lg_n, False
                out.append(Ins("s_waitcnt " + " ".join(parts)))
                if not it.lg0:
                    emit(0, nl)
            else:
                emit(nv, nl, it.lg0)
            continue
        if it.kind == "drained":
            if it.vm:
                vm_done = vm_n
            if it.lg:
                lg_done, smem_pending = lg_n, False
            continue
        if it.kind not in ("label", "meta"):
            nv, nl, l0 = 0, 0, False
            for r in it.src | it.dst:
                p = pend.get(r)
                if p is None:
                    continue
                if p.kind == "vld":
                    if p.count:
                        nv = max(nv, p.vm)
                elif p.kind == "dsr":
                    if it.kind == "dsr" and r in it.dst and r not in it.src:
                        continue
                    nl = max(nl, p.lg)
                elif p.kind == "smem" and smem_pending:
                    l0 = True
            emit(nv, nl, l0)
        out.append(it)
        if it.kind in VM_KINDS:
            if it.count:
                vm_n += 1
            it.vm = vm_n
        if it.kind in LG_KINDS:
            lg_n += 1
            it.lg = lg_n
        if it.kind == "smem":
            smem_pending = True
        if it.kind in ("vld", "dsr", "smem"):
            for r in it.dst:
                pend[r] = it
        else:
            for r in it.dst:
                pend.pop(r, None)
    return out


def states(it):
    if it.kind == "nop":
        return int(it.text.split()[1]) + 1
    if it.kind in ("label", "meta"):
        return 0
    return 1


def is_valu(it):
    return it.kind in ("valu", "trans")


def need_gap(p, c):
    g = 0
    pv = {r for r in p.dst if r[0] in "va"}
    ps = {r for r in p.dst if r[0] == "s"}
    c_mfma = c.kind in ("mfma32", "mfma16")
    if is_valu(p):
        if c_mfma and pv & c.src:
            g = max(g, 2)
        if ps & c.src and c.kind in VM_KINDS:
            g = max(g, 5)
        if ps & c.src and is_valu(c):
            g = max(g, 4 if ("readlane" in c.op or "writelane" in c.op) else 2)
        if pv & c.src and ("readfirstlane" in c.op or "readlane" in c.op):
            g = max(g, 1)
        if pv & c.src and ("permlane" in c.op or "dpp" in c.text or "row_" in c.text):
            g = max(g, 2)
        if p.kind == "trans" and pv & c.src and c.kind == "valu":
            g = max(g, 1)
        if p.op.startswith("v_dot") and pv & (c.src | c.dst):
            same_acc = c.op == p.op and not (pv & (c.src - _dot_acc(c)))
            if not same_acc:
                g = max(g, 3)
        if ("s", "exec") in p.dst and c_mfma:
            g = max(g, 4)
    if p.kind == "salu" and ("s", "m0") in p.dst and c.kind == "dma":
        g = max(g, 1)
    if p.kind in ("mfma32", "mfma16"):
        big = p.kind == "mfma32"
        if c_mfma:
            if pv & (c.src - c.srcc):
                g = max(g, 12 if big else 8)
            if pv & c.srcc and not (c.srcc == pv and c.kind == p.kind):
                g = max(g, 10 if big else 6)
            if pv & c.dst and not (pv & c.srcc):
                g = max(g, 12 if big else 8)
        else:
            if pv & (c.src | c.dst):
                g = max(g, 12 if big else 8)
            if is_valu(c) and p.srcc & c.dst:
                g = max(g, 7 if big else 3)
    if p.wide and p.wide & c.dst:
        g = max(g, 2)
    return g


def _dot_acc(c):
    ops = split_ops(c.text.split(None, 1)[1])
    if c.op.startswith("v_dot2c"):
        return set(regs_of(ops[0]))
    return set(regs_of(ops[3].split()[0])) if len(ops) > 3 else set()


def pad_hazards(items):
    out = []
    for it in items:
        if it.kind not in ("label", "meta", "nop"):
            need, dist = 0, 0
            for p in reversed(out):
                if dist >= 12:
                    break
                if p.kind not in ("label", "meta", "nop", "rawwait"):
                    need = max(need, need_gap(p, it) - dist)
                dist += states(p)
            if need > 0:
                out.append(Ins(f"s_nop {need - 1}"))
        out.append(it)
    return out


def finalize(seq):
    items = pad_hazards(resolve_waits(seq.items))
    lines = []
    for it in items:
        if it.kind == "label":
            lines.append(it.text)
        else:
            lines.append("    " + it.text)
    return "\n".join(lines) + "\n", items
```

```python
import math
import struct
import sys

from asmdsl import Seq, finalize, weave, spread, split

NAME = "gated_mix__ssm_conv_h3__mixer_s_mlp__prompt"

FLAG0, FLAG1 = 0x0, 0x8000
WS_H, WS_X1, WS_H2, WS_KVT, WS_YT = 0x100000, 0x300000, 0x500000, 0xC00000, 0xE00000
WS_STATS, WS_GATE, WS_STAMP = 0x1000000, 0x1080000, 0x1100000
WS_SIZE = 0x1200000

R0, R1, R2, R3, R4 = 0, 32768, 65536, 98304, 131072
EX1, KB, VB, A1R = R2, R2 + 16384, R2 + 25600, R2 + 33792
ST = R4 + 28672
ST_STAT, ST_CS, ST_CS3 = ST, ST + 1024, ST + 1536
KCOPY, KCH = 4288, 8576
CK, CU, UCH = R4, R4 + 17152, 4672
YB = R4
LDS_SIZE = 163840

sX, sK, sV, sSK, sW1, sW2, sW3, sW4, sOUT, sWS, sDBG = [f"s[{4 + 4 * i}:{7 + 4 * i}]" for i in range(11)]
pSH, pD, pG = "s[48:49]", "s[50:51]", "s[52:53]"
sw, sth, skh, snh, sc, sj, sm, ssc = [f"s{i}" for i in range(54, 62)]
srot, sOneLo, sOneHi, sOnes, sHi = "s62", "s63", "s64", "s65", "s66"
sT0, sT1, sT2, sT3, sCnt = "s67", "s68", "s69", "s70", "s71"
sU = [f"s{i}" for i in range(72, 79)]
sFlag, sPriv = "s79", "s80"
sWsrc, sWlds, sA, sB, sC, sD, sE, sOob = [f"s{i}" for i in range(81, 89)]
sH2st, sH2fl, sH2ld, sX1ld, sStld = [f"s{i}" for i in range(89, 94)]

vL, vL16, vTrX, vTrY, vTr0, vTr1, vWs, vW3s = [f"v{i}" for i in range(1, 9)]
vXs = [f"v{i}" for i in range(9, 13)]
vXr = [f"v{i}" for i in range(13, 17)]
vPoll, vP2, vZero, vCsA = "v17", "v18", "v19", "v20"
vT = [f"v{i}" for i in range(21, 28)]
V_KK, V_SM = 28, 30
V_XRES, V_X1P = 32, 40
V_B, V_ACC, V_A, V_TMP = 48, 112, 176, 208
V_ONES = 244
V_SSM = 232
vPv, vPw, vKv, vKh = "v248", "v249", "v250", "v251"
V_SK = 252
A_W2, A_PARK = 0, 128


def vr(b, n=1):
    return f"v{b}" if n == 1 else f"v[{b}:{b + n - 1}]"


def ar(b, n=1):
    return f"a{b}" if n == 1 else f"a[{b}:{b + n - 1}]"


def fbits(x):
    return "0x%08x" % struct.unpack("<I", struct.pack("<f", x))[0]


C0 = math.sqrt(2.0 / math.pi)
GK1 = -2.0 * C0 * math.log2(math.e)
GK2 = GK1 * 0.044715
SPIN_LIMIT = 400000


class Gen:
    def __init__(self, profile=False, diag=None, opt=None):
        self.profile = profile
        self.opt = opt or {}
        self.diag = diag
        self.p = Seq()
        self.nlabel = 0
        self.stamps = []

    def label(self, base):
        self.nlabel += 1
        return f"L_{base}_{self.nlabel}"

    def stamp(self, p, name):
        if self.diag and name in self.diag[:2]:
            r = 96 + 2 * self.diag.index(name)
            p(f"{'s_memtime' if len(self.diag) > 3 else 's_memrealtime'} s[{r}:{r + 1}]")
            p.wait(lg0=True)
        if not self.profile:
            return
        i = len(self.stamps)
        self.stamps.append(name)
        p("s_memtime s[100:101]")
        p.wait(lg0=True)
        p(f"v_writelane_b32 v254, s100, {i + 2}")

    def dma(self, p, vaddr, srd, soff, imm=0, flags="", count=True):
        off = f" offset:{imm}" if imm else ""
        return p(f"buffer_load_dwordx4 {vaddr}, {srd}, {soff} offen{off} {flags} lds", count)

    def dma_groups(self, vsrc, srd, s_base, s_tmp, lds_reg, items):
        groups, toks = [], []
        for lds, src in items:
            g = Seq()
            g(f"s_add_u32 m0, {lds_reg}, {lds}")
            g(f"s_add_u32 {s_tmp}, {s_base}, {src}")
            toks.append(self.dma(g, vsrc, srd, s_tmp))
            groups.append(g)
        return groups, toks

    def emit(self, p, groups):
        for g in groups:
            p.extend(g)

    def poll_issue(self, p, dst, vaddr, soff, srd=sWS):
        return p(f"buffer_load_dword {dst}, {vaddr}, {srd}, {soff} offen sc1")

    def poll_check(self, p, dst, vaddr, soff, need, srd=sWS):
        a, b = self.label("poll"), self.label("pdone")
        p(f"v_cmp_gt_u32 vcc, {need}, {dst}")
        p(f"s_cbranch_vccz {b}")
        p(f"s_mov_b32 {sCnt}, {SPIN_LIMIT}")
        p(f"{a}:")
        p("s_sleep 4")
        p(f"buffer_load_dword {dst}, {vaddr}, {srd}, {soff} offen sc1", count=False)
        p("s_waitcnt vmcnt(0)")
        p(f"v_cmp_gt_u32 vcc, {need}, {dst}")
        p(f"s_cbranch_vccz {b}")
        p(f"s_sub_u32 {sCnt}, {sCnt}, 1")
        p(f"s_cmp_lg_u32 {sCnt}, 0")
        p(f"s_cbranch_scc1 {a}")
        p(f"{b}:")

    def publish(self, p, toks, value, area):
        p.wait(vm=toks)
        p(f"v_mov_b32 {vP2}, {value}")
        p(f"s_add_u32 {sE}, {sFlag}, {area}")
        p("s_mov_b64 exec, 1")
        t = p(f"buffer_store_dword {vP2}, {vZero}, {sWS}, {sE} offen sc1")
        p("s_mov_b64 exec, -1")
        return t

    def half_sum(self, p, reg, tmp):
        p(f"v_mov_b32 {tmp}, {reg}")
        p(f"v_permlane32_swap_b32 {reg}, {tmp}")
        p(f"v_add_f32 {reg}, {reg}, {tmp}")

    def a_reads(self, p, dst, vaddr, off, areg=False):
        f = ar if areg else vr
        p(f"ds_read_b64_tr_b16 {f(dst, 2)}, {vaddr} offset:{off}")
        return p(f"ds_read_b64_tr_b16 {f(dst + 2, 2)}, {vaddr} offset:{off + 512}")

    def ln_consts(self, p, vsum, vsq):
        p(f"v_mul_f32 {vr(V_SM + 1)}, {fbits(-1.0 / 512)}, {vsum}")
        p(f"v_mul_f32 {vsq}, {fbits(1.0 / 512)}, {vsq}")
        p(f"v_fma_f32 {vsq}, -{vr(V_SM + 1)}, {vr(V_SM + 1)}, {vsq}")
        p(f"v_max_f32 {vsq}, 0, {vsq}")
        p(f"v_add_f32 {vsq}, {fbits(1e-5)}, {vsq}")
        p(f"v_rsq_f32 {vsum}, {vsq}")
        p(f"v_sqrt_f32 {vr(V_SM)}, {vsq}")
        p(f"v_mul_f32 {vr(V_KK)}, {fbits(GK1)}, {vsum}")
        p(f"v_mul_f32 {vsq}, {vsum}, {vsum}")
        p(f"v_mul_f32 {vsq}, {vsq}, {vsum}")
        p(f"v_mul_f32 {vr(V_KK + 1)}, {fbits(GK2)}, {vsq}")

    def gelu_packed(self, p, acc, cs, tmp, out, n=16):
        KK, SM = vr(V_KK, 2), vr(V_SM, 2)
        for b in range(0, n, 8):
            pr = [b + 2 * i for i in range(4)]
            t = lambda x: tmp + (x - b)
            for x in pr:
                p(f"v_pk_fma_f32 {vr(acc + x, 2)}, {vr(cs + x, 2)}, {SM}, {vr(acc + x, 2)} op_sel:[0,1,0] op_sel_hi:[1,1,1]")
            for x in pr:
                p(f"v_pk_mul_f32 {vr(t(x), 2)}, {vr(acc + x, 2)}, {vr(acc + x, 2)}")
            for x in pr:
                p(f"v_pk_fma_f32 {vr(t(x), 2)}, {vr(t(x), 2)}, {KK}, {KK} op_sel:[0,1,0] op_sel_hi:[1,1,0]")
            for x in pr:
                p(f"v_pk_mul_f32 {vr(t(x), 2)}, {vr(t(x), 2)}, {vr(acc + x, 2)}")
            for x in range(b, b + 8):
                p(f"v_exp_f32 {vr(t(x))}, {vr(t(x))}")
            for x in pr:
                p(f"v_pk_fma_f32 {vr(t(x), 2)}, {vr(t(x), 2)}, {SM}, {SM} op_sel:[0,0,0] op_sel_hi:[1,0,0]")
            for x in range(b, b + 8):
                p(f"v_rcp_f32 {vr(t(x))}, {vr(t(x))}")
            for x in pr:
                p(f"v_pk_mul_f32 {vr(t(x), 2)}, {vr(t(x), 2)}, {vr(acc + x, 2)}")
            for x in pr:
                p(f"v_cvt_pk_bf16_f32 {vr(out + x // 2)}, {vr(t(x))}, {vr(t(x) + 1)}")

    def prologue(self, p):
        p("s_cmp_ge_u32 s2, 256")
        p("s_cbranch_scc1 L_end")
        if self.profile:
            p("v_mov_b32 v254, 0")
            p("s_memrealtime s[100:101]")
            p.wait(lg0=True)
            p("v_writelane_b32 v254, s100, 0")
        self.stamp(p, "start")
        for i, off in enumerate((0, 8, 16, 32, 56, 64, 72, 80, 96, 112, 104)):
            p(f"s_load_dwordx2 s[{4 + 4 * i}:{5 + 4 * i}], s[0:1], {off}")
        p(f"s_load_dwordx2 {pSH}, s[0:1], 24")
        p(f"s_load_dwordx2 {pD}, s[0:1], 40")
        p(f"s_load_dwordx2 {pG}, s[0:1], 88")
        skip = self.label("nopf")
        p("s_cmp_ge_u32 s2, 16")
        p(f"s_cbranch_scc1 {skip}")
        p("s_getpc_b64 s[68:69]")
        p("s_lshr_b32 s70, s2, 3")
        p("s_lshl_b32 s70, s70, 15")
        p("v_lshlrev_b32 v1, 7, v0")
        p("v_add_u32 v1, s70, v1")
        p("v_cmp_gt_u32 vcc, CODE_BYTES, v1")
        p("s_and_saveexec_b64 s[72:73], vcc")
        p(f"s_cbranch_execz {skip}_r")
        p("global_load_dword v255, v1, s[68:69]", count=False)
        p(f"{skip}_r:")
        p("s_mov_b64 exec, s[72:73]")
        p(f"{skip}:")
        row, t1, t2 = vT[0], vT[1], vT[2]
        p(f"""
        v_lshrrev_b32 {vT[3]}, 6, v0
        v_and_b32 {vL}, 63, v0
        v_readfirstlane_b32 {sw}, {vT[3]}
        v_lshlrev_b32 {vL16}, 4, {vL}
        v_mov_b32 {vZero}, 0
        v_lshrrev_b32 {row}, 3, {vL}
        v_and_b32 {t2}, 7, {vL}
        s_and_b32 {sT0}, s2, 7
        s_lshr_b32 {sT1}, s2, 6
        s_lshl_b32 {sc}, {sT0}, 2
        s_add_u32 {sc}, {sc}, {sT1}
        s_lshr_b32 {sj}, s2, 3
        s_and_b32 {sj}, {sj}, 7
        s_add_u32 {srot}, {sj}, {sT1}
        s_and_b32 {srot}, {srot}, 3
        s_and_b32 {sth}, {sw}, 1
        s_lshr_b32 {skh}, {sw}, 1
        s_lshl_b32 {sPriv}, {sw}, 14
        """)
        p(f"""
        s_lshr_b32 {sT0}, {sj}, 2
        s_add_u32 {sT0}, {sT0}, 1
        s_sub_u32 {sT1}, 0, {sT0}
        s_bitcmp1_b32 {sj}, 1
        s_cselect_b32 {sT0}, {sT0}, {sT1}
        s_lshl_b32 {sT1}, {sc}, 6
        s_add_u32 {sT0}, {sT0}, {sT1}
        s_lshl_b32 {sT1}, {sth}, 5
        s_add_u32 {sT0}, {sT0}, {sT1}
        s_lshl_b32 {sT0}, {sT0}, 10
        s_lshl_b32 {sT1}, {skh}, 9
        s_add_u32 {sT0}, {sT0}, {sT1}
        v_lshrrev_b32 {t1}, 1, {row}
        v_xor_b32 {t1}, {t1}, {t2}
        v_lshlrev_b32 {t1}, 4, {t1}
        v_lshl_add_u32 {t1}, {row}, 10, {t1}
        v_add_u32 {vXs[0]}, {sT0}, {t1}
        v_xor_b32 {t1}, 64, {t1}
        v_add_u32 {t1}, {sT0}, {t1}
        v_add_u32 {vXs[1]}, 8192, {t1}
        v_add_u32 {vXs[2]}, 16384, {vXs[0]}
        v_add_u32 {vXs[3]}, 24576, {t1}
        """)
        sizes = (1 << 21, 1 << 21, 1 << 21, 1 << 21, 1 << 19, 1 << 19, 512 * 3584, 1792 * 1024, 1 << 21, WS_SIZE, 256)
        for i, n in enumerate(sizes):
            p(f"s_mov_b32 s{6 + 4 * i}, {n}")
            p(f"s_mov_b32 s{7 + 4 * i}, 0x20000")
        p.wait(lg0=True)

    def clear_flags(self, p):
        skip = self.label("noclr")
        p(f"s_or_b32 {sT0}, s2, {sw}")
        p(f"s_cmp_lg_u32 {sT0}, 0")
        p(f"s_cbranch_scc1 {skip}")
        for i in range(4):
            p(f"v_mov_b32 {vr(V_TMP + i)}, 0")
        p(f"v_lshlrev_b32 {vT[5]}, 7, {vL}")
        for i in range(8):
            p(f"s_mov_b32 {sT0}, {i * 8192}")
            p(f"buffer_store_dwordx4 {vr(V_TMP, 4)}, {vT[5]}, {sWS}, {sT0} offen sc1", count=False)
        p(f"{skip}:")

    def x_loads(self, p):
        xs = []
        for pos in range(4):
            p(f"s_add_u32 {sT0}, {srot}, {pos}")
            p(f"s_and_b32 {sT0}, {sT0}, 3")
            p(f"s_lshl_b32 {sT0}, {sT0}, 7")
            for a in range(4):
                p(f"s_add_u32 m0, {sPriv}, {R2 + (pos * 4 + a) * 1024}")
                xs.append(self.dma(p, vXs[a], sX, sT0))
        return xs

    def setup2(self, p):
        row, t1, t2 = vT[0], vT[1], vT[2]
        p(f"""
        s_xor_b32 {snh}, {sth}, {skh}
        s_mov_b32 {sOneLo}, 0x00003f80
        s_mov_b32 {sOneHi}, 0x3f800000
        s_mov_b32 {sOnes}, 0x3f803f80
        s_mov_b32 {sHi}, 0xffff0000
        s_lshl_b32 {sFlag}, {sc}, 3
        s_add_u32 {sFlag}, {sFlag}, {sj}
        s_lshl_b32 {sFlag}, {sFlag}, 7
        s_lshl_b32 {sT0}, {sw}, 2
        s_add_u32 {sFlag}, {sFlag}, {sT0}
        s_lshr_b32 {sT0}, {sc}, 3
        s_lshl_b32 {ssc}, {sT0}, 2
        s_and_b32 {sT0}, {sc}, 3
        s_add_u32 {ssc}, {ssc}, {sT0}
        s_bfe_u32 {sT0}, {sc}, 0x10002
        s_mul_i32 {sm}, {sT0}, 7
        s_add_u32 {sm}, {sm}, {sj}
        s_cmp_eq_u32 {sj}, 7
        s_cselect_b32 s30, 0, s30
        s_cselect_b32 {sOob}, {WS_SIZE}, 0
        s_lshl_b32 {sWlds}, {skh}, 15
        s_lshl_b32 {sT1}, {sth}, 12
        s_add_u32 {sWlds}, {sWlds}, {sT1}
        s_lshl_b32 {sWsrc}, {skh}, 18
        s_lshl_b32 {sT1}, {sth}, 15
        s_add_u32 {sWsrc}, {sWsrc}, {sT1}
        s_lshl_b32 {sT1}, {sj}, 7
        s_add_u32 {sWsrc}, {sWsrc}, {sT1}
        v_lshrrev_b32 {t1}, 2, {vL}
        v_and_b32 {t1}, 4, {t1}
        v_xor_b32 {t1}, {t1}, {t2}
        v_lshlrev_b32 {t1}, 4, {t1}
        v_lshl_add_u32 {vWs}, {row}, 10, {t1}
        v_mul_u32_u24 {vW3s}, 3584, {row}
        v_add_u32 {vW3s}, {vW3s}, {t1}
        s_lshl_b32 {sT0}, {sc}, 16
        s_add_u32 {sT0}, {sT0}, {sT1}
        v_lshlrev_b32 {vKv}, 4, {t2}
        v_lshl_add_u32 {vKv}, {row}, 10, {vKv}
        v_add_u32 {vKv}, {sT0}, {vKv}
        v_subrev_u32 {vKh}, 8192, {vKv}
        """)

    def w12_groups(self, srd, lds, pos):
        groups, toks = self.dma_groups(vWs, srd, sA, sB, sWlds, [(lds + pos * 8192 + i * 1024, i * 8192) for i in range(4)])
        g = Seq()
        g(f"s_add_u32 {sA}, {srot}, {pos}")
        g(f"s_and_b32 {sA}, {sA}, 3")
        g(f"s_lshl_b32 {sA}, {sA}, 16")
        g(f"s_add_u32 {sA}, {sA}, {sWsrc}")
        g.extend(groups[0])
        groups[0] = g
        return groups, toks

    def kv_groups(self, t):
        g0 = Seq()
        skip = self.label("nohalo")
        g0(f"s_cmp_lg_u32 {sw}, 0")
        g0(f"s_cbranch_scc1 {skip}")
        g0(f"s_mov_b32 m0, {KB}")
        self.dma(g0, vKh, sK, "0", count=False)
        g0(f"{skip}:")
        g0(f"""
        s_lshl_b32 {sC}, {sj}, 6
        s_lshl_b32 {sD}, {sw}, 4
        s_add_u32 {sC}, {sC}, {sD}
        v_and_b32 {vKh}, 15, {vL}
        v_add_u32 {vKh}, {sC}, {vKh}
        v_lshlrev_b32 {vKh}, 3, {vKh}
        """)
        g0(f"global_load_dwordx2 {vr(V_SK, 2)}, {vKh}, {pSH}")
        g0(f"s_lshl_b32 {sC}, {sw}, 13")
        g0(f"s_lshl_b32 {sD}, {sw}, 10")
        gk, tk = self.dma_groups(vKv, sK, sC, sB, sD, [(KB + 1024, 0), (KB + 5120, 32768)])
        gv, tv = self.dma_groups(vKv, sV, sC, sB, sD, [(VB, 0), (VB + 4096, 32768)])
        t["kv"] = tk + tv
        return [g0] + gk + gv

    def small_groups(self):
        g = Seq()
        g(f"""
        s_lshl_b32 {sC}, {sc}, 6
        s_lshl_b32 {sD}, {sth}, 5
        s_add_u32 {sC}, {sC}, {sD}
        s_lshl_b32 {sC}, {sC}, 10
        s_lshl_b32 {sD}, {sj}, 7
        s_lshl_b32 {sB}, {snh}, 6
        s_add_u32 {sD}, {sD}, {sB}
        v_and_b32 {vKv}, 31, {vL}
        v_lshrrev_b32 {vKh}, 5, {vL}
        v_lshlrev_b32 {vKh}, 4, {vKh}
        v_add_u32 {vKh}, {sD}, {vKh}
        v_lshl_add_u32 {vXs[0]}, {vKv}, 10, {vKh}
        v_add_u32 {vXs[0]}, {sC}, {vXs[0]}
        """)
        g(f"buffer_load_dwordx4 {vr(V_XRES, 4)}, {vXs[0]}, {sX}, 0 offen")
        g(f"buffer_load_dwordx4 {vr(V_XRES + 4, 4)}, {vXs[0]}, {sX}, 0 offen offset:32")
        g(f"global_load_dwordx4 {vr(V_X1P, 4)}, {vKh}, {pG}")
        g(f"global_load_dwordx4 {vr(V_X1P + 4, 4)}, {vKh}, {pG} offset:32")
        h = Seq()
        h(f"""
        s_lshl_b32 {sC}, {sj}, 6
        s_lshl_b32 {sD}, {sc}, 1
        s_add_u32 {sC}, {sC}, {sD}
        s_add_u32 {sC}, {sC}, {sth}
        s_lshl_b32 {sD}, {sC}, 1
        v_mov_b32 {vKh}, {sD}
        s_lshl_b32 {sC}, {sC}, 12
        s_lshl_b32 {sD}, {skh}, 11
        s_add_u32 {sC}, {sC}, {sD}
        """)
        h(f"buffer_load_dwordx4 {vr(V_SSM, 4)}, {vL16}, {sSK}, {sC} offen")
        h(f"buffer_load_dwordx4 {vr(V_SSM + 6, 4)}, {vL16}, {sSK}, {sC} offen offset:1024")
        h(f"buffer_load_dword {vr(V_SSM + 4)}, {vL16}, {sSK}, {sC} offen offset:16")
        h(f"buffer_load_dword {vr(V_SSM + 10)}, {vL16}, {sSK}, {sC} offen offset:1040")
        h(f"global_load_ushort {vr(V_SSM + 5)}, {vKh}, {pD}")
        return g, h

    def lds_addrs(self, p):
        a, b, c = vT[0], vT[1], vT[2]
        p(f"""
        v_lshrrev_b32 {a}, 5, {vL}
        v_lshlrev_b32 {vTr0}, 10, {a}
        v_lshlrev_b32 {vCsA}, 4, {a}
        v_bfe_u32 {a}, {vL}, 2, 2
        v_lshl_add_u32 {vTr0}, {a}, 7, {vTr0}
        v_lshrrev_b32 {a}, 1, {a}
        v_lshl_add_u32 {vTr0}, {a}, 6, {vTr0}
        v_bfe_u32 {a}, {vL}, 4, 1
        v_lshl_add_u32 {vTr0}, {a}, 5, {vTr0}
        v_and_b32 {a}, 1, {vL}
        v_lshl_add_u32 {vTr0}, {a}, 4, {vTr0}
        v_bfe_u32 {a}, {vL}, 1, 1
        v_lshl_add_u32 {vTr0}, {a}, 3, {vTr0}
        s_lshl_b32 {sT0}, {snh}, 6
        s_lshl_b32 {sT1}, {skh}, 15
        v_xor_b32 {vTrX}, {sT0}, {vTr0}
        v_add_u32 {vTrX}, {sT1}, {vTrX}
        v_xor_b32 {vTrY}, 64, {vTrX}
        v_bfe_u32 {a}, {vL}, 3, 2
        v_lshlrev_b32 {a}, 10, {a}
        v_and_b32 {b}, 7, {vL}
        v_lshl_add_u32 {a}, {b}, 7, {a}
        s_add_u32 {sT0}, {sPriv}, {R2}
        v_add_u32 {a}, {sT0}, {a}
        v_bfe_u32 {b}, {vL}, 1, 3
        v_lshrrev_b32 {c}, 5, {vL}
        v_xor_b32 {b}, {b}, {c}
        """)
        for s in range(4):
            p(f"v_xor_b32 {c}, {2 * s}, {b}")
            p(f"v_lshl_add_u32 {vXr[s]}, {c}, 4, {a}")
        p(f"""
        v_and_b32 {a}, 3, {vL}
        v_bfe_u32 {b}, {vL}, 2, 1
        v_bfe_u32 {c}, {vL}, 4, 1
        v_xor_b32 {b}, {b}, {c}
        v_or_b32 {a}, {a}, {b}
        v_cmp_eq_u32 vcc, 0, {a}
        v_mov_b32 {b}, {sOnes}
        v_cndmask_b32 {vr(V_ONES)}, 0, {b}, vcc
        v_cndmask_b32 {vr(V_ONES + 1)}, 0, {b}, vcc
        v_cndmask_b32 {vr(V_ONES + 2)}, 0, {b}, vcc
        v_cndmask_b32 {vr(V_ONES + 3)}, 0, {b}, vcc
        """)

    def gate_open(self, p):
        skip = self.label("nogate")
        p(f"s_or_b32 {sT0}, s2, {sw}")
        p(f"s_cmp_lg_u32 {sT0}, 0")
        p(f"s_cbranch_scc1 {skip}")
        p(f"v_mov_b32 {vP2}, 1")
        p("s_mov_b64 exec, 1")
        p(f"buffer_store_dword {vP2}, {vZero}, {sDBG}, 0 offen sc1", count=False)
        p("s_mov_b64 exec, -1")
        p(f"{skip}:")

    def p1(self, p, t):
        self.clear_flags(p)
        xs = self.x_loads(p)
        self.setup2(p)
        self.lds_addrs(p)
        self.stamp(p, "x issued")
        S, Q, S2, Q2 = vr(V_TMP), vr(V_TMP + 1), vr(V_TMP + 2), vr(V_TMP + 3)
        w1 = []
        for pos in range(4):
            g, tk = self.w12_groups(sW1, R0, pos)
            self.emit(p, g)
            w1.append(tk)
            p.wait(vm=xs[4 * pos + 3])
            if pos == 0:
                self.gate_open(p)
            for s in range(4):
                p(f"ds_read_b128 {vr(V_B + 16 * pos + 4 * s, 4)}, {vXr[s]} offset:{pos * 4096}")
            for d in range(16 * pos, 16 * pos + 16, 2):
                c = ["0"] * 4 if d == 0 else [S, Q, S2, Q2]
                p(f"v_dot2_f32_bf16 {S}, {vr(V_B + d)}, {sOnes}, {c[0]}")
                p(f"v_dot2_f32_bf16 {Q}, {vr(V_B + d)}, {vr(V_B + d)}, {c[1]}")
                p(f"v_dot2_f32_bf16 {S2}, {vr(V_B + d + 1)}, {sOnes}, {c[2]}")
                p(f"v_dot2_f32_bf16 {Q2}, {vr(V_B + d + 1)}, {vr(V_B + d + 1)}, {c[3]}")
        p(f"v_add_f32 {S}, {S}, {S2}")
        p(f"v_add_f32 {Q}, {Q}, {Q2}")
        self.half_sum(p, S, S2)
        self.half_sum(p, Q, Q2)
        p(f"""
        v_and_b32 {vT[0]}, 31, {vL}
        s_lshl_b32 {sT0}, {sw}, 8
        s_add_u32 {sT0}, {sT0}, {ST_STAT}
        v_lshl_add_u32 {vT[1]}, {vT[0]}, 3, {sT0}
        """)
        p(f"ds_write_b64 {vT[1]}, {vr(V_TMP, 2)}")
        p(f"""
        s_lshl_b32 {sT0}, {sw}, 12
        s_add_u32 {sT0}, {sT0}, {EX1}
        v_add_u32 {vT[2]}, {sT0}, {vL16}
        s_lshl_b32 {sT0}, {snh}, 8
        s_lshl_b32 {sT1}, {skh}, 7
        s_add_u32 {sT1}, {sT1}, {sT0}
        s_add_u32 {sT1}, {sT1}, {ST_CS}
        v_lshl_add_u32 {vT[3]}, {vT[0]}, 2, {sT1}
        s_add_u32 {sT0}, {sT0}, {ST_CS}
        v_add_u32 {vT[4]}, {sT0}, {vCsA}
        v_xor_b32 {vT[5]}, 8192, {vT[2]}
        v_xor_b32 {vT[1]}, 512, {vT[1]}
        s_lshl_b32 {sT0}, {sc}, 1
        s_add_u32 {sT0}, {sT0}, {sth}
        s_lshl_b32 {sT0}, {sT0}, 15
        s_lshl_b32 {sT1}, {sj}, 12
        s_add_u32 {sT0}, {sT0}, {sT1}
        s_lshl_b32 {sT1}, {snh}, 11
        s_add_u32 {sH2st}, {sT0}, {sT1}
        """)
        self.stamp(p, "x stats")
        accX, accY, cs = V_ACC, V_ACC + 16, V_ACC + 32
        kvg = self.kv_groups(t)
        for pos in range(4):
            p.wait(vm=w1[pos][-1])
            p("s_barrier")
            for s in range(4):
                A = V_A + 8 * s
                self.a_reads(p, A + 4, vTrY, pos * 8192 + s * 2048)
                self.a_reads(p, A, vTrX, pos * 8192 + s * 2048)
            q = Seq()
            for s in range(4):
                A, B = V_A + 8 * s, V_B + 16 * pos + 4 * s
                z = pos == 0 and s == 0
                q(f"v_mfma_f32_32x32x16_bf16 {vr(accY, 16)}, {vr(A + 4, 4)}, {vr(B, 4)}, {'0' if z else vr(accY, 16)}")
                q(f"v_mfma_f32_16x16x32_bf16 {vr(cs, 4)}, {vr(V_ONES, 4)}, {vr(A, 4)}, {'0' if z else vr(cs, 4)}")
                q(f"v_mfma_f32_32x32x16_bf16 {vr(accX, 16)}, {vr(A, 4)}, {vr(B, 4)}, {'0' if z else vr(accX, 16)}")
            p.extend(q)
            if pos == 0:
                self.emit(p, kvg)
            if pos == 2:
                t["gate"] = self.poll_issue(p, vPw, vZero, "0", srd=sDBG)
        self.stamp(p, "p1 mfma")
        for g in range(4):
            p(f"ds_write_b128 {vT[2]}, {vr(accY + 4 * g, 4)} offset:{g * 1024}")
        p(f"ds_write_b32 {vT[3]}, {vr(cs)}")
        p.wait(lg0=True)
        p("s_barrier")
        p(f"ds_read_b64 {vr(V_TMP + 2, 2)}, {vT[1]}")
        c0, c1 = V_A, V_A + 16
        for g in range(4):
            p(f"ds_read_b128 {vr(c0 + 4 * g, 4)}, {vT[4]} offset:{g * 32}")
            p(f"ds_read_b128 {vr(c1 + 4 * g, 4)}, {vT[4]} offset:{128 + g * 32}")
        for g in range(4):
            p(f"ds_read_b128 {vr(accY + 4 * g, 4)}, {vT[5]} offset:{g * 1024}")
        w2g, w2t = [], []
        for pos in range(4):
            g, tk = self.w12_groups(sW2, R0, pos)
            w2g += g
            w2t += tk
        early = self.opt.get("w2_early", 4)
        self.emit(p, w2g[:early])
        p(f"v_add_f32 {S}, {S}, {S2}")
        p(f"v_add_f32 {Q}, {Q}, {Q2}")
        self.ln_consts(p, S, Q)
        for x in range(0, 16, 2):
            p(f"v_pk_add_f32 {vr(c0 + x, 2)}, {vr(c0 + x, 2)}, {vr(c1 + x, 2)}")
        for x in range(0, 16, 2):
            p(f"v_pk_add_f32 {vr(accX + x, 2)}, {vr(accX + x, 2)}, {vr(accY + x, 2)}")
        out = V_TMP + 8
        self.gelu_packed(p, accX, c0, V_TMP + 16, out)
        p(f"s_add_u32 {sT0}, {sH2st}, {WS_H}")
        s0 = p(f"buffer_store_dwordx4 {vr(out, 4)}, {vL16}, {sWS}, {sT0} offen sc1")
        s1 = p(f"buffer_store_dwordx4 {vr(out + 4, 4)}, {vL16}, {sWS}, {sT0} offen offset:1024 sc1")
        self.stamp(p, "h stored")
        self.emit(p, w2g[early:])
        t["w2"] = w2t
        self.poll_check(p, vPw, vZero, "0", 1, srd=sDBG)
        self.publish(p, [s0, s1], 1, FLAG0)
        self.stamp(p, "h flag")

    def a1(self, p, t):
        kk, vv, o = V_B, V_B + 12, V_TMP
        sk = V_SK
        a, b = vT[0], vT[1]
        p(f"""
        v_lshrrev_b32 {a}, 4, {vL}
        v_lshlrev_b32 {a}, 11, {a}
        v_bfe_u32 {b}, {vL}, 2, 2
        v_lshl_add_u32 {a}, {b}, 7, {a}
        v_and_b32 {b}, 3, {vL}
        v_lshl_add_u32 {a}, {b}, 3, {a}
        s_lshl_b32 {sT0}, {sw}, 5
        s_add_u32 {sT0}, {sT0}, {KB}
        v_add_u32 {a}, {sT0}, {a}
        """)
        p.wait(vm=t["kv"])
        p("s_barrier")
        for rd in range(5):
            p(f"ds_read_b64_tr_b16 {vr(kk + 2 * rd, 2)}, {a} offset:{(4 + 4 * rd) * 128}")
        for rd in range(4):
            p(f"ds_read_b64_tr_b16 {vr(vv + 2 * rd, 2)}, {a} offset:{(VB - KB) + 4 * rd * 128}")
        c10, c32, c0, c21, c3 = V_A, V_A + 1, V_A + 2, V_A + 3, V_A + 4
        p(f"v_alignbit_b32 {vr(c10)}, {vr(sk)}, {vr(sk)}, 16")
        p(f"v_alignbit_b32 {vr(c32)}, {vr(sk + 1)}, {vr(sk + 1)}, 16")
        p(f"v_and_b32 {vr(c0)}, 0xffff, {vr(sk)}")
        p(f"v_and_b32 {vr(c3)}, {sHi}, {vr(sk + 1)}")
        p(f"v_and_b32 {vr(c21)}, 0xffff, {vr(sk + 1)}")
        p(f"v_and_or_b32 {vr(c21)}, {vr(sk)}, {sHi}, {vr(c21)}")
        p(f"""
        v_and_b32 {vT[3]}, 3, {vL}
        v_bfe_u32 {vT[4]}, {vL}, 2, 1
        v_lshlrev_b32 {vT[3]}, 7, {vT[3]}
        v_lshl_add_u32 {vPoll}, {vT[4]}, 3, {vT[3]}
        s_lshl_b32 {sC}, {sc}, 10
        s_lshl_b32 {sT1}, {skh}, 9
        s_add_u32 {sC}, {sC}, {sT1}
        s_lshl_b32 {sT1}, {sth}, 2
        s_add_u32 {sC}, {sC}, {sT1}
        """)
        f = V_ACC
        for i in range(8):
            p(f"v_dot2_f32_bf16 {vr(f + 2 * i)}, {vr(kk + i)}, {vr(c3)}, 0")
            p(f"v_dot2_f32_bf16 {vr(f + 2 * i + 1)}, {vr(kk + i + 1)}, {vr(c32)}, 0")
        for i in range(8):
            p(f"v_dot2_f32_bf16 {vr(f + 2 * i)}, {vr(kk + i + 1)}, {vr(c21)}, {vr(f + 2 * i)}")
            p(f"v_dot2_f32_bf16 {vr(f + 2 * i + 1)}, {vr(kk + i + 2)}, {vr(c10)}, {vr(f + 2 * i + 1)}")
        for i in range(8):
            p(f"v_dot2_f32_bf16 {vr(f + 2 * i)}, {vr(kk + i + 2)}, {vr(c0)}, {vr(f + 2 * i)}")
        for i in range(8):
            p(f"v_lshlrev_b32 {vr(f + 16 + 2 * i)}, 16, {vr(vv + i)}")
            p(f"v_and_b32 {vr(f + 17 + 2 * i)}, {sHi}, {vr(vv + i)}")
        for i in range(8):
            p(f"v_pk_mul_f32 {vr(f + 2 * i, 2)}, {vr(f + 2 * i, 2)}, {vr(f + 16 + 2 * i, 2)}")
        for i in range(8):
            p(f"v_cvt_pk_bf16_f32 {vr(o + i)}, {vr(f + 15 - 2 * i)}, {vr(f + 14 - 2 * i)}")
        p(f"""
        v_and_b32 {a}, 15, {vL}
        v_mul_u32_u24 {a}, 144, {a}
        v_lshrrev_b32 {b}, 4, {vL}
        v_sub_u32 {b}, 3, {b}
        v_lshl_add_u32 {a}, {b}, 5, {a}
        s_mul_i32 {sT0}, {sw}, 2304
        s_add_u32 {sT0}, {sT0}, {A1R}
        v_add_u32 {a}, {sT0}, {a}
        """)
        p(f"ds_write_b128 {a}, {vr(o, 4)}")
        w2 = p(f"ds_write_b128 {a}, {vr(o + 4, 4)} offset:16")
        self.poll_issue(p, vPv, vPoll, sC)
        p(f"""
        v_lshrrev_b32 {a}, 3, {vL}
        v_and_b32 {b}, 7, {vL}
        v_lshlrev_b32 {b}, 4, {b}
        v_lshl_add_u32 {vT[2]}, {a}, 12, {b}
        v_mul_u32_u24 {a}, 144, {a}
        v_add3_u32 {a}, {a}, {b}, {sT0}
        s_lshl_b32 {sT0}, {sj}, 18
        s_lshl_b32 {sT1}, {sw}, 16
        s_add_u32 {sT0}, {sT0}, {sT1}
        s_sub_u32 {sT1}, 31, {sc}
        s_lshl_b32 {sT1}, {sT1}, 7
        s_add_u32 {sT0}, {sT0}, {sT1}
        s_add_u32 {sT0}, {sT0}, {WS_KVT}
        s_add_u32 {sT1}, {sT0}, 32768
        """)
        p.wait(lg=w2)
        p(f"ds_read_b128 {vr(o + 8, 4)}, {a}")
        p(f"ds_read_b128 {vr(o + 12, 4)}, {a} offset:{8 * 144}")
        s0 = p(f"buffer_store_dwordx4 {vr(o + 8, 4)}, {vT[2]}, {sWS}, {sT0} offen sc1")
        s1 = p(f"buffer_store_dwordx4 {vr(o + 12, 4)}, {vT[2]}, {sWS}, {sT1} offen sc1")
        t["kvt"] = [s0, s1]
        self.stamp(p, "a1 done")

    def w3_groups(self, line, lds, order):
        g0 = Seq()
        g0(f"""
        s_mul_i32 {sA}, {sw}, {128 * 3584}
        s_lshl_b32 {sB}, {sm}, 8
        s_add_u32 {sA}, {sA}, {sB}
        """)
        groups, toks = self.dma_groups(vW3s, sW3, sA, sB, sPriv, [(lds + i * 1024, line * 128 + i * 8 * 3584) for i in order])
        g0.extend(groups[0])
        groups[0] = g0
        return groups, toks

    def w4_offsets(self, p):
        p(f"s_mul_i32 {sT0}, {sw}, 7")
        p(f"s_lshl_b32 {sT2}, {sj}, 7")
        for u in range(7):
            p(f"""
            s_add_u32 {sT1}, {sT0}, {u}
            s_lshr_b32 {sU[u]}, {sT1}, 1
            s_lshl_b32 {sU[u]}, {sU[u]}, 17
            s_and_b32 {sT1}, {sT1}, 1
            s_lshl_b32 {sT1}, {sT1}, 14
            s_add_u32 {sU[u]}, {sU[u]}, {sT1}
            s_add_u32 {sU[u]}, {sU[u]}, {sT2}
            """)

    def w4_dma_groups(self, piece, lds):
        groups, toks = [], []
        for u in range(7):
            g, tk = self.dma_groups(vWs, sW4, sU[u], sB, sPriv, [(lds + u * 2048 + i * 1024, piece * 32768 + i * 8192) for i in range(2)])
            groups += g
            toks += tk
        return groups, toks

    def w4_park_groups(self, piece, areg):
        groups = []
        for u in range(7):
            for i in range(2):
                g = Seq()
                g(f"s_add_u32 {sB}, {sU[u]}, {piece * 32768 + i * 8192}")
                g(f"buffer_load_dwordx4 {ar(areg + 8 * u + 4 * i, 4)}, {vWs}, {sW4}, {sB} offen")
                groups.append(g)
        return groups

    def w4_unpark_groups(self, areg, vaddr):
        groups, toks = [], []
        for n in range(14):
            g = Seq()
            toks.append(g(f"ds_write_b128 {vaddr}, {ar(areg + 4 * n, 4)} offset:{n * 1024}"))
            groups.append(g)
        return groups, toks

    def gate_partial(self, p):
        g, g2 = vr(V_TMP + 4), vr(V_TMP + 5)
        for i in range(0, 8, 2):
            p(f"v_dot2_f32_bf16 {g}, {vr(V_XRES + i)}, {vr(V_X1P + i)}, {'0' if i == 0 else g}")
            p(f"v_dot2_f32_bf16 {g2}, {vr(V_XRES + i + 1)}, {vr(V_X1P + i + 1)}, {'0' if i == 0 else g2}")
        p(f"v_add_f32 {g}, {g}, {g2}")
        self.half_sum(p, g, g2)

    def stage_conv_k(self, p):
        a, b = vT[0], vT[1]
        d = V_SSM
        o = V_A
        p(f"""
        s_mul_i32 {sT0}, {sth}, {KCH}
        s_add_u32 {sT0}, {sT0}, {CK}
        s_lshl_b32 {sT1}, {skh}, 11
        s_add_u32 {sT1}, {sT1}, {sT0}
        v_add_u32 {a}, {sT1}, {vL16}
        v_cmp_eq_u32 vcc, 63, {vL}
        s_cmp_eq_u32 {skh}, 1
        s_cselect_b64 vcc, vcc, 0
        v_cndmask_b32 {vr(d + 10)}, {vr(d + 10)}, {vZero}, vcc
        """)
        p(f"ds_write_b128 {a}, {vr(d, 4)} offset:64")
        p(f"ds_write_b128 {a}, {vr(d + 6, 4)} offset:{64 + 1024}")
        for i in range(4):
            p(f"v_alignbit_b32 {vr(o + i)}, {vr(d + i + 1)}, {vr(d + i)}, 16")
            p(f"v_alignbit_b32 {vr(o + 4 + i)}, {vr(d + 7 + i)}, {vr(d + 6 + i)}, 16")
        p(f"ds_write_b128 {a}, {vr(o, 4)} offset:{KCOPY + 64}")
        p(f"ds_write_b128 {a}, {vr(o + 4, 4)} offset:{KCOPY + 64 + 1024}")
        p(f"""
        s_mul_i32 {sT1}, {skh}, {64 + 4096}
        s_add_u32 {sT1}, {sT1}, {sT0}
        v_and_b32 {b}, 15, {vL}
        v_lshl_add_u32 {a}, {b}, 2, {sT1}
        v_readfirstlane_b32 {sT2}, {vr(d)}
        s_lshl_b32 {sT2}, {sT2}, 16
        s_cmp_eq_u32 {skh}, 0
        s_cselect_b32 {sT2}, {sT2}, 0
        v_cmp_eq_u32 vcc, 15, {b}
        v_mov_b32 {b}, {sT2}
        v_cndmask_b32 {b}, 0, {b}, vcc
        """)
        p(f"ds_write_b32 {a}, {vZero}")
        p(f"ds_write_b32 {a}, {b} offset:{KCOPY}")
        p(f"""
        s_mul_i32 {sT0}, {sth}, {UCH}
        s_add_u32 {sT0}, {sT0}, {CU}
        s_lshl_b32 {sT1}, {skh}, 8
        s_add_u32 {sT1}, {sT1}, {sT0}
        v_lshl_add_u32 {a}, {vL}, 2, {sT1}
        v_and_b32 {b}, 7, {vL}
        v_lshl_add_u32 {b}, {b}, 2, {sT0}
        """)
        p(f"ds_write_b32 {a}, {vZero} offset:{32 + 4096}")
        p(f"ds_write_b32 {b}, {vZero}")

    def p2(self, p, t):
        p(f"""
        s_lshl_b32 {sT1}, {sc}, 1
        s_add_u32 {sT1}, {sT1}, {sth}
        s_lshl_b32 {sT1}, {sT1}, 15
        s_lshl_b32 {sT0}, {skh}, 14
        s_add_u32 {sT1}, {sT1}, {sT0}
        s_add_u32 {sT1}, {sT1}, {WS_H}
        """)
        self.poll_check(p, vPv, vPoll, sC, 1)
        self.stamp(p, "h seen")
        hl = []
        for pos in range(4):
            g = Seq()
            g(f"s_add_u32 {sT0}, {srot}, {pos}")
            g(f"s_and_b32 {sT0}, {sT0}, 3")
            g(f"s_lshl_b32 {sT0}, {sT0}, 12")
            g(f"s_add_u32 {sT0}, {sT0}, {sT1}")
            for s in range(4):
                g(f"buffer_load_dwordx4 {vr(V_B + 16 * pos + 4 * s, 4)}, {vL16}, {sWS}, {sT0} offen offset:{s * 1024} sc1")
            hl.append(g)
        self.emit(p, hl[:2])
        p.wait(vm=t["w2"], lg0=True)
        p("s_barrier")
        for ks in range(16):
            self.a_reads(p, A_W2 + 8 * ks + 4, vTrY, ks * 2048, areg=True)
            self.a_reads(p, A_W2 + 8 * ks, vTrX, ks * 2048, areg=True)
            if ks == 5:
                p.extend(hl[2])
            if ks == 11:
                p.extend(hl[3])
        p(f"""
        v_and_b32 {vPoll}, 31, {vL}
        v_lshlrev_b32 {vPoll}, 10, {vPoll}
        s_lshl_b32 {sT2}, {sj}, 7
        s_lshr_b32 {sT1}, {sc}, 3
        s_lshl_b32 {sT1}, {sT1}, 2
        s_add_u32 {sT2}, {sT2}, {sT1}
        s_add_u32 {sT2}, {sT2}, {FLAG1}
        v_add_u32 {vT[2]}, {sPriv}, {vL16}
        v_xor_b32 {vT[3]}, 32768, {vT[2]}
        """)
        p.wait(lg0=True)
        p("s_barrier")
        self.stamp(p, "w2 regs")
        accX, accY = V_ACC, V_ACC + 16
        q = Seq()
        for ks in range(16):
            z = ks == 0
            B = V_B + 4 * ks
            q(f"v_mfma_f32_32x32x16_bf16 {vr(accY, 16)}, {ar(A_W2 + 8 * ks + 4, 4)}, {vr(B, 4)}, {'0' if z else vr(accY, 16)}")
            q(f"v_mfma_f32_32x32x16_bf16 {vr(accX, 16)}, {ar(A_W2 + 8 * ks, 4)}, {vr(B, 4)}, {'0' if z else vr(accX, 16)}")
        gx, gs = self.small_groups()
        pub = Seq()
        self.publish(pub, t["kvt"], 1, FLAG1)
        l0g, l0t = self.w3_groups(0, R2, range(16))
        t["l0"] = l0t
        n0 = self.opt.get("l0_in_p2", 6)
        pl = Seq()
        self.poll_issue(pl, vPv, vPoll, sT2)
        plan = [(2, pub), (6, gx), (12, gs)] + spread(l0g[:n0], 18, 30) + [(32, pl)]
        p.extend(weave(q, plan))
        t["l0g"] = l0g[n0:]
        self.stamp(p, "p2 mfma")
        for g in range(4):
            p(f"ds_write_b128 {vT[2]}, {vr(accY + 4 * g, 4)} offset:{g * 1024}")
        self.gate_partial(p)
        for i in range(8):
            p(f"v_dot2_f32_bf16 {vr(accX + 2 * i)}, {vr(V_XRES + i)}, {sOneLo}, {vr(accX + 2 * i)}")
            p(f"v_dot2_f32_bf16 {vr(accX + 2 * i + 1)}, {vr(V_XRES + i)}, {sOneHi}, {vr(accX + 2 * i + 1)}")
        p.wait(lg0=True)
        p("s_barrier")
        for g in range(4):
            p(f"ds_read_b128 {vr(accY + 4 * g, 4)}, {vT[3]} offset:{g * 1024}")
        p(f"""
        s_add_u32 {sT0}, {sH2st}, {WS_X1}
        s_lshl_b32 {sT3}, {sc}, 1
        s_add_u32 {sT3}, {sT3}, {sth}
        s_lshl_b32 {sC}, {sT3}, 12
        s_lshl_b32 {sT1}, {sj}, 9
        s_add_u32 {sC}, {sC}, {sT1}
        s_lshl_b32 {sT1}, {snh}, 3
        s_add_u32 {sC}, {sC}, {sT1}
        s_add_u32 {sC}, {sC}, {WS_STATS}
        s_lshl_b32 {sD}, {sT3}, 11
        s_lshr_b32 {sT1}, {sj}, 1
        s_lshl_b32 {sT1}, {sT1}, 9
        s_add_u32 {sD}, {sD}, {sT1}
        s_and_b32 {sT1}, {sj}, 1
        s_lshl_b32 {sT1}, {sT1}, 1
        s_add_u32 {sT1}, {sT1}, {snh}
        s_lshl_b32 {sT1}, {sT1}, 2
        s_add_u32 {sD}, {sD}, {sT1}
        s_add_u32 {sD}, {sD}, {WS_GATE}
        """)
        for x in range(0, 16, 2):
            p(f"v_pk_add_f32 {vr(accX + x, 2)}, {vr(accX + x, 2)}, {vr(accY + x, 2)}")
        for i in range(8):
            p(f"v_cvt_pk_bf16_f32 {vr(V_X1P + i)}, {vr(accX + 2 * i)}, {vr(accX + 2 * i + 1)}")
        s0 = p(f"buffer_store_dwordx4 {vr(V_X1P, 4)}, {vL16}, {sWS}, {sT0} offen sc1")
        s1 = p(f"buffer_store_dwordx4 {vr(V_X1P + 4, 4)}, {vL16}, {sWS}, {sT0} offen offset:1024 sc1")
        S, Q, S2, Q2 = vr(V_TMP), vr(V_TMP + 1), vr(V_TMP + 2), vr(V_TMP + 3)
        for i in range(0, 8, 2):
            c = ["0"] * 4 if i == 0 else [S, Q, S2, Q2]
            p(f"v_dot2_f32_bf16 {S}, {vr(V_X1P + i)}, {sOnes}, {c[0]}")
            p(f"v_dot2_f32_bf16 {Q}, {vr(V_X1P + i)}, {vr(V_X1P + i)}, {c[1]}")
            p(f"v_dot2_f32_bf16 {S2}, {vr(V_X1P + i + 1)}, {sOnes}, {c[2]}")
            p(f"v_dot2_f32_bf16 {Q2}, {vr(V_X1P + i + 1)}, {vr(V_X1P + i + 1)}, {c[3]}")
        p(f"v_add_f32 {S}, {S}, {S2}")
        p(f"v_add_f32 {Q}, {Q}, {Q2}")
        self.half_sum(p, S, S2)
        self.half_sum(p, Q, Q2)
        p("s_mov_b64 exec, 0xffffffff")
        s2 = p(f"buffer_store_dwordx2 {vr(V_TMP, 2)}, {vL16}, {sWS}, {sC} offen sc1")
        s3 = p(f"buffer_store_dword {vr(V_TMP + 4)}, {vL16}, {sWS}, {sD} offen sc1")
        p("s_mov_b64 exec, -1")
        t["x1"] = [s0, s1, s2, s3]
        self.stamp(p, "x1 stored")

    def conv(self, p, t):
        self.poll_check(p, vPv, vPoll, sT2, 1)
        p(f"""
        s_lshl_b32 {sT0}, {sj}, 6
        s_lshl_b32 {sT1}, {sc}, 1
        s_add_u32 {sT0}, {sT0}, {sT1}
        s_add_u32 {sT0}, {sT0}, {sth}
        s_lshl_b32 {sT0}, {sT0}, 12
        s_lshl_b32 {sT1}, {skh}, 11
        s_add_u32 {sT0}, {sT0}, {sT1}
        s_add_u32 {sT0}, {sT0}, {WS_KVT}
        s_mul_i32 {sT2}, {sth}, {UCH}
        s_add_u32 {sT1}, {sT1}, {sT2}
        s_add_u32 m0, {sT1}, {CU + 32}
        """)
        self.dma(p, vL16, sWS, sT0, 0, "sc1")
        u = self.dma(p, vL16, sWS, sT0, 1024, "sc1")
        vA = [vXs[1], vXs[2], vXs[3], vXr[0], vXr[1]]
        vB = vXr[2]
        a, b = vT[0], vT[1]
        p(f"""
        v_and_b32 {a}, 15, {vL}
        v_lshrrev_b32 {b}, 4, {vL}
        v_lshlrev_b32 {b}, 4, {b}
        s_lshl_b32 {sT1}, {skh}, 8
        s_add_u32 {sT2}, {sT2}, {sT1}
        s_add_u32 {sT2}, {sT2}, {CU + 480}
        v_lshlrev_b32 {vB}, 5, {a}
        v_sub_u32 {vB}, {b}, {vB}
        v_add_u32 {vB}, {sT2}, {vB}
        v_add_u32 {vA[0]}, 1, {a}
        v_and_b32 {vA[0]}, 30, {vA[0]}
        v_lshl_add_u32 {vA[0]}, {vA[0]}, 1, {b}
        v_and_b32 {a}, 1, {a}
        v_xor_b32 {a}, 1, {a}
        v_mul_u32_u24 {a}, {KCOPY}, {a}
        s_mul_i32 {sT0}, {sth}, {KCH}
        s_add_u32 {sT0}, {sT0}, {sT1}
        s_add_u32 {sT0}, {sT0}, {CK}
        v_add3_u32 {vA[0]}, {vA[0]}, {a}, {sT0}
        """)
        for i in range(1, 5):
            p(f"v_add_u32 {vA[i]}, {1024 * i}, {vA[0]}")
        self.stage_conv_k(p)
        self.w4_offsets(p)
        p(f"""
        v_and_b32 {vT[3]}, 7, {vL}
        v_bfe_u32 {vT[4]}, {vL}, 3, 1
        v_lshlrev_b32 {vT[3]}, 7, {vT[3]}
        v_lshl_add_u32 {vPoll}, {vT[4]}, 3, {vT[3]}
        s_lshl_b32 {sT2}, {ssc}, 1
        s_add_u32 {sT2}, {sT2}, {skh}
        s_lshl_b32 {sC}, {sT2}, 10
        s_lshl_b32 {sT1}, {sth}, 2
        s_add_u32 {sC}, {sC}, {sT1}
        s_mul_i32 {sH2st}, {sT2}, 229376
        s_lshl_b32 {sT1}, {sm}, 12
        s_add_u32 {sH2st}, {sH2st}, {sT1}
        s_lshl_b32 {sT1}, {sth}, 10
        s_add_u32 {sH2st}, {sH2st}, {sT1}
        s_add_u32 {sH2st}, {sH2st}, {WS_H2}
        s_add_u32 {sH2st}, {sH2st}, {sOob}
        s_lshl_b32 {sT2}, {ssc}, 2
        s_add_u32 {sT2}, {sT2}, {sw}
        s_lshl_b32 {sX1ld}, {sT2}, 15
        s_add_u32 {sX1ld}, {sX1ld}, {WS_X1}
        s_add_u32 {sX1ld}, {sX1ld}, {sOob}
        s_lshl_b32 {sStld}, {sT2}, 12
        s_add_u32 {sStld}, {sStld}, {WS_STATS}
        s_add_u32 {sStld}, {sStld}, {sOob}
        s_add_u32 {srot}, {sw}, {sj}
        s_and_b32 {srot}, {srot}, 3
        """)
        self.publish(p, t["x1"], 2, FLAG0)
        self.stamp(p, "x1 flag")
        p.wait(vm=u, lg0=True)
        p("s_barrier")
        self.stamp(p, "conv start")
        acc, BF, AF = V_ACC, V_B, V_B + 36
        q = Seq()

        def rdA(slot, rho, aa):
            o = (64 * rho + 512 * (aa & 1)) // 4
            q(f"ds_read2_b32 {vr(AF + 4 * slot, 2)}, {vA[aa >> 1]} offset0:{o} offset1:{o + 1}")
            q(f"ds_read2_b32 {vr(AF + 4 * slot + 2, 2)}, {vA[aa >> 1]} offset0:{o + 2} offset1:{o + 3}")

        def rdB(bb, rho):
            q(f"ds_read_b128 {vr(BF + 4 * (bb if bb >= 0 else 8), 4)}, {vB} offset:{3584 - 512 * bb + 64 * rho}")

        rdA(0, 0, 0)
        for bb in range(7, -1, -1):
            rdB(bb, 0)
        rdA(1, 0, 1)
        rdA(2, 0, 2)
        n = 0
        for rho in range(4):
            for aa in range(8):
                for bb in range(7 - aa, -1, -1):
                    z = rho == 0 and aa == 0
                    d = vr(acc + 4 * (aa + bb), 4)
                    q(f"v_mfma_f32_16x16x32_bf16 {d}, {vr(AF + 4 * (n % 4), 4)}, {vr(BF + 4 * bb, 4)}, {'0' if z else d}")
                    if bb == 7 - aa:
                        if rho < 3:
                            rdB(bb, rho + 1)
                        nx = n + 3
                        if nx < 32:
                            rdA(nx % 4, nx // 8, nx % 8)
                n += 1
        l1g, l1t = self.w3_groups(1, R0, range(16))
        t["l1"] = l1t
        bulk = t["l0g"] + l1g
        nb = self.opt.get("bulk_in_conv", 12)
        pp = self.opt.get("x1_poll_at", 44)
        pc = self.opt.get("x1_check_at", 84)
        pl, pk = Seq(), Seq()
        self.poll_issue(pl, vPv, vPoll, sC)
        self.poll_check(pk, vPv, vPoll, sC, 2)
        self.stamp(pk, "x1 seen")
        xg = []
        for ks in range(32):
            g = Seq()
            if ks % 8 == 0:
                g(f"s_add_u32 {sD}, {srot}, {ks // 8}")
                g(f"s_and_b32 {sD}, {sD}, 3")
                g(f"s_lshl_b32 {sD}, {sD}, 13")
                g(f"s_add_u32 {sD}, {sD}, {sX1ld}")
            elif ks % 4 == 0:
                g(f"s_add_u32 {sD}, {sD}, 4096")
            g(f"buffer_load_dwordx4 {ar(4 * ks, 4)}, {vL16}, {sWS}, {sD} offen offset:{(ks % 4) * 1024} sc1")
            xg.append(g)
        nx1 = self.opt.get("x1_in_conv", 18)
        plan = spread(bulk[:nb], 1, pp - 4) + [(pp, pl), (pc, pk)] + spread(xg[:nx1], pc, 144)
        p.extend(weave(q, plan))
        t["bulk"] = bulk[nb:]
        t["x1g"] = xg[nx1:]
        skip = self.label("noextra")
        p(f"s_cmp_lg_u32 {skh}, 0")
        p(f"s_cbranch_scc1 {skip}")
        q = p
        rdB(-1, 0)
        for aa in range(1, 9):
            o = (512 * (aa & 1)) // 4
            p(f"ds_read2_b32 {vr(BF + 4 * (aa - 1), 2)}, {vA[aa >> 1]} offset0:{o} offset1:{o + 1}")
            p(f"ds_read2_b32 {vr(BF + 4 * (aa - 1) + 2, 2)}, {vA[aa >> 1]} offset0:{o + 2} offset1:{o + 3}")
        for aa in range(1, 9):
            d = vr(acc + 4 * (aa - 1), 4)
            p(f"v_mfma_f32_16x16x32_bf16 {d}, {vr(BF + 4 * (aa - 1), 4)}, {vr(BF + 32, 4)}, {d}")
        p(f"{skip}:")
        p.wait(lg0=True)
        p(f"""
        s_lshl_b32 {sT0}, {sw}, 12
        s_add_u32 {sT0}, {sT0}, {CK}
        v_add_u32 {a}, {sT0}, {vL16}
        s_nop 4
        """)
        self.stamp(p, "conv mfma")
        p("s_barrier")
        hi, join = self.label("convhi"), self.label("convjoin")
        p(f"s_cmp_lg_u32 {skh}, 0")
        p(f"s_cbranch_scc1 {hi}")
        for g in range(4):
            p(f"ds_write_b128 {a}, {vr(acc + 16 + 4 * g, 4)} offset:{g * 1024}")
        p(f"s_branch {join}")
        p(f"{hi}:")
        for g in range(4):
            p(f"ds_write_b128 {a}, {vr(acc + 4 * g, 4)} offset:{g * 1024}")
        p("s_waitcnt lgkmcnt(0)")
        for i in range(16):
            p(f"v_mov_b32 {vr(acc + i)}, {vr(acc + 16 + i)}")
        p(f"{join}:")
        p(f"""
        v_xor_b32 {a}, 8192, {a}
        v_and_b32 {b}, 15, {vL}
        v_lshlrev_b32 {b}, 5, {b}
        v_lshrrev_b32 {vT[2]}, 4, {vL}
        v_lshl_add_u32 {b}, {vT[2]}, 3, {b}
        s_mul_i32 {sT1}, {sth}, {UCH}
        s_add_u32 {sT1}, {sT1}, {CU + 4120 - 1536}
        s_lshl_b32 {sT2}, {skh}, 11
        s_sub_u32 {sT1}, {sT1}, {sT2}
        v_sub_u32 {vT[2]}, {sT1}, {b}
        s_xor_b32 {sT0}, {sT0}, 8192
        v_add_u32 {b}, {sT0}, {b}
        v_lshlrev_b32 {vr(V_SSM + 5)}, 16, {vr(V_SSM + 5)}
        """)
        p("s_waitcnt lgkmcnt(0)")
        p.drained(vm=False, lg=True)
        p.wait(vm=t["l0"])
        p("s_barrier")
        uu = V_B
        for g in range(4):
            p(f"ds_read_b128 {vr(acc + 16 + 4 * g, 4)}, {a} offset:{g * 1024}")
            p(f"ds_read_b64 {vr(uu + 2 * g, 2)}, {vT[2]} offset:{1536 - 512 * g}")
        k = min(4, len(t["x1g"]))
        self.emit(p, t["x1g"][:k])
        t["x1g"] = t["x1g"][k:]
        for x in range(0, 16, 2):
            p(f"v_pk_add_f32 {vr(acc + x, 2)}, {vr(acc + x, 2)}, {vr(acc + 16 + x, 2)}")
        e = acc + 16
        for g in range(4):
            p(f"v_and_b32 {vr(e + 4 * g)}, {sHi}, {vr(uu + 2 * g + 1)}")
            p(f"v_lshlrev_b32 {vr(e + 4 * g + 1)}, 16, {vr(uu + 2 * g + 1)}")
            p(f"v_and_b32 {vr(e + 4 * g + 2)}, {sHi}, {vr(uu + 2 * g)}")
            p(f"v_lshlrev_b32 {vr(e + 4 * g + 3)}, 16, {vr(uu + 2 * g)}")
        for x in range(16):
            p(f"v_fmac_f32 {vr(acc + x)}, {vr(V_SSM + 5)}, {vr(e + x)}")
        for i in range(8):
            p(f"v_cvt_pk_bf16_f32 {vr(uu + i)}, {vr(acc + 2 * i)}, {vr(acc + 2 * i + 1)}")
        last = None
        for g in range(4):
            last = p(f"ds_write_b64 {b}, {vr(uu + 2 * g, 2)} offset:{g * 512}")
        p(f"""
        v_lshrrev_b32 {b}, 3, {vL}
        v_and_b32 {vT[2]}, 7, {vL}
        v_lshlrev_b32 {vT[2]}, 4, {vT[2]}
        v_lshl_add_u32 {b}, {b}, 13, {vT[2]}
        s_lshl_b32 {sT0}, {sj}, 18
        s_lshl_b32 {sT1}, {skh}, 17
        s_add_u32 {sT0}, {sT0}, {sT1}
        s_lshl_b32 {sT1}, {sc}, 1
        s_add_u32 {sT1}, {sT1}, {sth}
        s_lshl_b32 {sT1}, {sT1}, 7
        s_add_u32 {sT0}, {sT0}, {sT1}
        s_add_u32 {sT0}, {sT0}, {WS_YT}
        s_add_u32 {sT1}, {sT0}, 65536
        """)
        p.wait(lg=last)
        p(f"ds_read_b128 {vr(uu + 8, 4)}, {a}")
        p(f"ds_read_b128 {vr(uu + 12, 4)}, {a} offset:1024")
        s0 = p(f"buffer_store_dwordx4 {vr(uu + 8, 4)}, {b}, {sWS}, {sT0} offen sc1")
        s1 = p(f"buffer_store_dwordx4 {vr(uu + 12, 4)}, {b}, {sWS}, {sT1} offen sc1")
        t["y"] = [s0, s1]
        self.stamp(p, "conv done")

    def p3_phase(self, base, accA, accB, cs):
        q = Seq()
        regs = [(vXr[0], vXr[1]), (vXr[2], vXr[3])]

        def setblk(blk):
            r0, r1 = regs[blk & 1]
            q(f"s_add_u32 {sT0}, {srot}, {blk}")
            q(f"s_and_b32 {sT0}, {sT0}, 3")
            q(f"s_lshl_b32 {sT0}, {sT0}, 14")
            q(f"s_add_u32 {sT0}, {sT0}, {base}")
            q(f"v_add_u32 {r0}, {sT0}, {vTr0}")
            q(f"v_xor_b32 {r1}, 64, {r0}")

        def rd(ks):
            r0, r1 = regs[(ks >> 3) & 1]
            A = V_A + 8 * (ks % 4)
            self.a_reads(q, A, r0, (ks & 7) * 2048)
            self.a_reads(q, A + 4, r1, (ks & 7) * 2048)

        setblk(0)
        rd(0)
        rd(1)
        setblk(1)
        for ks in range(32):
            A = V_A + 8 * (ks % 4)
            z = ks == 0
            q(f"v_mfma_f32_32x32x16_bf16 {vr(accA, 16)}, {vr(A, 4)}, {ar(4 * ks, 4)}, {'0' if z else vr(accA, 16)}")
            if ks + 2 < 32:
                rd(ks + 2)
            q(f"v_mfma_f32_32x32x16_bf16 {vr(accB, 16)}, {vr(A + 4, 4)}, {ar(4 * ks, 4)}, {'0' if z else vr(accB, 16)}")
            if ks < 8:
                q(f"v_mfma_f32_16x16x32_bf16 {vr(cs, 4)}, {vr(V_ONES, 4)}, {vr(A, 4)}, {'0' if z else vr(cs, 4)}")
                q(f"v_mfma_f32_16x16x32_bf16 {vr(cs, 4)}, {vr(V_SSM, 4)}, {vr(A + 4, 4)}, {vr(cs, 4)}")
            if ks in (8, 16):
                setblk(ks // 8 + 1)
        return q

    def cs_reduce(self, p, table, tmp):
        for i in range(4):
            p(f"ds_read_b32 {vr(tmp + i)}, {vT[5]} offset:{table - ST + i * 256}")
        p(f"v_add_f32 {vr(tmp)}, {vr(tmp)}, {vr(tmp + 1)}")
        p(f"v_add_f32 {vr(tmp + 2)}, {vr(tmp + 2)}, {vr(tmp + 3)}")
        p(f"v_add_f32 {vr(tmp)}, {vr(tmp)}, {vr(tmp + 2)}")
        p(f"ds_write_b32 {vT[6]}, {vr(tmp)} offset:3072")

    def h2_tile(self, acc, half, cs16, out):
        q = Seq()
        for g in range(4):
            q(f"ds_read_b128 {vr(cs16 + 4 * g, 4)}, {vCsA} offset:{half * 128 + g * 32}")
        self.gelu_packed(q, acc, cs16, V_TMP + 16, out)
        s0 = q(f"buffer_store_dwordx4 {vr(out, 4)}, {vL16}, {sWS}, {sH2st} offen sc1")
        s1 = q(f"buffer_store_dwordx4 {vr(out + 4, 4)}, {vL16}, {sWS}, {sH2st} offen offset:2048 sc1")
        q(f"s_add_u32 {sH2st}, {sH2st}, 57344")
        return q, [s0, s1]

    def h2_load_groups(self, piece, reg):
        groups = []
        for u in range(7):
            for i in range(2):
                g = Seq()
                if i == 0 and u % 2 == 0:
                    g(f"s_add_u32 {sD}, {sH2ld}, {piece * 57344 + u * 2048}")
                g(f"buffer_load_dwordx4 {reg(8 * u + 4 * i)}, {vXs[1 + i]}, {sWS}, {sD} offen offset:{(u % 2) * 2048} sc1")
                groups.append(g)
        return groups

    def p3(self, p, t):
        accA, accB, cs16, cs = V_ACC, V_ACC + 16, V_ACC + 32, V_ACC + 48
        stt = V_B
        a, b = vT[0], vT[1]
        p(f"""
        v_and_b32 {a}, 8, {vL}
        v_cmp_eq_u32 vcc, 0, {a}
        v_lshlrev_b32 {vT[5]}, 2, {vL}
        v_add_u32 {vT[5]}, {ST}, {vT[5]}
        s_lshl_b32 {sT0}, {sw}, 8
        v_add_u32 {vT[6]}, {sT0}, {vT[5]}
        s_add_u32 {sT0}, {sT0}, {ST + 3072}
        v_add_u32 {vCsA}, {sT0}, {vCsA}
        """)
        for i in range(4):
            p(f"v_cndmask_b32 {vr(V_SSM + i)}, {vr(V_ONES + i)}, {vZero}, vcc")
        for i in range(4):
            p(f"v_cndmask_b32 {vr(V_ONES + i)}, {vZero}, {vr(V_ONES + i)}, vcc")
        sg = Seq()
        for i in range(4):
            sg(f"buffer_load_dwordx4 {vr(stt + 4 * i, 4)}, {vL16}, {sWS}, {sStld} offen offset:{i * 1024} sc1")
        ypub = Seq()
        self.publish(ypub, t["y"], 2, FLAG1)
        rest = t["x1g"] + split(sg) + t["bulk"]
        plan = spread(rest, 1, 66) + [(40, ypub)]
        p.extend(weave(self.p3_phase(R2, accA, accB, cs), plan))
        self.stamp(p, "p3 t01")
        p(f"ds_write_b32 {vT[6]}, {vr(cs)} offset:2048")
        for x in (0, 1):
            p(f"v_add_f32 {vr(stt + x)}, {vr(stt + x)}, {vr(stt + 2 + x)}")
        for i in range(1, 4):
            for x in (0, 1):
                p(f"v_add_f32 {vr(stt + x)}, {vr(stt + x)}, {vr(stt + 4 * i + x)}")
                p(f"v_add_f32 {vr(stt + x)}, {vr(stt + x)}, {vr(stt + 4 * i + 2 + x)}")
        p.wait(lg0=True)
        p("s_barrier")
        self.cs_reduce(p, ST + 2048, cs)
        self.half_sum(p, vr(stt), vr(stt + 2))
        self.half_sum(p, vr(stt + 1), vr(stt + 3))
        self.ln_consts(p, vr(stt), vr(stt + 1))
        q0, st0 = self.h2_tile(accA, 0, cs16, V_TMP)
        p.extend(q0)
        self.stamp(p, "h2 p0 st")
        w0g, w0t = self.w4_dma_groups(0, R2)
        q1, st1 = self.h2_tile(accB, 1, cs16, V_TMP + 8)
        n0 = self.opt.get("w4_in_g1", 8)
        p.extend(weave(q1, spread(w0g[:n0], 1, 30), kinds=("trans",)))
        p(f"""
        v_and_b32 {vKv}, 31, {vL}
        v_lshlrev_b32 {vKv}, 10, {vKv}
        v_lshrrev_b32 {a}, 5, {vL}
        v_lshl_add_u32 {vKv}, {a}, 2, {vKv}
        s_lshl_b32 {sC}, {sj}, 7
        s_lshr_b32 {sT1}, {sc}, 4
        s_lshl_b32 {sT1}, {sT1}, 3
        s_add_u32 {sC}, {sC}, {sT1}
        s_add_u32 {sC}, {sC}, {FLAG1}
        v_and_b32 {a}, 3, {vL}
        v_bfe_u32 {b}, {vL}, 2, 1
        v_lshlrev_b32 {a}, 7, {a}
        v_lshl_add_u32 {vPoll}, {b}, 2, {a}
        s_lshr_b32 {sT0}, {sc}, 3
        s_lshl_b32 {sT0}, {sT0}, 3
        s_lshl_b32 {sT1}, {skh}, 2
        s_add_u32 {sT0}, {sT0}, {sT1}
        s_bfe_u32 {sT1}, {sc}, 0x20001
        s_add_u32 {sT0}, {sT0}, {sT1}
        s_lshl_b32 {sT0}, {sT0}, 3
        s_mul_i32 {sT1}, {sth}, 3
        s_add_u32 {sT0}, {sT0}, {sT1}
        s_lshl_b32 {sT0}, {sT0}, 7
        s_and_b32 {sT1}, {sc}, 1
        s_lshl_b32 {sT1}, {sT1}, 3
        s_add_u32 {sH2fl}, {sT0}, {sT1}
        s_mul_i32 {sT0}, {sw}, {7 * 2048}
        s_mul_i32 {sT1}, {sc}, 229376
        s_add_u32 {sT1}, {sT1}, {sT0}
        s_add_u32 {sH2ld}, {sT1}, {WS_H2}
        s_lshl_b32 {sT0}, {sth}, 10
        v_add_u32 {vXs[1]}, {sT0}, {vL16}
        v_xor_b32 {vXs[2]}, 1024, {vXs[1]}
        v_add_u32 {vXs[3]}, {sPriv}, {vL16}
        s_lshl_b32 {sT0}, {skh}, 15
        s_sub_u32 {sT0}, {sPriv}, {sT0}
        v_add_u32 {vTrX}, {sT0}, {vTrX}
        v_add_u32 {vTrY}, {sT0}, {vTrY}
        """)
        self.publish(p, st0, 3, FLAG0)
        self.stamp(p, "h2 p0 flag")
        p.wait(vm=t["l1"])
        p("s_barrier")
        pub1, ypl, ypk, hpl, hpk = Seq(), Seq(), Seq(), Seq(), Seq()
        self.publish(pub1, st1, 4, FLAG0)
        self.poll_issue(ypl, vPw, vKv, sC)
        self.poll_check(ypk, vPw, vKv, sC, 2)
        ypk(f"""
        s_lshl_b32 {sT2}, {sj}, 5
        s_add_u32 {sT2}, {sT2}, {sc}
        s_lshl_b32 {sT2}, {sT2}, 13
        s_lshl_b32 {sT1}, {sw}, 11
        s_add_u32 {sT2}, {sT2}, {sT1}
        s_add_u32 {sT2}, {sT2}, {WS_YT}
        s_add_u32 m0, {sT1}, {YB}
        """)
        self.dma(ypk, vL16, sWS, sT2, 0, "sc1")
        ytok = self.dma(ypk, vL16, sWS, sT2, 1024, "sc1")
        gl = Seq()
        gt = V_B + 56
        gl(f"""
        s_lshl_b32 {sT2}, {sc}, 1
        s_add_u32 {sT2}, {sT2}, {sth}
        s_lshl_b32 {sT2}, {sT2}, 11
        s_add_u32 {sT2}, {sT2}, {WS_GATE}
        """)
        gl(f"buffer_load_dwordx4 {vr(gt, 4)}, {vL16}, {sWS}, {sT2} offen sc1")
        gl(f"buffer_load_dwordx4 {vr(gt + 4, 4)}, {vL16}, {sWS}, {sT2} offen offset:1024 sc1")
        self.poll_issue(hpl, vPv, vPoll, sH2fl)
        self.poll_check(hpk, vPv, vPoll, sH2fl, 3)
        self.stamp(hpk, "h2 seen")
        park1 = self.w4_park_groups(1, A_PARK)
        park2 = self.w4_park_groups(2, A_PARK + 56)
        h0 = self.h2_load_groups(0, lambda r: vr(V_B + r, 4))
        hp = self.opt.get("h2_poll_at", 50)
        hc = self.opt.get("h2_check_at", 68)
        nb = self.opt.get("bulk_in_ii", 16)
        bulk = w0g[n0:] + park1 + park2
        nh = self.opt.get("h2_in_ii", 8)
        plan = [(1, ypl), (8, pub1), (20, ypk)] + spread(bulk[:nb], 2, hp - 6) + [(hp, hpl), (hc, hpk)] + spread(h0[:nh], hc, 79) + [(80, gl)]
        p.extend(weave(self.p3_phase(R0, accA, accB, cs), plan))
        bulk = bulk[nb:]
        self.stamp(p, "p3 t23")
        p(f"ds_write_b32 {vT[6]}, {vr(cs)}")
        p(f"""
        v_lshrrev_b32 {a}, 5, {vL}
        v_lshlrev_b32 {a}, 10, {a}
        v_bfe_u32 {b}, {vL}, 2, 2
        v_lshl_add_u32 {a}, {b}, 7, {a}
        v_bfe_u32 {b}, {vL}, 4, 1
        v_lshl_add_u32 {a}, {b}, 5, {a}
        v_and_b32 {b}, 3, {vL}
        v_lshl_add_u32 {a}, {b}, 3, {a}
        s_lshl_b32 {sT0}, {snh}, 12
        s_lshl_b32 {sT1}, {sth}, 6
        s_add_u32 {sT0}, {sT0}, {sT1}
        s_add_u32 {sT0}, {sT0}, {YB}
        v_add_u32 {a}, {sT0}, {a}
        """)
        p.wait(vm=ytok, lg0=True)
        p("s_barrier")
        self.cs_reduce(p, ST, cs)
        yy = V_A
        for i in range(4):
            p(f"ds_read_b64_tr_b16 {vr(yy + 2 * i, 2)}, {a} offset:{(i >> 1) * 2048 + (i & 1) * 512}")
        q2, st2 = self.h2_tile(accA, 0, cs16, V_TMP)
        p.extend(weave(q2, spread(h0[nh:], 1, 20), kinds=("trans",)))
        q3, st3 = self.h2_tile(accB, 1, cs16, V_TMP + 8)
        nb3 = self.opt.get("bulk_in_g3", 8)
        p.extend(weave(q3, spread(bulk[:nb3], 1, 30), kinds=("trans",)))
        bulk = bulk[nb3:]
        self.stamp(p, "p3 done")
        for i in range(1, 8):
            p(f"v_add_f32 {vr(gt)}, {vr(gt)}, {vr(gt + i)}")
        self.half_sum(p, vr(gt), vr(gt + 1))
        G, OM = V_KK, V_KK + 1
        p(f"v_mul_f32 {vr(gt)}, {fbits(-math.log2(math.e))}, {vr(gt)}")
        p(f"v_exp_f32 {vr(gt)}, {vr(gt)}")
        p(f"v_add_f32 {vr(gt)}, 1.0, {vr(gt)}")
        p(f"v_rcp_f32 {vr(G)}, {vr(gt)}")
        self.publish(p, st2, 5, FLAG0)
        p(f"v_sub_f32 {vr(OM)}, 1.0, {vr(G)}")
        base = V_TMP + 16
        w = V_ACC
        for i in range(8):
            p(f"v_and_b32 {vr(w + 2 * i)}, 0xffff, {vr(yy + i)}")
            p(f"v_and_b32 {vr(w + 2 * i + 1)}, {sHi}, {vr(yy + i)}")
            p(f"v_lshlrev_b32 {vr(base + 2 * i)}, 16, {vr(V_X1P + i)}")
            p(f"v_and_b32 {vr(base + 2 * i + 1)}, {sHi}, {vr(V_X1P + i)}")
        for i in range(8):
            p(f"v_dot2_f32_bf16 {vr(w + 2 * i)}, {vr(V_XRES + i)}, {vr(w + 2 * i)}, 0")
            p(f"v_dot2_f32_bf16 {vr(w + 2 * i + 1)}, {vr(V_XRES + i)}, {vr(w + 2 * i + 1)}, 0")
        for i in range(8):
            p(f"v_pk_mul_f32 {vr(base + 2 * i, 2)}, {vr(base + 2 * i, 2)}, {vr(V_KK, 2)} op_sel:[0,1] op_sel_hi:[1,1]")
        for i in range(8):
            p(f"v_pk_fma_f32 {vr(base + 2 * i, 2)}, {vr(w + 2 * i, 2)}, {vr(V_KK, 2)}, {vr(base + 2 * i, 2)} op_sel:[0,0,0] op_sel_hi:[1,0,1]")
        self.stamp(p, "base ready")
        t.update(st3=st3, bulk=bulk, w0t=w0t, base=base)

    def p4(self, p, t):
        acc = [V_ACC + 16 * i for i in range(4)]
        breg = [lambda r: vr(V_B + r, 4), lambda r: ar(r, 4), lambda r: ar(56 + r, 4), lambda r: vr(V_B + r, 4)]
        p(f"v_add_u32 {vXr[0]}, {R2}, {vTrX}")
        p(f"v_add_u32 {vXr[1]}, {R2}, {vTrY}")
        p(f"v_add_u32 {vXr[2]}, {R2}, {vXs[3]}")
        areg = [(vXr[0], vXr[1]), (vTrX, vTrY)]
        pub3 = Seq()
        self.publish(pub3, t["st3"], 6, FLAG0)
        un1, un1t = self.w4_unpark_groups(A_PARK, vXs[3])
        un2, un2t = self.w4_unpark_groups(A_PARK + 56, vXr[2])
        un3, un3t = self.w4_unpark_groups(A_PARK, vXs[3])
        park3 = self.w4_park_groups(3, A_PARK)
        p.wait(vm=t["w0t"])
        for piece in range(4):
            q = Seq()
            rx, ry = areg[piece & 1]

            def rd(u):
                A = V_A + 8 * (u % 4)
                self.a_reads(q, A, rx, u * 2048)
                self.a_reads(q, A + 4, ry, u * 2048)

            rd(0)
            rd(1)
            for u in range(7):
                A = V_A + 8 * (u % 4)
                z = piece == 0 and u == 0
                B0, B1 = breg[piece](8 * u), breg[piece](8 * u + 4)
                for slot, (Aop, Bop) in enumerate(((A, B0), (A + 4, B0), (A, B1), (A + 4, B1))):
                    q(f"v_mfma_f32_32x32x16_bf16 {vr(acc[slot], 16)}, {vr(Aop, 4)}, {Bop}, {'0' if z else vr(acc[slot], 16)}")
                    if slot == 0 and u + 2 < 7:
                        rd(u + 2)
            plan = []
            if piece < 3:
                pl, pk = Seq(), Seq()
                self.poll_issue(pl, vPv, vPoll, sH2fl)
                self.poll_check(pk, vPv, vPoll, sH2fl, 4 + piece)
                hg = self.h2_load_groups(piece + 1, breg[piece + 1])
                if piece == 0:
                    plan += [(0, pl), (1, pub3)] + spread(t["bulk"], 1, 8) + [(9, pk)] + spread(hg, 9, 27) + spread(un1, 10, 27)
                elif piece == 1:
                    plan += [(0, pl)] + spread(park3, 1, 8) + [(9, pk)] + spread(hg, 9, 27) + spread(un2, 2, 27)
                else:
                    plan += [(0, pl), (9, pk)] + spread(hg, 9, 27) + spread(un3, 6, 27)
            p.extend(weave(q, plan))
            self.stamp(p, f"p4 piece{piece}")
        a = vXr[2]
        p(f"v_xor_b32 {vT[2]}, {2 << 14}, {a}")
        p(f"v_xor_b32 {vT[3]}, {3 << 14}, {a}")
        p(f"v_xor_b32 {vT[4]}, {1 << 14}, {a}")
        for s in range(1, 4):
            for g in range(4):
                p(f"ds_write_b128 {a}, {vr(acc[s] + 4 * g, 4)} offset:{(s - 1) * 4096 + g * 1024}")
        p.wait(lg0=True)
        p("s_barrier")
        for s in range(1, 4):
            for g in range(4):
                p(f"ds_read_b128 {vr(acc[s] + 4 * g, 4)}, {vT[1 + s]} offset:{(s - 1) * 4096 + g * 1024}")
        base = t["base"]
        for s in range(1, 4):
            for x in range(0, 16, 2):
                p(f"v_pk_add_f32 {vr(acc[0] + x, 2)}, {vr(acc[0] + x, 2)}, {vr(acc[s] + x, 2)}")
        for x in range(0, 16, 2):
            p(f"v_pk_fma_f32 {vr(acc[0] + x, 2)}, {vr(acc[0] + x, 2)}, {vr(V_KK, 2)}, {vr(base + x, 2)} op_sel:[0,1,0] op_sel_hi:[1,1,1]")
        for i in range(8):
            p(f"v_cvt_pk_bf16_f32 {vr(base + i)}, {vr(acc[0] + 2 * i)}, {vr(acc[0] + 2 * i + 1)}")
        fl = self.opt.get("out_flags", "")
        p(f"buffer_store_dwordx4 {vr(base, 4)}, {vXs[0]}, {sOUT}, 0 offen {fl}")
        p(f"buffer_store_dwordx4 {vr(base + 4, 4)}, {vXs[0]}, {sOUT}, 0 offen offset:32 {fl}")
        self.stamp(p, "out issued")

    def write_stamps(self, p):
        if self.diag:
            p.wait(vm0=True)
            self.stamp(p, "end")
            p(f"""
            s_cmp_lg_u32 s2, {self.opt.get("diag_wg", 73)}
            s_cbranch_scc1 L_end
            s_sub_u32 s98, s98, s96
            s_mul_i32 s98, s98, {self.diag[2]}
            s_lshr_b32 s98, s98, {4 if len(self.diag) > 3 else 0}
            s_memrealtime s[96:97]
            s_waitcnt lgkmcnt(0)
            L_diag:
            s_memrealtime s[100:101]
            s_waitcnt lgkmcnt(0)
            s_sub_u32 s100, s100, s96
            s_cmp_lt_u32 s100, s98
            s_cbranch_scc1 L_diag
            """)
        if not self.profile:
            return
        p.wait(vm0=True)
        self.stamp(p, "end")
        p("s_memrealtime s[100:101]")
        p.wait(lg0=True)
        p("v_writelane_b32 v254, s100, 1")
        p(f"""
        s_lshl_b32 {sT0}, s2, 2
        s_add_u32 {sT0}, {sT0}, {sw}
        s_lshl_b32 {sT0}, {sT0}, 8
        s_add_u32 {sT0}, {sT0}, {WS_STAMP}
        v_lshlrev_b32 {vP2}, 2, {vL}
        """)
        p(f"buffer_store_dword v254, {vP2}, {sWS}, {sT0} offen")

    def build(self):
        p = self.p
        t = {}
        self.prologue(p)
        self.p1(p, t)
        self.a1(p, t)
        self.p2(p, t)
        self.conv(p, t)
        self.p3(p, t)
        self.p4(p, t)
        self.write_stamps(p)
        p("L_end:")
        p("s_endpgm")
        assert len(self.stamps) <= 62, len(self.stamps)
        body, items = finalize(p)
        head = open(__file__.replace("gen.py", "header.txt")).read()
        text = head + f"; @launch grid=(256,1,1) block=(256,1,1) lds={LDS_SIZE}\n"
        text += f""".amdgcn_target "amdgcn-amd-amdhsa--gfx950"
.text
.globl {NAME}_kernel
.p2align 8
.type {NAME}_kernel,@function
{NAME}_kernel:
.set CODE_BYTES, L_code_end - {NAME}_kernel - 256
"""
        text += body
        text += f"""L_code_end:
.section .rodata,"a"
.p2align 6
.amdhsa_kernel {NAME}_kernel
  .amdhsa_next_free_vgpr 512
  .amdhsa_next_free_sgpr 102
  .amdhsa_accum_offset 256
  .amdhsa_group_segment_fixed_size 0
  .amdhsa_kernarg_size 120
  .amdhsa_user_sgpr_count 2
  .amdhsa_user_sgpr_kernarg_segment_ptr 1
  .amdhsa_system_sgpr_workgroup_id_x 1
.end_amdhsa_kernel
"""
        return text


if __name__ == "__main__":
    prof = "--profile" in sys.argv
    out = [a for a in sys.argv[1:] if not a.startswith("--")]
    diag = [a[7:].split(",") for a in sys.argv if a.startswith("--diag=")]
    opt = {}
    for a in sys.argv:
        if a.startswith("--o:"):
            k, v = a[4:].split("=")
            opt[k] = int(v) if v.lstrip("-").isdigit() else v
    g = Gen(profile=prof, diag=diag[0] if diag else None, opt=opt)
    text = g.build()
    path = out[0] if out else f"cdna_kernels/{NAME}.s"
    open(path, "w").write(text)
    if prof:
        open(path + ".stamps", "w").write("\n".join(g.stamps))
    print("wrote", path, len(text), "bytes")
```

```python
import re

REG_RE = re.compile(r"^(-|\|)?([vas])(\d+)\|?$")
RNG_RE = re.compile(r"^(-|\|)?([vas])\[(\d+):(\d+)\]\|?$")
TRANS = ("v_exp_f32", "v_log_f32", "v_rcp_f32", "v_rsq_f32", "v_sqrt_f32", "v_sin_f32", "v_cos_f32")


def regs_of(tok):
    tok = tok.strip()
    m = REG_RE.match(tok)
    if m:
        return [(m.group(2), int(m.group(3)))]
    m = RNG_RE.match(tok)
    if m:
        return [(m.group(2), i) for i in range(int(m.group(3)), int(m.group(4)) + 1)]
    if tok == "vcc":
        return [("s", "vcc")]
    if tok in ("exec", "exec_hi", "exec_lo"):
        return [("s", "exec")]
    if tok == "m0":
        return [("s", "m0")]
    return []


def split_ops(s):
    out, depth, cur = [], 0, ""
    for ch in s:
        if ch == "[":
            depth += 1
        if ch == "]":
            depth -= 1
        if ch == "," and depth == 0:
            out.append(cur.strip())
            cur = ""
        else:
            cur += ch
    if cur.strip():
        out.append(cur.strip())
    return out


class Ins:
    __slots__ = ("text", "op", "kind", "dst", "src", "srcc", "count", "vm", "lg", "wide", "note")

    def __init__(self, text, count=True):
        self.text = text.strip()
        self.count = count
        self.vm = None
        self.lg = None
        self.srcc = set()
        self.wide = set()
        self.note = None
        t = self.text
        if t.endswith(":"):
            self.op, self.kind, self.dst, self.src = t, "label", set(), set()
            return
        if t.startswith(";") or t.startswith("."):
            self.op, self.kind, self.dst, self.src = t, "meta", set(), set()
            return
        parts = t.split(None, 1)
        op = parts[0]
        self.op = op
        rest = parts[1] if len(parts) > 1 else ""
        ops = split_ops(rest)
        mods = ""
        if ops:
            last = ops[-1].split(None, 1)
            ops[-1] = last[0]
            mods = last[1] if len(last) > 1 else ""
        R = [regs_of(o) for o in ops]
        flat = lambda xs: set(r for x in xs for r in x)
        dst, src = set(), set()
        if op.startswith("v_mfma"):
            self.kind = "mfma32" if "32x32" in op else "mfma16"
            dst, src = flat(R[:1]), flat(R[1:])
            self.srcc = flat(R[3:4])
        elif op.startswith("buffer_load") or op.startswith("global_load"):
            if re.search(r"\blds\b", mods):
                self.kind = "dma"
                src = flat(R) | {("s", "m0")}
            else:
                self.kind = "vld"
                dst, src = flat(R[:1]) - {("v", 255)}, flat(R[1:])
        elif op.startswith("buffer_store"):
            self.kind = "vst"
            src = flat(R)
            if "x4" in op or "x3" in op:
                self.wide = flat(R[:1])
        elif op.startswith("global_store"):
            self.kind = "vst"
            src = flat(R)
            if "x4" in op or "x3" in op:
                self.wide = flat(R[1:2])
        elif op.startswith("ds_read") or op.startswith("ds_bpermute"):
            self.kind = "dsr"
            dst, src = flat(R[:1]), flat(R[1:])
        elif op.startswith("ds_write"):
            self.kind = "dsw"
            src = flat(R)
        elif op.startswith("s_load") or op.startswith("s_memtime") or op.startswith("s_memrealtime"):
            self.kind = "smem"
            dst, src = flat(R[:1]), flat(R[1:])
        elif op == "s_waitcnt":
            self.kind = "rawwait"
        elif op == "s_barrier":
            self.kind = "barrier"
        elif op == "s_nop":
            self.kind = "nop"
        elif op.startswith("s_cbranch") or op == "s_branch":
            self.kind = "branch"
            if "vcc" in op:
                src = {("s", "vcc")}
        elif op in ("s_endpgm", "s_sleep", "s_setprio"):
            self.kind = "salu"
        elif op.startswith("s_cmp") or op.startswith("s_bitcmp"):
            self.kind = "salu"
            src = flat(R)
        elif op.startswith("s_"):
            self.kind = "salu"
            dst, src = flat(R[:1]), flat(R[1:])
            if "saveexec" in op:
                dst |= {("s", "exec")}
        elif op.startswith("v_"):
            base = op.replace("_e32", "").replace("_e64", "")
            self.kind = "trans" if base in TRANS else "valu"
            dst, src = flat(R[:1]), flat(R[1:])
            if "permlane" in op and "swap" in op:
                dst, src = flat(R[:2]), flat(R[:2])
            if op.startswith("v_fmac") or op.startswith("v_dot2c") or op.startswith("v_pk_fmac"):
                src |= dst
            if op.startswith("v_add_co") or op.startswith("v_addc_co"):
                dst, src = flat(R[:2]), flat(R[2:])
            if op.startswith("v_cndmask") and len(ops) == 3:
                src |= {("s", "vcc")}
        else:
            raise ValueError("unknown instruction: " + t)
        self.dst, self.src = dst, src


class Wait:
    kind = "wait"

    def __init__(self, vm=(), lg=(), vm0=False, lg0=False):
        self.vm, self.lg, self.vm0, self.lg0 = list(vm), list(lg), vm0, lg0


class Drained:
    kind = "drained"

    def __init__(self, vm=True, lg=True):
        self.vm, self.lg = vm, lg


class Group:
    kind = "group"

    def __init__(self, items):
        self.items = list(items)


class Mark:
    kind = "mark"

    def __init__(self, name=None, limit=None, at_least=None, force=None):
        self.name, self.limit, self.at_least, self.force = name, limit, at_least, force


class Bg:
    def __init__(self, seq, cls, after=None, prio=0):
        self.seq, self.cls, self.after, self.done, self.prio = seq, cls, after, False, prio
        self.ins = [i for i in flatten(seq.items) if isinstance(i, Ins)]
        for i in self.ins:
            if i.kind in ("vld", "vst", "dma"):
                i.note = cls


def flatten(items):
    out = []
    for it in items:
        if it.kind == "group":
            out.extend(flatten(it.items))
        else:
            out.append(it)
    return out


class Seq:
    def __init__(self):
        self.items = []

    def atomic(self, other):
        self.items.append(Group(other.items))

    def mark(self, name=None, limit=None, at_least=None, force=None):
        self.items.append(Mark(name, limit, at_least, force))

    def __call__(self, text, count=True):
        last = None
        for line in text.strip().split("\n"):
            line = line.strip()
            if not line:
                continue
            last = Ins(line, count)
            self.items.append(last)
        return last

    def wait(self, vm=(), lg=(), vm0=False, lg0=False):
        if isinstance(vm, Ins):
            vm = [vm]
        if isinstance(lg, Ins):
            lg = [lg]
        self.items.append(Wait(vm, lg, vm0, lg0))

    def drained(self, vm=True, lg=True):
        self.items.append(Drained(vm, lg))

    def extend(self, other):
        self.items.extend(other.items)

    def groups(self):
        out, cur = [], []
        for it in self.items:
            cur.append(it)
            if it.kind in ("salu", "wait", "meta", "mark"):
                continue
            out.append(cur)
            cur = []
        if cur:
            out.append(cur)
        return out


def weave(fg, plan, kinds=("mfma32", "mfma16")):
    out = Seq()
    plan = sorted(enumerate(plan), key=lambda e: (e[1][0], e[0]))
    plan = [e[1] for e in plan]
    gi, n = 0, 0
    while gi < len(plan) and plan[gi][0] <= 0:
        out.extend(plan[gi][1])
        gi += 1
    for it in fg.items:
        out.items.append(it)
        if it.kind in kinds:
            n += 1
            while gi < len(plan) and plan[gi][0] <= n:
                out.extend(plan[gi][1])
                gi += 1
    for _, g in plan[gi:]:
        out.extend(g)
    return out


def spread(groups, first, last):
    n = len(groups)
    return [(first + (last - first) * i // max(n - 1, 1), g) for i, g in enumerate(groups)]


def cost(items):
    c = 0
    for it in flatten(items):
        if it.kind == "trans":
            c += 2
        elif it.kind in ("mark", "meta", "label", "drained"):
            c += 0
        elif isinstance(it, Ins) and not it.count:
            c += 0
        else:
            c += 1
    return c


def fill(fg, streams, fixed=()):
    caps, n = {}, 0
    for it in fg.items:
        if it.kind in ("mfma32", "mfma16"):
            n += 1
            caps[n] = 5.0 if it.kind == "mfma32" else 1.2
        elif n:
            caps[n] -= cost([it])
    for pos, g in fixed:
        if pos in caps:
            caps[pos] -= min(cost(g.items), 6)
    plan = list(fixed)
    for first, last, groups in streams:
        idx = [i for i in range(first, last + 1) if i in caps]
        w = [max(caps[i], 0.15) for i in idx]
        total, need = sum(w), sum(cost(g.items) for g in groups)
        acc, done, gi = 0.0, 0, 0
        for i, wi in zip(idx, w):
            acc += wi * need / total
            used = 0
            while gi < len(groups) and (done + cost(groups[gi].items) / 2.0 <= acc or i == idx[-1]):
                plan.append((i, groups[gi]))
                done += cost(groups[gi].items)
                used += cost(groups[gi].items)
                gi += 1
            caps[i] -= used
    return plan


def split(seq):
    out = []
    for g in seq.groups():
        q = Seq()
        q.items = list(g)
        out.append(q)
    return out


VM_KINDS = ("vld", "vst", "dma")
LG_KINDS = ("dsr", "dsw")


def resolve_waits(items):
    out = []
    vm_n, vm_done = 0, 0
    lg_n, lg_done = 0, 0
    smem_pending = False
    pend = {}

    def emit(need_vm, need_lg, lg0=False):
        nonlocal vm_done, lg_done, smem_pending
        parts = []
        if need_vm > vm_done:
            n = min(vm_n - need_vm, 63)
            parts.append(f"vmcnt({n})")
            vm_done = vm_n - n
        if lg0 or (need_lg > lg_done and smem_pending):
            if smem_pending or lg_done < lg_n:
                parts.append("lgkmcnt(0)")
            lg_done, smem_pending = lg_n, False
        elif need_lg > lg_done:
            n = min(lg_n - need_lg, 15)
            parts.append(f"lgkmcnt({n})")
            lg_done = lg_n - n
        if parts:
            out.append(Ins("s_waitcnt " + " ".join(parts)))

    for it in items:
        if it.kind == "wait":
            nv = vm_n if it.vm0 else max([t.vm for t in it.vm], default=0)
            nl = max([t.lg for t in it.lg], default=0)
            if it.vm0:
                parts = ["vmcnt(0)"]
                vm_done = vm_n
                if it.lg0:
                    parts.append("lgkmcnt(0)")
                    lg_done, smem_pending = lg_n, False
                out.append(Ins("s_waitcnt " + " ".join(parts)))
                if not it.lg0:
                    emit(0, nl)
            else:
                emit(nv, nl, it.lg0)
            continue
        if it.kind == "drained":
            if it.vm:
                vm_done = vm_n
            if it.lg:
                lg_done, smem_pending = lg_n, False
            continue
        if it.kind not in ("label", "meta"):
            nv, nl, l0 = 0, 0, False
            for r in it.src | it.dst:
                p = pend.get(r)
                if p is None:
                    continue
                if p.kind == "vld":
                    if p.count:
                        nv = max(nv, p.vm)
                elif p.kind == "dsr" and p.count:
                    if it.kind == "dsr" and r in it.dst and r not in it.src:
                        continue
                    nl = max(nl, p.lg)
                elif p.kind == "smem" and smem_pending:
                    l0 = True
            emit(nv, nl, l0)
        out.append(it)
        if it.kind in VM_KINDS:
            if it.count:
                vm_n += 1
            it.vm = vm_n
        if it.kind in LG_KINDS:
            if it.count:
                lg_n += 1
            it.lg = lg_n
        if it.kind == "smem":
            smem_pending = True
        if it.kind in ("vld", "dsr", "smem"):
            for r in it.dst:
                pend[r] = it
        else:
            for r in it.dst:
                pend.pop(r, None)
    return out


def states(it):
    if it.kind == "nop":
        return int(it.text.split()[1]) + 1
    if it.kind in ("label", "meta"):
        return 0
    return 1


def is_valu(it):
    return it.kind in ("valu", "trans")


def need_gap(p, c):
    g = 0
    pv = {r for r in p.dst if r[0] in "va"}
    ps = {r for r in p.dst if r[0] == "s"}
    c_mfma = c.kind in ("mfma32", "mfma16")
    if is_valu(p):
        if c_mfma and pv & c.src:
            g = max(g, 2)
        if ps & c.src and c.kind in VM_KINDS:
            g = max(g, 5)
        if ps & c.src and is_valu(c):
            g = max(g, 4 if ("readlane" in c.op or "writelane" in c.op) else 2)
        if pv & c.src and ("readfirstlane" in c.op or "readlane" in c.op):
            g = max(g, 1)
        if pv & c.src and ("permlane" in c.op or "dpp" in c.text or "row_" in c.text):
            g = max(g, 2)
        if p.kind == "trans" and pv & c.src and c.kind == "valu":
            g = max(g, 1)
        if p.op.startswith("v_dot") and pv & (c.src | c.dst):
            same_acc = c.op == p.op and not (pv & (c.src - _dot_acc(c)))
            if not same_acc:
                g = max(g, 3)
        if ("s", "exec") in p.dst and c_mfma:
            g = max(g, 4)
    if p.kind == "salu" and ("s", "m0") in p.dst and c.kind == "dma":
        g = max(g, 1)
    if p.kind in ("mfma32", "mfma16"):
        big = p.kind == "mfma32"
        if c_mfma:
            if pv & (c.src - c.srcc):
                g = max(g, 12 if big else 8)
            if pv & c.srcc and not (c.srcc == pv and c.kind == p.kind):
                g = max(g, 10 if big else 6)
            if pv & c.dst and not (pv & c.srcc):
                g = max(g, 12 if big else 8)
        else:
            if pv & (c.src | c.dst):
                g = max(g, 12 if big else 8)
            if is_valu(c) and p.srcc & c.dst:
                g = max(g, 7 if big else 3)
    if p.wide and p.wide & c.dst:
        g = max(g, 2)
    return g


def _dot_acc(c):
    ops = split_ops(c.text.split(None, 1)[1])
    if c.op.startswith("v_dot2c"):
        return set(regs_of(ops[0]))
    return set(regs_of(ops[3].split()[0])) if len(ops) > 3 else set()


def pad_hazards(items):
    out = []
    for it in items:
        if it.kind not in ("label", "meta", "nop"):
            need, dist = 0, 0
            for p in reversed(out):
                if dist >= 12:
                    break
                if p.kind not in ("label", "meta", "nop", "rawwait"):
                    need = max(need, need_gap(p, it) - dist)
                dist += states(p)
            if need > 0:
                out.append(Ins(f"s_nop {need - 1}"))
        out.append(it)
    return out


CLASSES = {"l2": (70, 350), "mall": (100, 900), "hand": (90, 800), "cold": (170, 1400), "st": (30, 800),
           "few": (20, 700), "fewcold": (60, 1500), None: (70, 500)}
DEPTH = 10


def schedule(seq, bgs, classes=None, log=None):
    cl = dict(CLASSES)
    cl.update(classes or {})
    out = Seq()
    st = dict(t=0, pipe=0, vm_last=0, ds_last=0, limit=700)
    vm_done, vm_ins, ready, fin, passed = [], [], {}, {}, {None}
    owner = {}
    for b in bgs:
        for i in b.ins:
            owner[id(i)] = b
    pending_dst = {}

    def refresh():
        pending_dst.clear()
        for b in bgs:
            if not b.done and b.after in passed:
                for i in b.ins:
                    if i.kind == "vld":
                        for r in i.dst:
                            pending_dst.setdefault(r, b)

    def force(b):
        for x in bgs:
            if not x.done and x.after in passed and x.prio == b.prio:
                issue(x)
            if x is b:
                break
        assert b.done, "background group needed before its mark"

    def run(it):
        t = st["t"]
        if it.kind == "mark":
            if it.name:
                passed.add(it.name)
                if log is not None:
                    log.append((it.name, t))
                refresh()
            if it.limit is not None:
                st["limit"] = it.limit
            if it.at_least is not None:
                st["t"] = max(t, fin.get(it.at_least[0], 0) + it.at_least[1])
            fin[it.name] = st["t"]
            if it.force is not None:
                for x in bgs:
                    if not x.done and x.after in passed and x.prio <= it.force:
                        issue(x)
            return
        if it.kind == "wait":
            for k in it.vm + it.lg:
                t = max(t, fin.get(id(k), 0))
            if it.vm0:
                t = max(t, st["vm_last"])
            if it.lg0:
                t = max(t, st["ds_last"])
            st["t"] = t + 4
            return
        if it.kind in ("label", "meta", "drained", "branch", "rawwait"):
            st["t"] = t + (4 if it.kind == "branch" else 0)
            return
        if not it.count:
            st["t"] = t + 4
            return
        for r in it.src:
            t = max(t, ready.get(r, 0))
        k = it.kind
        if k in ("mfma32", "mfma16"):
            t = max(t, st["pipe"])
            d = 32 if k == "mfma32" else 16
            st["pipe"] = t + d
            for r in it.dst:
                ready[r] = 0
            t += 8
        elif k in ("valu", "trans"):
            if it.op.startswith("v_pk_") or it.op.startswith("v_dot"):
                t = max(t, st["pipe"] + 12)
            t += 8 if k == "trans" else 5
        elif k in ("dsr", "dsw"):
            c = 52 if it.op == "ds_write_b128" else (16 if "b128" in it.op or "read2" in it.op or k == "dsw" else 8)
            st["ds_last"] = max(st["ds_last"] + c, t + 90)
            fin[id(it)] = st["ds_last"]
            for r in it.dst:
                ready[r] = st["ds_last"]
            t += 4
        elif k in ("vld", "vst", "dma"):
            if len(vm_done) >= DEPTH:
                t = max(t, vm_done[-DEPTH])
            s, lat = cl[it.note if it.note else ("st" if k == "vst" else None)]
            st["vm_last"] = max(st["vm_last"] + s, t + lat)
            vm_done.append(st["vm_last"])
            vm_ins.append(it)
            fin[id(it)] = st["vm_last"]
            for r in it.dst:
                ready[r] = st["vm_last"]
            t += 8
        elif k == "barrier":
            t += 50
        elif k == "smem":
            t += 4
        elif k == "nop":
            t += 4 * states(it)
        else:
            t += 4
        st["t"] = t

    def issue(b):
        b.done = True
        if log is not None:
            log.append((f"+{b.prio}", st["t"]))
        out.items.append(Group(b.seq.items))
        for i in flatten(b.seq.items):
            run(i)
        refresh()

    def needs(items):
        for it in items:
            if it.kind == "wait":
                for k in it.vm:
                    b = owner.get(id(k))
                    if b and not b.done:
                        force(b)
            elif isinstance(it, Ins):
                for r in it.src:
                    b = pending_dst.get(r)
                    if b and not b.done:
                        force(b)

    def candidate(now):
        outstanding = sum(1 for x in vm_done[-DEPTH:] if x > now)
        seen = set()
        for nxt in bgs:
            if nxt.done or nxt.after not in passed or nxt.prio in seen:
                continue
            seen.add(nxt.prio)
            n = sum(1 for i in nxt.ins if i.kind in ("vld", "vst", "dma"))
            sv, lat = cl[nxt.cls]
            if outstanding + n > DEPTH or st["vm_last"] + n * sv - now > st["limit"]:
                return None
            if lat + (n - 1) * sv > st["limit"]:
                continue
            return nxt
        return None

    def stall_until(items):
        t = st["t"]
        for it in items:
            if it.kind == "wait":
                for k in it.vm:
                    t = max(t, fin.get(id(k), 0))
            elif isinstance(it, Ins) and it.kind not in ("salu", "label", "meta"):
                for r in it.src:
                    t = max(t, ready.get(r, 0))
                break
        return t

    for g in seq.groups():
        items = flatten(g)
        skip = False
        for it in items:
            if it.kind == "mark":
                run(it)
        needs(items)
        until = stall_until(items)
        while until > st["t"] + 60:
            step = None
            for done, ins in list(zip(vm_done, vm_ins))[-DEPTH:]:
                if st["t"] < done < until - 40 and candidate(done):
                    step = (done, ins)
                    break
            c = candidate(st["t"])
            if c:
                issue(c)
            elif step:
                w = Wait(vm=[step[1]])
                out.items.append(w)
                run(w)
                issue(candidate(st["t"]))
            else:
                break
        out.items.append(Group([x for x in g if x.kind != "mark"]))
        for it in items:
            if it.kind == "mark":
                continue
            if it.kind == "label" and skip == it.text[:-1]:
                skip = False
            if not skip:
                run(it)
            if it.kind == "branch" and it.op == "s_cbranch_vccz":
                skip = it.text.split()[1]
        while True:
            c = candidate(st["t"])
            if c is None:
                break
            issue(c)
    assert all(b.done for b in bgs), "unissued background groups"
    if log is not None:
        log.append(("end", st["t"]))
    return out


def finalize(seq):
    items = [i for i in flatten(seq.items) if i.kind != "mark"]
    items = pad_hazards(resolve_waits(items))
    lines = []
    for it in items:
        if it.kind == "label":
            lines.append(it.text)
        else:
            lines.append("    " + it.text)
    return "\n".join(lines) + "\n", items
```

```python
import math
import struct
import sys

from asmdsl import Seq, Bg, finalize, schedule, weave, spread, split, fill

NAME = "gated_mix__ssm_conv_h3__mixer_s_mlp__prompt"

FLAG0, FLAG1, WS_EPOCH = 0x0, 0x20000, 0x40000
WS_H, WS_X1, WS_H2, WS_KVT, WS_YT = 0x100000, 0x300000, 0x500000, 0xC00000, 0xE00000
WS_STATS, WS_GATE, WS_STAMP = 0x1000000, 0x1080000, 0x1100000
WS_SIZE = 0x1200000

R0, R1, R2, R3, R4 = 0, 32768, 65536, 98304, 131072
KB, VB, A1R = R4, R4 + 9216, R4 + 17408
ST = R4 + 28672
ST_STAT, ST_CS, ST_CS3 = ST, ST + 1024, ST + 1536
KCOPY, KCH = 4288, 8576
CK, CU, UCH = R4, R4 + 17152, 4928
EX2, EXC = R2 + 12288, R4
YB = R4
LDS_SIZE = 163840

sX, sK, sV, sSK, sW1, sW2, sW3, sW4, sOUT, sWS, sDBG = [f"s[{4 + 4 * i}:{7 + 4 * i}]" for i in range(11)]
pSH, pD, pG = "s[48:49]", "s[50:51]", "s[52:53]"
sw, sth, skh, snh, sc, sj, sm, ssc = [f"s{i}" for i in range(54, 62)]
srot, sja, sEp, sOnes, sHi = "s62", "s63", "s64", "s65", "s66"
sOneLo, sOneHi = "s44", "s45"
sT0, sT1, sT2, sT3, sCnt = "s67", "s68", "s69", "s70", "s71"
sU = [f"s{i}" for i in range(72, 79)]
sFlag, sPriv = "s79", "s80"
sWsrc, sWlds, sW3b, sB, sC, sD, sE, sOob = [f"s{i}" for i in range(81, 89)]
sR = ["s46", "s47", "s3", "s95"]
sH2st, sH2fl, sH2ld, sX1ld, sStld = [f"s{i}" for i in range(89, 94)]
sj2 = "s94"
sYfl, sYld, sYlds, sGld = "s8", "s9", "s10", "s11"

vL, vL16, vTrX, vTrY, vTr0, vWs1, vWs, vW3s = [f"v{i}" for i in range(1, 9)]
vW3s1 = "v0"
vXs = [f"v{i}" for i in range(9, 13)]
vXr = [f"v{i}" for i in range(13, 17)]
vPoll, vP2, vZero, vCsA = "v17", "v18", "v19", "v20"
vT = [f"v{i}" for i in range(21, 27)] + ["v253"]
V_KK, V_SM = 28, 30
V_XRES, V_X1P = 32, 40
V_B, V_ACC, V_A, V_TMP = 48, 112, 176, 208
V_ONES = 244
V_SSM = 232
vPv, vPw, vKv, vKh = "v248", "v249", "v250", "v251"
V_SK = 252
vL128 = "v243"
vOut = "v27"
vH2fl, vY = "v252", "v9"
A_W2, A_PARK = 0, 128


def vr(b, n=1):
    return f"v{b}" if n == 1 else f"v[{b}:{b + n - 1}]"


def ar(b, n=1):
    return f"a{b}" if n == 1 else f"a[{b}:{b + n - 1}]"


def fbits(x):
    return "0x%08x" % struct.unpack("<I", struct.pack("<f", x))[0]


C0 = math.sqrt(2.0 / math.pi)
GK1 = -2.0 * C0 * math.log2(math.e)
GK2 = GK1 * 0.044715
SPIN_LIMIT = 400000


class Gen:
    def __init__(self, profile=False, diag=None, opt=None):
        self.profile = profile
        self.opt = opt or {}
        self.diag = diag
        self.p = Seq()
        self.nlabel = 0
        self.npoll = 0
        self.idle = (3 - self.opt.get('j2', 1)) & 7
        self.bgs = []
        self.stamps = []

    def label(self, base):
        self.nlabel += 1
        return f"L_{base}_{self.nlabel}"

    def stamp(self, p, name):
        p.mark("@" + name)
        if self.diag and name in self.diag[:2]:
            r = 96 + 2 * self.diag.index(name)
            p(f"{'s_memtime' if len(self.diag) > 3 else 's_memrealtime'} s[{r}:{r + 1}]")
            p.wait(lg0=True)
        if not self.profile:
            return
        only = self.opt.get("stamps")
        if only and name not in ("start", "end") and name not in only.split(",") and not name[-1].isdigit():
            return
        i = len(self.stamps)
        self.stamps.append(name)
        q = Seq()
        q("s_memtime s[100:101]")
        q.wait(lg0=True)
        q(f"v_writelane_b32 v254, s100, {i + 2}")
        p.atomic(q)

    def dma(self, p, vaddr, srd, soff, imm=0, flags="", count=True):
        off = f" offset:{imm}" if imm else ""
        return p(f"buffer_load_dwordx4 {vaddr}, {srd}, {soff} offen{off} {flags} lds", count)

    def bg(self, seq, cls, after, prio):
        b = Bg(seq, cls, after, prio)
        self.bgs.append((prio, len(self.bgs), b))
        return b

    def dma_pair(self, v0, v1, srd, src_lines, lds_reg, lds, flags=""):
        g = Seq()
        g(f"s_add_u32 m0, {lds_reg}, {lds}")
        g(src_lines)
        self.dma(g, v0, srd, sB, flags=flags)
        return g, self.dma(g, v1, srd, sB, 1024, flags=flags)

    def dense(self, tag, positions):
        plan = []
        if self.opt.get("dense") == tag[0] or self.opt.get("dense") == "all":
            for n in positions:
                q = Seq()
                self.stamp(q, f"{tag}{n}")
                plan.append((n, q))
        return plan

    def emit(self, p, groups):
        for g in groups:
            p.extend(g)

    def poll_issue(self, p, dst, vaddr, soff, srd=sWS):
        t = p(f"buffer_load_dword {dst}, {vaddr}, {srd}, {soff} offen sc1")
        t.note = "few"
        return t

    def poll_check(self, p0, dst, vaddr, soff, need):
        p = Seq()
        a, b = self.label("poll"), self.label("pdone")
        p(f"s_mov_b32 {sCnt}, {SPIN_LIMIT}")
        p(f"s_add_u32 {sE}, {sEp}, {need}")
        p(f"v_subrev_u32 {dst}, {sE}, {dst}")
        p(f"v_cmp_lt_u32 vcc, {6 - need}, {dst}")
        p(f"s_cbranch_vccz {b}")
        p(f"{a}:")
        p(f"s_sleep {self.opt.get('poll_sleep', 3)}")
        p(f"s_sub_u32 {sCnt}, {sCnt}, 1")
        p(f"buffer_load_dword {dst}, {vaddr}, {sWS}, {soff} offen sc1", count=False)
        p("s_waitcnt vmcnt(0)")
        p(f"v_subrev_u32 {dst}, {sE}, {dst}")
        p(f"v_cmp_lt_u32 vcc, {6 - need}, {dst}")
        p(f"s_cbranch_vccz {b}")
        p(f"s_cmp_lg_u32 {sCnt}, 0")
        p(f"s_cbranch_scc1 {a}")
        p(f"{b}:")
        if self.profile:
            self.npoll += 1
            p(f"s_sub_u32 {sCnt}, {SPIN_LIMIT}, {sCnt}")
            p(f"v_writelane_b32 v254, {sCnt}, {64 - self.npoll}")
        p0.atomic(p)

    def masked(self, p0, mask, text):
        p = Seq()
        p(f"s_mov_b64 exec, {mask}")
        t = p(text)
        p("s_mov_b64 exec, -1")
        p0.atomic(p)
        return t

    def publish(self, p, toks, value, area):
        p(f"s_add_u32 {sE}, {sEp}, {value}")
        p(f"v_mov_b32 {vP2}, {sE}")
        p(f"s_add_u32 {sE}, {sFlag}, {area}")
        p.wait(vm=toks)
        return self.masked(p, 1, f"buffer_store_dword {vP2}, {vZero}, {sWS}, {sE} offen sc1")

    def half_sum(self, p, reg, tmp):
        p(f"v_mov_b32 {tmp}, {reg}")
        p(f"v_permlane32_swap_b32 {reg}, {tmp}")
        p(f"v_add_f32 {reg}, {reg}, {tmp}")

    def a_reads(self, p, dst, vaddr, off, areg=False):
        f = ar if areg else vr
        p(f"ds_read_b64_tr_b16 {f(dst, 2)}, {vaddr} offset:{off}")
        return p(f"ds_read_b64_tr_b16 {f(dst + 2, 2)}, {vaddr} offset:{off + 512}")

    def ln_consts(self, p, vsum, vsq):
        p(f"v_mul_f32 {vr(V_SM + 1)}, {fbits(-1.0 / 512)}, {vsum}")
        p(f"v_mul_f32 {vsq}, {fbits(1.0 / 512)}, {vsq}")
        p(f"v_fma_f32 {vsq}, -{vr(V_SM + 1)}, {vr(V_SM + 1)}, {vsq}")
        p(f"v_max_f32 {vsq}, 0, {vsq}")
        p(f"v_add_f32 {vsq}, {fbits(1e-5)}, {vsq}")
        p(f"v_rsq_f32 {vsum}, {vsq}")
        p(f"v_sqrt_f32 {vr(V_SM)}, {vsq}")
        p(f"v_mul_f32 {vr(V_KK)}, {fbits(GK1)}, {vsum}")
        p(f"v_mul_f32 {vsq}, {vsum}, {vsum}")
        p(f"v_mul_f32 {vsq}, {vsq}, {vsum}")
        p(f"v_mul_f32 {vr(V_KK + 1)}, {fbits(GK2)}, {vsq}")

    def gelu_packed(self, p, acc, cs, tmp, out, n=16):
        KK, SM = vr(V_KK, 2), vr(V_SM, 2)
        for b in range(0, n, 8):
            pr = [b + 2 * i for i in range(4)]
            t = lambda x: tmp + (x - b)
            for x in pr:
                p(f"v_pk_fma_f32 {vr(acc + x, 2)}, {vr(cs + x, 2)}, {SM}, {vr(acc + x, 2)} op_sel:[0,1,0] op_sel_hi:[1,1,1]")
            for x in pr:
                p(f"v_pk_mul_f32 {vr(t(x), 2)}, {vr(acc + x, 2)}, {vr(acc + x, 2)}")
            for x in pr:
                p(f"v_pk_fma_f32 {vr(t(x), 2)}, {vr(t(x), 2)}, {KK}, {KK} op_sel:[0,1,0] op_sel_hi:[1,1,0]")
            for x in pr:
                p(f"v_pk_mul_f32 {vr(t(x), 2)}, {vr(t(x), 2)}, {vr(acc + x, 2)}")
            for x in range(b, b + 8):
                p(f"v_exp_f32 {vr(t(x))}, {vr(t(x))}")
            for x in pr:
                p(f"v_pk_fma_f32 {vr(t(x), 2)}, {vr(t(x), 2)}, {SM}, {SM} op_sel:[0,0,0] op_sel_hi:[1,0,0]")
            for x in range(b, b + 8):
                p(f"v_rcp_f32 {vr(t(x))}, {vr(t(x))}")
            for x in pr:
                p(f"v_pk_mul_f32 {vr(t(x), 2)}, {vr(t(x), 2)}, {vr(acc + x, 2)}")
            for x in pr:
                p(f"v_cvt_pk_bf16_f32 {vr(out + x // 2)}, {vr(t(x))}, {vr(t(x) + 1)}")

    def prologue(self, p):
        p("s_cmp_ge_u32 s2, 256")
        p("s_cbranch_scc1 L_end")
        if self.profile:
            p("v_mov_b32 v254, 0")
            p("s_memrealtime s[100:101]")
            p.wait(lg0=True)
            p("v_writelane_b32 v254, s100, 0")
        self.stamp(p, "start")
        p("s_load_dwordx16 s[64:79], s[0:1], 0")
        p("s_getpc_b64 s[48:49]")
        p("L_pc:")
        p("s_lshr_b32 s50, s2, 3")
        p("s_lshl_b32 s50, s50, 10")
        p("v_lshlrev_b32 v1, 7, v0")
        p("v_add_u32 v2, s50, v1")
        p("v_cmp_gt_u32 vcc, 32, v0")
        p("v_cndmask_b32 v1, v2, v1, vcc")
        p("v_min_u32 v1, CODE_BYTES, v1")
        p("v_cmp_gt_u32 vcc, 40, v0")
        p("s_and_saveexec_b64 s[50:51], vcc")
        p("s_cbranch_execz L_nopf")
        p("global_load_dword v255, v1, s[48:49]", count=False)
        p("L_nopf:")
        p("s_mov_b64 exec, s[50:51]")
        row, t1, t2 = vT[0], vT[1], vT[2]
        sT0, sT1 = "s52", "s53"
        p(f"""
        v_lshrrev_b32 {vT[3]}, 6, v0
        v_and_b32 {vL}, 63, v0
        v_readfirstlane_b32 {sw}, {vT[3]}
        v_lshrrev_b32 {row}, 3, {vL}
        v_and_b32 {t2}, 7, {vL}
        s_and_b32 {sT0}, s2, 7
        s_lshr_b32 {sT1}, s2, 6
        s_lshl_b32 {sc}, {sT0}, 2
        s_add_u32 {sc}, {sc}, {sT1}
        s_bfe_u32 {sj}, s2, 0x30003
        s_add_u32 {srot}, {sj}, {sT1}
        s_and_b32 {srot}, {srot}, {self.opt.get("rot1", 3)}
        s_and_b32 {sth}, {sw}, 1
        s_lshr_b32 {skh}, {sw}, 1
        s_lshl_b32 {sPriv}, {sw}, 14
        """)
        p(f"""
        s_lshr_b32 {sT0}, {sj}, 2
        s_add_u32 {sT0}, {sT0}, 1
        s_sub_u32 {sT1}, 0, {sT0}
        s_bitcmp1_b32 {sj}, 1
        s_cselect_b32 {sT0}, {sT0}, {sT1}
        s_lshl_b32 {sT1}, {sc}, 6
        s_add_u32 {sT0}, {sT0}, {sT1}
        s_lshl_b32 {sT1}, {sth}, 5
        s_add_u32 {sT0}, {sT0}, {sT1}
        s_lshl_b32 {sT0}, {sT0}, 10
        s_lshl_b32 {sT1}, {skh}, 9
        s_add_u32 {sT0}, {sT0}, {sT1}
        v_lshrrev_b32 {t1}, 1, {row}
        v_xor_b32 {t1}, {t1}, {t2}
        v_lshlrev_b32 {t1}, 4, {t1}
        v_lshl_add_u32 {t1}, {row}, 10, {t1}
        v_add_u32 {vXs[0]}, {sT0}, {t1}
        v_xor_b32 {t1}, 64, {t1}
        v_add_u32 {t1}, {sT0}, {t1}
        v_add_u32 {vXs[1]}, {8192 - 1024}, {t1}
        v_add_u32 {vXs[2]}, 16384, {vXs[0]}
        v_add_u32 {vXs[3]}, {24576 - 1024}, {t1}
        s_mov_b32 s6, {1 << 21}
        s_mov_b32 s7, 0x20000
        s_mov_b32 s22, {1 << 19}
        s_mov_b32 s23, 0x20000
        s_lshl_b32 {sWlds}, {skh}, 15
        s_lshl_b32 {sT1}, {sth}, 12
        s_add_u32 {sWlds}, {sWlds}, {sT1}
        s_lshl_b32 {sWsrc}, {skh}, 18
        s_lshl_b32 {sT1}, {sth}, 15
        s_add_u32 {sWsrc}, {sWsrc}, {sT1}
        s_lshl_b32 {sT1}, {sj}, 7
        s_add_u32 {sWsrc}, {sWsrc}, {sT1}
        v_lshrrev_b32 {vT[4]}, 2, {vL}
        v_and_b32 {vT[4]}, 4, {vT[4]}
        v_xor_b32 {vT[4]}, {vT[4]}, {t2}
        v_lshlrev_b32 {vT[4]}, 4, {vT[4]}
        v_lshl_add_u32 {vWs}, {row}, 10, {vT[4]}
        v_add_u32 {vWs1}, 7168, {vWs}
        """)
        p.wait(lg0=True)
        p("s_mov_b64 s[4:5], s[64:65]")
        p("s_mov_b64 s[20:21], s[78:79]")
        for dst, off in ((40, 112), (24, 64), (28, 72), (32, 80), (52, 88), (36, 96)):
            p(f"s_load_dwordx2 s[{dst}:{dst + 1}], s[0:1], {off}")
        for dst, src in ((8, 66), (12, 68), (48, 70), (16, 72), (50, 74)):
            p(f"s_mov_b64 s[{dst}:{dst + 1}], s[{src}:{src + 1}]")
        self.set_rot(p)
        self.stamp(p, "karg")

    def set_rot(self, p):
        for pos in range(4):
            p(f"s_add_u32 {sR[pos]}, {srot}, {pos}")
            p(f"s_and_b32 {sR[pos]}, {sR[pos]}, 3")
            p(f"s_lshl_b32 {sR[pos]}, {sR[pos]}, 7")

    def kernargs2(self, p):
        sizes = (1 << 21, 1 << 21, 1 << 21, 1 << 21, 1 << 19, 1 << 19, 512 * 3584, 1792 * 1024, 1 << 21, WS_SIZE, 256)
        for i, n in enumerate(sizes):
            if i not in (0, 4, 10):
                p(f"s_mov_b32 s{6 + 4 * i}, {n}")
                p(f"s_mov_b32 s{7 + 4 * i}, 0x20000")
        p(f"v_lshlrev_b32 {vL16}, 4, {vL}")
        p(f"v_mov_b32 {vZero}, 0")

    def touch(self, kind, after, prio):
        g = Seq()
        srd, lines = {"w2": (sW2, 4), "w3": (sW3, 14), "w4": (sW4, 14)}[kind]
        g(f"s_lshl_b32 {sB}, s2, 2")
        g(f"s_add_u32 {sB}, {sB}, {sw}")
        g(f"s_mul_i32 {sB}, {sB}, {lines * 128}")
        self.masked(g, (1 << lines) - 1, f"buffer_load_dword v255, {vL128}, {srd}, {sB} offen")
        self.bg(g, "fewcold", after, prio)

    def touch_slow(self, kind, after, prio):
        g = Seq()
        srd, lines = {"w2": (sW2, 4), "w4": (sW4, 14)}[kind]
        g(f"s_lshr_b32 {sB}, s2, 3")
        g(f"s_lshl_b32 {sB}, {sB}, 2")
        g(f"s_add_u32 {sB}, {sB}, {sw}")
        g(f"s_mul_i32 {sB}, {sB}, {lines * 1024}")
        g(f"v_lshlrev_b32 {vr(V_TMP + 4)}, 10, {vL}")
        self.masked(g, (1 << lines) - 1, f"buffer_load_dword v255, {vr(V_TMP + 4)}, {srd}, {sB} offen offset:384")
        self.bg(g, "fewcold", after, prio)

    def warm_flags(self, p):
        for i in range(4):
            p(f"v_mov_b32 {vr(V_TMP + 4 + i)}, {sEp}")
        p(f"v_lshrrev_b32 {vP2}, 3, {vL}")
        p(f"v_mul_u32_u24 {vP2}, {FLAG1 - 128}, {vP2}")
        p(f"v_add_u32 {vP2}, {vP2}, {vL16}")
        self.masked(p, "0xffff", f"buffer_store_dwordx4 {vr(V_TMP + 4, 4)}, {vP2}, {sWS}, {sFlag} offen sc1")

    def advance_epoch(self, p):
        p(f"""
        s_or_b32 {sT0}, s2, {sw}
        s_cmp_eq_u32 {sT0}, 0
        s_cselect_b32 {sT0}, 0, {WS_SIZE}
        s_add_u32 {sT0}, {sT0}, {WS_EPOCH}
        s_add_u32 {sT1}, {sEp}, 8
        v_mov_b32 {vP2}, {sT1}
        """)
        self.masked(p, 1, f"buffer_store_dword {vP2}, {vZero}, {sWS}, {sT0} offen")

    def x_loads(self, pos, cls, after, prio):
        for a in (0, 2):
            g = Seq()
            g(f"s_add_u32 m0, {sPriv}, {R2 + (pos * 4 + a) * 1024}")
            fl = self.opt.get("x_nt", "nt")
            self.dma(g, vXs[a], sX, sR[pos], flags=fl)
            self.dma(g, vXs[a + 1], sX, sR[pos], 1024, flags=fl)
            self.bg(g, cls, after, prio)

    def setup2(self, p):
        row, t1, t2 = vT[0], vT[1], vT[2]
        p(f"""
        s_xor_b32 {snh}, {sth}, {skh}
        s_mov_b32 {sOneLo}, 0x00003f80
        s_mov_b32 {sOneHi}, 0x3f800000
        s_add_u32 {sj2}, {sj}, {self.opt.get("j2", 1)}
        s_and_b32 {sj2}, {sj2}, 7
        s_add_u32 {sja}, {sj}, {self.opt.get("ja", 2)}
        s_and_b32 {sja}, {sja}, 7
        s_mov_b32 {sOnes}, 0x3f803f80
        s_mov_b32 {sHi}, 0xffff0000
        s_lshl_b32 {sFlag}, {sc}, 3
        s_add_u32 {sFlag}, {sFlag}, {sj}
        s_lshl_b32 {sFlag}, {sFlag}, 2
        s_add_u32 {sFlag}, {sFlag}, {sw}
        s_lshl_b32 {sFlag}, {sFlag}, 7
        s_lshr_b32 {sT0}, {sc}, 3
        s_lshl_b32 {ssc}, {sT0}, 2
        s_and_b32 {sT0}, {sc}, 3
        s_add_u32 {ssc}, {ssc}, {sT0}
        s_bfe_u32 {sT0}, {sc}, 0x10002
        s_mul_i32 {sm}, {sT0}, 7
        s_add_u32 {sm}, {sm}, {sj}
        s_cmp_gt_u32 {sj}, {self.idle}
        s_cselect_b32 {sT0}, 1, 0
        s_sub_u32 {sm}, {sm}, {sT0}
        s_cmp_eq_u32 {sj}, {self.idle}
        s_cselect_b32 {sOob}, {WS_SIZE}, {WS_SIZE if self.opt.get("dbg_noP3") else 0}
        v_lshlrev_b32 {vL128}, 7, {vL}
        v_mul_u32_u24 {vW3s}, 3584, {row}
        v_add_u32 {vW3s}, {vW3s}, {vT[4]}
        v_add_u32 {vW3s1}, {8 * 3584 - 1024}, {vW3s}
        s_mul_i32 {sW3b}, {sw}, {128 * 3584}
        s_lshl_b32 {sT1}, {sm}, 8
        s_add_u32 {sW3b}, {sW3b}, {sT1}
        s_add_u32 {sW3b}, {sW3b}, {sOob}
        s_lshl_b32 {sT1}, {sja}, 7
        s_lshl_b32 {sT0}, {sc}, 16
        s_add_u32 {sT0}, {sT0}, {sT1}
        v_lshlrev_b32 {vKv}, 4, {t2}
        v_lshl_add_u32 {vKv}, {row}, 10, {vKv}
        v_add_u32 {vKv}, {sT0}, {vKv}
        v_subrev_u32 {vKh}, 8192, {vKv}
        """)

    def w12_loads(self, srd, pos, cls, after, prio):
        toks = []
        for i in (0, 2):
            src = f"s_lshl_b32 {sB}, {sR[pos]}, 9\ns_add_u32 {sB}, {sB}, {sWsrc}"
            if i:
                src += f"\ns_add_u32 {sB}, {sB}, 16384"
            g, tk = self.dma_pair(vWs, vWs1, srd, src, sWlds, R0 + pos * 8192 + i * 1024)
            self.bg(g, cls, after, prio)
            toks.append(tk)
        return toks

    def kv_loads(self, t, after, prio):
        g = Seq()
        g(f"s_mul_i32 {sB}, {sw}, 2304")
        g(f"s_add_u32 {sB}, {sB}, {A1R}")
        g(f"s_cmp_eq_u32 {sw}, 0")
        g(f"s_cselect_b32 m0, {KB}, {sB}")
        g(f"s_cselect_b32 {sB}, 0, {1 << 21}")
        self.dma(g, vKh, sK, sB, flags="nt")
        g(f"""
        s_lshl_b32 {sB}, {sja}, 2
        s_add_u32 {sB}, {sB}, {sw}
        s_lshl_b32 {sB}, {sB}, 7
        v_and_b32 {vKh}, 15, {vL}
        v_lshl_add_u32 {vKh}, {vKh}, 3, {sB}
        """)
        g(f"global_load_dwordx2 {vr(V_SK, 2)}, {vKh}, {pSH}")
        self.bg(g, "fewcold", after, prio)
        t["kv"] = []
        for srd, base in ((sK, KB + 1024), (sV, VB)):
            g = Seq()
            g(f"s_lshl_b32 {sB}, {sw}, 11")
            g(f"s_add_u32 m0, {sB}, {base}")
            g(f"s_lshl_b32 {sB}, {sw}, 14")
            self.dma(g, vKv, srd, sB, flags="nt")
            g(f"s_add_u32 {sB}, {sB}, 7168")
            t["kv"].append(self.dma(g, vKv, srd, sB, 1024, flags="nt"))
            self.bg(g, "cold", after, prio)

    def small_addrs(self, p):
        p(f"""
        s_lshl_b32 {sT0}, {sc}, 6
        s_lshl_b32 {sT1}, {sth}, 5
        s_add_u32 {sT0}, {sT0}, {sT1}
        s_lshl_b32 {sT0}, {sT0}, 10
        s_lshl_b32 {sT1}, {sj2}, 7
        s_lshl_b32 {sT2}, {snh}, 6
        s_add_u32 {sT1}, {sT1}, {sT2}
        v_and_b32 {vOut}, 31, {vL}
        v_lshrrev_b32 {vPv}, 5, {vL}
        v_lshlrev_b32 {vPv}, 4, {vPv}
        v_add_u32 {vPv}, {sT1}, {vPv}
        v_lshl_add_u32 {vOut}, {vOut}, 10, {vPv}
        v_add_u32 {vOut}, {sT0}, {vOut}
        s_lshl_b32 {sT0}, {sj}, 6
        s_lshl_b32 {sT1}, {sc}, 1
        s_add_u32 {sT0}, {sT0}, {sT1}
        s_add_u32 {sT0}, {sT0}, {sth}
        s_lshl_b32 {sT1}, {sT0}, 1
        v_mov_b32 {vPw}, {sT1}
        s_lshl_b32 {sT0}, {sT0}, 12
        s_lshl_b32 {sT1}, {skh}, 11
        s_add_u32 {sStld}, {sT0}, {sT1}
        """)

    def small_loads(self, after, prio_x, prio_s, after_s):
        g = Seq()
        g(f"buffer_load_dwordx4 {vr(V_XRES, 4)}, {vOut}, {sX}, 0 offen")
        g(f"buffer_load_dwordx4 {vr(V_XRES + 4, 4)}, {vOut}, {sX}, 0 offen offset:32")
        self.bg(g, "mall", after, prio_x)
        g = Seq()
        g(f"global_load_dwordx4 {vr(V_X1P, 4)}, {vPv}, {pG}")
        g(f"global_load_dwordx4 {vr(V_X1P + 4, 4)}, {vPv}, {pG} offset:32")
        g(f"global_load_ushort {vr(V_SSM + 5)}, {vPw}, {pD}")
        self.bg(g, "few", after, prio_x)
        g = Seq()
        g(f"buffer_load_dwordx4 {vr(V_SSM, 4)}, {vL16}, {sSK}, {sStld} offen nt")
        g(f"buffer_load_dwordx4 {vr(V_SSM + 6, 4)}, {vL16}, {sSK}, {sStld} offen offset:1024 nt")
        self.bg(g, "cold", after_s, prio_s)
        g = Seq()
        g(f"buffer_load_dword {vr(V_SSM + 4)}, {vL16}, {sSK}, {sStld} offen offset:16 nt")
        g(f"buffer_load_dword {vr(V_SSM + 10)}, {vL16}, {sSK}, {sStld} offen offset:1040 nt")
        self.bg(g, "few", after_s, prio_s)

    def lds_addrs(self, p):
        a, b, c = vT[0], vT[1], vT[2]
        p(f"""
        v_lshrrev_b32 {a}, 5, {vL}
        v_lshlrev_b32 {vTr0}, 10, {a}
        v_lshlrev_b32 {vCsA}, 4, {a}
        v_bfe_u32 {a}, {vL}, 2, 2
        v_lshl_add_u32 {vTr0}, {a}, 7, {vTr0}
        v_lshrrev_b32 {a}, 1, {a}
        v_lshl_add_u32 {vTr0}, {a}, 6, {vTr0}
        v_bfe_u32 {a}, {vL}, 4, 1
        v_lshl_add_u32 {vTr0}, {a}, 5, {vTr0}
        v_and_b32 {a}, 1, {vL}
        v_lshl_add_u32 {vTr0}, {a}, 4, {vTr0}
        v_bfe_u32 {a}, {vL}, 1, 1
        v_lshl_add_u32 {vTr0}, {a}, 3, {vTr0}
        s_lshl_b32 {sT0}, {snh}, 6
        s_lshl_b32 {sT1}, {skh}, 15
        v_xor_b32 {vTrX}, {sT0}, {vTr0}
        v_add_u32 {vTrX}, {sT1}, {vTrX}
        v_xor_b32 {vTrY}, 64, {vTrX}
        v_bfe_u32 {a}, {vL}, 3, 2
        v_lshlrev_b32 {a}, 10, {a}
        v_and_b32 {b}, 7, {vL}
        v_lshl_add_u32 {a}, {b}, 7, {a}
        s_add_u32 {sT0}, {sPriv}, {R2}
        v_add_u32 {a}, {sT0}, {a}
        v_bfe_u32 {b}, {vL}, 1, 3
        v_lshrrev_b32 {c}, 5, {vL}
        v_xor_b32 {b}, {b}, {c}
        """)
        for s in range(4):
            p(f"v_xor_b32 {c}, {2 * s}, {b}")
            p(f"v_lshl_add_u32 {vXr[s]}, {c}, 4, {a}")
        p(f"""
        v_and_b32 {a}, 3, {vL}
        v_bfe_u32 {b}, {vL}, 2, 1
        v_bfe_u32 {c}, {vL}, 4, 1
        v_xor_b32 {b}, {b}, {c}
        v_or_b32 {a}, {a}, {b}
        v_cmp_eq_u32 vcc, 0, {a}
        v_mov_b32 {b}, {sOnes}
        v_cndmask_b32 {vr(V_ONES)}, 0, {b}, vcc
        v_cndmask_b32 {vr(V_ONES + 1)}, 0, {b}, vcc
        v_cndmask_b32 {vr(V_ONES + 2)}, 0, {b}, vcc
        v_cndmask_b32 {vr(V_ONES + 3)}, 0, {b}, vcc
        """)

    def dot_stats(self, p, regs, first):
        S, Q, S2, Q2 = vr(V_TMP), vr(V_TMP + 1), vr(V_TMP + 2), vr(V_TMP + 3)
        for n in range(0, len(regs), 2):
            a, b = vr(regs[n]), vr(regs[n + 1])
            if first and n == 0:
                p(f"v_dot2_f32_bf16 {S}, {a}, {sOnes}, 0")
                p(f"v_dot2_f32_bf16 {Q}, {a}, {a}, 0")
                p(f"v_dot2_f32_bf16 {S2}, {b}, {sOnes}, 0")
                p(f"v_dot2_f32_bf16 {Q2}, {b}, {b}, 0")
            else:
                p(f"v_dot2c_f32_bf16 {S}, {sOnes}, {a}")
                p(f"v_dot2c_f32_bf16 {Q}, {a}, {a}")
                p(f"v_dot2c_f32_bf16 {S2}, {sOnes}, {b}")
                p(f"v_dot2c_f32_bf16 {Q2}, {b}, {b}")

    def fold_stats(self, p):
        S, Q, S2, Q2 = vr(V_TMP), vr(V_TMP + 1), vr(V_TMP + 2), vr(V_TMP + 3)
        p(f"v_add_f32 {S}, {S}, {S2}")
        p(f"v_add_f32 {Q}, {Q}, {Q2}")
        p(f"v_mov_b32 {S2}, {S}")
        p(f"v_mov_b32 {Q2}, {Q}")
        p(f"v_permlane32_swap_b32 {S}, {S2}")
        p(f"v_permlane32_swap_b32 {Q}, {Q2}")
        p(f"v_add_f32 {S}, {S}, {S2}")
        p(f"v_add_f32 {Q}, {Q}, {Q2}")

    def p1(self, p, t):
        o = self.opt
        w1 = []
        rot = o.get("rot1", 3)
        for pos in range(4):
            cls = "cold" if pos < 4 // (bin(rot).count("1") * 2 or 1) else "l2"
            self.x_loads(pos, "p1" + cls, "go2" if pos else "go", 0)
            w1.append(self.w12_loads(sW1, pos, "p1" + cls, "go2" if pos else "go", 0))
        p.mark("go", limit=5000)
        p("s_nop 0")
        self.kernargs2(p)
        p.mark("go2")
        self.setup2(p)
        p(f"s_load_dword {sEp}, s[40:41], {WS_EPOCH}")
        self.lds_addrs(p)
        self.small_addrs(p)
        p(f"""
        v_and_b32 {vT[0]}, 31, {vL}
        s_lshl_b32 {sT0}, {sw}, 8
        s_add_u32 {sT0}, {sT0}, {ST_STAT}
        v_lshl_add_u32 {vT[1]}, {vT[0]}, 3, {sT0}
        v_xor_b32 {vPoll}, 512, {vT[1]}
        s_add_u32 {sT0}, {sPriv}, {R2}
        v_add_u32 {vT[2]}, {sT0}, {vL16}
        v_xor_b32 {vT[5]}, 32768, {vT[2]}
        s_lshl_b32 {sT0}, {snh}, 8
        s_lshl_b32 {sT1}, {skh}, 7
        s_add_u32 {sT1}, {sT1}, {sT0}
        s_add_u32 {sT1}, {sT1}, {ST_CS}
        v_lshl_add_u32 {vT[3]}, {vT[0]}, 2, {sT1}
        s_add_u32 {sT0}, {sT0}, {ST_CS}
        v_add_u32 {vT[4]}, {sT0}, {vCsA}
        s_lshl_b32 {sT0}, {sc}, 1
        s_add_u32 {sT0}, {sT0}, {sth}
        s_lshl_b32 {sT0}, {sT0}, 15
        s_lshl_b32 {sT1}, {sj}, 12
        s_add_u32 {sT1}, {sT0}, {sT1}
        s_lshl_b32 {sT2}, {snh}, 11
        s_add_u32 {sH2st}, {sT1}, {sT2}
        s_lshl_b32 {sT1}, {skh}, 14
        s_add_u32 {sT0}, {sT0}, {sT1}
        s_add_u32 {sX1ld}, {sT0}, {WS_H}
        """)
        self.w4_offsets(p)
        self.warm_flags(p)
        p.mark("setup")
        self.stamp(p, "setup")
        self.kv_loads(t, "setup", 1)
        self.touch("w2", "setup", 2)
        if o.get("slow_w2", 1):
            self.touch_slow("w2", "setup", 2)
        if o.get("slow_w4", 1):
            self.touch_slow("w4", o.get("touch_w4", "conv"), 7)
        self.small_loads("setup", 3, 4, o.get("ssm_after", "setup"))
        self.touch("w3", o.get("touch_w3", "setup"), 5)
        self.touch("w4", o.get("touch_w4", "conv"), 6)
        accX, accY, cs = V_ACC, V_ACC + 16, V_ACC + 32
        AB = [V_A, V_B + 32]

        def reads(q, pos):
            q.wait(vm=w1[pos][-1])
            q("s_barrier")
            for s in range(4):
                q(f"ds_read_b128 {vr(V_B + 16 * (pos & 1) + 4 * s, 4)}, {vXr[s]} offset:{pos * 4096}")
            for s in range(4):
                self.a_reads(q, AB[pos & 1] + 8 * s + 4, vTrY, pos * 8192 + s * 2048)
            for s in range(4):
                self.a_reads(q, AB[pos & 1] + 8 * s, vTrX, pos * 8192 + s * 2048)

        reads(p, 0)
        self.stamp(p, "x0 landed")
        for pos in range(4):
            B0, A0 = V_B + 16 * (pos & 1), AB[pos & 1]
            self.dot_stats(p, list(range(B0, B0 + 16)), pos == 0)
            q = Seq()
            for s in range(4):
                q(f"v_mfma_f32_32x32x16_bf16 {vr(accY, 16)}, {vr(A0 + 8 * s + 4, 4)}, {vr(B0 + 4 * s, 4)}, {'0' if pos + s == 0 else vr(accY, 16)}")
            for s in range(4):
                q(f"v_mfma_f32_16x16x32_bf16 {vr(cs, 4)}, {vr(V_ONES, 4)}, {vr(A0 + 8 * s, 4)}, {'0' if pos + s == 0 else vr(cs, 4)}")
            for s in range(4):
                q(f"v_mfma_f32_32x32x16_bf16 {vr(accX, 16)}, {vr(A0 + 8 * s, 4)}, {vr(B0 + 4 * s, 4)}, {'0' if pos + s == 0 else vr(accX, 16)}")
            plan = []
            if pos < 3:
                r = Seq()
                reads(r, pos + 1)
                plan += spread(split(r), o.get("p1_rd0", 3), 11)
            if pos == 3:
                st = Seq()
                self.fold_stats(st)
                st(f"ds_write_b64 {vT[1]}, {vr(V_TMP, 2)}")
                wr = Seq()
                for g in range(4):
                    wr(f"ds_write_b128 {vT[2]}, {vr(accY + 4 * g, 4)} offset:{g * 1024}")
                wr(f"ds_write_b32 {vT[3]}, {vr(cs)}")
                plan += spread(split(st), 1, 4) + spread(split(wr), 9, 12)
            p.extend(weave(q, plan + self.dense(f"a{pos}_", (0, 4, 8, 12))))
        p.mark(force=9)
        self.stamp(p, "p1 mfma")
        p.wait(lg0=True)
        p("s_barrier")
        c0, c1 = V_A, V_A + 16
        S, Q, S2, Q2 = vr(V_TMP), vr(V_TMP + 1), vr(V_TMP + 2), vr(V_TMP + 3)
        p(f"ds_read_b64 {vr(V_TMP + 2, 2)}, {vPoll}")
        for g in range(4):
            p(f"ds_read_b128 {vr(accY + 4 * g, 4)}, {vT[5]} offset:{g * 1024}")
        for g in range(4):
            p(f"ds_read_b128 {vr(c0 + 4 * g, 4)}, {vT[4]} offset:{g * 32}")
            p(f"ds_read_b128 {vr(c1 + 4 * g, 4)}, {vT[4]} offset:{128 + g * 32}")
        p(f"s_sub_u32 {sT0}, {sj2}, {sj}")
        p(f"s_lshl_b32 {sT0}, {sT0}, 7")
        p(f"s_add_u32 {sWsrc}, {sWsrc}, {sT0}")
        p("s_nop 0")
        p.mark("B1", limit=o.get("lim_g1", 1500))
        p(f"v_add_f32 {S}, {S}, {S2}")
        p(f"v_add_f32 {Q}, {Q}, {Q2}")
        self.ln_consts(p, S, Q)
        for x in range(0, 16, 2):
            p(f"v_pk_add_f32 {vr(accX + x, 2)}, {vr(accX + x, 2)}, {vr(accY + x, 2)}")
        for x in range(0, 16, 2):
            p(f"v_pk_add_f32 {vr(c0 + x, 2)}, {vr(c0 + x, 2)}, {vr(c1 + x, 2)}")
        out = V_TMP + 8
        self.gelu_packed(p, accX, c0, V_TMP + 16, out)
        p(f"s_add_u32 {sT0}, {sH2st}, {WS_H}")
        s0 = p(f"buffer_store_dwordx4 {vr(out, 4)}, {vL16}, {sWS}, {sT0} offen sc1")
        s1 = p(f"buffer_store_dwordx4 {vr(out + 4, 4)}, {vL16}, {sWS}, {sT0} offen offset:1024 sc1")
        t["h"] = [s0, s1]
        p.mark("h_st", limit=o.get("lim_w2", 1500))
        self.stamp(p, "h stored")
        t["w2"] = []
        for pos in range(4):
            t["w2"] += self.w12_loads(sW2, pos, "mall", o.get("w2_after", "B1"), 11)

    def h_flag(self, p, t):
        self.publish(p, t["h"], 1, FLAG0)
        if self.opt.get("rb_h", 0):
            p(f"s_add_u32 {sT0}, {sH2st}, {WS_H}")
            self.masked(p, "0xffff", f"buffer_load_dword v255, {vL128}, {sWS}, {sT0} offen sc1").note = "few"
        p.mark("h_flag", limit=self.opt.get("lim_hflag", 1500))
        self.stamp(p, "h flag")

    def a1(self, p, t):
        kk, vv, o = V_B, V_B + 12, V_TMP
        sk = V_SK
        a, b = vT[0], vT[1]
        p(f"""
        v_lshrrev_b32 {a}, 4, {vL}
        v_lshlrev_b32 {a}, 11, {a}
        v_bfe_u32 {b}, {vL}, 2, 2
        v_lshl_add_u32 {a}, {b}, 7, {a}
        v_and_b32 {b}, 3, {vL}
        v_lshl_add_u32 {a}, {b}, 3, {a}
        s_lshl_b32 {sT0}, {sw}, 5
        s_add_u32 {sT0}, {sT0}, {KB}
        v_add_u32 {a}, {sT0}, {a}
        """)
        p.wait(vm=t["kv"])
        p("s_barrier")
        p.mark("Bkv")
        for rd in range(5):
            p(f"ds_read_b64_tr_b16 {vr(kk + 2 * rd, 2)}, {a} offset:{(4 + 4 * rd) * 128}")
        for rd in range(4):
            p(f"ds_read_b64_tr_b16 {vr(vv + 2 * rd, 2)}, {a} offset:{(VB - KB) + 4 * rd * 128}")
        c10, c32, c0, c21, c3 = V_A, V_A + 1, V_A + 2, V_A + 3, V_A + 4
        p(f"v_alignbit_b32 {vr(c10)}, {vr(sk)}, {vr(sk)}, 16")
        p(f"v_alignbit_b32 {vr(c32)}, {vr(sk + 1)}, {vr(sk + 1)}, 16")
        p(f"v_and_b32 {vr(c0)}, 0xffff, {vr(sk)}")
        p(f"v_and_b32 {vr(c3)}, {sHi}, {vr(sk + 1)}")
        p(f"v_and_b32 {vr(c21)}, 0xffff, {vr(sk + 1)}")
        p(f"v_and_or_b32 {vr(c21)}, {vr(sk)}, {sHi}, {vr(c21)}")
        p(f"""
        v_and_b32 {vT[3]}, 3, {vL}
        v_bfe_u32 {vT[2]}, {vL}, 2, 1
        v_lshlrev_b32 {vT[3]}, 9, {vT[3]}
        v_lshl_add_u32 {vPoll}, {vT[2]}, 8, {vT[3]}
        s_lshl_b32 {sC}, {sc}, 12
        s_lshl_b32 {sT1}, {skh}, 11
        s_add_u32 {sC}, {sC}, {sT1}
        s_lshl_b32 {sT1}, {sth}, 7
        s_add_u32 {sC}, {sC}, {sT1}
        """)
        f = V_ACC
        q = Seq()
        for i in range(8):
            q(f"v_dot2_f32_bf16 {vr(f + 2 * i)}, {vr(kk + i)}, {vr(c3)}, 0")
            q(f"v_dot2_f32_bf16 {vr(f + 2 * i + 1)}, {vr(kk + i + 1)}, {vr(c32)}, 0")
        for i in range(8):
            q(f"v_dot2_f32_bf16 {vr(f + 2 * i)}, {vr(kk + i + 1)}, {vr(c21)}, {vr(f + 2 * i)}")
            q(f"v_dot2_f32_bf16 {vr(f + 2 * i + 1)}, {vr(kk + i + 2)}, {vr(c10)}, {vr(f + 2 * i + 1)}")
        for i in range(8):
            q(f"v_dot2_f32_bf16 {vr(f + 2 * i)}, {vr(kk + i + 2)}, {vr(c0)}, {vr(f + 2 * i)}")
        for i in range(8):
            q(f"v_lshlrev_b32 {vr(f + 16 + 2 * i)}, 16, {vr(vv + i)}")
            q(f"v_and_b32 {vr(f + 17 + 2 * i)}, {sHi}, {vr(vv + i)}")
        for i in range(8):
            q(f"v_pk_mul_f32 {vr(f + 2 * i, 2)}, {vr(f + 2 * i, 2)}, {vr(f + 16 + 2 * i, 2)}")
        for i in range(8):
            q(f"v_cvt_pk_bf16_f32 {vr(o + i)}, {vr(f + 15 - 2 * i)}, {vr(f + 14 - 2 * i)}")
        p.extend(q)
        if not self.opt.get("a1_first", 1):
            self.h_flag(p, t)
        p(f"""
        v_and_b32 {a}, 15, {vL}
        v_mul_u32_u24 {a}, 144, {a}
        v_lshrrev_b32 {b}, 4, {vL}
        v_sub_u32 {b}, 3, {b}
        v_lshl_add_u32 {a}, {b}, 5, {a}
        s_mul_i32 {sT0}, {sw}, 2304
        s_add_u32 {sT0}, {sT0}, {A1R}
        v_add_u32 {a}, {sT0}, {a}
        """)
        p(f"ds_write_b128 {a}, {vr(o, 4)}")
        w2 = p(f"ds_write_b128 {a}, {vr(o + 4, 4)} offset:16")
        p(f"""
        v_lshrrev_b32 {a}, 3, {vL}
        v_and_b32 {b}, 7, {vL}
        v_lshlrev_b32 {b}, 4, {b}
        v_lshl_add_u32 {vT[2]}, {a}, 12, {b}
        v_mul_u32_u24 {a}, 144, {a}
        v_add3_u32 {a}, {a}, {b}, {sT0}
        s_lshl_b32 {sT0}, {sja}, 18
        s_lshl_b32 {sT1}, {sw}, 16
        s_add_u32 {sT0}, {sT0}, {sT1}
        s_sub_u32 {sT1}, 31, {sc}
        s_lshl_b32 {sT1}, {sT1}, 7
        s_add_u32 {sT0}, {sT0}, {sT1}
        s_add_u32 {sT0}, {sT0}, {WS_KVT}
        s_add_u32 {sT1}, {sT0}, 32768
        """)
        p.wait(lg=w2)
        p(f"ds_read_b128 {vr(o + 8, 4)}, {a}")
        p(f"ds_read_b128 {vr(o + 12, 4)}, {a} offset:{8 * 144}")
        s0 = p(f"buffer_store_dwordx4 {vr(o + 8, 4)}, {vT[2]}, {sWS}, {sT0} offen sc1")
        s1 = p(f"buffer_store_dwordx4 {vr(o + 12, 4)}, {vT[2]}, {sWS}, {sT1} offen sc1")
        t["kvt"] = [s0, s1]
        self.stamp(p, "a1 done")
        if self.opt.get("a1_first", 1):
            self.h_flag(p, t)

    def w3_loads(self, line, lds, after, prio, blocks=range(0, 16, 2)):
        toks = []
        for i in blocks:
            g, tk = self.dma_pair(vW3s, vW3s1, sW3, f"s_add_u32 {sB}, {sW3b}, {line * 128 + i * 8 * 3584}", sPriv, lds + i * 1024)
            self.bg(g, "mall", after, prio)
            toks.append(tk)
        return toks

    def w4_offsets(self, p):
        p(f"s_mul_i32 {sT0}, {sw}, 7")
        p(f"s_lshl_b32 {sT2}, {sj2}, 7")
        if self.opt.get("dbg_now4"):
            p(f"s_add_u32 {sT2}, {sT2}, {WS_SIZE}")
        for u in range(7):
            p(f"""
            s_add_u32 {sT1}, {sT0}, {u}
            s_lshr_b32 {sU[u]}, {sT1}, 1
            s_lshl_b32 {sU[u]}, {sU[u]}, 17
            s_and_b32 {sT1}, {sT1}, 1
            s_lshl_b32 {sT1}, {sT1}, 14
            s_add_u32 {sU[u]}, {sU[u]}, {sT1}
            s_add_u32 {sU[u]}, {sU[u]}, {sT2}
            """)

    def w4_loads(self, piece, lds, after, prio):
        toks = []
        for u in range(7):
            g, tk = self.dma_pair(vWs, vWs1, sW4, f"s_add_u32 {sB}, {sU[u]}, {piece * 32768}", sPriv, lds + u * 2048)
            self.bg(g, "mall", after, prio)
            toks.append(tk)
        return toks

    def w4_park(self, piece, areg, after, prio):
        for u in range(7):
            g = Seq()
            g(f"s_add_u32 {sB}, {sU[u]}, {piece * 32768}")
            g(f"buffer_load_dwordx4 {ar(areg + 8 * u, 4)}, {vWs}, {sW4}, {sB} offen")
            g(f"buffer_load_dwordx4 {ar(areg + 8 * u + 4, 4)}, {vWs1}, {sW4}, {sB} offen offset:1024")
            self.bg(g, "mall", after, prio)

    def w4_unpark_groups(self, areg, vaddr):
        groups, toks = [], []
        for n in range(14):
            g = Seq()
            toks.append(g(f"ds_write_b128 {vaddr}, {ar(areg + 4 * n, 4)} offset:{n * 1024}"))
            groups.append(g)
        return groups, toks

    def gate_partial(self, p):
        g, g2 = vr(V_TMP), vr(V_TMP + 1)
        for i in range(0, 8, 2):
            p(f"v_dot2_f32_bf16 {g}, {vr(V_XRES + i)}, {vr(V_X1P + i)}, {'0' if i == 0 else g}")
            p(f"v_dot2_f32_bf16 {g2}, {vr(V_XRES + i + 1)}, {vr(V_X1P + i + 1)}, {'0' if i == 0 else g2}")
        p(f"""
        s_lshl_b32 {sT3}, {sc}, 1
        s_add_u32 {sT3}, {sT3}, {sth}
        s_lshl_b32 {sD}, {sT3}, 11
        s_lshl_b32 {sT1}, {sj2}, 1
        s_add_u32 {sT1}, {sT1}, {snh}
        s_lshl_b32 {sT1}, {sT1}, 7
        s_add_u32 {sD}, {sD}, {sT1}
        v_lshlrev_b32 {vT[5]}, 2, {vL}
        s_add_u32 {sD}, {sD}, {WS_GATE}
        """)
        p(f"v_add_f32 {g}, {g}, {g2}")
        self.half_sum(p, g, g2)
        self.masked(p, "0xffffffff", f"buffer_store_dword {g}, {vT[5]}, {sWS}, {sD} offen sc1")

    def stage_conv_k(self, p):
        a, b = vT[0], vT[1]
        d = V_SSM
        o = V_TMP + 8
        p(f"""
        s_mul_i32 {sT0}, {sth}, {KCH}
        s_add_u32 {sT0}, {sT0}, {CK}
        s_lshl_b32 {sT1}, {skh}, 11
        s_add_u32 {sT1}, {sT1}, {sT0}
        v_add_u32 {a}, {sT1}, {vL16}
        v_cmp_eq_u32 vcc, 63, {vL}
        s_cmp_eq_u32 {skh}, 1
        s_cselect_b64 vcc, vcc, 0
        v_cndmask_b32 {vr(d + 10)}, {vr(d + 10)}, {vZero}, vcc
        """)
        p(f"ds_write_b128 {a}, {vr(d, 4)} offset:64")
        p(f"ds_write_b128 {a}, {vr(d + 6, 4)} offset:{64 + 1024}")
        for i in range(4):
            p(f"v_alignbit_b32 {vr(o + i)}, {vr(d + i + 1)}, {vr(d + i)}, 16")
            p(f"v_alignbit_b32 {vr(o + 4 + i)}, {vr(d + 7 + i)}, {vr(d + 6 + i)}, 16")
        p(f"ds_write_b128 {a}, {vr(o, 4)} offset:{KCOPY + 64}")
        p(f"ds_write_b128 {a}, {vr(o + 4, 4)} offset:{KCOPY + 64 + 1024}")
        p(f"""
        s_mul_i32 {sT1}, {skh}, {64 + 4096}
        s_add_u32 {sT1}, {sT1}, {sT0}
        v_and_b32 {b}, 15, {vL}
        v_lshl_add_u32 {a}, {b}, 2, {sT1}
        v_readfirstlane_b32 {sT2}, {vr(d)}
        s_lshl_b32 {sT2}, {sT2}, 16
        s_cmp_eq_u32 {skh}, 0
        s_cselect_b32 {sT2}, {sT2}, 0
        v_cmp_eq_u32 vcc, 15, {b}
        v_mov_b32 {b}, {sT2}
        v_cndmask_b32 {b}, 0, {b}, vcc
        """)
        p(f"ds_write_b32 {a}, {vZero}")
        p(f"ds_write_b32 {a}, {b} offset:{KCOPY}")
        p(f"""
        s_mul_i32 {sT0}, {sth}, {UCH}
        s_add_u32 {sT0}, {sT0}, {CU}
        s_lshl_b32 {sT1}, {skh}, 8
        s_add_u32 {sT1}, {sT1}, {sT0}
        v_lshl_add_u32 {a}, {vL}, 2, {sT1}
        v_and_b32 {b}, 7, {vL}
        v_lshl_add_u32 {b}, {b}, 2, {sT0}
        """)
        p(f"ds_write_b32 {a}, {vZero} offset:{32 + 4096}")
        p(f"ds_write_b32 {a}, {vZero} offset:{32 + 4096 + 256}")
        p(f"ds_write_b32 {b}, {vZero}")

    def p2(self, p, t):
        o = self.opt
        self.gate_partial(p)
        self.publish(p, t["kvt"], 1, FLAG1)
        p.wait(vm=t["w2"][o.get("hpoll_wait", 7)])
        self.poll_issue(p, vPv, vPoll, sC)
        self.poll_check(p, vPv, vPoll, sC, 1)
        p.mark("h_seen", limit=1500)
        self.stamp(p, "h seen")
        for pos in range(4):
            for s in (0, 2):
                g = Seq()
                g(f"s_lshl_b32 {sB}, {sR[pos]}, 5")
                g(f"s_add_u32 {sB}, {sB}, {sX1ld}")
                for x in (s, s + 1):
                    g(f"buffer_load_dwordx4 {vr(V_B + 16 * pos + 4 * x, 4)}, {vL16}, {sWS}, {sB} offen offset:{x * 1024} sc1")
                self.bg(g, "hand", "h_seen", 10)
        p(f"""
        v_and_b32 {vKv}, 31, {vL}
        v_lshlrev_b32 {vKv}, 12, {vKv}
        s_sub_u32 {sD}, {sj}, {self.opt.get("ja", 2)}
        s_and_b32 {sD}, {sD}, 7
        s_lshl_b32 {sD}, {sD}, 9
        s_lshr_b32 {sT3}, {sc}, 3
        s_lshl_b32 {sT3}, {sT3}, 7
        s_add_u32 {sD}, {sD}, {sT3}
        s_add_u32 {sD}, {sD}, {FLAG1}
        s_add_u32 {sT3}, {sPriv}, {EX2}
        v_add_u32 {vT[2]}, {sT3}, {vL16}
        v_xor_b32 {vT[3]}, 32768, {vT[2]}
        s_sub_u32 {sT0}, {sj2}, {sj}
        s_lshl_b32 {sT0}, {sT0}, 12
        s_add_u32 {sT0}, {sT0}, {sH2st}
        s_add_u32 {sH2st}, {sT0}, {WS_X1}
        s_lshl_b32 {sT3}, {sc}, 1
        s_add_u32 {sT3}, {sT3}, {sth}
        s_lshl_b32 {sC}, {sT3}, 12
        s_lshl_b32 {sT1}, {sj2}, 9
        s_add_u32 {sC}, {sC}, {sT1}
        s_lshl_b32 {sT1}, {snh}, 8
        s_add_u32 {sC}, {sC}, {sT1}
        s_add_u32 {sC}, {sC}, {WS_STATS}
        v_lshlrev_b32 {vKh}, 3, {vL}
        """)
        p.wait(vm=t["w2"], lg0=True)
        p("s_barrier")
        p.mark("Bp2")
        t["l0"] = self.w3_loads(0, R2, o.get("l0_after", "Bp2"), 30, range(0, 12, 2)) + self.w3_loads(0, R2, "conv", 29, (12, 14))
        accX, accY = V_ACC, V_ACC + 16
        q = Seq()

        for ks in range(3):
            self.a_reads(q, V_A + 8 * ks + 4, vTrY, ks * 2048)
            self.a_reads(q, V_A + 8 * ks, vTrX, ks * 2048)
        self.stage_conv_k(q)
        for ks in range(13):
            z = ks == 0
            A, B, N = V_A + 8 * (ks % 4), V_B + 4 * ks, V_A + 8 * ((ks + 3) % 4)
            q(f"v_mfma_f32_32x32x16_bf16 {vr(accY, 16)}, {vr(A + 4, 4)}, {vr(B, 4)}, {'0' if z else vr(accY, 16)}")
            self.a_reads(q, N + 4, vTrY, (ks + 3) * 2048)
            q(f"v_mfma_f32_32x32x16_bf16 {vr(accX, 16)}, {vr(A, 4)}, {vr(B, 4)}, {'0' if z else vr(accX, 16)}")
            self.a_reads(q, N, vTrX, (ks + 3) * 2048)
        for ks in range(13, 16):
            q(f"v_mfma_f32_32x32x16_bf16 {vr(accY, 16)}, {vr(V_A + 8 * (ks % 4) + 4, 4)}, {vr(V_B + 4 * ks, 4)}, {vr(accY, 16)}")
        for ks in range(13, 16):
            q(f"v_mfma_f32_32x32x16_bf16 {vr(accX, 16)}, {vr(V_A + 8 * (ks % 4), 4)}, {vr(V_B + 4 * ks, 4)}, {vr(accX, 16)}")
        pub, pl, lim = Seq(), Seq(), Seq()
        lim.mark(limit=o.get("lim_p2", 1300))
        self.poll_issue(pl, vPw, vKv, sD)
        p.extend(weave(q, [(16, lim), (o.get("kvt_poll_at", 30), pl)] + self.dense("a5_", (0, 1, 8, 16, 24, 32))))
        for g in range(4):
            p(f"ds_write_b128 {vT[2]}, {vr(accY + 4 * g, 4)} offset:{g * 1024}")
        p.mark(limit=o.get("lim_e2", 1100))
        self.stamp(p, "p2 mfma")
        p.wait(lg0=True)
        p("s_barrier")
        p.mark("B2")
        t["l1"] = self.w3_loads(1, R0, "B2", 31)
        for g in range(4):
            p(f"ds_read_b128 {vr(accY + 4 * g, 4)}, {vT[3]} offset:{g * 1024}")
        for i in range(8):
            p(f"v_dot2c_f32_bf16 {vr(accX + 2 * i)}, {sOneLo}, {vr(V_XRES + i)}")
            p(f"v_dot2c_f32_bf16 {vr(accX + 2 * i + 1)}, {sOneHi}, {vr(V_XRES + i)}")
        for x in range(0, 16, 2):
            p(f"v_pk_add_f32 {vr(accX + x, 2)}, {vr(accX + x, 2)}, {vr(accY + x, 2)}")
        for i in range(8):
            p(f"v_cvt_pk_bf16_f32 {vr(V_X1P + i)}, {vr(accX + 2 * i)}, {vr(accX + 2 * i + 1)}")
        s0 = p(f"buffer_store_dwordx4 {vr(V_X1P, 4)}, {vL16}, {sWS}, {sH2st} offen sc1")
        s1 = p(f"buffer_store_dwordx4 {vr(V_X1P + 4, 4)}, {vL16}, {sWS}, {sH2st} offen offset:1024 sc1")
        self.dot_stats(p, list(range(V_X1P, V_X1P + 8)), True)
        self.fold_stats(p)
        s2 = self.masked(p, "0xffffffff", f"buffer_store_dwordx2 {vr(V_TMP, 2)}, {vKh}, {sWS}, {sC} offen sc1")
        t["x1"] = [s0, s1, s2]
        self.stamp(p, "x1 stored")

    def conv(self, p, t):
        o = self.opt
        p(f"""
        s_lshl_b32 {sT0}, {sj}, 6
        s_lshl_b32 {sT1}, {sc}, 1
        s_add_u32 {sT0}, {sT0}, {sT1}
        s_add_u32 {sT0}, {sT0}, {sth}
        s_lshl_b32 {sT0}, {sT0}, 12
        s_lshl_b32 {sT1}, {skh}, 11
        s_add_u32 {sT0}, {sT0}, {sT1}
        s_add_u32 {sT0}, {sT0}, {WS_KVT}
        s_mul_i32 {sT2}, {sth}, {UCH}
        s_add_u32 {sT1}, {sT1}, {sT2}
        """)
        self.poll_check(p, vPw, vKv, sD, 1)
        self.stamp(p, "kvt seen")
        g = Seq()
        g(f"s_add_u32 m0, {sT1}, {CU + 32}")
        self.dma(g, vL16, sWS, sT0, 0, "sc1").note = "hand"
        u = self.dma(g, vL16, sWS, sT0, 1024, "sc1")
        u.note = "hand"
        p.atomic(g)
        p.mark("x1_st", limit=o.get("lim_conv", 1800))
        vA = [vXs[1], vXs[2], vXs[3], vXr[0], vXr[1]]
        vB = vXr[2]
        a, b = vT[0], vT[1]
        p(f"""
        v_and_b32 {a}, 15, {vL}
        v_lshrrev_b32 {b}, 4, {vL}
        v_lshlrev_b32 {b}, 4, {b}
        s_lshl_b32 {sT1}, {skh}, 8
        s_add_u32 {sT2}, {sT2}, {sT1}
        s_add_u32 {sT2}, {sT2}, {CU + 480}
        v_lshlrev_b32 {vB}, 5, {a}
        v_sub_u32 {vB}, {b}, {vB}
        v_add_u32 {vB}, {sT2}, {vB}
        v_add_u32 {vA[0]}, 1, {a}
        v_and_b32 {vA[0]}, 30, {vA[0]}
        v_lshl_add_u32 {vA[0]}, {vA[0]}, 1, {b}
        v_and_b32 {a}, 1, {a}
        v_xor_b32 {a}, 1, {a}
        v_mul_u32_u24 {a}, {KCOPY}, {a}
        s_mul_i32 {sT0}, {sth}, {KCH}
        s_add_u32 {sT0}, {sT0}, {sT1}
        s_add_u32 {sT0}, {sT0}, {CK}
        v_add3_u32 {vA[0]}, {vA[0]}, {a}, {sT0}
        """)
        for i in range(1, 4):
            p(f"v_add_u32 {vA[i]}, {1024 * i}, {vA[0]}")
        p(f"s_cmp_eq_u32 {skh}, 0")
        p(f"s_cselect_b32 {sT0}, 4096, 0")
        p(f"v_add_u32 {vA[4]}, {sT0}, {vA[0]}")
        p(f"""
        v_and_b32 {vT[3]}, 7, {vL}
        v_bfe_u32 {vT[4]}, {vL}, 3, 1
        v_lshlrev_b32 {vT[3]}, 9, {vT[3]}
        v_lshl_add_u32 {vPoll}, {vT[4]}, 8, {vT[3]}
        s_lshl_b32 {sT2}, {ssc}, 1
        s_add_u32 {sT2}, {sT2}, {skh}
        s_lshl_b32 {sC}, {sT2}, 12
        s_lshl_b32 {sT1}, {sth}, 7
        s_add_u32 {sC}, {sC}, {sT1}
        s_mul_i32 {sH2st}, {sT2}, 229376
        s_lshl_b32 {sT1}, {sm}, 12
        s_add_u32 {sH2st}, {sH2st}, {sT1}
        s_lshl_b32 {sT1}, {sth}, 10
        s_add_u32 {sH2st}, {sH2st}, {sT1}
        s_add_u32 {sH2st}, {sH2st}, {WS_H2}
        s_add_u32 {sH2st}, {sH2st}, {sOob}
        s_lshl_b32 {sT2}, {ssc}, 2
        s_add_u32 {sT2}, {sT2}, {sw}
        s_lshl_b32 {sX1ld}, {sT2}, 15
        s_add_u32 {sX1ld}, {sX1ld}, {WS_X1}
        s_add_u32 {sX1ld}, {sX1ld}, {sOob}
        s_lshl_b32 {sStld}, {sT2}, 12
        s_add_u32 {sStld}, {sStld}, {WS_STATS}
        s_add_u32 {sStld}, {sStld}, {sOob}
        s_add_u32 {srot}, {sw}, {sj}
        s_and_b32 {srot}, {srot}, 3
        """)
        self.set_rot(p)
        self.late_addrs(p)
        self.publish(p, t["x1"], 2, FLAG0)
        p.mark("x1_flag")
        self.stamp(p, "x1 flag")
        p.wait(vm=u, lg0=True)
        p("s_barrier")
        p.mark("conv")
        self.stamp(p, "conv start")
        self.w4_park(2, A_PARK, o.get("park2_after", "conv2"), 40)
        acc, AF = V_ACC + 32, V_A
        BF = [V_B, V_B + 32]
        BX = V_TMP
        q = Seq()
        order = (0, 7, 1, 6, 2, 5, 3, 4)
        rows = [(0, 8)] + [(rho, aa) for rho in range(4) for aa in order]

        def rdA(n):
            rho, aa = rows[n]
            of = (64 * rho + 512 * (aa & 1)) // 4
            q(f"ds_read2_b32 {vr(AF + 4 * (n % 8), 2)}, {vA[aa >> 1]} offset0:{of} offset1:{of + 1}")
            q(f"ds_read2_b32 {vr(AF + 4 * (n % 8) + 2, 2)}, {vA[aa >> 1]} offset0:{of + 2} offset1:{of + 3}")

        def rdB(bb, rho):
            d = BX if bb < 0 else BF[rho & 1] + 4 * bb
            q(f"ds_read_b128 {vr(d, 4)}, {vB} offset:{3584 - 512 * bb + 64 * rho}")

        rdA(0)
        rdB(-1, 0)
        rdA(1)
        for bb in range(7, -1, -1):
            rdB(bb, 0)
        for n in range(2, 5):
            rdA(n)
        started = set()
        for n, (rho, aa) in enumerate(rows):
            bs = list(range(7 - aa, -1, -1)) + ([-1] if rho == 0 and aa > 0 else [])
            for k, bb in enumerate(bs):
                d = vr(acc + 4 * (aa + bb), 4)
                B = BX if bb < 0 else BF[rho & 1] + 4 * bb
                q(f"v_mfma_f32_16x16x32_bf16 {d}, {vr(AF + 4 * (n % 8), 4)}, {vr(B, 4)}, {d if aa + bb in started else '0'}")
                started.add(aa + bb)
                if k == 0 and n + 5 < len(rows):
                    rdA(n + 5)
                if k == len(bs) // 2 and n > 0 and rho < 3:
                    rdB(7 - (n - 1) % 8, rho + 1)
        pl, pk, m2 = Seq(), Seq(), Seq()
        pl.mark(limit=o.get("lim_x1poll", 1100))
        pp = o.get("x1_poll_at", 60)
        pl2 = Seq()
        self.poll_issue(pl2, vPv, vPoll, sC)
        pl2.mark(limit=o.get("lim_x1poll2", 1100))
        self.poll_check(pk, vPv, vPoll, sC, 2)
        pk.mark("x1_seen", limit=1500)
        self.stamp(pk, "x1 seen")
        m2.mark("conv2")
        for ks in range(0, 32, 2):
            g = Seq()
            g(f"s_lshl_b32 {sB}, {sR[ks // 8]}, 6")
            g(f"s_add_u32 {sB}, {sB}, {sX1ld}")
            if ks % 8 >= 4:
                g(f"s_add_u32 {sB}, {sB}, 4096")
            for x in (ks, ks + 1):
                g(f"buffer_load_dwordx4 {ar(4 * x, 4)}, {vL16}, {sWS}, {sB} offen offset:{(x % 4) * 1024} sc1")
            self.bg(g, "hand", "x1_seen", 12)
        plan = [(max(pp - 20, 1), pl), (pp, pl2), (o.get("x1_check_at", 96), pk), (o.get("conv2_at", 1), m2)] + self.dense("c", range(1, 152, 12))
        ad = Seq()
        ad(f"""
        s_lshl_b32 {sT0}, {sw}, 12
        s_add_u32 {sT0}, {sT0}, {EXC}
        v_add_u32 {vT[3]}, {sT0}, {vL16}
        v_xor_b32 {a}, 8192, {vT[3]}
        v_and_b32 {b}, 15, {vL}
        v_lshlrev_b32 {b}, 5, {b}
        v_lshrrev_b32 {vT[2]}, 4, {vL}
        v_lshl_add_u32 {b}, {vT[2]}, 3, {b}
        s_mul_i32 {sT1}, {sth}, {UCH}
        s_add_u32 {sT1}, {sT1}, {CU + 4120 - 1536}
        s_lshl_b32 {sT2}, {skh}, 11
        s_sub_u32 {sT1}, {sT1}, {sT2}
        v_sub_u32 {vT[2]}, {sT1}, {b}
        s_xor_b32 {sT0}, {sT0}, 8192
        v_add_u32 {b}, {sT0}, {b}
        v_lshlrev_b32 {vr(V_SSM + 5)}, 16, {vr(V_SSM + 5)}
        v_and_b32 {vT[4]}, 8, {vL}
        v_cmp_eq_u32 vcc, 0, {vT[4]}
        """)
        sel = Seq()
        sel(f"v_and_b32 {vT[4]}, 8, {vL}")
        sel(f"v_cmp_eq_u32 vcc, 0, {vT[4]}")
        for n in range(4):
            sel(f"v_cndmask_b32 {vr(V_SSM + n)}, {vr(V_ONES + n)}, {vZero}, vcc")
        for n in range(4):
            sel(f"v_cndmask_b32 {vr(V_ONES + n)}, {vZero}, {vr(V_ONES + n)}, vcc")
        sel(f"""
        v_lshlrev_b32 {vT[5]}, 2, {vL}
        v_add_u32 {vT[5]}, {ST}, {vT[5]}
        s_lshl_b32 {sT0}, {sw}, 8
        v_add_u32 {vT[6]}, {sT0}, {vT[5]}
        s_add_u32 {sT0}, {sT0}, {ST + 3072}
        v_add_u32 {vCsA}, {sT0}, {vCsA}
        """)
        ad.items = ad.items[:-2]
        p.extend(weave(q, fill(q, [(104, 126, split(ad)), (128, 150, split(sel))], plan)))
        self.stamp(p, "conv mfma")
        p.wait(vm=t["l0"])
        x = Seq()
        hi, join = self.label("convhi"), self.label("convjoin")
        x("s_barrier")
        x("s_nop 4")
        x(f"s_cmp_lg_u32 {skh}, 0")
        x(f"s_cbranch_scc1 {hi}")
        for half, tail in ((16, f"s_branch {join}\n{hi}:"), (0, f"{join}:")):
            for n in range(4):
                x(f"ds_write_b128 {vT[3]}, {vr(acc + half + 4 * n, 4)} offset:{n * 1024}", count=(half == 0))
            x("s_waitcnt lgkmcnt(0)")
            x("s_barrier")
            for n in range(4):
                x(f"ds_read_b128 {vr(acc + half + 4 * n, 4)}, {a} offset:{n * 1024}", count=(half == 0))
            x(tail)
        t["cx"] = x.items[-2]
        p.atomic(x)
        p.mark("conv_end")
        self.stamp(p, "conv done")
        e = Seq()
        uu, tmp = V_B + 16, V_B + 32
        for n in range(4):
            e(f"ds_read_b64 {vr(uu + 2 * n, 2)}, {vT[2]} offset:{1536 - 512 * n}")
        e.wait(lg=t["cx"])
        for n in range(16):
            e(f"v_add_f32 {vr(acc + n)}, {vr(acc + n)}, {vr(acc + 16 + n)}")
        for n in range(4):
            e(f"v_and_b32 {vr(tmp)}, {sHi}, {vr(uu + 2 * n + 1)}")
            e(f"v_lshlrev_b32 {vr(tmp + 1)}, 16, {vr(uu + 2 * n + 1)}")
            e(f"v_and_b32 {vr(tmp + 2)}, {sHi}, {vr(uu + 2 * n)}")
            e(f"v_lshlrev_b32 {vr(tmp + 3)}, 16, {vr(uu + 2 * n)}")
            for r in range(4):
                e(f"v_fmac_f32 {vr(acc + 4 * n + r)}, {vr(V_SSM + 5)}, {vr(tmp + r)}")
        for n in range(8):
            e(f"v_cvt_pk_bf16_f32 {vr(uu + n)}, {vr(acc + 2 * n)}, {vr(acc + 2 * n + 1)}")
        for n in range(4):
            e(f"ds_write_b64 {b}, {vr(uu + 2 * n, 2)} offset:{n * 512}")
        e(f"ds_read_b128 {vr(uu + 8, 4)}, {a}")
        e(f"ds_read_b128 {vr(uu + 12, 4)}, {a} offset:1024")
        e(f"""
        v_lshrrev_b32 {b}, 3, {vL}
        v_and_b32 {vT[2]}, 7, {vL}
        v_lshlrev_b32 {vT[2]}, 4, {vT[2]}
        v_lshl_add_u32 {b}, {b}, 13, {vT[2]}
        s_lshl_b32 {sT2}, {sj}, 18
        s_lshl_b32 {sT1}, {skh}, 17
        s_add_u32 {sT2}, {sT2}, {sT1}
        s_lshl_b32 {sT1}, {sc}, 1
        s_add_u32 {sT1}, {sT1}, {sth}
        s_lshl_b32 {sT1}, {sT1}, 7
        s_add_u32 {sT2}, {sT2}, {sT1}
        s_add_u32 {sT2}, {sT2}, {WS_YT}
        s_add_u32 {sT1}, {sT2}, 65536
        """)
        s0 = e(f"buffer_store_dwordx4 {vr(uu + 8, 4)}, {b}, {sWS}, {sT2} offen sc1")
        s1 = e(f"buffer_store_dwordx4 {vr(uu + 12, 4)}, {b}, {sWS}, {sT1} offen sc1")
        t["y"], t["conv_epi"] = [s0, s1], e

    def p3_phase(self, base, accA, accB, cs):
        q = Seq()
        regs = [(vXr[0], vXr[1]), (vXr[2], vXr[3])]

        def setblk(blk):
            r0, r1 = regs[blk & 1]
            q(f"s_lshl_b32 {sT0}, {sR[blk]}, 7")
            q(f"s_add_u32 {sT0}, {sT0}, {base}")
            q(f"v_add_u32 {r0}, {sT0}, {vTr0}")
            q(f"v_xor_b32 {r1}, 64, {r0}")

        def rd(ks, half):
            if ks < 32:
                tok[ks] = self.a_reads(q, V_A + 8 * (ks % 4) + 4 * half, regs[(ks >> 3) & 1][half], (ks & 7) * 2048)

        tok = {}
        setblk(0)
        for ks in range(2):
            rd(ks, 0)
            rd(ks, 1)
        setblk(1)
        for ks in range(32):
            A = V_A + 8 * (ks % 4)
            z = ks == 0
            q.wait(lg=tok[ks])
            q(f"v_mfma_f32_32x32x16_bf16 {vr(accA, 16)}, {vr(A, 4)}, {ar(4 * ks, 4)}, {'0' if z else vr(accA, 16)}")
            rd(ks + 2, 0)
            q(f"v_mfma_f32_32x32x16_bf16 {vr(accB, 16)}, {vr(A + 4, 4)}, {ar(4 * ks, 4)}, {'0' if z else vr(accB, 16)}")
            rd(ks + 2, 1)
            if ks < 8:
                q(f"v_mfma_f32_16x16x32_bf16 {vr(cs, 4)}, {vr(V_ONES, 4)}, {vr(A, 4)}, {'0' if z else vr(cs, 4)}")
                q(f"v_mfma_f32_16x16x32_bf16 {vr(cs, 4)}, {vr(V_SSM, 4)}, {vr(A + 4, 4)}, {vr(cs, 4)}")
            if ks in (8, 16):
                setblk(ks // 8 + 1)
        return q

    def p3_tile(self, base, half, acc, cs=None):
        q = Seq()
        regs = [vXr[0], vXr[2]]
        tok = {}

        def setblk(blk):
            q(f"s_lshl_b32 {sT0}, {sR[blk]}, 7")
            q(f"s_add_u32 {sT0}, {sT0}, {base}")
            q(f"v_add_u32 {regs[blk & 1]}, {sT0}, {vTr0}")
            if half:
                q(f"v_xor_b32 {regs[blk & 1]}, 64, {regs[blk & 1]}")

        def rd(ks):
            if ks < 32:
                tok[ks] = self.a_reads(q, V_A + 4 * (ks % 6), regs[(ks >> 3) & 1], (ks & 7) * 2048)

        setblk(0)
        if cs is not None:
            q(f"v_xor_b32 {vXr[1]}, 64, {vXr[0]}")
        for ks in range(4):
            rd(ks)
        setblk(1)
        for ks in range(32):
            A = V_A + 4 * (ks % 6)
            if cs is not None and ks < 8:
                self.a_reads(q, V_A + 24 + 4 * (ks & 1), vXr[1], ks * 2048)
            q(f"v_mfma_f32_32x32x16_bf16 {vr(acc, 16)}, {vr(A, 4)}, {ar(4 * ks, 4)}, {'0' if ks == 0 else vr(acc, 16)}")
            rd(ks + 4)
            if cs is not None and ks < 8:
                q(f"v_mfma_f32_16x16x32_bf16 {vr(cs, 4)}, {vr(V_ONES, 4)}, {vr(A, 4)}, {'0' if ks == 0 else vr(cs, 4)}")
            if cs is not None and 0 < ks < 9:
                q(f"v_mfma_f32_16x16x32_bf16 {vr(cs, 4)}, {vr(V_SSM, 4)}, {vr(V_A + 24 + 4 * ((ks - 1) & 1), 4)}, {vr(cs, 4)}")
            if ks in (6, 14):
                setblk(ks // 8 + 2)
        return q

    def cs_exchange(self, table, cs, dstA, dstB):
        w, r, a, b = Seq(), Seq(), Seq(), Seq()
        tok = w(f"ds_write_b32 {vT[6]}, {vr(cs)} offset:{table - ST}")
        r.wait(lg=tok)
        r("s_barrier")
        for n in range(4):
            r(f"ds_read_b32 {vr(cs + n)}, {vT[5]} offset:{table - ST + n * 256}")
        r(f"v_add_f32 {vr(cs)}, {vr(cs)}, {vr(cs + 1)}")
        r(f"v_add_f32 {vr(cs + 2)}, {vr(cs + 2)}, {vr(cs + 3)}")
        r(f"v_add_f32 {vr(cs)}, {vr(cs)}, {vr(cs + 2)}")
        r(f"ds_write_b32 {vT[6]}, {vr(cs)} offset:3072")
        for n in range(4):
            a(f"ds_read_b128 {vr(dstA + 4 * n, 4)}, {vCsA} offset:{n * 32}")
            b(f"ds_read_b128 {vr(dstB + 4 * n, 4)}, {vCsA} offset:{128 + n * 32}")
        return w, r, a, b

    def gelu_plain(self, p, acc, cs, tmp, out):
        K1, K2, SD, NM = vr(V_KK), vr(V_KK + 1), vr(V_SM), vr(V_SM + 1)
        for b in range(0, 16, 4):
            xs = range(b, b + 4)
            T = lambda x: vr(tmp + (x & 7))
            for x in xs:
                p(f"v_fmac_f32 {vr(acc + x)}, {vr(cs + x)}, {NM}")
            for x in xs:
                p(f"v_mul_f32 {T(x)}, {vr(acc + x)}, {vr(acc + x)}")
            for x in xs:
                p(f"v_fma_f32 {T(x)}, {T(x)}, {K2}, {K1}")
            for x in xs:
                p(f"v_mul_f32 {T(x)}, {T(x)}, {vr(acc + x)}")
            for x in xs:
                p(f"v_exp_f32 {T(x)}, {T(x)}")
            for x in xs:
                p(f"v_fma_f32 {T(x)}, {T(x)}, {SD}, {SD}")
            for x in xs:
                p(f"v_rcp_f32 {T(x)}, {T(x)}")
            for x in xs:
                p(f"v_mul_f32 {T(x)}, {T(x)}, {vr(acc + x)}")
            for x in (b, b + 2):
                p(f"v_cvt_pk_bf16_f32 {vr(out + x // 2)}, {T(x)}, {T(x + 1)}")

    def h2_tile(self, acc, cs16, out, plain=False):
        q = Seq()
        (self.gelu_plain if plain else self.gelu_packed)(q, acc, cs16, V_TMP + 16, out)
        s0 = q(f"buffer_store_dwordx4 {vr(out, 4)}, {vL16}, {sWS}, {sH2st} offen sc1")
        s1 = q(f"buffer_store_dwordx4 {vr(out + 4, 4)}, {vL16}, {sWS}, {sH2st} offen offset:2048 sc1")
        q(f"s_add_u32 {sH2st}, {sH2st}, 57344")
        q("s_nop 0")
        return q, [s0, s1]

    def h2_loads(self, piece, reg, prio):
        for u in range(7):
            g = Seq()
            g(f"s_add_u32 {sB}, {sH2ld}, {piece * 57344 + u * 2048}")
            for i in range(2):
                g(f"buffer_load_dwordx4 {reg(8 * u + 4 * i)}, {vXs[1 + i]}, {sWS}, {sB} offen sc1")
            self.bg(g, "hand", f"h2_seen{piece}", prio)

    def late_addrs(self, p):
        a, b = vT[0], vT[1]
        o = self.opt
        p(f"""
        s_lshl_b32 {sYfl}, {sj2}, 9
        s_lshr_b32 {sT1}, {sc}, 4
        s_lshl_b32 {sT1}, {sT1}, 8
        s_add_u32 {sYfl}, {sYfl}, {sT1}
        s_add_u32 {sYfl}, {sYfl}, {FLAG1}
        v_and_b32 {a}, 3, {vL}
        s_mul_i32 {sT1}, {sth}, 3
        v_add_u32 {a}, {sT1}, {a}
        v_add_u32 {b}, {8 - self.idle}, {a}
        v_lshrrev_b32 {b}, 3, {b}
        v_add_u32 {a}, {a}, {b}
        v_bfe_u32 {b}, {vL}, 2, 1
        v_lshlrev_b32 {a}, 9, {a}
        v_lshl_add_u32 {vH2fl}, {b}, 7, {a}
        s_lshr_b32 {sT2}, {sc}, 3
        s_lshl_b32 {sT2}, {sT2}, 3
        s_lshl_b32 {sT1}, {skh}, 2
        s_add_u32 {sT2}, {sT2}, {sT1}
        s_bfe_u32 {sT1}, {sc}, 0x20001
        s_add_u32 {sT2}, {sT2}, {sT1}
        s_lshl_b32 {sT2}, {sT2}, 12
        s_and_b32 {sT1}, {sc}, 1
        s_lshl_b32 {sT1}, {sT1}, 8
        s_add_u32 {sH2fl}, {sT2}, {sT1}
        s_mul_i32 {sT2}, {sw}, {7 * 2048}
        s_mul_i32 {sT1}, {sc}, 229376
        s_add_u32 {sT1}, {sT1}, {sT2}
        s_add_u32 {sH2ld}, {sT1}, {WS_H2 + (WS_SIZE if o.get("dbg_noh2") else 0)}
        s_lshl_b32 {sT2}, {skh}, 15
        s_sub_u32 {sT2}, {sPriv}, {sT2}
        v_add_u32 {vTrX}, {sT2}, {vTrX}
        v_add_u32 {vTrY}, {sT2}, {vTrY}
        v_lshrrev_b32 {a}, 5, {vL}
        v_lshl_add_u32 {vKv}, {a}, 7, {vKv}
        v_lshlrev_b32 {a}, 10, {a}
        v_bfe_u32 {b}, {vL}, 2, 2
        v_lshl_add_u32 {a}, {b}, 7, {a}
        v_bfe_u32 {b}, {vL}, 4, 1
        v_lshl_add_u32 {a}, {b}, 5, {a}
        v_and_b32 {b}, 3, {vL}
        v_lshl_add_u32 {a}, {b}, 3, {a}
        s_lshl_b32 {sT2}, {snh}, 12
        s_lshl_b32 {sT1}, {sth}, 6
        s_add_u32 {sT2}, {sT2}, {sT1}
        s_add_u32 {sT2}, {sT2}, {YB}
        v_add_u32 {vY}, {sT2}, {a}
        s_lshl_b32 {sYld}, {sj2}, 5
        s_add_u32 {sYld}, {sYld}, {sc}
        s_lshl_b32 {sYld}, {sYld}, 13
        s_lshl_b32 {sT1}, {sw}, 11
        s_add_u32 {sYld}, {sYld}, {sT1}
        s_add_u32 {sYld}, {sYld}, {WS_YT}
        s_add_u32 {sYlds}, {sT1}, {YB}
        s_lshl_b32 {sGld}, {sc}, 1
        s_add_u32 {sGld}, {sGld}, {sth}
        s_lshl_b32 {sGld}, {sGld}, 11
        s_add_u32 {sGld}, {sGld}, {WS_GATE}
        """)

    def p3(self, p, t):
        o = self.opt
        T0, T1, T2, T3 = V_ACC, V_ACC + 16, V_ACC, V_ACC + 32
        cs, stt = V_TMP, V_B
        a, b = vT[0], vT[1]
        p.mark("p3")
        for i in range(0, 8, 2):
            g = Seq()
            for x in (i, i + 1):
                g(f"buffer_load_dwordx2 {vr(stt + 2 * x, 2)}, {vKh}, {sWS}, {sStld} offen offset:{x * 512} sc1")
            self.bg(g, "few", "p3", o.get("prio_stats", 11))
        ypub, lim, ln = Seq(), Seq(), Seq()
        self.publish(ypub, t["y"], 2, FLAG1)
        lim.mark(limit=o.get("lim_g0", 1100))
        for x in (0, 1):
            ln(f"v_add_f32 {vr(stt + x)}, {vr(stt + x)}, {vr(stt + 2 + x)}")
        for i in range(1, 4):
            for x in (0, 1):
                ln(f"v_add_f32 {vr(stt + x)}, {vr(stt + x)}, {vr(stt + 4 * i + x)}")
                ln(f"v_add_f32 {vr(stt + x)}, {vr(stt + x)}, {vr(stt + 4 * i + 2 + x)}")
        self.half_sum(ln, vr(stt), vr(stt + 2))
        self.half_sum(ln, vr(stt + 1), vr(stt + 3))
        self.ln_consts(ln, vr(stt), vr(stt + 1))
        csA, csB = V_B + 44, V_ACC + 48
        cw, cr, ca, cb = self.cs_exchange(ST + 2048, cs, csA, csB)
        q = self.p3_phase(R2, T0, T1, cs)
        fixed = [(36, cw), (o.get("ypub_at", 76), ypub), (o.get("lim_g0_at", 66), lim)] + self.dense("i", range(1, 80, self.opt.get("dstep", 8)))
        streams = [(2, 46, split(t["conv_epi"])), (47, 53, split(cr)), (54, 72, split(ln)), (73, 78, split(ca) + split(cb))]
        p.extend(weave(q, fill(q, streams, fixed)))
        self.stamp(p, "p3 t01")
        q0, st0 = self.h2_tile(T0, csA, V_TMP)
        p.extend(q0)
        p.mark(limit=o.get("lim_g1b", 1100))
        self.stamp(p, "h2 p0 st")
        q1, st1 = self.h2_tile(T1, csB, V_TMP + 8)
        p.extend(q1)
        p.mark(limit=1500)
        p(f"""
        s_lshl_b32 {sT2}, {sth}, 10
        v_add_u32 {vXs[1]}, {sT2}, {vL16}
        v_xor_b32 {vXs[2]}, 1024, {vXs[1]}
        v_add_u32 {vXs[3]}, {sPriv}, {vL16}
        v_lshlrev_b32 {b}, 2, {vL}
        """)
        p.wait(vm=t["l1"])
        p("s_barrier")
        p.mark("B3")
        self.stamp(p, "h2 p1 st")
        w0t = self.w4_loads(0, R2, "B3", 32)
        self.w4_park(3, A_PARK + 56, o.get("park3_after", "conv2"), 41)
        pub0, pub1, pub2, ypl, ypk, hpl, hpk, yd, gl, lim, lim2 = (Seq() for _ in range(11))
        self.publish(pub0, st0, 3, FLAG0)
        self.stamp(pub0, "h2 p0 flag")
        self.publish(pub1, st1, 4, FLAG0)
        self.poll_issue(ypl, vPw, vKv, sYfl)
        self.poll_check(ypk, vPw, vKv, sYfl, 2)
        yd(f"s_mov_b32 m0, {sYlds}")
        self.dma(yd, vL16, sWS, sYld, 0, "sc1")
        ytok = self.dma(yd, vL16, sWS, sYld, 1024, "sc1")
        ypk.atomic(yd)
        T2, T3, csA2, csB2 = V_ACC, V_ACC + 16, V_ACC + 32, V_ACC + 48
        cw, cr, ca, cb = self.cs_exchange(ST, cs, csA2, csB2)
        q = self.p3_tile(R0, 0, T2, cs)
        lim.mark(limit=o.get("lim_g2", 1100))
        fixed = [(o.get("pub0_at", 2), pub0), (o.get("pub1_at", 22), pub1), (28, cw), (o.get("lim_g2_at", 36), lim)]
        streams = [(32, 38, split(cr)), (40, 47, split(ca) + split(cb))]
        p.extend(weave(q, fill(q, streams, fixed + self.dense("j", range(1, 48, self.opt.get("dstep", 6))))))
        self.stamp(p, "p3 t2")
        self.poll_issue(p, vPv, vH2fl, sH2fl)
        p.extend(ypl)
        q2, st2 = self.h2_tile(T2, csA2, V_TMP)
        p.extend(q2)
        p.mark(limit=1500)
        self.publish(pub2, st2, 5, FLAG0)
        self.poll_check(hpk, vPv, vH2fl, sH2fl, 4)
        hpk.mark("h2_seen0")
        self.stamp(hpk, "h2 seen")
        self.h2_loads(0, lambda r: vr(V_B + r, 4), 20)
        gt = V_B + 56
        for i in range(8):
            gl(f"buffer_load_dword {vr(gt + i)}, {b}, {sWS}, {sGld} offen offset:{i * 256} sc1").note = "few"
        q = self.p3_tile(R0, 1, T3)
        lim2.mark(limit=o.get("lim_g3", 1100))
        fixed = [(o.get("h2_check_at", 2), hpk), (o.get("y_check_at", 6), ypk), (o.get("pub2_at", 24), pub2), (o.get("lim_g3_at", 24), lim2)]
        p.extend(weave(q, fill(q, [], fixed + self.dense("k", range(1, 32, 4)))))
        self.stamp(p, "p3 t23")
        p.wait(vm=ytok)
        p("s_barrier")
        p.mark("B4")
        p.mark("h2_seen1")
        w1t = self.w4_loads(1, R0, "B4", 21)
        self.h2_loads(1, lambda r: ar(r, 4), 21)
        q3, st3 = self.h2_tile(T3, csB2, V_TMP + 8)
        p.extend(q3)
        p.mark(limit=1500)
        self.poll_issue(p, vPv, vH2fl, sH2fl)
        t["gl"] = gl
        a = vY
        self.stamp(p, "p3 done")
        bs = Seq()
        yy, base = V_TMP, V_TMP + 16
        for i in range(4):
            bs(f"ds_read_b64_tr_b16 {vr(yy + 2 * i, 2)}, {a} offset:{(i >> 1) * 2048 + (i & 1) * 512}")
        for i in range(1, 8):
            bs(f"v_add_f32 {vr(gt)}, {vr(gt)}, {vr(gt + i)}")
        self.half_sum(bs, vr(gt), vr(gt + 1))
        G, OM = vr(V_KK), vr(V_KK + 1)
        bs(f"v_mul_f32 {vr(gt)}, {fbits(-math.log2(math.e))}, {vr(gt)}")
        bs(f"v_exp_f32 {vr(gt)}, {vr(gt)}")
        bs(f"v_add_f32 {vr(gt)}, 1.0, {vr(gt)}")
        bs(f"v_rcp_f32 {G}, {vr(gt)}")
        bs(f"v_sub_f32 {OM}, 1.0, {G}")
        for i in range(8):
            for h, un in ((0, "v_lshlrev_b32 {d}, 16, {s}"), (1, "v_and_b32 {d}, " + sHi + ", {s}")):
                t0, t1, d = vr(gt + 2 * h), vr(gt + 2 * h + 1), vr(base + 2 * i + h)
                bs(un.format(d=t0, s=vr(yy + i)))
                bs(un.format(d=t1, s=vr(V_XRES + i)))
                bs(un.format(d=d, s=vr(V_X1P + i)))
                bs(f"v_mul_f32 {t0}, {t0}, {t1}")
                bs(f"v_mul_f32 {d}, {d}, {OM}")
                bs(f"v_fmac_f32 {d}, {t0}, {G}")
        t.update(st3=st3, w0t=w0t, w1t=w1t, base=base, bs=bs)

    def p4(self, p, t):
        o = self.opt
        acc = [V_ACC + 16 * i for i in range(4)]
        breg = [lambda r: vr(V_B + r, 4), lambda r: ar(r, 4), lambda r: ar(56 + r, 4), lambda r: vr(V_B + r, 4)]
        p(f"v_add_u32 {vXr[0]}, {R2}, {vTrX}")
        p(f"v_add_u32 {vXr[1]}, {R2}, {vTrY}")
        p(f"v_add_u32 {vXr[2]}, {R2}, {vXs[3]}")
        areg = [(vXr[0], vXr[1]), (vTrX, vTrY)]
        pub3 = Seq()
        self.publish(pub3, t["st3"], 6, FLAG0)
        un2, un2t = self.w4_unpark_groups(A_PARK, vXr[2])
        un3, un3t = self.w4_unpark_groups(A_PARK + 56, vXs[3])
        bs = split(t["bs"])
        a = vXr[2]
        q = Seq()
        steps = [(pc, u) for pc in range(4) for u in range(7)]

        def rd(n, halves=(0, 1)):
            pc, u = steps[n]
            if pc < 2 and 0 in halves:
                q.wait(vm=t["w0t" if pc == 0 else "w1t"][u])
            for h in halves:
                self.a_reads(q, V_A + 8 * (n % 4) + 4 * h, areg[pc & 1][h], u * 2048)

        def mfma(n, slot):
            pc, u = steps[n]
            A = V_A + 8 * (n % 4) + 4 * (slot & 1)
            B = breg[pc](8 * u + 4 * (slot >> 1))
            q(f"v_mfma_f32_32x32x16_bf16 {vr(acc[slot], 16)}, {vr(A, 4)}, {B}, {'0' if n == 0 else vr(acc[slot], 16)}")

        rd(0)
        rd(1)
        for n in range(24):
            for slot in range(4):
                mfma(n, slot)
                if slot < 2:
                    rd(n + 2, (slot,))
        rd(26)
        mfma(24, 1)
        rd(27)
        for slot in (1, 2, 3, 0):
            for n in range(24, 28):
                if (n, slot) != (24, 1):
                    mfma(n, slot)
        pk2, pl3, pk3 = Seq(), Seq(), Seq()
        self.poll_check(pk2, vPv, vH2fl, sH2fl, 5)
        pk2.mark("h2_seen2")
        self.h2_loads(2, breg[2], 22)
        self.poll_issue(pl3, vPv, vH2fl, sH2fl)
        self.poll_check(pk3, vPv, vH2fl, sH2fl, 6)
        pk3.mark("h2_seen3")
        self.h2_loads(3, breg[3], 23)
        plan = [(o.get("pub3_at", 12), pub3), (o.get("h2p2_check", 24), pk2), (o.get("h2p3_poll", 44), pl3), (o.get("h2p3_check", 60), pk3)]
        plan += spread(split(t["gl"]), 30, 44)
        plan += spread(un2, 26, 46) + spread(un3, 54, 74)
        xa = Seq()
        xa(f"v_xor_b32 {vT[2]}, {2 << 14}, {a}")
        xa(f"v_xor_b32 {vT[3]}, {3 << 14}, {a}")
        xa(f"v_xor_b32 {vT[4]}, {1 << 14}, {a}")
        plan += [(90, xa)]
        for s in range(1, 4):
            w = Seq()
            for g in range(4):
                w(f"ds_write_b128 {a}, {vr(acc[s] + 4 * g, 4)} offset:{(s - 1) * 4096 + g * 1024}")
            plan += spread(split(w), 96 + 4 * s + 2, min(96 + 4 * s + 5, 112))
        for pc in range(3):
            sq = Seq()
            self.stamp(sq, f"p4 piece{pc}")
            plan.append((28 * (pc + 1), sq))
        p.extend(weave(q, fill(q, [(60, 94, bs)], plan + self.dense("p", range(1, 112, 4)))))
        self.stamp(p, "p4 piece3")
        p.wait(lg0=True)
        p("s_barrier")
        for s in range(1, 4):
            for g in range(4):
                p(f"ds_read_b128 {vr(acc[s] + 4 * g, 4)}, {vT[1 + s]} offset:{(s - 1) * 4096 + g * 1024}")
        base = t["base"]
        fl = o.get("out_flags", "")
        for half in (0, 8):
            for s in range(1, 4):
                for x in range(half, half + 8, 2):
                    p(f"v_pk_add_f32 {vr(acc[0] + x, 2)}, {vr(acc[0] + x, 2)}, {vr(acc[s] + x, 2)}")
            for x in range(half, half + 8, 2):
                p(f"v_pk_fma_f32 {vr(acc[0] + x, 2)}, {vr(acc[0] + x, 2)}, {vr(V_KK, 2)}, {vr(base + x, 2)} op_sel:[0,1,0] op_sel_hi:[1,1,1]")
            for i in range(half // 2, half // 2 + 4):
                p(f"v_cvt_pk_bf16_f32 {vr(V_TMP + i)}, {vr(acc[0] + 2 * i)}, {vr(acc[0] + 2 * i + 1)}")
            p(f"buffer_store_dwordx4 {vr(V_TMP + half // 2, 4)}, {vOut}, {sOUT}, 0 offen offset:{half * 4} {fl}")
        self.advance_epoch(p)
        self.stamp(p, "out issued")

    def write_stamps(self, p):
        if self.diag:
            p.wait(vm0=True)
            self.stamp(p, "end")
            p(f"""
            s_cmp_lg_u32 s2, {self.opt.get("diag_wg", 73)}
            s_cbranch_scc1 L_end
            s_sub_u32 s98, s98, s96
            s_mul_i32 s98, s98, {self.diag[2]}
            s_lshr_b32 s98, s98, {4 if len(self.diag) > 3 else 0}
            s_memrealtime s[96:97]
            s_waitcnt lgkmcnt(0)
            L_diag:
            s_memrealtime s[100:101]
            s_waitcnt lgkmcnt(0)
            s_sub_u32 s100, s100, s96
            s_cmp_lt_u32 s100, s98
            s_cbranch_scc1 L_diag
            """)
        if not self.profile:
            return
        p.wait(vm0=True)
        self.stamp(p, "end")
        p("s_memrealtime s[100:101]")
        p.wait(lg0=True)
        p("v_writelane_b32 v254, s100, 1")
        p(f"""
        s_lshl_b32 {sT0}, s2, 2
        s_add_u32 {sT0}, {sT0}, {sw}
        s_lshl_b32 {sT0}, {sT0}, 8
        s_add_u32 {sT0}, {sT0}, {WS_STAMP}
        v_lshlrev_b32 {vP2}, 2, {vL}
        """)
        p(f"buffer_store_dword v254, {vP2}, {sWS}, {sT0} offen")

    def build(self):
        p = self.p
        t = {}
        self.prologue(p)
        self.p1(p, t)
        self.a1(p, t)
        self.p2(p, t)
        self.conv(p, t)
        self.p3(p, t)
        self.p4(p, t)
        self.write_stamps(p)
        p("L_end:")
        p("s_endpgm")
        assert len(self.stamps) + self.npoll <= 62, len(self.stamps)
        classes = {"p1cold": (self.opt.get("s_p1cold", 230), self.opt.get("l_p1cold", 1400)), "p1l2": (75, 400)}
        for k in ("mall", "hand", "cold"):
            if "s_" + k in self.opt:
                classes[k] = (self.opt["s_" + k], self.opt.get("l_" + k, 900))
        self.log = []
        p = schedule(p, [b for _, _, b in sorted(self.bgs, key=lambda e: e[:2])], classes, self.log, self.opt.get("split_bg", 1))
        body, items = finalize(p)
        head = open(__file__.replace("gen.py", "header.txt")).read()
        text = head + f"; @launch grid=(256,1,1) block=(256,1,1) lds={LDS_SIZE}\n"
        text += f""".amdgcn_target "amdgcn-amd-amdhsa--gfx950"
.text
.globl {NAME}_kernel
.p2align 8
.type {NAME}_kernel,@function
{NAME}_kernel:
.set CODE_BYTES, L_code_end - L_pc - 4
"""
        text += body
        text += f"""L_code_end:
.section .rodata,"a"
.p2align 6
.amdhsa_kernel {NAME}_kernel
  .amdhsa_next_free_vgpr 512
  .amdhsa_next_free_sgpr 102
  .amdhsa_accum_offset 256
  .amdhsa_group_segment_fixed_size 0
  .amdhsa_kernarg_size 120
  .amdhsa_user_sgpr_count 2
  .amdhsa_user_sgpr_kernarg_segment_ptr 1
  .amdhsa_system_sgpr_workgroup_id_x 1
.end_amdhsa_kernel
"""
        return text


if __name__ == "__main__":
    prof = "--profile" in sys.argv
    out = [a for a in sys.argv[1:] if not a.startswith("--")]
    diag = [a[7:].split(",") for a in sys.argv if a.startswith("--diag=")]
    opt = {}
    for a in sys.argv:
        if a.startswith("--o:"):
            k, v = a[4:].split("=")
            opt[k] = int(v) if v.lstrip("-").isdigit() else v
    g = Gen(profile=prof, diag=diag[0] if diag else None, opt=opt)
    text = g.build()
    path = out[0] if out else f"cdna_kernels/{NAME}.s"
    open(path, "w").write(text)
    if prof:
        open(path + ".stamps", "w").write("\n".join(g.stamps))
    print("wrote", path, len(text), "bytes")
    if "--log" in sys.argv:
        print("  ".join(f"{n}={t}" for n, t in g.log))
```

```python
import re

REG_RE = re.compile(r"^(-|\|)?([vas])(\d+)\|?$")
RNG_RE = re.compile(r"^(-|\|)?([vas])\[(\d+):(\d+)\]\|?$")
TRANS = ("v_exp_f32", "v_log_f32", "v_rcp_f32", "v_rsq_f32", "v_sqrt_f32", "v_sin_f32", "v_cos_f32")


def regs_of(tok):
    tok = tok.strip()
    m = REG_RE.match(tok)
    if m:
        return [(m.group(2), int(m.group(3)))]
    m = RNG_RE.match(tok)
    if m:
        return [(m.group(2), i) for i in range(int(m.group(3)), int(m.group(4)) + 1)]
    if tok == "vcc":
        return [("s", "vcc")]
    if tok in ("exec", "exec_hi", "exec_lo"):
        return [("s", "exec")]
    if tok == "m0":
        return [("s", "m0")]
    return []


def split_ops(s):
    out, depth, cur = [], 0, ""
    for ch in s:
        if ch == "[":
            depth += 1
        if ch == "]":
            depth -= 1
        if ch == "," and depth == 0:
            out.append(cur.strip())
            cur = ""
        else:
            cur += ch
    if cur.strip():
        out.append(cur.strip())
    return out


class Ins:
    __slots__ = ("text", "op", "kind", "dst", "src", "srcc", "count", "vm", "lg", "wide", "note")

    def __init__(self, text, count=True):
        self.text = text.strip()
        self.count = count
        self.vm = None
        self.lg = None
        self.srcc = set()
        self.wide = set()
        self.note = None
        t = self.text
        if t.endswith(":"):
            self.op, self.kind, self.dst, self.src = t, "label", set(), set()
            return
        if t.startswith(";") or t.startswith("."):
            self.op, self.kind, self.dst, self.src = t, "meta", set(), set()
            return
        parts = t.split(None, 1)
        op = parts[0]
        self.op = op
        rest = parts[1] if len(parts) > 1 else ""
        ops = split_ops(rest)
        mods = ""
        if ops:
            last = ops[-1].split(None, 1)
            ops[-1] = last[0]
            mods = last[1] if len(last) > 1 else ""
        R = [regs_of(o) for o in ops]
        flat = lambda xs: set(r for x in xs for r in x)
        dst, src = set(), set()
        if op.startswith("v_mfma"):
            self.kind = "mfma32" if "32x32" in op else "mfma16"
            dst, src = flat(R[:1]), flat(R[1:])
            self.srcc = flat(R[3:4])
        elif op.startswith("buffer_load") or op.startswith("global_load"):
            if re.search(r"\blds\b", mods):
                self.kind = "dma"
                src = flat(R) | {("s", "m0")}
            else:
                self.kind = "vld"
                dst, src = flat(R[:1]) - {("v", 255)}, flat(R[1:])
        elif op.startswith("buffer_store"):
            self.kind = "vst"
            src = flat(R)
            if "x4" in op or "x3" in op:
                self.wide = flat(R[:1])
        elif op.startswith("global_store"):
            self.kind = "vst"
            src = flat(R)
            if "x4" in op or "x3" in op:
                self.wide = flat(R[1:2])
        elif op.startswith("ds_read") or op.startswith("ds_bpermute"):
            self.kind = "dsr"
            dst, src = flat(R[:1]), flat(R[1:])
        elif op.startswith("ds_write"):
            self.kind = "dsw"
            src = flat(R)
        elif op.startswith("s_load") or op.startswith("s_memtime") or op.startswith("s_memrealtime"):
            self.kind = "smem"
            dst, src = flat(R[:1]), flat(R[1:])
        elif op == "s_waitcnt":
            self.kind = "rawwait"
        elif op == "s_barrier":
            self.kind = "barrier"
        elif op == "s_nop":
            self.kind = "nop"
        elif op.startswith("s_cbranch") or op == "s_branch":
            self.kind = "branch"
            if "vcc" in op:
                src = {("s", "vcc")}
        elif op in ("s_endpgm", "s_sleep", "s_setprio"):
            self.kind = "salu"
        elif op.startswith("s_cmp") or op.startswith("s_bitcmp"):
            self.kind = "salu"
            src = flat(R)
        elif op.startswith("s_"):
            self.kind = "salu"
            dst, src = flat(R[:1]), flat(R[1:])
            if "saveexec" in op:
                dst |= {("s", "exec")}
        elif op.startswith("v_"):
            base = op.replace("_e32", "").replace("_e64", "")
            self.kind = "trans" if base in TRANS else "valu"
            dst, src = flat(R[:1]), flat(R[1:])
            if "permlane" in op and "swap" in op:
                dst, src = flat(R[:2]), flat(R[:2])
            if op.startswith("v_fmac") or op.startswith("v_dot2c") or op.startswith("v_pk_fmac"):
                src |= dst
            if op.startswith("v_add_co") or op.startswith("v_addc_co"):
                dst, src = flat(R[:2]), flat(R[2:])
            if op.startswith("v_cndmask") and len(ops) == 3:
                src |= {("s", "vcc")}
        else:
            raise ValueError("unknown instruction: " + t)
        self.dst, self.src = dst, src


class Wait:
    kind = "wait"

    def __init__(self, vm=(), lg=(), vm0=False, lg0=False):
        self.vm, self.lg, self.vm0, self.lg0 = list(vm), list(lg), vm0, lg0


class Drained:
    kind = "drained"

    def __init__(self, vm=True, lg=True):
        self.vm, self.lg = vm, lg


class Group:
    kind = "group"

    def __init__(self, items):
        self.items = list(items)


class Mark:
    kind = "mark"

    def __init__(self, name=None, limit=None, at_least=None, force=None, until=None):
        self.name, self.limit, self.at_least, self.force, self.until = name, limit, at_least, force, until


class Passed(set):
    def __contains__(self, key):
        if isinstance(key, tuple):
            return all(set.__contains__(self, k) for k in key)
        return set.__contains__(self, key)


class Bg:
    def __init__(self, seq, cls, after=None, prio=0):
        self.seq, self.cls, self.after, self.done, self.prio = seq, cls, after, False, prio
        self.ins = [i for i in flatten(seq.items) if isinstance(i, Ins)]
        for i in self.ins:
            if i.kind in ("vld", "vst", "dma"):
                i.note = cls


def flatten(items):
    out = []
    for it in items:
        if it.kind == "group":
            out.extend(flatten(it.items))
        else:
            out.append(it)
    return out


class Seq:
    def __init__(self):
        self.items = []

    def atomic(self, other):
        self.items.append(Group(other.items))

    def mark(self, name=None, limit=None, at_least=None, force=None, until=None):
        self.items.append(Mark(name, limit, at_least, force, until))

    def __call__(self, text, count=True):
        last = None
        for line in text.strip().split("\n"):
            line = line.strip()
            if not line:
                continue
            last = Ins(line, count)
            self.items.append(last)
        return last

    def wait(self, vm=(), lg=(), vm0=False, lg0=False):
        if isinstance(vm, Ins):
            vm = [vm]
        if isinstance(lg, Ins):
            lg = [lg]
        self.items.append(Wait(vm, lg, vm0, lg0))

    def drained(self, vm=True, lg=True):
        self.items.append(Drained(vm, lg))

    def extend(self, other):
        self.items.extend(other.items)

    def groups(self):
        out, cur = [], []
        for it in self.items:
            cur.append(it)
            if it.kind in ("salu", "wait", "meta", "mark"):
                continue
            out.append(cur)
            cur = []
        if cur:
            out.append(cur)
        return out


def weave(fg, plan, kinds=("mfma32", "mfma16")):
    out = Seq()
    plan = sorted(enumerate(plan), key=lambda e: (e[1][0], e[0]))
    plan = [e[1] for e in plan]
    gi, n = 0, 0
    while gi < len(plan) and plan[gi][0] <= 0:
        out.extend(plan[gi][1])
        gi += 1
    for it in fg.items:
        out.items.append(it)
        if it.kind in kinds:
            n += 1
            while gi < len(plan) and plan[gi][0] <= n:
                out.extend(plan[gi][1])
                gi += 1
    for _, g in plan[gi:]:
        out.extend(g)
    return out


def spread(groups, first, last):
    n = len(groups)
    return [(first + (last - first) * i // max(n - 1, 1), g) for i, g in enumerate(groups)]


def cost(items):
    c = 0
    for it in flatten(items):
        if it.kind == "trans":
            c += 2
        elif it.kind in ("mark", "meta", "label", "drained"):
            c += 0
        elif isinstance(it, Ins) and not it.count:
            c += 0
        else:
            c += 1
    return c


def fill(fg, streams, fixed=()):
    caps, n = {}, 0
    for it in fg.items:
        if it.kind in ("mfma32", "mfma16"):
            n += 1
            caps[n] = 5.0 if it.kind == "mfma32" else 1.2
        elif n:
            caps[n] -= cost([it])
    for pos, g in fixed:
        if pos in caps:
            caps[pos] -= min(cost(g.items), 6)
    plan = list(fixed)
    for first, last, groups in streams:
        idx = [i for i in range(first, last + 1) if i in caps]
        w = [max(caps[i], 0.15) for i in idx]
        total, need = sum(w), sum(cost(g.items) for g in groups)
        acc, done, gi = 0.0, 0, 0
        for i, wi in zip(idx, w):
            acc += wi * need / total
            used = 0
            while gi < len(groups) and (done + cost(groups[gi].items) / 2.0 <= acc or i == idx[-1]):
                plan.append((i, groups[gi]))
                done += cost(groups[gi].items)
                used += cost(groups[gi].items)
                gi += 1
            caps[i] -= used
    return plan


def split(seq):
    out = []
    for g in seq.groups():
        q = Seq()
        q.items = list(g)
        out.append(q)
    return out


VM_KINDS = ("vld", "vst", "dma")
LG_KINDS = ("dsr", "dsw")


def resolve_waits(items):
    out = []
    vm_n, vm_done = 0, 0
    lg_n, lg_done = 0, 0
    smem_pending = False
    pend = {}

    def emit(need_vm, need_lg, lg0=False):
        nonlocal vm_done, lg_done, smem_pending
        parts = []
        if need_vm > vm_done:
            n = min(vm_n - need_vm, 63)
            parts.append(f"vmcnt({n})")
            vm_done = vm_n - n
        if lg0 or (need_lg > lg_done and smem_pending):
            if smem_pending or lg_done < lg_n:
                parts.append("lgkmcnt(0)")
            lg_done, smem_pending = lg_n, False
        elif need_lg > lg_done:
            n = min(lg_n - need_lg, 15)
            parts.append(f"lgkmcnt({n})")
            lg_done = lg_n - n
        if parts:
            out.append(Ins("s_waitcnt " + " ".join(parts)))

    for it in items:
        if it.kind == "wait":
            nv = vm_n if it.vm0 else max([t.vm for t in it.vm], default=0)
            nl = max([t.lg for t in it.lg], default=0)
            if it.vm0:
                parts = ["vmcnt(0)"]
                vm_done = vm_n
                if it.lg0:
                    parts.append("lgkmcnt(0)")
                    lg_done, smem_pending = lg_n, False
                out.append(Ins("s_waitcnt " + " ".join(parts)))
                if not it.lg0:
                    emit(0, nl)
            else:
                emit(nv, nl, it.lg0)
            continue
        if it.kind == "drained":
            if it.vm:
                vm_done = vm_n
            if it.lg:
                lg_done, smem_pending = lg_n, False
            continue
        if it.kind not in ("label", "meta"):
            nv, nl, l0 = 0, 0, False
            for r in it.src | it.dst:
                p = pend.get(r)
                if p is None:
                    continue
                if p.kind == "vld":
                    if p.count:
                        nv = max(nv, p.vm)
                elif p.kind == "dsr" and p.count:
                    if it.kind == "dsr" and r in it.dst and r not in it.src:
                        continue
                    nl = max(nl, p.lg)
                elif p.kind == "smem" and smem_pending:
                    l0 = True
            emit(nv, nl, l0)
        out.append(it)
        if it.kind in VM_KINDS:
            if it.count:
                vm_n += 1
            it.vm = vm_n
        if it.kind in LG_KINDS:
            if it.count:
                lg_n += 1
            it.lg = lg_n
        if it.kind == "smem":
            smem_pending = True
        if it.kind in ("vld", "dsr", "smem"):
            for r in it.dst:
                pend[r] = it
        else:
            for r in it.dst:
                pend.pop(r, None)
    return out


def states(it):
    if it.kind == "nop":
        return int(it.text.split()[1]) + 1
    if it.kind in ("label", "meta"):
        return 0
    return 1


def is_valu(it):
    return it.kind in ("valu", "trans")


def need_gap(p, c):
    g = 0
    pv = {r for r in p.dst if r[0] in "va"}
    ps = {r for r in p.dst if r[0] == "s"}
    c_mfma = c.kind in ("mfma32", "mfma16")
    if is_valu(p):
        if c_mfma and pv & c.src:
            g = max(g, 2)
        if ps & c.src and c.kind in VM_KINDS:
            g = max(g, 5)
        if ps & c.src and is_valu(c):
            g = max(g, 4 if ("readlane" in c.op or "writelane" in c.op) else 2)
        if pv & c.src and ("readfirstlane" in c.op or "readlane" in c.op):
            g = max(g, 1)
        if pv & c.src and ("permlane" in c.op or "dpp" in c.text or "row_" in c.text):
            g = max(g, 2)
        if p.kind == "trans" and pv & c.src and c.kind == "valu":
            g = max(g, 1)
        if p.op.startswith("v_dot") and pv & (c.src | c.dst):
            same_acc = c.op == p.op and not (pv & (c.src - _dot_acc(c)))
            if not same_acc:
                g = max(g, 3)
        if ("s", "exec") in p.dst and c_mfma:
            g = max(g, 4)
    if p.kind == "salu" and ("s", "m0") in p.dst and c.kind == "dma":
        g = max(g, 1)
    if p.kind in ("mfma32", "mfma16"):
        big = p.kind == "mfma32"
        if c_mfma:
            if pv & (c.src - c.srcc):
                g = max(g, 12 if big else 8)
            if pv & c.srcc and not (c.srcc == pv and c.kind == p.kind):
                g = max(g, 10 if big else 6)
            if pv & c.dst and not (pv & c.srcc):
                g = max(g, 12 if big else 8)
        else:
            if pv & (c.src | c.dst):
                g = max(g, 12 if big else 8)
            if is_valu(c) and p.srcc & c.dst:
                g = max(g, 7 if big else 3)
    if p.wide and p.wide & c.dst:
        g = max(g, 2)
    return g


def _dot_acc(c):
    ops = split_ops(c.text.split(None, 1)[1])
    if c.op.startswith("v_dot2c"):
        return set(regs_of(ops[0]))
    return set(regs_of(ops[3].split()[0])) if len(ops) > 3 else set()


def pad_hazards(items):
    out = []
    for it in items:
        if it.kind not in ("label", "meta", "nop"):
            need, dist = 0, 0
            for p in reversed(out):
                if dist >= 12:
                    break
                if p.kind not in ("label", "meta", "nop", "rawwait"):
                    need = max(need, need_gap(p, it) - dist)
                dist += states(p)
            if need > 0:
                out.append(Ins(f"s_nop {need - 1}"))
        out.append(it)
    return out


CLASSES = {"l2": (70, 350), "mall": (100, 900), "hand": (90, 800), "cold": (170, 1400), "st": (30, 800),
           "few": (20, 700), "fewcold": (60, 1500), None: (70, 500)}
DEPTH = 10


def schedule(seq, bgs, classes=None, log=None, split_bg=True, DEPTH=10):
    cl = dict(CLASSES)
    cl.update(classes or {})
    out = Seq()
    st = dict(t=0, pipe=0, vm_last=0, ds_last=0, limit=700)
    vm_done, vm_ins, ready, fin, passed = [], [], {}, {}, Passed([None])
    owner = {}
    for b in bgs:
        for i in b.ins:
            owner[id(i)] = b
    pending_dst = {}

    def refresh():
        pending_dst.clear()
        for b in bgs:
            if not b.done and b.after in passed:
                for i in b.ins:
                    if i.kind == "vld":
                        for r in i.dst:
                            pending_dst.setdefault(r, b)

    def force(b):
        for x in bgs:
            if not x.done and x.after in passed and x.prio == b.prio:
                issue(x)
            if x is b:
                break
        assert b.done, "background group needed before its mark"

    def run(it):
        t = st["t"]
        if it.kind == "mark":
            if it.name:
                passed.add(it.name)
                if log is not None:
                    log.append((it.name, t))
                refresh()
            if it.limit is not None:
                st["limit"] = it.limit
            if it.at_least is not None:
                st["t"] = max(t, fin.get(it.at_least[0], 0) + it.at_least[1])
            fin[it.name] = st["t"]
            if it.force is not None:
                for x in bgs:
                    if not x.done and x.after in passed and x.prio <= it.force:
                        issue(x)
            return
        if it.kind == "wait":
            for k in it.vm + it.lg:
                t = max(t, fin.get(id(k), 0))
            if it.vm0:
                t = max(t, st["vm_last"])
            if it.lg0:
                t = max(t, st["ds_last"])
            st["t"] = t + 4
            return
        if it.kind in ("label", "meta", "drained", "branch", "rawwait"):
            st["t"] = t + (4 if it.kind == "branch" else 0)
            return
        if not it.count:
            st["t"] = t + 4
            return
        for r in it.src:
            t = max(t, ready.get(r, 0))
        k = it.kind
        if k in ("mfma32", "mfma16"):
            t = max(t, st["pipe"])
            d = 32 if k == "mfma32" else 16
            st["pipe"] = t + d
            for r in it.dst:
                ready[r] = 0
            t += 8
        elif k in ("valu", "trans"):
            if it.op.startswith("v_pk_") or it.op.startswith("v_dot"):
                t = max(t, st["pipe"] + 12)
            t += 8 if k == "trans" else 5
        elif k in ("dsr", "dsw"):
            c = 52 if it.op == "ds_write_b128" else (16 if "b128" in it.op or "read2" in it.op or k == "dsw" else 8)
            st["ds_last"] = max(st["ds_last"] + c, t + 90)
            fin[id(it)] = st["ds_last"]
            for r in it.dst:
                ready[r] = st["ds_last"]
            t += 4
        elif k in ("vld", "vst", "dma"):
            if len(vm_done) >= DEPTH:
                t = max(t, vm_done[-DEPTH])
            s, lat = cl[it.note if it.note else ("st" if k == "vst" else None)]
            st["vm_last"] = max(st["vm_last"] + s, t + lat)
            vm_done.append(st["vm_last"])
            vm_ins.append(it)
            fin[id(it)] = st["vm_last"]
            for r in it.dst:
                ready[r] = st["vm_last"]
            t += 22
        elif k == "barrier":
            t += 50
        elif k == "smem":
            t += 4
        elif k == "nop":
            t += 4 * states(it)
        else:
            t += 4
        st["t"] = t

    backlog = []

    def emit_piece():
        piece = backlog.pop(0)
        out.items.append(Group(piece))
        for i in flatten(piece):
            run(i)

    def flush():
        while backlog:
            emit_piece()

    def issue(b, lazy=False):
        flush()
        b.done = True
        if log is not None:
            log.append((f"+{b.prio}", st["t"]))
        pieces = b.seq.groups()
        if lazy and pieces[0][0].kind == "salu" and len(pieces[0]) > 2:
            pieces = [pieces[0][:-1], pieces[0][-1:]] + pieces[1:]
        backlog.extend(pieces)
        if lazy:
            emit_piece()
        else:
            flush()
        refresh()

    def needs(items):
        for it in items:
            if it.kind == "wait":
                for k in it.vm:
                    b = owner.get(id(k))
                    if b and not b.done:
                        force(b)
            elif isinstance(it, Ins):
                for r in it.src:
                    b = pending_dst.get(r)
                    if b and not b.done:
                        force(b)

    def candidate(now):
        outstanding = sum(1 for x in vm_done[-DEPTH:] if x > now)
        seen = set()
        for nxt in bgs:
            if nxt.done or nxt.after not in passed or nxt.prio in seen:
                continue
            seen.add(nxt.prio)
            n = sum(1 for i in nxt.ins if i.kind in ("vld", "vst", "dma"))
            sv, lat = cl[nxt.cls]
            if outstanding + n > DEPTH or st["vm_last"] + n * sv - now > st["limit"]:
                return None
            if lat + (n - 1) * sv > st["limit"]:
                continue
            return nxt
        return None

    def stall_until(items):
        t = st["t"]
        for it in items:
            if it.kind == "wait":
                for k in it.vm:
                    t = max(t, fin.get(id(k), 0))
            elif isinstance(it, Ins) and it.kind not in ("salu", "label", "meta"):
                for r in it.src:
                    t = max(t, ready.get(r, 0))
                break
        return t

    for g in seq.groups():
        items = flatten(g)
        skip = False
        for it in items:
            if it.kind == "mark":
                run(it)
        if backlog:
            pend_regs = set(r for pc in backlog for i in flatten(pc) if isinstance(i, Ins) for r in i.dst)
            pend_ids = set(id(i) for pc in backlog for i in flatten(pc))
            clash = False
            for it in items:
                if it.kind == "wait":
                    clash |= it.vm0 or any(id(k) in pend_ids for k in it.vm)
                elif it.kind == "mark":
                    clash = True
                elif isinstance(it, Ins):
                    clash |= bool((it.src | it.dst) & pend_regs) or it.kind in ("dma", "barrier", "branch")
            if clash:
                flush()
        needs(items)
        hold = max([it.until for it in items if it.kind == "mark" and it.until] + [0])
        until = max(stall_until(items), hold)
        if until > st["t"] + 60:
            flush()
        while until > st["t"] + 60:
            step = None
            for done, ins in list(zip(vm_done, vm_ins))[-DEPTH:]:
                if st["t"] < done < until - 40 and candidate(done):
                    step = (done, ins)
                    break
            c = candidate(st["t"])
            if c:
                issue(c)
            elif step:
                w = Wait(vm=[step[1]])
                out.items.append(w)
                run(w)
                issue(candidate(st["t"]))
            else:
                break
        st["t"] = max(st["t"], hold)
        out.items.append(Group([x for x in g if x.kind != "mark"]))
        for it in items:
            if it.kind == "mark":
                continue
            if it.kind == "label" and skip == it.text[:-1]:
                skip = False
            if not skip:
                run(it)
            if it.kind == "branch" and it.op == "s_cbranch_vccz":
                skip = it.text.split()[1]
        last = [x for x in items if isinstance(x, Ins)]
        in_mfma = st["pipe"] > st["t"]
        if backlog:
            if (last and last[-1].kind in ("mfma32", "mfma16")) or not in_mfma:
                emit_piece()
            continue
        if in_mfma and split_bg:
            if last and last[-1].kind in ("mfma32", "mfma16"):
                c = candidate(st["t"])
                if c:
                    issue(c, lazy=True)
            continue
        while True:
            c = candidate(st["t"])
            if c is None:
                break
            issue(c)
    flush()
    assert all(b.done for b in bgs), "unissued background groups"
    if log is not None:
        log.append(("end", st["t"]))
    return out


def finalize(seq):
    items = [i for i in flatten(seq.items) if i.kind != "mark"]
    items = pad_hazards(resolve_waits(items))
    lines = []
    for it in items:
        if it.kind == "label":
            lines.append(it.text)
        else:
            lines.append("    " + it.text)
    return "\n".join(lines) + "\n", items
```

```python
import re

REG_RE = re.compile(r"^(-|\|)?([vas])(\d+)\|?$")
RNG_RE = re.compile(r"^(-|\|)?([vas])\[(\d+):(\d+)\]\|?$")
TRANS = ("v_exp_f32", "v_log_f32", "v_rcp_f32", "v_rsq_f32", "v_sqrt_f32", "v_sin_f32", "v_cos_f32")


def regs_of(tok):
    tok = tok.strip()
    m = REG_RE.match(tok)
    if m:
        return [(m.group(2), int(m.group(3)))]
    m = RNG_RE.match(tok)
    if m:
        return [(m.group(2), i) for i in range(int(m.group(3)), int(m.group(4)) + 1)]
    if tok == "vcc":
        return [("s", "vcc")]
    if tok in ("exec", "exec_hi", "exec_lo"):
        return [("s", "exec")]
    if tok == "m0":
        return [("s", "m0")]
    return []


def split_ops(s):
    out, depth, cur = [], 0, ""
    for ch in s:
        if ch == "[":
            depth += 1
        if ch == "]":
            depth -= 1
        if ch == "," and depth == 0:
            out.append(cur.strip())
            cur = ""
        else:
            cur += ch
    if cur.strip():
        out.append(cur.strip())
    return out


class Ins:
    __slots__ = ("text", "op", "kind", "dst", "src", "srcc", "count", "vm", "lg", "wide", "note")

    def __init__(self, text, count=True):
        self.text = text.strip()
        self.count = count
        self.vm = None
        self.lg = None
        self.srcc = set()
        self.wide = set()
        self.note = None
        t = self.text
        if t.endswith(":"):
            self.op, self.kind, self.dst, self.src = t, "label", set(), set()
            return
        if t.startswith(";") or t.startswith("."):
            self.op, self.kind, self.dst, self.src = t, "meta", set(), set()
            return
        parts = t.split(None, 1)
        op = parts[0]
        self.op = op
        rest = parts[1] if len(parts) > 1 else ""
        ops = split_ops(rest)
        mods = ""
        if ops:
            last = ops[-1].split(None, 1)
            ops[-1] = last[0]
            mods = last[1] if len(last) > 1 else ""
        R = [regs_of(o) for o in ops]
        flat = lambda xs: set(r for x in xs for r in x)
        dst, src = set(), set()
        if op.startswith("v_mfma"):
            self.kind = "mfma32" if "32x32" in op else "mfma16"
            dst, src = flat(R[:1]), flat(R[1:])
            self.srcc = flat(R[3:4])
        elif op.startswith("buffer_load") or op.startswith("global_load"):
            if re.search(r"\blds\b", mods):
                self.kind = "dma"
                src = flat(R) | {("s", "m0")}
            else:
                self.kind = "vld"
                dst, src = flat(R[:1]) - {("a", 255)}, flat(R[1:])
        elif op.startswith("buffer_store"):
            self.kind = "vst"
            src = flat(R)
            if "x4" in op or "x3" in op:
                self.wide = flat(R[:1])
        elif op.startswith("global_store"):
            self.kind = "vst"
            src = flat(R)
            if "x4" in op or "x3" in op:
                self.wide = flat(R[1:2])
        elif op.startswith("ds_read") or op.startswith("ds_bpermute"):
            self.kind = "dsr"
            dst, src = flat(R[:1]), flat(R[1:])
        elif op.startswith("ds_write"):
            self.kind = "dsw"
            src = flat(R)
        elif op.startswith("s_load") or op.startswith("s_memtime") or op.startswith("s_memrealtime"):
            self.kind = "smem"
            dst, src = flat(R[:1]), flat(R[1:])
        elif op == "s_waitcnt":
            self.kind = "rawwait"
        elif op == "s_barrier":
            self.kind = "barrier"
        elif op == "s_nop":
            self.kind = "nop"
        elif op.startswith("s_cbranch") or op == "s_branch":
            self.kind = "branch"
            if "vcc" in op:
                src = {("s", "vcc")}
        elif op in ("s_endpgm", "s_sleep", "s_setprio"):
            self.kind = "salu"
        elif op.startswith("s_cmp") or op.startswith("s_bitcmp"):
            self.kind = "salu"
            src = flat(R)
        elif op.startswith("s_"):
            self.kind = "salu"
            dst, src = flat(R[:1]), flat(R[1:])
            if "saveexec" in op:
                dst |= {("s", "exec")}
        elif op.startswith("v_"):
            base = op.replace("_e32", "").replace("_e64", "")
            self.kind = "trans" if base in TRANS else "valu"
            dst, src = flat(R[:1]), flat(R[1:])
            if "permlane" in op and "swap" in op:
                dst, src = flat(R[:2]), flat(R[:2])
            if op.startswith("v_fmac") or op.startswith("v_dot2c") or op.startswith("v_pk_fmac"):
                src |= dst
            if op.startswith("v_add_co") or op.startswith("v_addc_co"):
                dst, src = flat(R[:2]), flat(R[2:])
            if op.startswith("v_cndmask") and len(ops) == 3:
                src |= {("s", "vcc")}
        else:
            raise ValueError("unknown instruction: " + t)
        self.dst, self.src = dst, src


class Wait:
    kind = "wait"

    def __init__(self, vm=(), lg=(), vm0=False, lg0=False):
        self.vm, self.lg, self.vm0, self.lg0 = list(vm), list(lg), vm0, lg0


class Drained:
    kind = "drained"

    def __init__(self, vm=True, lg=True):
        self.vm, self.lg = vm, lg


class Group:
    kind = "group"

    def __init__(self, items):
        self.items = list(items)


class Mark:
    kind = "mark"

    def __init__(self, name=None, limit=None, at_least=None, force=None, until=None, depth=None):
        self.name, self.limit, self.at_least, self.force, self.until = name, limit, at_least, force, until
        self.depth = depth


class Passed(set):
    def __contains__(self, key):
        if isinstance(key, tuple):
            return all(set.__contains__(self, k) for k in key)
        return set.__contains__(self, key)


class Bg:
    def __init__(self, seq, cls, after=None, prio=0):
        self.seq, self.cls, self.after, self.done, self.prio = seq, cls, after, False, prio
        self.ins = [i for i in flatten(seq.items) if isinstance(i, Ins)]
        for i in self.ins:
            if i.kind in ("vld", "vst", "dma"):
                i.note = cls


def flatten(items):
    out = []
    for it in items:
        if it.kind == "group":
            out.extend(flatten(it.items))
        else:
            out.append(it)
    return out


class Seq:
    def __init__(self):
        self.items = []

    def atomic(self, other):
        self.items.append(Group(other.items))

    def mark(self, name=None, limit=None, at_least=None, force=None, until=None, depth=None):
        self.items.append(Mark(name, limit, at_least, force, until, depth))

    def __call__(self, text, count=True):
        last = None
        for line in text.strip().split("\n"):
            line = line.strip()
            if not line:
                continue
            last = Ins(line, count)
            self.items.append(last)
        return last

    def wait(self, vm=(), lg=(), vm0=False, lg0=False):
        if isinstance(vm, Ins):
            vm = [vm]
        if isinstance(lg, Ins):
            lg = [lg]
        self.items.append(Wait(vm, lg, vm0, lg0))

    def drained(self, vm=True, lg=True):
        self.items.append(Drained(vm, lg))

    def extend(self, other):
        self.items.extend(other.items)

    def groups(self):
        out, cur = [], []
        for it in self.items:
            cur.append(it)
            if it.kind in ("salu", "wait", "meta", "mark"):
                continue
            out.append(cur)
            cur = []
        if cur:
            out.append(cur)
        return out


def weave(fg, plan, kinds=("mfma32", "mfma16")):
    out = Seq()
    plan = sorted(enumerate(plan), key=lambda e: (e[1][0], e[0]))
    plan = [e[1] for e in plan]
    gi, n = 0, 0
    while gi < len(plan) and plan[gi][0] <= 0:
        out.extend(plan[gi][1])
        gi += 1
    for it in fg.items:
        out.items.append(it)
        if it.kind in kinds:
            n += 1
            while gi < len(plan) and plan[gi][0] <= n:
                out.extend(plan[gi][1])
                gi += 1
    for _, g in plan[gi:]:
        out.extend(g)
    return out


def spread(groups, first, last):
    n = len(groups)
    return [(first + (last - first) * i // max(n - 1, 1), g) for i, g in enumerate(groups)]


def cost(items):
    c = 0
    for it in flatten(items):
        if it.kind == "trans":
            c += 2
        elif it.kind in ("mark", "meta", "label", "drained"):
            c += 0
        elif isinstance(it, Ins) and not it.count:
            c += 0
        else:
            c += 1
    return c


def fill(fg, streams, fixed=(), gap=4):
    caps, n = {}, 0
    for it in fg.items:
        if it.kind in ("mfma32", "mfma16"):
            n += 1
            caps[n] = 5.0 if it.kind == "mfma32" else 1.2
        elif n:
            caps[n] -= cost([it])
    for pos, g in fixed:
        if pos in caps:
            caps[pos] -= min(cost(g.items), 6)
    plan = list(fixed)
    for first, last, groups in streams:
        idx = [i for i in range(first, last + 1) if i in caps]
        w = [max(caps[i], 0.15) for i in idx]
        total, need = sum(w), sum(cost(g.items) for g in groups)
        acc, done, gi = 0.0, 0, 0
        loaded = {}
        for i, wi in zip(idx, w):
            acc += wi * need / total
            used = 0
            while gi < len(groups) and (done + cost(groups[gi].items) / 2.0 <= acc or i == idx[-1]):
                ins = [x for x in flatten(groups[gi].items) if isinstance(x, Ins)]
                waits = [k for x in flatten(groups[gi].items) if x.kind == "wait" for k in x.lg]
                fresh = any(i - loaded.get(r, -99) < gap for x in ins if x.kind != "dsr" for r in x.src)
                fresh |= any(i - loaded.get(id(k), -99) < gap for k in waits)
                if fresh and i != idx[-1]:
                    break
                plan.append((i, groups[gi]))
                for x in ins:
                    if x.kind in ("dsr", "dsw"):
                        loaded[id(x)] = i
                        for r in x.dst:
                            loaded[r] = i
                done += cost(groups[gi].items)
                used += cost(groups[gi].items)
                gi += 1
            caps[i] -= used
    return plan


def split(seq):
    out = []
    for g in seq.groups():
        q = Seq()
        q.items = list(g)
        out.append(q)
    return out


VM_KINDS = ("vld", "vst", "dma")
LG_KINDS = ("dsr", "dsw")


def resolve_waits(items):
    out = []
    vm_n, vm_done = 0, 0
    lg_n, lg_done = 0, 0
    smem_pending = False
    pend = {}

    def emit(need_vm, need_lg, lg0=False):
        nonlocal vm_done, lg_done, smem_pending
        parts = []
        if need_vm > vm_done:
            n = min(vm_n - need_vm, 63)
            parts.append(f"vmcnt({n})")
            vm_done = vm_n - n
        if lg0 or (need_lg > lg_done and smem_pending):
            if smem_pending or lg_done < lg_n:
                parts.append("lgkmcnt(0)")
            lg_done, smem_pending = lg_n, False
        elif need_lg > lg_done:
            n = min(lg_n - need_lg, 15)
            parts.append(f"lgkmcnt({n})")
            lg_done = lg_n - n
        if parts:
            out.append(Ins("s_waitcnt " + " ".join(parts)))

    for it in items:
        if it.kind == "wait":
            nv = vm_n if it.vm0 else max([t.vm for t in it.vm], default=0)
            nl = max([t.lg for t in it.lg], default=0)
            if it.vm0:
                parts = ["vmcnt(0)"]
                vm_done = vm_n
                if it.lg0:
                    parts.append("lgkmcnt(0)")
                    lg_done, smem_pending = lg_n, False
                out.append(Ins("s_waitcnt " + " ".join(parts)))
                if not it.lg0:
                    emit(0, nl)
            else:
                emit(nv, nl, it.lg0)
            continue
        if it.kind == "drained":
            if it.vm:
                vm_done = vm_n
            if it.lg:
                lg_done, smem_pending = lg_n, False
            continue
        if it.kind not in ("label", "meta"):
            nv, nl, l0 = 0, 0, False
            for r in it.src | it.dst:
                p = pend.get(r)
                if p is None:
                    continue
                if p.kind == "vld":
                    if p.count:
                        nv = max(nv, p.vm)
                elif p.kind == "dsr" and p.count:
                    if it.kind == "dsr" and r in it.dst and r not in it.src:
                        continue
                    nl = max(nl, p.lg)
                elif p.kind == "smem" and smem_pending:
                    l0 = True
            emit(nv, nl, l0)
        out.append(it)
        if it.kind in VM_KINDS:
            if it.count:
                vm_n += 1
            it.vm = vm_n
        if it.kind in LG_KINDS:
            if it.count:
                lg_n += 1
            it.lg = lg_n
        if it.kind == "smem":
            smem_pending = True
        if it.kind in ("vld", "dsr", "smem"):
            for r in it.dst:
                pend[r] = it
        else:
            for r in it.dst:
                pend.pop(r, None)
    return out


def states(it):
    if it.kind == "nop":
        return int(it.text.split()[1]) + 1
    if it.kind in ("label", "meta"):
        return 0
    return 1


def is_valu(it):
    return it.kind in ("valu", "trans")


def need_gap(p, c):
    g = 0
    pv = {r for r in p.dst if r[0] in "va"}
    ps = {r for r in p.dst if r[0] == "s"}
    c_mfma = c.kind in ("mfma32", "mfma16")
    if is_valu(p):
        if c_mfma and pv & c.src:
            g = max(g, 2)
        if ps & c.src and c.kind in VM_KINDS:
            g = max(g, 5)
        if ps & c.src and is_valu(c):
            g = max(g, 4 if ("readlane" in c.op or "writelane" in c.op) else 2)
        if pv & c.src and ("readfirstlane" in c.op or "readlane" in c.op):
            g = max(g, 1)
        if pv & c.src and ("permlane" in c.op or "dpp" in c.text or "row_" in c.text):
            g = max(g, 2)
        if p.kind == "trans" and pv & c.src and c.kind == "valu":
            g = max(g, 1)
        if p.op.startswith("v_dot") and pv & (c.src | c.dst):
            same_acc = c.op == p.op and not (pv & (c.src - _dot_acc(c)))
            if not same_acc:
                g = max(g, 3)
        if ("s", "exec") in p.dst and c_mfma:
            g = max(g, 4)
    if p.kind == "salu" and ("s", "m0") in p.dst and c.kind == "dma":
        g = max(g, 1)
    if p.kind in ("mfma32", "mfma16"):
        big = p.kind == "mfma32"
        if c_mfma:
            if pv & (c.src - c.srcc):
                g = max(g, 12 if big else 8)
            if pv & c.srcc and not (c.srcc == pv and c.kind == p.kind):
                g = max(g, 10 if big else 6)
            if pv & c.dst and not (pv & c.srcc):
                g = max(g, 12 if big else 8)
        else:
            if pv & (c.src | c.dst):
                g = max(g, 12 if big else 8)
            if is_valu(c) and p.srcc & c.dst:
                g = max(g, 7 if big else 3)
    if p.wide and p.wide & c.dst:
        g = max(g, 2)
    return g


def _dot_acc(c):
    ops = split_ops(c.text.split(None, 1)[1])
    if c.op.startswith("v_dot2c"):
        return set(regs_of(ops[0]))
    return set(regs_of(ops[3].split()[0])) if len(ops) > 3 else set()


def pad_hazards(items):
    out = []
    for it in items:
        if it.kind not in ("label", "meta", "nop"):
            need, dist = 0, 0
            for p in reversed(out):
                if dist >= 12:
                    break
                if p.kind not in ("label", "meta", "nop", "rawwait"):
                    need = max(need, need_gap(p, it) - dist)
                dist += states(p)
            if need > 0:
                out.append(Ins(f"s_nop {need - 1}"))
        out.append(it)
    return out


CLASSES = {"l2": (70, 350), "mall": (100, 900), "hand": (90, 800), "cold": (170, 1400), "st": (30, 800),
           "few": (20, 700), "fewcold": (60, 1500), None: (70, 500)}
SMALL = 0.3


def weight(it):
    return SMALL if it.note in ("few", "fewcold") else 1.0


def schedule(seq, bgs, classes=None, log=None, split_bg=True, DEPTH=10):
    cl = dict(CLASSES)
    cl.update(classes or {})
    out = Seq()
    st = dict(t=0, pipe=0, vm_last=0, ds_last=0, limit=700, depth=DEPTH)
    vm_done, vm_ins, ready, fin, passed = [], [], {}, {}, Passed([None])
    owner = {}
    for b in bgs:
        for i in b.ins:
            owner[id(i)] = b
    pending_dst = {}

    def refresh():
        pending_dst.clear()
        for b in bgs:
            if not b.done and b.after in passed:
                for i in b.ins:
                    if i.kind == "vld":
                        for r in i.dst:
                            pending_dst.setdefault(r, b)

    def force(b):
        for x in bgs:
            if not x.done and x.after in passed and x.prio == b.prio:
                issue(x)
            if x is b:
                break
        assert b.done, "background group needed before its mark"

    def run(it):
        t = st["t"]
        if it.kind == "mark":
            if it.name:
                passed.add(it.name)
                if log is not None:
                    log.append((it.name, t))
                refresh()
            if it.limit is not None:
                st["limit"] = it.limit
            if it.depth is not None:
                st["depth"] = it.depth
            if it.at_least is not None:
                st["t"] = max(t, fin.get(it.at_least[0], 0) + it.at_least[1])
            fin[it.name] = st["t"]
            if it.force is not None:
                for x in bgs:
                    if not x.done and x.after in passed and x.prio <= it.force:
                        issue(x)
            return
        if it.kind == "wait":
            for k in it.vm + it.lg:
                t = max(t, fin.get(id(k), 0))
            if it.vm0:
                t = max(t, st["vm_last"])
            if it.lg0:
                t = max(t, st["ds_last"])
            st["t"] = t + 4
            return
        if it.kind in ("label", "meta", "drained", "branch", "rawwait"):
            st["t"] = t + (4 if it.kind == "branch" else 0)
            return
        if not it.count:
            st["t"] = t + 4
            return
        for r in it.src:
            t = max(t, ready.get(r, 0))
        k = it.kind
        if k in ("mfma32", "mfma16"):
            t = max(t, st["pipe"])
            d = 32 if k == "mfma32" else 16
            st["pipe"] = t + d
            for r in it.dst:
                ready[r] = 0
            t += 8
        elif k in ("valu", "trans"):
            if it.op.startswith("v_pk_") or it.op.startswith("v_dot"):
                t = max(t, st["pipe"] + 12)
            t += 8 if k == "trans" else 5
        elif k in ("dsr", "dsw"):
            c = 52 if it.op == "ds_write_b128" else (16 if "b128" in it.op or "read2" in it.op or k == "dsw" else 8)
            st["ds_last"] = max(st["ds_last"] + c, t + 90)
            fin[id(it)] = st["ds_last"]
            for r in it.dst:
                ready[r] = st["ds_last"]
            t += 4
        elif k in ("vld", "vst", "dma"):
            acc_w = weight(it)
            for d, x in zip(reversed(vm_done), reversed(vm_ins)):
                if d <= t:
                    break
                acc_w += weight(x)
                if acc_w > st["depth"] + 0.5:
                    t = max(t, d)
                    break
            s, lat = cl[it.note if it.note else ("st" if k == "vst" else None)]
            st["vm_last"] = max(st["vm_last"] + s, t + lat)
            vm_done.append(st["vm_last"])
            vm_ins.append(it)
            fin[id(it)] = st["vm_last"]
            for r in it.dst:
                ready[r] = st["vm_last"]
            t += 22
        elif k == "barrier":
            t += 50
        elif k == "smem":
            t += 4
        elif k == "nop":
            t += 4 * states(it)
        else:
            t += 4
        st["t"] = t

    backlog = []

    def emit_piece():
        piece = backlog.pop(0)
        out.items.append(Group(piece))
        for i in flatten(piece):
            run(i)

    def flush():
        while backlog:
            emit_piece()

    def issue(b, lazy=False):
        flush()
        b.done = True
        if log is not None:
            log.append((f"+{b.prio}", st["t"]))
        pieces = b.seq.groups()
        if lazy and pieces[0][0].kind == "salu" and len(pieces[0]) > 2:
            pieces = [pieces[0][:-1], pieces[0][-1:]] + pieces[1:]
        backlog.extend(pieces)
        if lazy:
            emit_piece()
        else:
            flush()
        refresh()

    def needs(items):
        for it in items:
            if it.kind == "wait":
                for k in it.vm:
                    b = owner.get(id(k))
                    if b and not b.done:
                        force(b)
            elif isinstance(it, Ins):
                for r in it.src:
                    b = pending_dst.get(r)
                    if b and not b.done:
                        force(b)

    def candidate(now):
        outstanding = 0
        for d, x in zip(reversed(vm_done), reversed(vm_ins)):
            if d <= now:
                break
            outstanding += weight(x)
        seen = set()
        for nxt in bgs:
            if nxt.done or nxt.after not in passed or nxt.prio in seen:
                continue
            seen.add(nxt.prio)
            n = sum(1 for i in nxt.ins if i.kind in ("vld", "vst", "dma"))
            sv, lat = cl[nxt.cls]
            wn = sum(weight(i) for i in nxt.ins if i.kind in ("vld", "vst", "dma"))
            if outstanding + wn > st["depth"] or st["vm_last"] + n * sv - now > st["limit"]:
                return None
            if lat + (n - 1) * sv > st["limit"]:
                continue
            return nxt
        return None

    def stall_until(items):
        t = st["t"]
        for it in items:
            if it.kind == "wait":
                for k in it.vm:
                    t = max(t, fin.get(id(k), 0))
            elif isinstance(it, Ins) and it.kind not in ("salu", "label", "meta"):
                for r in it.src:
                    t = max(t, ready.get(r, 0))
                break
        return t

    for g in seq.groups():
        items = flatten(g)
        skip = False
        for it in items:
            if it.kind == "mark":
                run(it)
        if backlog:
            pend_regs = set(r for pc in backlog for i in flatten(pc) if isinstance(i, Ins) for r in i.dst)
            pend_ids = set(id(i) for pc in backlog for i in flatten(pc))
            clash = False
            for it in items:
                if it.kind == "wait":
                    clash |= it.vm0 or any(id(k) in pend_ids for k in it.vm)
                elif it.kind == "mark":
                    clash = True
                elif isinstance(it, Ins):
                    clash |= bool((it.src | it.dst) & pend_regs) or it.kind in ("dma", "barrier", "branch")
            if clash:
                flush()
        needs(items)
        hold = max([it.until for it in items if it.kind == "mark" and it.until] + [0])
        until = max(stall_until(items), hold)
        if until > st["t"] + 60:
            flush()
        while until > st["t"] + 60:
            step = None
            for done, ins in list(zip(vm_done, vm_ins))[-2 * DEPTH:]:
                if st["t"] < done < until - 40 and candidate(done):
                    step = (done, ins)
                    break
            c = candidate(st["t"])
            if c:
                issue(c)
            elif step:
                w = Wait(vm=[step[1]])
                out.items.append(w)
                run(w)
                issue(candidate(st["t"]))
            else:
                break
        st["t"] = max(st["t"], hold)
        out.items.append(Group([x for x in g if x.kind != "mark"]))
        for it in items:
            if it.kind == "mark":
                continue
            if it.kind == "label" and skip == it.text[:-1]:
                skip = False
            if not skip:
                run(it)
            if it.kind == "branch" and it.op == "s_cbranch_vccz":
                skip = it.text.split()[1]
        last = [x for x in items if isinstance(x, Ins)]
        in_mfma = st["pipe"] > st["t"]
        if backlog:
            if (last and last[-1].kind in ("mfma32", "mfma16")) or not in_mfma:
                emit_piece()
            continue
        if in_mfma and split_bg:
            if last and last[-1].kind in ("mfma32", "mfma16"):
                c = candidate(st["t"])
                if c:
                    issue(c, lazy=True)
            continue
        while True:
            c = candidate(st["t"])
            if c is None:
                break
            issue(c)
    flush()
    assert all(b.done for b in bgs), "unissued background groups"
    if log is not None:
        log.append(("end", st["t"]))
    return out


def merge_waits(items):
    out = []
    for it in items:
        if it.kind == "rawwait" and out and out[-1].kind == "rawwait":
            cnt = {}
            for w in (out[-1], it):
                for k, v in re.findall(r"(vmcnt|lgkmcnt)\((\d+)\)", w.text):
                    cnt[k] = min(cnt.get(k, 99), int(v))
            out[-1] = Ins("s_waitcnt " + " ".join(f"{k}({v})" for k, v in cnt.items()))
        else:
            out.append(it)
    return out


def finalize(seq):
    items = [i for i in flatten(seq.items) if i.kind != "mark"]
    items = pad_hazards(merge_waits(resolve_waits(items)))
    lines = []
    for it in items:
        if it.kind == "label":
            lines.append(it.text)
        else:
            lines.append("    " + it.text)
    return "\n".join(lines) + "\n", items
```

```python
import math
import struct
import sys

from asmdsl import Seq, Bg, finalize, schedule, weave, spread, split, fill

NAME = "gated_mix__ssm_conv_h3__mixer_s_mlp__prompt"

FLAG0, FLAG1, WS_EPOCH = 0x0, 0x20000, 0x40000
WS_H, WS_X1, WS_H2, WS_KVT, WS_YT = 0x100000, 0x300000, 0x500000, 0xC00000, 0xE00000
WS_STATS, WS_GATE, WS_STAMP = 0x1000000, 0x1080000, 0x1100000
WS_SIZE = 0x1200000

R0, R1, R2, R3, R4 = 0, 32768, 65536, 98304, 131072
KB, VB, A1R = R4, R4 + 9216, R4 + 17408
ST = R4 + 28672
ST_STAT, ST_CS, ST_CS3 = ST, ST + 1024, ST + 1536
KCOPY, KCH = 4288, 8576
CK, CU, UCH = R4, R4 + 17152, 4928
EX2, EXC = R2 + 12288, R4
YB = R4
LDS_SIZE = 163840

sX, sK, sV, sSK, sW1, sW2, sW3, sW4, sOUT, sWS, sDBG = [f"s[{4 + 4 * i}:{7 + 4 * i}]" for i in range(11)]
pSH, pD, pG = "s[48:49]", "s[50:51]", "s[52:53]"
sw, sth, skh, snh, sc, sj, sm, ssc = [f"s{i}" for i in range(54, 62)]
srot, sja, sEp, sOnes, sHi = "s62", "s63", "s64", "s65", "s66"
sOneLo, sOneHi = "s44", "s45"
sT0, sT1, sT2, sT3, sCnt = "s67", "s68", "s69", "s70", "s71"
sU = [f"s{i}" for i in range(72, 79)]
sFlag, sPriv = "s79", "s80"
sWsrc, sWlds, sW3b, sB, sC, sD, sE, sOob = [f"s{i}" for i in range(81, 89)]
sR = ["s46", "s47", "s3", "s95"]
sH2st, sH2fl, sH2ld, sX1ld, sStld = [f"s{i}" for i in range(89, 94)]
sj2 = "s94"
sYfl, sYld, sYlds, sGld = "s8", "s9", "s10", "s11"
sQ = ["s12", "s13", "s14", "s15"]
sV4 = ["s20", "s21", "s22", "s23"]

vL, vL16, vTrX, vTrY, vTr0, vWs1, vWs, vW3s = [f"v{i}" for i in range(1, 9)]
vW3s1 = "v0"
vXs = [f"v{i}" for i in range(9, 13)]
vXr = [f"v{i}" for i in range(13, 17)]
vPoll, vP2, vZero, vCsA = "v17", "v18", "v19", "v20"
vT = [f"v{i}" for i in range(21, 27)] + ["v253"]
V_KK, V_SM = 28, 30
V_XRES, V_X1P = 32, 40
V_B, V_ACC, V_A, V_TMP = 48, 112, 176, 208
V_ONES = 244
V_SSM = 232
vPv, vPw, vKv, vKh = "v248", "v249", "v250", "v251"
V_SK = 252
vL128 = "v243"
vOut = "v27"
vH2fl, vY = "v252", "v9"
A_W2, A_PARK = 0, 128


def vr(b, n=1):
    return f"v{b}" if n == 1 else f"v[{b}:{b + n - 1}]"


def ar(b, n=1):
    return f"a{b}" if n == 1 else f"a[{b}:{b + n - 1}]"


def fbits(x):
    return "0x%08x" % struct.unpack("<I", struct.pack("<f", x))[0]


C0 = math.sqrt(2.0 / math.pi)
GK1 = -2.0 * C0 * math.log2(math.e)
GK2 = GK1 * 0.044715
SPIN_LIMIT = 400000


class Gen:
    def __init__(self, profile=False, diag=None, opt=None):
        self.profile = profile
        self.opt = opt or {}
        self.diag = diag
        self.p = Seq()
        self.nlabel = 0
        self.npoll = 0
        self.idle = (3 - self.opt.get('j2', 1)) & 7
        self.bgs = []
        self.stamps = []

    def label(self, base):
        self.nlabel += 1
        return f"L_{base}_{self.nlabel}"

    def stamp(self, p, name):
        p.mark("@" + name)
        if self.diag and name in self.diag[:2]:
            r = 96 + 2 * self.diag.index(name)
            p(f"{'s_memtime' if len(self.diag) > 3 else 's_memrealtime'} s[{r}:{r + 1}]")
            p.wait(lg0=True)
        if not self.profile:
            return
        only = self.opt.get("stamps")
        if only and name not in ("start", "end") and name not in only.split(",") and not name[-1].isdigit():
            return
        i = len(self.stamps)
        self.stamps.append(name)
        q = Seq()
        q("s_memtime s[100:101]")
        q.wait(lg0=True)
        q(f"v_writelane_b32 v254, s100, {i + 2}")
        p.atomic(q)

    def dma(self, p, vaddr, srd, soff, imm=0, flags="", count=True):
        off = f" offset:{imm}" if imm else ""
        return p(f"buffer_load_dwordx4 {vaddr}, {srd}, {soff} offen{off} {flags} lds", count)

    def bg(self, seq, cls, after, prio):
        b = Bg(seq, cls, after, prio)
        self.bgs.append((prio, len(self.bgs), b))
        return b

    def dma_pair(self, v0, v1, srd, src_lines, lds_reg, lds, flags=""):
        g = Seq()
        g(f"s_add_u32 m0, {lds_reg}, {lds}")
        g(src_lines)
        self.dma(g, v0, srd, sB, flags=flags)
        return g, self.dma(g, v1, srd, sB, 1024, flags=flags)

    def dense(self, tag, positions):
        plan = []
        if tag[0] in str(self.opt.get("dense", "")):
            for n in positions:
                q = Seq()
                self.stamp(q, f"{tag}{n}")
                plan.append((n, q))
        return plan

    def emit(self, p, groups):
        for g in groups:
            p.extend(g)

    def poll_issue(self, p, dst, vaddr, soff, srd=sWS):
        t = p(f"buffer_load_dword {dst}, {vaddr}, {srd}, {soff} offen sc1")
        t.note = "few"
        return t

    def poll_check(self, p0, dst, vaddr, soff, need):
        p = Seq()
        a, b = self.label("poll"), self.label("pdone")
        p(f"s_mov_b32 {sCnt}, {SPIN_LIMIT}")
        p(f"s_add_u32 {sE}, {sEp}, {need}")
        p(f"v_subrev_u32 {dst}, {sE}, {dst}")
        p(f"v_cmp_lt_u32 vcc, {6 - need}, {dst}")
        p(f"s_cbranch_vccz {b}")
        p(f"{a}:")
        p(f"s_sleep {self.opt.get('poll_sleep', 3)}")
        p(f"s_sub_u32 {sCnt}, {sCnt}, 1")
        p(f"buffer_load_dword {dst}, {vaddr}, {sWS}, {soff} offen sc1", count=False)
        p("s_waitcnt vmcnt(0)")
        p(f"v_subrev_u32 {dst}, {sE}, {dst}")
        p(f"v_cmp_lt_u32 vcc, {6 - need}, {dst}")
        p(f"s_cbranch_vccz {b}")
        p(f"s_cmp_lg_u32 {sCnt}, 0")
        p(f"s_cbranch_scc1 {a}")
        p(f"{b}:")
        if self.profile:
            self.npoll += 1
            p(f"s_sub_u32 {sCnt}, {SPIN_LIMIT}, {sCnt}")
            p(f"v_writelane_b32 v254, {sCnt}, {64 - self.npoll}")
        p0.atomic(p)

    def masked(self, p0, mask, text):
        p = Seq()
        p(f"s_mov_b64 exec, {mask}")
        t = p(text)
        p("s_mov_b64 exec, -1")
        p0.atomic(p)
        return t

    def publish(self, p, toks, value, area):
        p(f"s_add_u32 {sE}, {sEp}, {value}")
        p(f"v_mov_b32 {vP2}, {sE}")
        p(f"s_add_u32 {sE}, {sFlag}, {area}")
        p.wait(vm=toks)
        return self.masked(p, 1, f"buffer_store_dword {vP2}, {vZero}, {sWS}, {sE} offen sc1")

    def half_sum(self, p, reg, tmp):
        p(f"v_mov_b32 {tmp}, {reg}")
        p(f"v_permlane32_swap_b32 {reg}, {tmp}")
        p(f"v_add_f32 {reg}, {reg}, {tmp}")

    def a_reads(self, p, dst, vaddr, off, areg=False):
        f = ar if areg else vr
        p(f"ds_read_b64_tr_b16 {f(dst, 2)}, {vaddr} offset:{off}")
        return p(f"ds_read_b64_tr_b16 {f(dst + 2, 2)}, {vaddr} offset:{off + 512}")

    def ln_consts(self, p, vsum, vsq):
        p(f"v_mul_f32 {vr(V_SM + 1)}, {fbits(-1.0 / 512)}, {vsum}")
        p(f"v_mul_f32 {vsq}, {fbits(1.0 / 512)}, {vsq}")
        p(f"v_fma_f32 {vsq}, -{vr(V_SM + 1)}, {vr(V_SM + 1)}, {vsq}")
        p(f"v_max_f32 {vsq}, 0, {vsq}")
        p(f"v_add_f32 {vsq}, {fbits(1e-5)}, {vsq}")
        p(f"v_rsq_f32 {vsum}, {vsq}")
        p(f"v_sqrt_f32 {vr(V_SM)}, {vsq}")
        p(f"v_mul_f32 {vr(V_KK)}, {fbits(GK1)}, {vsum}")
        p(f"v_mul_f32 {vsq}, {vsum}, {vsum}")
        p(f"v_mul_f32 {vsq}, {vsq}, {vsum}")
        p(f"v_mul_f32 {vr(V_KK + 1)}, {fbits(GK2)}, {vsq}")

    def gelu_packed(self, p, acc, cs, tmp, out, n=16):
        KK, SM = vr(V_KK, 2), vr(V_SM, 2)
        for b in range(0, n, 8):
            pr = [b + 2 * i for i in range(4)]
            t = lambda x: tmp + (x - b)
            for x in pr:
                p(f"v_pk_fma_f32 {vr(acc + x, 2)}, {vr(cs + x, 2)}, {SM}, {vr(acc + x, 2)} op_sel:[0,1,0] op_sel_hi:[1,1,1]")
            for x in pr:
                p(f"v_pk_mul_f32 {vr(t(x), 2)}, {vr(acc + x, 2)}, {vr(acc + x, 2)}")
            for x in pr:
                p(f"v_pk_fma_f32 {vr(t(x), 2)}, {vr(t(x), 2)}, {KK}, {KK} op_sel:[0,1,0] op_sel_hi:[1,1,0]")
            for x in pr:
                p(f"v_pk_mul_f32 {vr(t(x), 2)}, {vr(t(x), 2)}, {vr(acc + x, 2)}")
            for x in range(b, b + 8):
                p(f"v_exp_f32 {vr(t(x))}, {vr(t(x))}")
            for x in pr:
                p(f"v_pk_fma_f32 {vr(t(x), 2)}, {vr(t(x), 2)}, {SM}, {SM} op_sel:[0,0,0] op_sel_hi:[1,0,0]")
            for x in range(b, b + 8):
                p(f"v_rcp_f32 {vr(t(x))}, {vr(t(x))}")
            for x in pr:
                p(f"v_pk_mul_f32 {vr(t(x), 2)}, {vr(t(x), 2)}, {vr(acc + x, 2)}")
            for x in pr:
                p(f"v_cvt_pk_bf16_f32 {vr(out + x // 2)}, {vr(t(x))}, {vr(t(x) + 1)}")

    def prologue(self, p):
        p("s_cmp_ge_u32 s2, 256")
        p("s_cbranch_scc1 L_end")
        if self.profile:
            p("v_mov_b32 v254, 0")
            p("s_memrealtime s[100:101]")
            p.wait(lg0=True)
            p("v_writelane_b32 v254, s100, 0")
        self.stamp(p, "start")
        p("s_load_dwordx16 s[64:79], s[0:1], 0")
        p("s_getpc_b64 s[48:49]")
        p("L_pc:")
        p("s_lshr_b32 s50, s2, 3")
        p("s_lshl_b32 s50, s50, 10")
        p("v_lshlrev_b32 v1, 7, v0")
        p("v_add_u32 v2, s50, v1")
        p("v_cmp_gt_u32 vcc, 32, v0")
        p("v_cndmask_b32 v1, v2, v1, vcc")
        p("v_min_u32 v1, CODE_BYTES, v1")
        p("v_cmp_gt_u32 vcc, 40, v0")
        p("s_and_saveexec_b64 s[50:51], vcc")
        p("s_cbranch_execz L_nopf")
        p("global_load_dword v255, v1, s[48:49]", count=False)
        p("L_nopf:")
        p("s_mov_b64 exec, s[50:51]")
        row, t1, t2 = vT[0], vT[1], vT[2]
        sT0, sT1 = "s52", "s53"
        p(f"""
        v_lshrrev_b32 {vT[3]}, 6, v0
        v_and_b32 {vL}, 63, v0
        v_readfirstlane_b32 {sw}, {vT[3]}
        v_lshrrev_b32 {row}, 3, {vL}
        v_and_b32 {t2}, 7, {vL}
        s_and_b32 {sT0}, s2, 7
        s_lshr_b32 {sT1}, s2, 6
        s_lshl_b32 {sc}, {sT0}, 2
        s_add_u32 {sc}, {sc}, {sT1}
        s_bfe_u32 {sj}, s2, 0x30003
        s_add_u32 {srot}, {sj}, {sT1}
        s_and_b32 {srot}, {srot}, {self.opt.get("rot1", 3)}
        s_and_b32 {sth}, {sw}, 1
        s_lshr_b32 {skh}, {sw}, 1
        s_lshl_b32 {sPriv}, {sw}, 14
        """)
        p(f"""
        s_lshr_b32 {sT0}, {sj}, 2
        s_add_u32 {sT0}, {sT0}, 1
        s_sub_u32 {sT1}, 0, {sT0}
        s_bitcmp1_b32 {sj}, 1
        s_cselect_b32 {sT0}, {sT0}, {sT1}
        s_lshl_b32 {sT1}, {sc}, 6
        s_add_u32 {sT0}, {sT0}, {sT1}
        s_lshl_b32 {sT1}, {sth}, 5
        s_add_u32 {sT0}, {sT0}, {sT1}
        s_lshl_b32 {sT0}, {sT0}, 10
        s_lshl_b32 {sT1}, {skh}, 9
        s_add_u32 {sT0}, {sT0}, {sT1}
        v_lshrrev_b32 {t1}, 1, {row}
        v_xor_b32 {t1}, {t1}, {t2}
        v_lshlrev_b32 {t1}, 4, {t1}
        v_lshl_add_u32 {t1}, {row}, 10, {t1}
        v_add_u32 {vXs[0]}, {sT0}, {t1}
        v_xor_b32 {t1}, 64, {t1}
        v_add_u32 {t1}, {sT0}, {t1}
        v_add_u32 {vXs[1]}, {8192 - 1024}, {t1}
        v_add_u32 {vXs[2]}, 16384, {vXs[0]}
        v_add_u32 {vXs[3]}, {24576 - 1024}, {t1}
        s_mov_b32 s6, {1 << 21}
        s_mov_b32 s7, 0x20000
        s_mov_b32 s22, {1 << 19}
        s_mov_b32 s23, 0x20000
        s_lshl_b32 {sWlds}, {skh}, 15
        s_lshl_b32 {sT1}, {sth}, 12
        s_add_u32 {sWlds}, {sWlds}, {sT1}
        s_lshl_b32 {sWsrc}, {skh}, 18
        s_lshl_b32 {sT1}, {sth}, 15
        s_add_u32 {sWsrc}, {sWsrc}, {sT1}
        s_lshl_b32 {sT1}, {sj}, 7
        s_add_u32 {sWsrc}, {sWsrc}, {sT1}
        v_lshrrev_b32 {vT[4]}, 2, {vL}
        v_and_b32 {vT[4]}, 4, {vT[4]}
        v_xor_b32 {vT[4]}, {vT[4]}, {t2}
        v_lshlrev_b32 {vT[4]}, 4, {vT[4]}
        v_lshl_add_u32 {vWs}, {row}, 10, {vT[4]}
        v_add_u32 {vWs1}, 7168, {vWs}
        """)
        p.wait(lg0=True)
        p("s_mov_b64 s[4:5], s[64:65]")
        p("s_mov_b64 s[20:21], s[78:79]")
        for dst, off in ((40, 112), (24, 64), (28, 72), (32, 80), (52, 88), (36, 96)):
            p(f"s_load_dwordx2 s[{dst}:{dst + 1}], s[0:1], {off}")
        for dst, src in ((8, 66), (12, 68), (48, 70), (16, 72), (50, 74)):
            p(f"s_mov_b64 s[{dst}:{dst + 1}], s[{src}:{src + 1}]")
        self.set_rot(p)
        self.stamp(p, "karg")

    def set_rot(self, p):
        for pos in range(4):
            p(f"s_add_u32 {sR[pos]}, {srot}, {pos}")
            p(f"s_and_b32 {sR[pos]}, {sR[pos]}, 3")
            p(f"s_lshl_b32 {sR[pos]}, {sR[pos]}, 7")

    def kernargs2(self, p):
        sizes = (1 << 21, 1 << 21, 1 << 21, 1 << 21, 1 << 19, 1 << 19, 512 * 3584, 1792 * 1024, 1 << 21, WS_SIZE, 256)
        for i, n in enumerate(sizes):
            if i not in (0, 4, 10):
                p(f"s_mov_b32 s{6 + 4 * i}, {n}")
                p(f"s_mov_b32 s{7 + 4 * i}, 0x20000")
        p(f"v_lshlrev_b32 {vL16}, 4, {vL}")
        p(f"v_mov_b32 {vZero}, 0")

    def touch(self, kind, after, prio):
        g = Seq()
        srd, lines = {"w2": (sW2, 4), "w3": (sW3, 14), "w4": (sW4, 14)}[kind]
        g(f"s_lshl_b32 {sB}, s2, 2")
        g(f"s_add_u32 {sB}, {sB}, {sw}")
        g(f"s_mul_i32 {sB}, {sB}, {lines * 128}")
        self.masked(g, (1 << lines) - 1, f"buffer_load_dword v255, {vL128}, {srd}, {sB} offen")
        self.bg(g, "fewcold", after, prio)

    def touch_slow(self, kind, after, prio):
        g = Seq()
        srd, lines = {"w2": (sW2, 4), "w4": (sW4, 14)}[kind]
        g(f"s_lshr_b32 {sB}, s2, 3")
        g(f"s_lshl_b32 {sB}, {sB}, 2")
        g(f"s_add_u32 {sB}, {sB}, {sw}")
        g(f"s_mul_i32 {sB}, {sB}, {lines * 1024}")
        g(f"v_lshlrev_b32 {vr(V_TMP + 4)}, 10, {vL}")
        self.masked(g, (1 << lines) - 1, f"buffer_load_dword v255, {vr(V_TMP + 4)}, {srd}, {sB} offen offset:384")
        self.bg(g, "fewcold", after, prio)

    def warm_flags(self, p):
        for i in range(4):
            p(f"v_mov_b32 {vr(V_TMP + 4 + i)}, {sEp}")
        p(f"v_lshrrev_b32 {vP2}, 3, {vL}")
        p(f"v_mul_u32_u24 {vP2}, {FLAG1 - 128}, {vP2}")
        p(f"v_add_u32 {vP2}, {vP2}, {vL16}")
        self.masked(p, "0xffff", f"buffer_store_dwordx4 {vr(V_TMP + 4, 4)}, {vP2}, {sWS}, {sFlag} offen sc1")

    def advance_epoch(self, p):
        p(f"""
        s_or_b32 {sT0}, s2, {sw}
        s_cmp_eq_u32 {sT0}, 0
        s_cselect_b32 {sT0}, 0, {WS_SIZE}
        s_add_u32 {sT0}, {sT0}, {WS_EPOCH}
        s_add_u32 {sT1}, {sEp}, 8
        v_mov_b32 {vP2}, {sT1}
        """)
        self.masked(p, 1, f"buffer_store_dword {vP2}, {vZero}, {sWS}, {sT0} offen")

    def x_loads(self, pos, cls, after, prio):
        for a in (0, 2):
            g = Seq()
            g(f"s_add_u32 m0, {sPriv}, {R2 + (pos * 4 + a) * 1024}")
            fl = self.opt.get("x_nt", "nt")
            self.dma(g, vXs[a], sX, sR[pos], flags=fl)
            self.dma(g, vXs[a + 1], sX, sR[pos], 1024, flags=fl)
            self.bg(g, cls, after, prio)

    def setup2(self, p):
        row, t1, t2 = vT[0], vT[1], vT[2]
        p(f"""
        s_xor_b32 {snh}, {sth}, {skh}
        s_mov_b32 {sOneLo}, 0x00003f80
        s_mov_b32 {sOneHi}, 0x3f800000
        s_add_u32 {sj2}, {sj}, {self.opt.get("j2", 1)}
        s_and_b32 {sj2}, {sj2}, 7
        s_add_u32 {sja}, {sj}, {self.opt.get("ja", 2)}
        s_and_b32 {sja}, {sja}, 7
        s_mov_b32 {sOnes}, 0x3f803f80
        s_mov_b32 {sHi}, 0xffff0000
        s_lshl_b32 {sFlag}, {sc}, 3
        s_add_u32 {sFlag}, {sFlag}, {sj}
        s_lshl_b32 {sFlag}, {sFlag}, 2
        s_add_u32 {sFlag}, {sFlag}, {sw}
        s_lshl_b32 {sFlag}, {sFlag}, 7
        s_lshr_b32 {sT0}, {sc}, 3
        s_lshl_b32 {ssc}, {sT0}, 2
        s_and_b32 {sT0}, {sc}, 3
        s_add_u32 {ssc}, {ssc}, {sT0}
        s_bfe_u32 {sT0}, {sc}, 0x10002
        s_mul_i32 {sm}, {sT0}, 7
        s_add_u32 {sm}, {sm}, {sj}
        s_cmp_gt_u32 {sj}, {self.idle}
        s_cselect_b32 {sT0}, 1, 0
        s_sub_u32 {sm}, {sm}, {sT0}
        s_cmp_eq_u32 {sj}, {self.idle}
        s_cselect_b32 {sOob}, {WS_SIZE}, {WS_SIZE if self.opt.get("dbg_noP3") else 0}
        v_lshlrev_b32 {vL128}, 7, {vL}
        v_mul_u32_u24 {vW3s}, 3584, {row}
        v_add_u32 {vW3s}, {vW3s}, {vT[4]}
        v_add_u32 {vW3s1}, {8 * 3584 - 1024}, {vW3s}
        s_mul_i32 {sW3b}, {sw}, {128 * 3584}
        s_lshl_b32 {sT1}, {sm}, 8
        s_add_u32 {sW3b}, {sW3b}, {sT1}
        s_add_u32 {sW3b}, {sW3b}, {sOob}
        s_lshl_b32 {sT1}, {sja}, 7
        s_lshl_b32 {sT0}, {sc}, 16
        s_add_u32 {sT0}, {sT0}, {sT1}
        v_lshlrev_b32 {vKv}, 4, {t2}
        v_lshl_add_u32 {vKv}, {row}, 10, {vKv}
        v_add_u32 {vKv}, {sT0}, {vKv}
        v_subrev_u32 {vKh}, 8192, {vKv}
        """)

    def w12_loads(self, srd, pos, cls, after, prio):
        toks = []
        for i in (0, 2):
            src = f"s_lshl_b32 {sB}, {sR[pos]}, 9\ns_add_u32 {sB}, {sB}, {sWsrc}"
            if i:
                src += f"\ns_add_u32 {sB}, {sB}, 16384"
            g, tk = self.dma_pair(vWs, vWs1, srd, src, sWlds, R0 + pos * 8192 + i * 1024)
            self.bg(g, cls, after, prio)
            toks.append(tk)
        return toks

    def kv_loads(self, t, after, prio):
        g = Seq()
        g(f"s_mul_i32 {sB}, {sw}, 2304")
        g(f"s_add_u32 {sB}, {sB}, {A1R}")
        g(f"s_cmp_eq_u32 {sw}, 0")
        g(f"s_cselect_b32 m0, {KB}, {sB}")
        g(f"s_cselect_b32 {sB}, 0, {1 << 21}")
        self.dma(g, vKh, sK, sB, flags="nt")
        g(f"""
        s_lshl_b32 {sB}, {sja}, 2
        s_add_u32 {sB}, {sB}, {sw}
        s_lshl_b32 {sB}, {sB}, 7
        v_and_b32 {vKh}, 15, {vL}
        v_lshl_add_u32 {vKh}, {vKh}, 3, {sB}
        """)
        g(f"global_load_dwordx2 {vr(V_SK, 2)}, {vKh}, {pSH}")
        self.bg(g, "fewcold", after, prio)
        t["kv"] = []
        for srd, base in ((sK, KB + 1024), (sV, VB)):
            g = Seq()
            g(f"s_lshl_b32 {sB}, {sw}, 11")
            g(f"s_add_u32 m0, {sB}, {base}")
            g(f"s_lshl_b32 {sB}, {sw}, 14")
            self.dma(g, vKv, srd, sB, flags="nt")
            g(f"s_add_u32 {sB}, {sB}, 7168")
            t["kv"].append(self.dma(g, vKv, srd, sB, 1024, flags="nt"))
            self.bg(g, "cold", after, prio)

    def small_addrs(self, p):
        p(f"""
        s_lshl_b32 {sT0}, {sc}, 6
        s_lshl_b32 {sT1}, {sth}, 5
        s_add_u32 {sT0}, {sT0}, {sT1}
        s_lshl_b32 {sT0}, {sT0}, 10
        s_lshl_b32 {sT1}, {sj2}, 7
        s_lshl_b32 {sT2}, {snh}, 6
        s_add_u32 {sT1}, {sT1}, {sT2}
        v_and_b32 {vOut}, 31, {vL}
        v_lshrrev_b32 {vPv}, 5, {vL}
        v_lshlrev_b32 {vPv}, 4, {vPv}
        v_add_u32 {vPv}, {sT1}, {vPv}
        v_lshl_add_u32 {vOut}, {vOut}, 10, {vPv}
        v_add_u32 {vOut}, {sT0}, {vOut}
        s_lshl_b32 {sT0}, {sj}, 6
        s_lshl_b32 {sT1}, {sc}, 1
        s_add_u32 {sT0}, {sT0}, {sT1}
        s_add_u32 {sT0}, {sT0}, {sth}
        s_lshl_b32 {sT1}, {sT0}, 1
        v_mov_b32 {vPw}, {sT1}
        s_lshl_b32 {sT0}, {sT0}, 12
        s_lshl_b32 {sT1}, {skh}, 11
        s_add_u32 {sStld}, {sT0}, {sT1}
        """)

    def small_loads(self, after, prio_x, prio_s, after_s):
        g = Seq()
        g(f"buffer_load_dwordx4 {vr(V_XRES, 4)}, {vOut}, {sX}, 0 offen")
        g(f"buffer_load_dwordx4 {vr(V_XRES + 4, 4)}, {vOut}, {sX}, 0 offen offset:32")
        self.bg(g, "mall", after, prio_x)
        g = Seq()
        g(f"global_load_dwordx4 {vr(V_X1P, 4)}, {vPv}, {pG}")
        g(f"global_load_dwordx4 {vr(V_X1P + 4, 4)}, {vPv}, {pG} offset:32")
        g(f"global_load_ushort {vr(V_SSM + 5)}, {vPw}, {pD}")
        self.bg(g, "few", after, prio_x)
        g = Seq()
        g(f"buffer_load_dwordx4 {vr(V_SSM, 4)}, {vL16}, {sSK}, {sStld} offen nt")
        g(f"buffer_load_dwordx4 {vr(V_SSM + 6, 4)}, {vL16}, {sSK}, {sStld} offen offset:1024 nt")
        self.bg(g, "cold", after_s, prio_s)
        g = Seq()
        g(f"buffer_load_dword {vr(V_SSM + 4)}, {vL16}, {sSK}, {sStld} offen offset:16 nt")
        g(f"buffer_load_dword {vr(V_SSM + 10)}, {vL16}, {sSK}, {sStld} offen offset:1040 nt")
        self.bg(g, "few", after_s, prio_s)

    def lds_addrs(self, p):
        a, b, c = vT[0], vT[1], vT[2]
        p(f"""
        v_lshrrev_b32 {a}, 5, {vL}
        v_lshlrev_b32 {vTr0}, 10, {a}
        v_lshlrev_b32 {vCsA}, 4, {a}
        v_bfe_u32 {a}, {vL}, 2, 2
        v_lshl_add_u32 {vTr0}, {a}, 7, {vTr0}
        v_lshrrev_b32 {a}, 1, {a}
        v_lshl_add_u32 {vTr0}, {a}, 6, {vTr0}
        v_bfe_u32 {a}, {vL}, 4, 1
        v_lshl_add_u32 {vTr0}, {a}, 5, {vTr0}
        v_and_b32 {a}, 1, {vL}
        v_lshl_add_u32 {vTr0}, {a}, 4, {vTr0}
        v_bfe_u32 {a}, {vL}, 1, 1
        v_lshl_add_u32 {vTr0}, {a}, 3, {vTr0}
        s_lshl_b32 {sT0}, {snh}, 6
        s_lshl_b32 {sT1}, {skh}, 15
        v_xor_b32 {vTrX}, {sT0}, {vTr0}
        v_add_u32 {vTrX}, {sT1}, {vTrX}
        v_xor_b32 {vTrY}, 64, {vTrX}
        v_bfe_u32 {a}, {vL}, 3, 2
        v_lshlrev_b32 {a}, 10, {a}
        v_and_b32 {b}, 7, {vL}
        v_lshl_add_u32 {a}, {b}, 7, {a}
        s_add_u32 {sT0}, {sPriv}, {R2}
        v_add_u32 {a}, {sT0}, {a}
        v_bfe_u32 {b}, {vL}, 1, 3
        v_lshrrev_b32 {c}, 5, {vL}
        v_xor_b32 {b}, {b}, {c}
        """)
        for s in range(4):
            p(f"v_xor_b32 {c}, {2 * s}, {b}")
            p(f"v_lshl_add_u32 {vXr[s]}, {c}, 4, {a}")
        p(f"""
        v_and_b32 {a}, 3, {vL}
        v_bfe_u32 {b}, {vL}, 2, 1
        v_bfe_u32 {c}, {vL}, 4, 1
        v_xor_b32 {b}, {b}, {c}
        v_or_b32 {a}, {a}, {b}
        v_cmp_eq_u32 vcc, 0, {a}
        v_mov_b32 {b}, {sOnes}
        v_cndmask_b32 {vr(V_ONES)}, 0, {b}, vcc
        v_cndmask_b32 {vr(V_ONES + 1)}, 0, {b}, vcc
        v_cndmask_b32 {vr(V_ONES + 2)}, 0, {b}, vcc
        v_cndmask_b32 {vr(V_ONES + 3)}, 0, {b}, vcc
        """)

    def dot_stats(self, p, regs, first):
        S, Q, S2, Q2 = vr(V_TMP), vr(V_TMP + 1), vr(V_TMP + 2), vr(V_TMP + 3)
        for n in range(0, len(regs), 2):
            a, b = vr(regs[n]), vr(regs[n + 1])
            if first and n == 0:
                p(f"v_dot2_f32_bf16 {S}, {a}, {sOnes}, 0")
                p(f"v_dot2_f32_bf16 {Q}, {a}, {a}, 0")
                p(f"v_dot2_f32_bf16 {S2}, {b}, {sOnes}, 0")
                p(f"v_dot2_f32_bf16 {Q2}, {b}, {b}, 0")
            else:
                p(f"v_dot2c_f32_bf16 {S}, {sOnes}, {a}")
                p(f"v_dot2c_f32_bf16 {Q}, {a}, {a}")
                p(f"v_dot2c_f32_bf16 {S2}, {sOnes}, {b}")
                p(f"v_dot2c_f32_bf16 {Q2}, {b}, {b}")

    def fold_stats(self, p):
        S, Q, S2, Q2 = vr(V_TMP), vr(V_TMP + 1), vr(V_TMP + 2), vr(V_TMP + 3)
        p(f"v_add_f32 {S}, {S}, {S2}")
        p(f"v_add_f32 {Q}, {Q}, {Q2}")
        p(f"v_mov_b32 {S2}, {S}")
        p(f"v_mov_b32 {Q2}, {Q}")
        p(f"v_permlane32_swap_b32 {S}, {S2}")
        p(f"v_permlane32_swap_b32 {Q}, {Q2}")
        p(f"v_add_f32 {S}, {S}, {S2}")
        p(f"v_add_f32 {Q}, {Q}, {Q2}")

    def p1(self, p, t):
        o = self.opt
        w1 = []
        rot = o.get("rot1", 3)
        for pos in range(4):
            cls = "cold" if pos < 4 // (bin(rot).count("1") * 2 or 1) else "l2"
            self.x_loads(pos, "p1" + cls, "go2" if pos else "go", 0)
            w1.append(self.w12_loads(sW1, pos, "p1" + cls, "go2" if pos else "go", 0))
        p.mark("go", limit=5000)
        p("s_nop 0")
        self.kernargs2(p)
        p.mark("go2")
        self.setup2(p)
        p(f"s_load_dword {sEp}, s[40:41], {WS_EPOCH}")
        self.lds_addrs(p)
        self.small_addrs(p)
        p(f"""
        v_and_b32 {vT[0]}, 31, {vL}
        s_lshl_b32 {sT0}, {sw}, 8
        s_add_u32 {sT0}, {sT0}, {ST_STAT}
        v_lshl_add_u32 {vT[1]}, {vT[0]}, 3, {sT0}
        v_xor_b32 {vPoll}, 512, {vT[1]}
        s_add_u32 {sT0}, {sPriv}, {R2}
        v_add_u32 {vT[2]}, {sT0}, {vL16}
        v_xor_b32 {vT[5]}, 32768, {vT[2]}
        s_lshl_b32 {sT0}, {snh}, 8
        s_lshl_b32 {sT1}, {skh}, 7
        s_add_u32 {sT1}, {sT1}, {sT0}
        s_add_u32 {sT1}, {sT1}, {ST_CS}
        v_lshl_add_u32 {vT[3]}, {vT[0]}, 2, {sT1}
        s_add_u32 {sT0}, {sT0}, {ST_CS}
        v_add_u32 {vT[4]}, {sT0}, {vCsA}
        s_lshl_b32 {sT0}, {sc}, 1
        s_add_u32 {sT0}, {sT0}, {sth}
        s_lshl_b32 {sT0}, {sT0}, 15
        s_lshl_b32 {sT1}, {sj}, 12
        s_add_u32 {sT1}, {sT0}, {sT1}
        s_lshl_b32 {sT2}, {snh}, 11
        s_add_u32 {sH2st}, {sT1}, {sT2}
        s_lshl_b32 {sT1}, {skh}, 14
        s_add_u32 {sT0}, {sT0}, {sT1}
        s_add_u32 {sX1ld}, {sT0}, {WS_H}
        """)
        self.w4_offsets(p)
        self.warm_flags(p)
        p.mark("setup")
        self.stamp(p, "setup")
        self.kv_loads(t, "setup", 1)
        self.touch("w2", "setup", 2)
        if o.get("slow_w2", 1):
            self.touch_slow("w2", "setup", 2)
        if o.get("slow_w4", 1):
            self.touch_slow("w4", o.get("touch_w4", "conv"), 7)
        self.small_loads("setup", 3, 4, o.get("ssm_after", "setup"))
        self.touch("w3", o.get("touch_w3", "setup"), 5)
        self.touch("w4", o.get("touch_w4", "conv"), 6)
        accX, accY, cs = V_ACC, V_ACC + 16, V_ACC + 32
        AB = [V_A, V_B + 32]

        def reads(q, pos):
            q.wait(vm=w1[pos][-1])
            q("s_barrier")
            for s in range(4):
                q(f"ds_read_b128 {vr(V_B + 16 * (pos & 1) + 4 * s, 4)}, {vXr[s]} offset:{pos * 4096}")
            for s in range(4):
                self.a_reads(q, AB[pos & 1] + 8 * s + 4, vTrY, pos * 8192 + s * 2048)
            for s in range(4):
                self.a_reads(q, AB[pos & 1] + 8 * s, vTrX, pos * 8192 + s * 2048)

        reads(p, 0)
        self.stamp(p, "x0 landed")
        for pos in range(4):
            B0, A0 = V_B + 16 * (pos & 1), AB[pos & 1]
            self.dot_stats(p, list(range(B0, B0 + 16)), pos == 0)
            q = Seq()
            for s in range(4):
                q(f"v_mfma_f32_32x32x16_bf16 {vr(accY, 16)}, {vr(A0 + 8 * s + 4, 4)}, {vr(B0 + 4 * s, 4)}, {'0' if pos + s == 0 else vr(accY, 16)}")
            for s in range(4):
                q(f"v_mfma_f32_16x16x32_bf16 {vr(cs, 4)}, {vr(V_ONES, 4)}, {vr(A0 + 8 * s, 4)}, {'0' if pos + s == 0 else vr(cs, 4)}")
            for s in range(4):
                q(f"v_mfma_f32_32x32x16_bf16 {vr(accX, 16)}, {vr(A0 + 8 * s, 4)}, {vr(B0 + 4 * s, 4)}, {'0' if pos + s == 0 else vr(accX, 16)}")
            plan = []
            if pos < 3:
                r = Seq()
                reads(r, pos + 1)
                plan += spread(split(r), o.get("p1_rd0", 3), 11)
            if pos == 3:
                st = Seq()
                self.fold_stats(st)
                st(f"ds_write_b64 {vT[1]}, {vr(V_TMP, 2)}")
                wr = Seq()
                for g in range(4):
                    wr(f"ds_write_b128 {vT[2]}, {vr(accY + 4 * g, 4)} offset:{g * 1024}")
                wr(f"ds_write_b32 {vT[3]}, {vr(cs)}")
                plan += spread(split(st), 1, 4) + spread(split(wr), 9, 12)
            p.extend(weave(q, plan + self.dense(f"a{pos}_", (0, 4, 8, 12))))
        p.mark(force=9)
        self.stamp(p, "p1 mfma")
        p.wait(lg0=True)
        p("s_barrier")
        c0, c1 = V_A, V_A + 16
        S, Q, S2, Q2 = vr(V_TMP), vr(V_TMP + 1), vr(V_TMP + 2), vr(V_TMP + 3)
        p(f"ds_read_b64 {vr(V_TMP + 2, 2)}, {vPoll}")
        for g in range(4):
            p(f"ds_read_b128 {vr(accY + 4 * g, 4)}, {vT[5]} offset:{g * 1024}")
        for g in range(4):
            p(f"ds_read_b128 {vr(c0 + 4 * g, 4)}, {vT[4]} offset:{g * 32}")
            p(f"ds_read_b128 {vr(c1 + 4 * g, 4)}, {vT[4]} offset:{128 + g * 32}")
        p(f"s_sub_u32 {sT0}, {sj2}, {sj}")
        p(f"s_lshl_b32 {sT0}, {sT0}, 7")
        p(f"s_add_u32 {sWsrc}, {sWsrc}, {sT0}")
        p("s_nop 0")
        p.mark("B1", limit=o.get("lim_g1", 0))
        p(f"v_add_f32 {S}, {S}, {S2}")
        p(f"v_add_f32 {Q}, {Q}, {Q2}")
        self.ln_consts(p, S, Q)
        for x in range(0, 16, 2):
            p(f"v_pk_add_f32 {vr(accX + x, 2)}, {vr(accX + x, 2)}, {vr(accY + x, 2)}")
        for x in range(0, 16, 2):
            p(f"v_pk_add_f32 {vr(c0 + x, 2)}, {vr(c0 + x, 2)}, {vr(c1 + x, 2)}")
        out = V_TMP + 8
        self.gelu_packed(p, accX, c0, V_TMP + 16, out)
        p(f"s_add_u32 {sT0}, {sH2st}, {WS_H}")
        s0 = p(f"buffer_store_dwordx4 {vr(out, 4)}, {vL16}, {sWS}, {sT0} offen sc1")
        s1 = p(f"buffer_store_dwordx4 {vr(out + 4, 4)}, {vL16}, {sWS}, {sT0} offen offset:1024 sc1")
        t["h"] = [s0, s1]
        p.mark("h_st", limit=o.get("lim_w2", 2000))
        self.stamp(p, "h stored")
        t["w2"] = []
        for pos in range(4):
            t["w2"] += self.w12_loads(sW2, pos, "mall", o.get("w2_after", "B1"), 11)

    def h_flag(self, p, t):
        self.publish(p, t["h"], 1, FLAG0)
        if self.opt.get("rb_h", 0):
            p(f"s_add_u32 {sT0}, {sH2st}, {WS_H}")
            self.masked(p, "0xffff", f"buffer_load_dword v255, {vL128}, {sWS}, {sT0} offen sc1").note = "few"
        p.mark("h_flag", limit=self.opt.get("lim_hflag", 1500))
        self.stamp(p, "h flag")

    def a1(self, p, t):
        kk, vv, o = V_B, V_B + 12, V_TMP
        sk = V_SK
        a, b = vT[0], vT[1]
        p(f"""
        v_lshrrev_b32 {a}, 4, {vL}
        v_lshlrev_b32 {a}, 11, {a}
        v_bfe_u32 {b}, {vL}, 2, 2
        v_lshl_add_u32 {a}, {b}, 7, {a}
        v_and_b32 {b}, 3, {vL}
        v_lshl_add_u32 {a}, {b}, 3, {a}
        s_lshl_b32 {sT0}, {sw}, 5
        s_add_u32 {sT0}, {sT0}, {KB}
        v_add_u32 {a}, {sT0}, {a}
        """)
        p.wait(vm=t["kv"])
        p("s_barrier")
        p.mark("Bkv")
        for rd in range(5):
            p(f"ds_read_b64_tr_b16 {vr(kk + 2 * rd, 2)}, {a} offset:{(4 + 4 * rd) * 128}")
        for rd in range(4):
            p(f"ds_read_b64_tr_b16 {vr(vv + 2 * rd, 2)}, {a} offset:{(VB - KB) + 4 * rd * 128}")
        c10, c32, c0, c21, c3 = V_A, V_A + 1, V_A + 2, V_A + 3, V_A + 4
        p(f"v_alignbit_b32 {vr(c10)}, {vr(sk)}, {vr(sk)}, 16")
        p(f"v_alignbit_b32 {vr(c32)}, {vr(sk + 1)}, {vr(sk + 1)}, 16")
        p(f"v_and_b32 {vr(c0)}, 0xffff, {vr(sk)}")
        p(f"v_and_b32 {vr(c3)}, {sHi}, {vr(sk + 1)}")
        p(f"v_and_b32 {vr(c21)}, 0xffff, {vr(sk + 1)}")
        p(f"v_and_or_b32 {vr(c21)}, {vr(sk)}, {sHi}, {vr(c21)}")
        p(f"""
        v_and_b32 {vT[3]}, 3, {vL}
        v_bfe_u32 {vT[2]}, {vL}, 2, 1
        v_lshlrev_b32 {vT[3]}, 9, {vT[3]}
        v_lshl_add_u32 {vPoll}, {vT[2]}, 8, {vT[3]}
        s_lshl_b32 {sC}, {sc}, 12
        s_lshl_b32 {sT1}, {skh}, 11
        s_add_u32 {sC}, {sC}, {sT1}
        s_lshl_b32 {sT1}, {sth}, 7
        s_add_u32 {sC}, {sC}, {sT1}
        """)
        f = V_ACC
        q = Seq()
        for i in range(8):
            q(f"v_dot2_f32_bf16 {vr(f + 2 * i)}, {vr(kk + i)}, {vr(c3)}, 0")
            q(f"v_dot2_f32_bf16 {vr(f + 2 * i + 1)}, {vr(kk + i + 1)}, {vr(c32)}, 0")
        for i in range(8):
            q(f"v_dot2_f32_bf16 {vr(f + 2 * i)}, {vr(kk + i + 1)}, {vr(c21)}, {vr(f + 2 * i)}")
            q(f"v_dot2_f32_bf16 {vr(f + 2 * i + 1)}, {vr(kk + i + 2)}, {vr(c10)}, {vr(f + 2 * i + 1)}")
        for i in range(8):
            q(f"v_dot2_f32_bf16 {vr(f + 2 * i)}, {vr(kk + i + 2)}, {vr(c0)}, {vr(f + 2 * i)}")
        for i in range(8):
            q(f"v_lshlrev_b32 {vr(f + 16 + 2 * i)}, 16, {vr(vv + i)}")
            q(f"v_and_b32 {vr(f + 17 + 2 * i)}, {sHi}, {vr(vv + i)}")
        for i in range(8):
            q(f"v_pk_mul_f32 {vr(f + 2 * i, 2)}, {vr(f + 2 * i, 2)}, {vr(f + 16 + 2 * i, 2)}")
        for i in range(8):
            q(f"v_cvt_pk_bf16_f32 {vr(o + i)}, {vr(f + 15 - 2 * i)}, {vr(f + 14 - 2 * i)}")
        mode = self.opt.get("a1_first", 40)
        if mode > 1:
            hf = Seq()
            self.h_flag(hf, t)
            q = weave(q, [(mode, hf)], kinds=("valu",))
        p.extend(q)
        if mode == 0:
            self.h_flag(p, t)
        p(f"""
        v_and_b32 {a}, 15, {vL}
        v_mul_u32_u24 {a}, 144, {a}
        v_lshrrev_b32 {b}, 4, {vL}
        v_sub_u32 {b}, 3, {b}
        v_lshl_add_u32 {a}, {b}, 5, {a}
        s_mul_i32 {sT0}, {sw}, 2304
        s_add_u32 {sT0}, {sT0}, {A1R}
        v_add_u32 {a}, {sT0}, {a}
        """)
        p(f"ds_write_b128 {a}, {vr(o, 4)}")
        w2 = p(f"ds_write_b128 {a}, {vr(o + 4, 4)} offset:16")
        p(f"""
        v_lshrrev_b32 {a}, 3, {vL}
        v_and_b32 {b}, 7, {vL}
        v_lshlrev_b32 {b}, 4, {b}
        v_lshl_add_u32 {vT[2]}, {a}, 12, {b}
        v_mul_u32_u24 {a}, 144, {a}
        v_add3_u32 {a}, {a}, {b}, {sT0}
        s_lshl_b32 {sT0}, {sja}, 18
        s_lshl_b32 {sT1}, {sw}, 16
        s_add_u32 {sT0}, {sT0}, {sT1}
        s_sub_u32 {sT1}, 31, {sc}
        s_lshl_b32 {sT1}, {sT1}, 7
        s_add_u32 {sT0}, {sT0}, {sT1}
        s_add_u32 {sT0}, {sT0}, {WS_KVT}
        s_add_u32 {sT1}, {sT0}, 32768
        """)
        p.wait(lg=w2)
        p(f"ds_read_b128 {vr(o + 8, 4)}, {a}")
        p(f"ds_read_b128 {vr(o + 12, 4)}, {a} offset:{8 * 144}")
        s0 = p(f"buffer_store_dwordx4 {vr(o + 8, 4)}, {vT[2]}, {sWS}, {sT0} offen sc1")
        s1 = p(f"buffer_store_dwordx4 {vr(o + 12, 4)}, {vT[2]}, {sWS}, {sT1} offen sc1")
        t["kvt"] = [s0, s1]
        self.stamp(p, "a1 done")
        if self.opt.get("a1_first", 40) == 1:
            self.h_flag(p, t)

    def w3_loads(self, line, lds, after, prio, blocks=range(0, 16, 2)):
        toks = []
        for i in blocks:
            g, tk = self.dma_pair(vW3s, vW3s1, sW3, f"s_add_u32 {sB}, {sW3b}, {line * 128 + i * 8 * 3584}", sPriv, lds + i * 1024)
            self.bg(g, "mall", after, prio)
            toks.append(tk)
        return toks

    def w4_offsets(self, p):
        p(f"s_mul_i32 {sT0}, {sw}, 7")
        p(f"s_lshl_b32 {sT2}, {sj2}, 7")
        if self.opt.get("dbg_now4"):
            p(f"s_add_u32 {sT2}, {sT2}, {WS_SIZE}")
        for u in range(7):
            p(f"""
            s_add_u32 {sT1}, {sT0}, {u}
            s_lshr_b32 {sU[u]}, {sT1}, 1
            s_lshl_b32 {sU[u]}, {sU[u]}, 17
            s_and_b32 {sT1}, {sT1}, 1
            s_lshl_b32 {sT1}, {sT1}, 14
            s_add_u32 {sU[u]}, {sU[u]}, {sT1}
            s_add_u32 {sU[u]}, {sU[u]}, {sT2}
            """)

    def w4_loads(self, piece, lds, after, prio):
        toks = []
        for u in range(7):
            oob = WS_SIZE if piece == 3 and u < self.opt.get("dbg_p3", 0) else 0
            g, tk = self.dma_pair(vWs, vWs1, sW4, f"s_add_u32 {sB}, {sU[u]}, {piece * 32768 + oob}", sPriv, lds + u * 2048)
            self.bg(g, "mall", after, prio)
            toks.append(tk)
        return toks

    def w4_park(self, piece, areg, after, prio):
        for u in range(7):
            g = Seq()
            g(f"s_add_u32 {sB}, {sU[u]}, {piece * 32768}")
            g(f"buffer_load_dwordx4 {ar(areg + 8 * u, 4)}, {vWs}, {sW4}, {sB} offen")
            g(f"buffer_load_dwordx4 {ar(areg + 8 * u + 4, 4)}, {vWs1}, {sW4}, {sB} offen offset:1024")
            self.bg(g, "mall", after, prio)

    def w4_unpark_groups(self, areg, vaddr):
        groups, toks = [], []
        for n in range(14):
            g = Seq()
            toks.append(g(f"ds_write_b128 {vaddr}, {ar(areg + 4 * n, 4)} offset:{n * 1024}"))
            groups.append(g)
        return groups, toks

    def gate_partial(self, p):
        g, g2 = vr(V_TMP), vr(V_TMP + 1)
        for i in range(0, 8, 2):
            p(f"v_dot2_f32_bf16 {g}, {vr(V_XRES + i)}, {vr(V_X1P + i)}, {'0' if i == 0 else g}")
            p(f"v_dot2_f32_bf16 {g2}, {vr(V_XRES + i + 1)}, {vr(V_X1P + i + 1)}, {'0' if i == 0 else g2}")
        p(f"""
        s_lshl_b32 {sT3}, {sc}, 1
        s_add_u32 {sT3}, {sT3}, {sth}
        s_lshl_b32 {sD}, {sT3}, 11
        s_lshl_b32 {sT1}, {sj2}, 1
        s_add_u32 {sT1}, {sT1}, {snh}
        s_lshl_b32 {sT1}, {sT1}, 7
        s_add_u32 {sD}, {sD}, {sT1}
        v_lshlrev_b32 {vT[5]}, 2, {vL}
        s_add_u32 {sD}, {sD}, {WS_GATE}
        """)
        p(f"v_add_f32 {g}, {g}, {g2}")
        self.half_sum(p, g, g2)
        self.masked(p, "0xffffffff", f"buffer_store_dword {g}, {vT[5]}, {sWS}, {sD} offen sc1")

    def stage_conv_k(self, p):
        a, b = vT[0], vT[1]
        d = V_SSM
        o = V_TMP + 8
        p(f"""
        s_mul_i32 {sT0}, {sth}, {KCH}
        s_add_u32 {sT0}, {sT0}, {CK}
        s_lshl_b32 {sT1}, {skh}, 11
        s_add_u32 {sT1}, {sT1}, {sT0}
        v_add_u32 {a}, {sT1}, {vL16}
        v_cmp_eq_u32 vcc, 63, {vL}
        s_cmp_eq_u32 {skh}, 1
        s_cselect_b64 vcc, vcc, 0
        v_cndmask_b32 {vr(d + 10)}, {vr(d + 10)}, {vZero}, vcc
        """)
        p(f"ds_write_b128 {a}, {vr(d, 4)} offset:64")
        p(f"ds_write_b128 {a}, {vr(d + 6, 4)} offset:{64 + 1024}")
        for i in range(4):
            p(f"v_alignbit_b32 {vr(o + i)}, {vr(d + i + 1)}, {vr(d + i)}, 16")
            p(f"v_alignbit_b32 {vr(o + 4 + i)}, {vr(d + 7 + i)}, {vr(d + 6 + i)}, 16")
        p(f"ds_write_b128 {a}, {vr(o, 4)} offset:{KCOPY + 64}")
        p(f"ds_write_b128 {a}, {vr(o + 4, 4)} offset:{KCOPY + 64 + 1024}")
        p(f"""
        s_mul_i32 {sT1}, {skh}, {64 + 4096}
        s_add_u32 {sT1}, {sT1}, {sT0}
        v_and_b32 {b}, 15, {vL}
        v_lshl_add_u32 {a}, {b}, 2, {sT1}
        v_readfirstlane_b32 {sT2}, {vr(d)}
        s_lshl_b32 {sT2}, {sT2}, 16
        s_cmp_eq_u32 {skh}, 0
        s_cselect_b32 {sT2}, {sT2}, 0
        v_cmp_eq_u32 vcc, 15, {b}
        v_mov_b32 {b}, {sT2}
        v_cndmask_b32 {b}, 0, {b}, vcc
        """)
        p(f"ds_write_b32 {a}, {vZero}")
        p(f"ds_write_b32 {a}, {b} offset:{KCOPY}")
        p(f"""
        s_mul_i32 {sT0}, {sth}, {UCH}
        s_add_u32 {sT0}, {sT0}, {CU}
        s_lshl_b32 {sT1}, {skh}, 8
        s_add_u32 {sT1}, {sT1}, {sT0}
        v_lshl_add_u32 {a}, {vL}, 2, {sT1}
        v_and_b32 {b}, 7, {vL}
        v_lshl_add_u32 {b}, {b}, 2, {sT0}
        """)
        p(f"ds_write_b32 {a}, {vZero} offset:{32 + 4096}")
        p(f"ds_write_b32 {a}, {vZero} offset:{32 + 4096 + 256}")
        p(f"ds_write_b32 {b}, {vZero}")

    def p2(self, p, t):
        o = self.opt
        self.gate_partial(p)
        for pos in range(4):
            p(f"s_lshl_b32 {sQ[pos]}, {sR[pos]}, 5")
            p(f"s_add_u32 {sQ[pos]}, {sQ[pos]}, {sX1ld}")
        self.publish(p, t["kvt"], 1, FLAG1)
        p.wait(vm=t["w2"][o.get("hpoll_wait", 7)])
        self.poll_issue(p, vPv, vPoll, sC)
        self.poll_check(p, vPv, vPoll, sC, 1)
        p.mark("h_seen", limit=self.opt.get("lim_def", 1500))
        self.stamp(p, "h seen")
        for pos in range(4):
            for s in (0, 2):
                g = Seq()
                for x in (s, s + 1):
                    g(f"buffer_load_dwordx4 {vr(V_B + 16 * pos + 4 * x, 4)}, {vL16}, {sWS}, {sQ[pos]} offen offset:{x * 1024} sc1")
                self.bg(g, "hand", "h_seen", 10)
        p(f"""
        v_and_b32 {vKv}, 31, {vL}
        v_lshlrev_b32 {vKv}, 12, {vKv}
        s_sub_u32 {sD}, {sj}, {self.opt.get("ja", 2)}
        s_and_b32 {sD}, {sD}, 7
        s_lshl_b32 {sD}, {sD}, 9
        s_lshr_b32 {sT3}, {sc}, 3
        s_lshl_b32 {sT3}, {sT3}, 7
        s_add_u32 {sD}, {sD}, {sT3}
        s_add_u32 {sD}, {sD}, {FLAG1}
        s_add_u32 {sT3}, {sPriv}, {EX2}
        v_add_u32 {vT[2]}, {sT3}, {vL16}
        v_xor_b32 {vT[3]}, 32768, {vT[2]}
        s_sub_u32 {sT0}, {sj2}, {sj}
        s_lshl_b32 {sT0}, {sT0}, 12
        s_add_u32 {sT0}, {sT0}, {sH2st}
        s_add_u32 {sH2st}, {sT0}, {WS_X1}
        s_lshl_b32 {sT3}, {sc}, 1
        s_add_u32 {sT3}, {sT3}, {sth}
        s_lshl_b32 {sC}, {sT3}, 12
        s_lshl_b32 {sT1}, {sj2}, 9
        s_add_u32 {sC}, {sC}, {sT1}
        s_lshl_b32 {sT1}, {snh}, 8
        s_add_u32 {sC}, {sC}, {sT1}
        s_add_u32 {sC}, {sC}, {WS_STATS}
        v_lshlrev_b32 {vKh}, 3, {vL}
        """)
        p.wait(vm=t["w2"], lg0=True)
        p("s_barrier")
        p.mark("Bp2")
        t["l0"] = self.w3_loads(0, R2, o.get("l0_after", "Bp2"), 30, range(0, 12, 2)) + self.w3_loads(0, R2, "conv", 29, (12, 14))
        accX, accY = V_ACC, V_ACC + 16
        q = Seq()

        for ks in range(3):
            self.a_reads(q, V_A + 8 * ks + 4, vTrY, ks * 2048)
            self.a_reads(q, V_A + 8 * ks, vTrX, ks * 2048)
        self.stage_conv_k(q)
        for ks in range(13):
            z = ks == 0
            A, B, N = V_A + 8 * (ks % 4), V_B + 4 * ks, V_A + 8 * ((ks + 3) % 4)
            q(f"v_mfma_f32_32x32x16_bf16 {vr(accY, 16)}, {vr(A + 4, 4)}, {vr(B, 4)}, {'0' if z else vr(accY, 16)}")
            self.a_reads(q, N + 4, vTrY, (ks + 3) * 2048)
            q(f"v_mfma_f32_32x32x16_bf16 {vr(accX, 16)}, {vr(A, 4)}, {vr(B, 4)}, {'0' if z else vr(accX, 16)}")
            self.a_reads(q, N, vTrX, (ks + 3) * 2048)
        for ks in range(13, 16):
            q(f"v_mfma_f32_32x32x16_bf16 {vr(accY, 16)}, {vr(V_A + 8 * (ks % 4) + 4, 4)}, {vr(V_B + 4 * ks, 4)}, {vr(accY, 16)}")
        for ks in range(13, 16):
            q(f"v_mfma_f32_32x32x16_bf16 {vr(accX, 16)}, {vr(V_A + 8 * (ks % 4), 4)}, {vr(V_B + 4 * ks, 4)}, {vr(accX, 16)}")
        pub, pl, lim = Seq(), Seq(), Seq()
        lim.mark(limit=o.get("lim_p2", 1300))
        self.poll_issue(pl, vPw, vKv, sD)
        p.extend(weave(q, [(16, lim), (o.get("kvt_poll_at", 30), pl)] + self.dense("a5_", (0, 1, 8, 16, 24, 32))))
        for g in range(4):
            p(f"ds_write_b128 {vT[2]}, {vr(accY + 4 * g, 4)} offset:{g * 1024}")
        p.mark(limit=o.get("lim_e2", 1100))
        self.stamp(p, "p2 mfma")
        p.wait(lg0=True)
        p("s_barrier")
        p.mark("B2")
        t["l1"] = self.w3_loads(1, R0, "B2", 31)
        for g in range(4):
            p(f"ds_read_b128 {vr(accY + 4 * g, 4)}, {vT[3]} offset:{g * 1024}")
        for i in range(8):
            p(f"v_dot2c_f32_bf16 {vr(accX + 2 * i)}, {sOneLo}, {vr(V_XRES + i)}")
            p(f"v_dot2c_f32_bf16 {vr(accX + 2 * i + 1)}, {sOneHi}, {vr(V_XRES + i)}")
        for x in range(0, 16, 2):
            p(f"v_pk_add_f32 {vr(accX + x, 2)}, {vr(accX + x, 2)}, {vr(accY + x, 2)}")
        for i in range(8):
            p(f"v_cvt_pk_bf16_f32 {vr(V_X1P + i)}, {vr(accX + 2 * i)}, {vr(accX + 2 * i + 1)}")
        s0 = p(f"buffer_store_dwordx4 {vr(V_X1P, 4)}, {vL16}, {sWS}, {sH2st} offen sc1")
        s1 = p(f"buffer_store_dwordx4 {vr(V_X1P + 4, 4)}, {vL16}, {sWS}, {sH2st} offen offset:1024 sc1")
        self.dot_stats(p, list(range(V_X1P, V_X1P + 8)), True)
        self.fold_stats(p)
        s2 = self.masked(p, "0xffffffff", f"buffer_store_dwordx2 {vr(V_TMP, 2)}, {vKh}, {sWS}, {sC} offen sc1")
        t["x1"] = [s0, s1, s2]
        self.stamp(p, "x1 stored")

    def conv(self, p, t):
        o = self.opt
        p(f"""
        s_lshl_b32 {sT0}, {sj}, 6
        s_lshl_b32 {sT1}, {sc}, 1
        s_add_u32 {sT0}, {sT0}, {sT1}
        s_add_u32 {sT0}, {sT0}, {sth}
        s_lshl_b32 {sT0}, {sT0}, 12
        s_lshl_b32 {sT1}, {skh}, 11
        s_add_u32 {sT0}, {sT0}, {sT1}
        s_add_u32 {sT0}, {sT0}, {WS_KVT}
        s_mul_i32 {sT2}, {sth}, {UCH}
        s_add_u32 {sT1}, {sT1}, {sT2}
        """)
        self.poll_check(p, vPw, vKv, sD, 1)
        self.stamp(p, "kvt seen")
        g = Seq()
        g(f"s_add_u32 m0, {sT1}, {CU + 32}")
        self.dma(g, vL16, sWS, sT0, 0, "sc1").note = "hand"
        u = self.dma(g, vL16, sWS, sT0, 1024, "sc1")
        u.note = "hand"
        p.atomic(g)
        p.mark("x1_st", limit=o.get("lim_conv", 1800), depth=o.get("depth2", 10))
        vA = [vXs[1], vXs[2], vXs[3], vXr[0], vXr[1]]
        vB = vXr[2]
        a, b = vT[0], vT[1]
        p(f"""
        v_and_b32 {a}, 15, {vL}
        v_lshrrev_b32 {b}, 4, {vL}
        v_lshlrev_b32 {b}, 4, {b}
        s_lshl_b32 {sT1}, {skh}, 8
        s_add_u32 {sT2}, {sT2}, {sT1}
        s_add_u32 {sT2}, {sT2}, {CU + 480}
        v_lshlrev_b32 {vB}, 5, {a}
        v_sub_u32 {vB}, {b}, {vB}
        v_add_u32 {vB}, {sT2}, {vB}
        v_add_u32 {vA[0]}, 1, {a}
        v_and_b32 {vA[0]}, 30, {vA[0]}
        v_lshl_add_u32 {vA[0]}, {vA[0]}, 1, {b}
        v_and_b32 {a}, 1, {a}
        v_xor_b32 {a}, 1, {a}
        v_mul_u32_u24 {a}, {KCOPY}, {a}
        s_mul_i32 {sT0}, {sth}, {KCH}
        s_add_u32 {sT0}, {sT0}, {sT1}
        s_add_u32 {sT0}, {sT0}, {CK}
        v_add3_u32 {vA[0]}, {vA[0]}, {a}, {sT0}
        """)
        for i in range(1, 4):
            p(f"v_add_u32 {vA[i]}, {1024 * i}, {vA[0]}")
        p(f"s_cmp_eq_u32 {skh}, 0")
        p(f"s_cselect_b32 {sT0}, 4096, 0")
        p(f"v_add_u32 {vA[4]}, {sT0}, {vA[0]}")
        p(f"""
        v_and_b32 {vT[3]}, 7, {vL}
        v_bfe_u32 {vT[4]}, {vL}, 3, 1
        v_lshlrev_b32 {vT[3]}, 9, {vT[3]}
        v_lshl_add_u32 {vPoll}, {vT[4]}, 8, {vT[3]}
        s_lshl_b32 {sT2}, {ssc}, 1
        s_add_u32 {sT2}, {sT2}, {skh}
        s_lshl_b32 {sC}, {sT2}, 12
        s_lshl_b32 {sT1}, {sth}, 7
        s_add_u32 {sC}, {sC}, {sT1}
        s_mul_i32 {sH2st}, {sT2}, 229376
        s_lshl_b32 {sT1}, {sm}, 12
        s_add_u32 {sH2st}, {sH2st}, {sT1}
        s_lshl_b32 {sT1}, {sth}, 10
        s_add_u32 {sH2st}, {sH2st}, {sT1}
        s_add_u32 {sH2st}, {sH2st}, {WS_H2}
        s_add_u32 {sH2st}, {sH2st}, {sOob}
        s_lshl_b32 {sT2}, {ssc}, 2
        s_add_u32 {sT2}, {sT2}, {sw}
        s_lshl_b32 {sX1ld}, {sT2}, 15
        s_add_u32 {sX1ld}, {sX1ld}, {WS_X1}
        s_add_u32 {sX1ld}, {sX1ld}, {sOob}
        s_lshl_b32 {sStld}, {sT2}, 12
        s_add_u32 {sStld}, {sStld}, {WS_STATS}
        s_add_u32 {sStld}, {sStld}, {sOob}
        s_add_u32 {srot}, {sw}, {sj}
        s_and_b32 {srot}, {srot}, 3
        """)
        self.set_rot(p)
        for pos in range(4):
            p(f"s_lshl_b32 {sQ[pos]}, {sR[pos]}, 6")
            p(f"s_add_u32 {sQ[pos]}, {sQ[pos]}, {sX1ld}")
            p(f"s_add_u32 {sV4[pos]}, {sQ[pos]}, 4096")
        self.late_addrs(p)
        self.publish(p, t["x1"], 2, FLAG0)
        p.mark("x1_flag")
        self.stamp(p, "x1 flag")
        p.wait(vm=u, lg0=True)
        p("s_barrier")
        p.mark("conv")
        self.stamp(p, "conv start")
        self.w4_park(1, A_PARK, o.get("park2_after", "conv2"), 40)
        acc, AF = V_ACC + 32, V_A
        BF = [V_B, V_B + 32]
        BX = V_TMP
        q = Seq()
        order = (0, 7, 1, 6, 2, 5, 3, 4)
        rows = [(0, 8)] + [(rho, aa) for rho in range(4) for aa in order]

        def rdA(n):
            rho, aa = rows[n]
            of = (64 * rho + 512 * (aa & 1)) // 4
            q(f"ds_read2_b32 {vr(AF + 4 * (n % 8), 2)}, {vA[aa >> 1]} offset0:{of} offset1:{of + 1}")
            q(f"ds_read2_b32 {vr(AF + 4 * (n % 8) + 2, 2)}, {vA[aa >> 1]} offset0:{of + 2} offset1:{of + 3}")

        def rdB(bb, rho):
            d = BX if bb < 0 else BF[rho & 1] + 4 * bb
            q(f"ds_read_b128 {vr(d, 4)}, {vB} offset:{3584 - 512 * bb + 64 * rho}")

        rdA(0)
        rdB(-1, 0)
        rdA(1)
        for bb in range(7, 1, -1):
            rdB(bb, 0)
        late = [lambda: rdB(1, 0), lambda: rdB(0, 0), lambda: rdA(2), lambda: rdA(3), lambda: rdA(4)]
        started = set()
        for n, (rho, aa) in enumerate(rows):
            bs = list(range(7 - aa, -1, -1)) + ([-1] if rho == 0 and aa > 0 else [])
            for k, bb in enumerate(bs):
                d = vr(acc + 4 * (aa + bb), 4)
                B = BX if bb < 0 else BF[rho & 1] + 4 * bb
                q(f"v_mfma_f32_16x16x32_bf16 {d}, {vr(AF + 4 * (n % 8), 4)}, {vr(B, 4)}, {d if aa + bb in started else '0'}")
                started.add(aa + bb)
                if late:
                    late.pop(0)()
                if k == 0 and n + 5 < len(rows):
                    rdA(n + 5)
                if k == len(bs) // 2 and n > 0 and rho < 3:
                    rdB(7 - (n - 1) % 8, rho + 1)
        pl, pk, m2 = Seq(), Seq(), Seq()
        pl.mark(limit=o.get("lim_x1poll", 1100))
        pp = o.get("x1_poll_at", 60)
        pl2 = Seq()
        self.poll_issue(pl2, vPv, vPoll, sC)
        pl2.mark(limit=o.get("lim_x1poll2", 1100))
        self.poll_check(pk, vPv, vPoll, sC, 2)
        pk.mark("x1_seen", limit=self.opt.get("lim_def", 1500))
        self.stamp(pk, "x1 seen")
        m2.mark("conv2")
        for ks in range(0, 32, 2):
            g = Seq()
            base = (sV4 if ks % 8 >= 4 else sQ)[ks // 8]
            for x in (ks, ks + 1):
                g(f"buffer_load_dwordx4 {ar(4 * x, 4)}, {vL16}, {sWS}, {base} offen offset:{(x % 4) * 1024} sc1")
            self.bg(g, "hand", "x1_seen", 12)
        plan = [(max(pp - 20, 1), pl), (pp, pl2), (o.get("x1_check_at", 96), pk), (o.get("conv2_at", 1), m2)] + self.dense("c", range(1, 152, 12))
        ad = Seq()
        ad(f"""
        s_lshl_b32 {sT0}, {sw}, 12
        s_add_u32 {sT0}, {sT0}, {EXC}
        v_add_u32 {vT[3]}, {sT0}, {vL16}
        v_xor_b32 {a}, 8192, {vT[3]}
        v_and_b32 {b}, 15, {vL}
        v_lshlrev_b32 {b}, 5, {b}
        v_lshrrev_b32 {vT[2]}, 4, {vL}
        v_lshl_add_u32 {b}, {vT[2]}, 3, {b}
        s_mul_i32 {sT1}, {sth}, {UCH}
        s_add_u32 {sT1}, {sT1}, {CU + 4120 - 1536}
        s_lshl_b32 {sT2}, {skh}, 11
        s_sub_u32 {sT1}, {sT1}, {sT2}
        v_sub_u32 {vT[2]}, {sT1}, {b}
        s_xor_b32 {sT0}, {sT0}, 8192
        v_add_u32 {b}, {sT0}, {b}
        v_lshlrev_b32 {vr(V_SSM + 5)}, 16, {vr(V_SSM + 5)}
        v_and_b32 {vT[4]}, 8, {vL}
        v_cmp_eq_u32 vcc, 0, {vT[4]}
        """)
        sel = Seq()
        sel(f"v_and_b32 {vT[4]}, 8, {vL}")
        sel(f"v_cmp_eq_u32 vcc, 0, {vT[4]}")
        for n in range(4):
            sel(f"v_cndmask_b32 {vr(V_SSM + n)}, {vr(V_ONES + n)}, {vZero}, vcc")
        for n in range(4):
            sel(f"v_cndmask_b32 {vr(V_ONES + n)}, {vZero}, {vr(V_ONES + n)}, vcc")
        sel(f"""
        v_lshlrev_b32 {vT[5]}, 2, {vL}
        v_add_u32 {vT[5]}, {ST}, {vT[5]}
        s_lshl_b32 {sT0}, {sw}, 8
        v_add_u32 {vT[6]}, {sT0}, {vT[5]}
        s_add_u32 {sT0}, {sT0}, {ST + 3072}
        v_add_u32 {vCsA}, {sT0}, {vCsA}
        """)
        ad.items = ad.items[:-2]
        p.extend(weave(q, fill(q, [(104, 126, split(ad)), (128, 150, split(sel))], plan)))
        self.stamp(p, "conv mfma")
        p.wait(vm=t["l0"])
        x = Seq()
        hi, join = self.label("convhi"), self.label("convjoin")
        x("s_barrier")
        t["ph1"] = self.behead(self.p3_phase(R2, V_ACC, V_ACC + 16, V_TMP))
        x.extend(t["ph1"][0])
        x(f"s_cmp_lg_u32 {skh}, 0")
        x(f"s_cbranch_scc1 {hi}")
        for half, tail in ((16, f"s_branch {join}\n{hi}:"), (0, f"{join}:")):
            for n in range(4):
                x(f"ds_write_b128 {vT[3]}, {vr(acc + half + 4 * n, 4)} offset:{n * 1024}", count=(half == 0))
            x("s_waitcnt lgkmcnt(0)")
            x("s_barrier")
            for n in range(4):
                x(f"ds_read_b128 {vr(acc + half + 4 * n, 4)}, {a} offset:{n * 1024}", count=(half == 0))
            x(tail)
        t["cx"] = x.items[-2]
        p.atomic(x)
        p.mark("conv_end")
        self.stamp(p, "conv done")
        e = Seq()
        uu, tmp = V_B + 16, V_B + 32
        for n in range(4):
            e(f"ds_read_b64 {vr(uu + 2 * n, 2)}, {vT[2]} offset:{1536 - 512 * n}")
        e.wait(lg=t["cx"])
        for n in range(16):
            e(f"v_add_f32 {vr(acc + n)}, {vr(acc + n)}, {vr(acc + 16 + n)}")
        for n in range(4):
            e(f"v_and_b32 {vr(tmp)}, {sHi}, {vr(uu + 2 * n + 1)}")
            e(f"v_lshlrev_b32 {vr(tmp + 1)}, 16, {vr(uu + 2 * n + 1)}")
            e(f"v_and_b32 {vr(tmp + 2)}, {sHi}, {vr(uu + 2 * n)}")
            e(f"v_lshlrev_b32 {vr(tmp + 3)}, 16, {vr(uu + 2 * n)}")
            for r in range(4):
                e(f"v_fmac_f32 {vr(acc + 4 * n + r)}, {vr(V_SSM + 5)}, {vr(tmp + r)}")
        for n in range(8):
            e(f"v_cvt_pk_bf16_f32 {vr(uu + n)}, {vr(acc + 2 * n)}, {vr(acc + 2 * n + 1)}")
        for n in range(4):
            e(f"ds_write_b64 {b}, {vr(uu + 2 * n, 2)} offset:{n * 512}")
        e(f"ds_read_b128 {vr(uu + 8, 4)}, {a}")
        e(f"ds_read_b128 {vr(uu + 12, 4)}, {a} offset:1024")
        e(f"""
        v_lshrrev_b32 {b}, 3, {vL}
        v_and_b32 {vT[2]}, 7, {vL}
        v_lshlrev_b32 {vT[2]}, 4, {vT[2]}
        v_lshl_add_u32 {b}, {b}, 13, {vT[2]}
        s_lshl_b32 {sT2}, {sj}, 18
        s_lshl_b32 {sT1}, {skh}, 17
        s_add_u32 {sT2}, {sT2}, {sT1}
        s_lshl_b32 {sT1}, {sc}, 1
        s_add_u32 {sT1}, {sT1}, {sth}
        s_lshl_b32 {sT1}, {sT1}, 7
        s_add_u32 {sT2}, {sT2}, {sT1}
        s_add_u32 {sT2}, {sT2}, {WS_YT}
        s_add_u32 {sT1}, {sT2}, 65536
        """)
        s0 = e(f"buffer_store_dwordx4 {vr(uu + 8, 4)}, {b}, {sWS}, {sT2} offen sc1")
        s1 = e(f"buffer_store_dwordx4 {vr(uu + 12, 4)}, {b}, {sWS}, {sT1} offen sc1")
        t["y"], t["conv_epi"] = [s0, s1], e

    @staticmethod
    def behead(q):
        n = next(i for i, it in enumerate(q.items) if it.kind in ("mfma32", "mfma16"))
        while q.items[n - 1].kind == "wait":
            n -= 1
        head, body = Seq(), Seq()
        head.items, body.items = q.items[:n], q.items[n:]
        return head, body

    def p3_phase(self, base, accA, accB, cs):
        q = Seq()
        regs = [(vXr[0], vXr[1]), (vXr[2], vXr[3])]

        def setblk(blk):
            r0, r1 = regs[blk & 1]
            q(f"s_lshl_b32 {sT0}, {sR[blk]}, 7")
            q(f"s_add_u32 {sT0}, {sT0}, {base}")
            q(f"v_add_u32 {r0}, {sT0}, {vTr0}")
            q(f"v_xor_b32 {r1}, 64, {r0}")

        def rd(ks, half):
            if ks < 32:
                tok[ks] = self.a_reads(q, V_A + 8 * (ks % 4) + 4 * half, regs[(ks >> 3) & 1][half], (ks & 7) * 2048)

        tok = {}
        setblk(0)
        ra = self.opt.get("ra2", 3)
        for ks in range(ra):
            rd(ks, 0)
            rd(ks, 1)
        setblk(1)
        for ks in range(32):
            A = V_A + 8 * (ks % 4)
            z = ks == 0
            q.wait(lg=tok[ks])
            q(f"v_mfma_f32_32x32x16_bf16 {vr(accA, 16)}, {vr(A, 4)}, {ar(4 * ks, 4)}, {'0' if z else vr(accA, 16)}")
            rd(ks + ra, 0)
            q(f"v_mfma_f32_32x32x16_bf16 {vr(accB, 16)}, {vr(A + 4, 4)}, {ar(4 * ks, 4)}, {'0' if z else vr(accB, 16)}")
            rd(ks + ra, 1)
            if ks < 8:
                q(f"v_mfma_f32_16x16x32_bf16 {vr(cs, 4)}, {vr(V_ONES, 4)}, {vr(A, 4)}, {'0' if z else vr(cs, 4)}")
                q(f"v_mfma_f32_16x16x32_bf16 {vr(cs, 4)}, {vr(V_SSM, 4)}, {vr(A + 4, 4)}, {vr(cs, 4)}")
            if ks in (8, 16):
                setblk(ks // 8 + 1)
        return q

    def p3_tile(self, base, half, acc, cs=None):
        q = Seq()
        regs = [vXr[0], vXr[2]]
        tok = {}

        def setblk(blk):
            q(f"s_lshl_b32 {sT0}, {sR[blk]}, 7")
            q(f"s_add_u32 {sT0}, {sT0}, {base}")
            q(f"v_add_u32 {regs[blk & 1]}, {sT0}, {vTr0}")
            if half:
                q(f"v_xor_b32 {regs[blk & 1]}, 64, {regs[blk & 1]}")

        def rd(ks):
            if ks < 32:
                tok[ks] = self.a_reads(q, V_A + 4 * (ks % 6), regs[(ks >> 3) & 1], (ks & 7) * 2048)

        setblk(0)
        X = V_ACC + 32
        if cs is not None:
            q(f"v_xor_b32 {vXr[1]}, 64, {vXr[0]}")
            for ks in range(3):
                self.a_reads(q, X + 4 * ks, vXr[1], ks * 2048)
        ra = self.opt.get("ra1", 5)
        for ks in range(ra):
            rd(ks)
        setblk(1)
        for ks in range(32):
            A = V_A + 4 * (ks % 6)
            q(f"v_mfma_f32_32x32x16_bf16 {vr(acc, 16)}, {vr(A, 4)}, {ar(4 * ks, 4)}, {'0' if ks == 0 else vr(acc, 16)}")
            rd(ks + ra)
            if cs is not None and ks < 8:
                q(f"v_mfma_f32_16x16x32_bf16 {vr(cs, 4)}, {vr(V_ONES, 4)}, {vr(A, 4)}, {'0' if ks == 0 else vr(cs, 4)}")
            if cs is not None and ks < 8:
                if ks + 3 < 8:
                    self.a_reads(q, X + 4 * ((ks + 3) % 4), vXr[1], (ks + 3) * 2048)
                q(f"v_mfma_f32_16x16x32_bf16 {vr(cs, 4)}, {vr(V_SSM, 4)}, {vr(X + 4 * (ks % 4), 4)}, {vr(cs, 4)}")
            if ks in (6, 14):
                setblk(ks // 8 + 2)
            if half:
                q.mark(f"t3_{ks}")
        return q

    def cs_exchange(self, table, cs, dstA, dstB):
        w, r, a, b = Seq(), Seq(), Seq(), Seq()
        tok = w(f"ds_write_b32 {vT[6]}, {vr(cs)} offset:{table - ST}")
        r.wait(lg=tok)
        r("s_barrier")
        for n in range(4):
            r(f"ds_read_b32 {vr(cs + n)}, {vT[5]} offset:{table - ST + n * 256}")
        r(f"v_add_f32 {vr(cs)}, {vr(cs)}, {vr(cs + 1)}")
        r(f"v_add_f32 {vr(cs + 2)}, {vr(cs + 2)}, {vr(cs + 3)}")
        r(f"v_add_f32 {vr(cs)}, {vr(cs)}, {vr(cs + 2)}")
        r(f"ds_write_b32 {vT[6]}, {vr(cs)} offset:3072")
        for n in range(4):
            a(f"ds_read_b128 {vr(dstA + 4 * n, 4)}, {vCsA} offset:{n * 32}")
            b(f"ds_read_b128 {vr(dstB + 4 * n, 4)}, {vCsA} offset:{128 + n * 32}")
        return w, r, a, b

    def gelu_plain(self, p, acc, cs, tmp, out):
        K1, K2, SD, NM = vr(V_KK), vr(V_KK + 1), vr(V_SM), vr(V_SM + 1)
        for b in range(0, 16, 4):
            xs = range(b, b + 4)
            T = lambda x: vr(tmp + (x & 7))
            for x in xs:
                p(f"v_fmac_f32 {vr(acc + x)}, {vr(cs + x)}, {NM}")
            for x in xs:
                p(f"v_mul_f32 {T(x)}, {vr(acc + x)}, {vr(acc + x)}")
            for x in xs:
                p(f"v_fma_f32 {T(x)}, {T(x)}, {K2}, {K1}")
            for x in xs:
                p(f"v_mul_f32 {T(x)}, {T(x)}, {vr(acc + x)}")
            for x in xs:
                p(f"v_exp_f32 {T(x)}, {T(x)}")
            for x in xs:
                p(f"v_fma_f32 {T(x)}, {T(x)}, {SD}, {SD}")
            for x in xs:
                p(f"v_rcp_f32 {T(x)}, {T(x)}")
            for x in xs:
                p(f"v_mul_f32 {T(x)}, {T(x)}, {vr(acc + x)}")
            for x in (b, b + 2):
                p(f"v_cvt_pk_bf16_f32 {vr(out + x // 2)}, {T(x)}, {T(x + 1)}")

    def h2_tile(self, acc, cs16, out, plain=False):
        q = Seq()
        (self.gelu_plain if plain else self.gelu_packed)(q, acc, cs16, V_TMP + 16, out)
        s0 = q(f"buffer_store_dwordx4 {vr(out, 4)}, {vL16}, {sWS}, {sH2st} offen sc1")
        s1 = q(f"buffer_store_dwordx4 {vr(out + 4, 4)}, {vL16}, {sWS}, {sH2st} offen offset:2048 sc1")
        q(f"s_add_u32 {sH2st}, {sH2st}, 57344")
        q("s_nop 0")
        return q, [s0, s1]

    def h2_loads(self, piece, reg, prio, freed=None):
        for u in range(7):
            g = Seq()
            g(f"s_add_u32 {sB}, {sH2ld}, {piece * 57344 + u * 2048}")
            for i in range(2):
                g(f"buffer_load_dwordx4 {reg(8 * u + 4 * i)}, {vXs[1 + i]}, {sWS}, {sB} offen sc1")
            self.bg(g, "hand", (f"h2_seen{piece}", f"t3_{freed + 2 * u + 1}") if freed is not None else f"h2_seen{piece}", prio)

    def late_addrs(self, p):
        a, b = vT[0], vT[1]
        o = self.opt
        p(f"""
        s_lshl_b32 {sYfl}, {sj2}, 9
        s_lshr_b32 {sT1}, {sc}, 4
        s_lshl_b32 {sT1}, {sT1}, 8
        s_add_u32 {sYfl}, {sYfl}, {sT1}
        s_add_u32 {sYfl}, {sYfl}, {FLAG1}
        v_and_b32 {a}, 3, {vL}
        s_mul_i32 {sT1}, {sth}, 3
        v_add_u32 {a}, {sT1}, {a}
        v_add_u32 {b}, {8 - self.idle}, {a}
        v_lshrrev_b32 {b}, 3, {b}
        v_add_u32 {a}, {a}, {b}
        v_bfe_u32 {b}, {vL}, 2, 1
        v_lshlrev_b32 {a}, 9, {a}
        v_lshl_add_u32 {vH2fl}, {b}, 7, {a}
        s_lshr_b32 {sT2}, {sc}, 3
        s_lshl_b32 {sT2}, {sT2}, 3
        s_lshl_b32 {sT1}, {skh}, 2
        s_add_u32 {sT2}, {sT2}, {sT1}
        s_bfe_u32 {sT1}, {sc}, 0x20001
        s_add_u32 {sT2}, {sT2}, {sT1}
        s_lshl_b32 {sT2}, {sT2}, 12
        s_and_b32 {sT1}, {sc}, 1
        s_lshl_b32 {sT1}, {sT1}, 8
        s_add_u32 {sH2fl}, {sT2}, {sT1}
        s_mul_i32 {sT2}, {sw}, {7 * 2048}
        s_mul_i32 {sT1}, {sc}, 229376
        s_add_u32 {sT1}, {sT1}, {sT2}
        s_add_u32 {sH2ld}, {sT1}, {WS_H2 + (WS_SIZE if o.get("dbg_noh2") else 0)}
        s_lshl_b32 {sT2}, {skh}, 15
        s_sub_u32 {sT2}, {sPriv}, {sT2}
        v_add_u32 {vTrX}, {sT2}, {vTrX}
        v_add_u32 {vTrY}, {sT2}, {vTrY}
        v_lshrrev_b32 {a}, 5, {vL}
        v_lshl_add_u32 {vKv}, {a}, 7, {vKv}
        v_lshlrev_b32 {a}, 10, {a}
        v_bfe_u32 {b}, {vL}, 2, 2
        v_lshl_add_u32 {a}, {b}, 7, {a}
        v_bfe_u32 {b}, {vL}, 4, 1
        v_lshl_add_u32 {a}, {b}, 5, {a}
        v_and_b32 {b}, 3, {vL}
        v_lshl_add_u32 {a}, {b}, 3, {a}
        s_lshl_b32 {sT2}, {snh}, 12
        s_lshl_b32 {sT1}, {sth}, 6
        s_add_u32 {sT2}, {sT2}, {sT1}
        s_add_u32 {sT2}, {sT2}, {YB}
        v_add_u32 {vY}, {sT2}, {a}
        s_lshl_b32 {sYld}, {sj2}, 5
        s_add_u32 {sYld}, {sYld}, {sc}
        s_lshl_b32 {sYld}, {sYld}, 13
        s_lshl_b32 {sT1}, {sw}, 11
        s_add_u32 {sYld}, {sYld}, {sT1}
        s_add_u32 {sYld}, {sYld}, {WS_YT}
        s_add_u32 {sYlds}, {sT1}, {YB}
        s_lshl_b32 {sGld}, {sc}, 1
        s_add_u32 {sGld}, {sGld}, {sth}
        s_lshl_b32 {sGld}, {sGld}, 11
        s_add_u32 {sGld}, {sGld}, {WS_GATE}
        """)

    def p3(self, p, t):
        o = self.opt
        T0, T1, T2, T3 = V_ACC, V_ACC + 16, V_ACC, V_ACC + 32
        cs, stt = V_TMP, V_B
        a, b = vT[0], vT[1]
        p.mark("p3")
        for i in range(0, 8, 2):
            g = Seq()
            for x in (i, i + 1):
                g(f"buffer_load_dwordx2 {vr(stt + 2 * x, 2)}, {vKh}, {sWS}, {sStld} offen offset:{x * 512} sc1")
            self.bg(g, "few", "p3", o.get("prio_stats", 11))
        ypub, lim, ln = Seq(), Seq(), Seq()
        self.publish(ypub, t["y"], 2, FLAG1)
        lim.mark(limit=o.get("lim_g0", 1100))
        for x in (0, 1):
            ln(f"v_add_f32 {vr(stt + x)}, {vr(stt + x)}, {vr(stt + 2 + x)}")
        for i in range(1, 4):
            for x in (0, 1):
                ln(f"v_add_f32 {vr(stt + x)}, {vr(stt + x)}, {vr(stt + 4 * i + x)}")
                ln(f"v_add_f32 {vr(stt + x)}, {vr(stt + x)}, {vr(stt + 4 * i + 2 + x)}")
        self.half_sum(ln, vr(stt), vr(stt + 2))
        self.half_sum(ln, vr(stt + 1), vr(stt + 3))
        self.ln_consts(ln, vr(stt), vr(stt + 1))
        csA, csB = V_B + 44, V_ACC + 48
        cw, cr, ca, cb = self.cs_exchange(ST + 2048, cs, csA, csB)
        q = t["ph1"][1]
        fixed = [(36, cw), (o.get("ypub_at", 76), ypub), (o.get("lim_g0_at", 66), lim)] + self.dense("i", range(1, 80, self.opt.get("dstep", 8)))
        streams = [(2, 46, split(t["conv_epi"])), (47, 53, split(cr)), (54, 72, split(ln)), (73, 78, split(ca) + split(cb))]
        p.extend(weave(q, fill(q, streams, fixed)))
        self.stamp(p, "p3 t01")
        q0, st0 = self.h2_tile(T0, csA, V_TMP)
        p.extend(q0)
        p.mark(limit=o.get("lim_g1b", 1100))
        self.stamp(p, "h2 p0 st")
        p.wait(vm=t["l1"])
        p("s_barrier")
        p.mark("B3")
        head2, body2 = self.behead(self.p3_tile(R0, 0, V_ACC, cs))
        p.extend(head2)
        q1, st1 = self.h2_tile(T1, csB, V_TMP + 8)
        p.extend(q1)
        p.mark(limit=self.opt.get("lim_def", 1500))
        p(f"""
        s_lshl_b32 {sT2}, {sth}, 10
        v_add_u32 {vXs[1]}, {sT2}, {vL16}
        v_xor_b32 {vXs[2]}, 1024, {vXs[1]}
        v_add_u32 {vXs[3]}, {sPriv}, {vL16}
        v_lshlrev_b32 {b}, 2, {vL}
        """)
        self.stamp(p, "h2 p1 st")
        w0t = self.w4_loads(0, R2, "B3", 32)
        self.w4_park(2, A_PARK + 56, o.get("park3_after", "conv2"), 41)
        pub0, pub1, pub2, ypl, ypk, hpl, hpk, yd, gl, lim, lim2 = (Seq() for _ in range(11))
        self.publish(pub0, st0, 3, FLAG0)
        self.stamp(pub0, "h2 p0 flag")
        self.publish(pub1, st1, 4, FLAG0)
        self.poll_issue(ypl, vPw, vKv, sYfl)
        self.poll_check(ypk, vPw, vKv, sYfl, 2)
        yd(f"s_mov_b32 m0, {sYlds}")
        self.dma(yd, vL16, sWS, sYld, 0, "sc1")
        ytok = self.dma(yd, vL16, sWS, sYld, 1024, "sc1")
        ypk.atomic(yd)
        T2, T3, csA2, csB2 = V_ACC, V_ACC + 16, V_ACC + 32, V_ACC + 48
        cw, cr, ca, cb = self.cs_exchange(ST, cs, csA2, csB2)
        q = body2
        lim.mark(limit=o.get("lim_g2", 1100))
        fixed = [(o.get("pub0_at", 2), pub0), (o.get("pub1_at", 22), pub1), (28, cw), (o.get("lim_g2_at", 36), lim)]
        streams = [(32, 38, split(cr)), (40, 47, split(ca) + split(cb))]
        p.extend(weave(q, fill(q, streams, fixed + self.dense("j", range(1, 48, self.opt.get("dstep", 6))))))
        self.stamp(p, "p3 t2")
        self.poll_issue(p, vPv, vH2fl, sH2fl)
        p.extend(ypl)
        head3, body3 = self.behead(self.p3_tile(R0, 1, T3))
        p.extend(head3)
        q2, st2 = self.h2_tile(T2, csA2, V_TMP)
        p.extend(q2)
        self.stamp(p, "g2 done")
        p.mark(limit=self.opt.get("lim_def", 1500))
        self.publish(pub2, st2, 5, FLAG0)
        self.poll_check(hpk, vPv, vH2fl, sH2fl, 4)
        hpk.mark("h2_seen0")
        self.stamp(hpk, "h2 seen")
        self.h2_loads(0, lambda r: vr(V_B + r, 4), 20)
        hpk.mark("h2_seen1")
        hpk("s_nop 0")
        self.h2_loads(1, lambda r: ar(r, 4), 21, freed=0)
        gt = V_B + 56
        for i in range(8):
            gl(f"buffer_load_dword {vr(gt + i)}, {b}, {sWS}, {sGld} offen offset:{i * 256} sc1").note = "few"
        q = body3
        lim2.mark(limit=o.get("lim_g3", 1100))
        fixed = [(o.get("h2_check_at", 2), hpk), (o.get("y_check_at", 6), ypk), (o.get("pub2_at", 30), pub2), (o.get("lim_g3_at", 20), lim2)]
        p.extend(weave(q, fill(q, [], fixed + self.dense("k", range(1, 32, 4)))))
        self.stamp(p, "p3 t23")
        p.wait(vm=ytok)
        p("s_barrier")
        p.mark("B4")
        w1t = self.w4_loads(3, R0, "B4", o.get("prio_p3", 22.5))
        p(f"v_add_u32 {vXr[0]}, {R2}, {vTrX}")
        p(f"v_add_u32 {vXr[1]}, {R2}, {vTrY}")
        p(f"v_add_u32 {vXr[2]}, {R2}, {vXs[3]}")
        for n in range(o.get("ra4", 3)):
            p.wait(vm=w0t[n])
            for h in range(2):
                self.a_reads(p, V_A + 8 * n + 4 * h, vXr[h], n * 2048)
        q3, st3 = self.h2_tile(T3, csB2, V_TMP + 8)
        p.extend(q3)
        p.mark(limit=self.opt.get("lim_def", 1500))
        self.poll_issue(p, vPv, vH2fl, sH2fl)
        t["gl"] = gl
        a = vY
        self.stamp(p, "p3 done")
        bs = Seq()
        yy, base = V_TMP, V_TMP + 16
        for i in range(4):
            bs(f"ds_read_b64_tr_b16 {vr(yy + 2 * i, 2)}, {a} offset:{(i >> 1) * 2048 + (i & 1) * 512}")
        for i in range(1, 8):
            bs(f"v_add_f32 {vr(gt)}, {vr(gt)}, {vr(gt + i)}")
        self.half_sum(bs, vr(gt), vr(gt + 1))
        G, OM = vr(V_KK), vr(V_KK + 1)
        bs(f"v_mul_f32 {vr(gt)}, {fbits(-math.log2(math.e))}, {vr(gt)}")
        bs(f"v_exp_f32 {vr(gt)}, {vr(gt)}")
        bs(f"v_add_f32 {vr(gt)}, 1.0, {vr(gt)}")
        bs(f"v_rcp_f32 {G}, {vr(gt)}")
        bs(f"v_sub_f32 {OM}, 1.0, {G}")
        for i in range(8):
            for h, un in ((0, "v_lshlrev_b32 {d}, 16, {s}"), (1, "v_and_b32 {d}, " + sHi + ", {s}")):
                t0, t1, d = vr(gt + 2 * h), vr(gt + 2 * h + 1), vr(base + 2 * i + h)
                bs(un.format(d=t0, s=vr(yy + i)))
                bs(un.format(d=t1, s=vr(V_XRES + i)))
                bs(un.format(d=d, s=vr(V_X1P + i)))
                bs(f"v_mul_f32 {t0}, {t0}, {t1}")
                bs(f"v_mul_f32 {d}, {d}, {OM}")
                bs(f"v_fmac_f32 {d}, {t0}, {G}")
        t.update(st3=st3, w0t=w0t, w1t=w1t, base=base, bs=bs)

    def p4(self, p, t):
        o = self.opt
        acc = [V_ACC + 16 * i for i in range(4)]
        breg = [lambda r: vr(V_B + r, 4), lambda r: ar(r, 4), lambda r: ar(56 + r, 4), lambda r: vr(V_B + r, 4)]
        areg = [(vXr[0], vXr[1])] * 3 + [(vTrX, vTrY)]
        pub3 = Seq()
        self.publish(pub3, t["st3"], 6, FLAG0)
        un1, _ = self.w4_unpark_groups(A_PARK, vXr[2])
        un2, _ = self.w4_unpark_groups(A_PARK + 56, vXr[2])
        bs = split(t["bs"])
        a = vXr[2]
        q = Seq()
        steps = [(pc, u) for pc in range(4) for u in range(7)]

        def rd(n, halves=(0, 1)):
            pc, u = steps[n]
            if pc in (0, 3) and 0 in halves:
                q.wait(vm=t["w0t" if pc == 0 else "w1t"][u])
            for h in halves:
                self.a_reads(q, V_A + 8 * (n % 4) + 4 * h, areg[pc][h], u * 2048)

        def mfma(n, slot):
            pc, u = steps[n]
            A = V_A + 8 * (n % 4) + 4 * (slot & 1)
            B = breg[pc](8 * u + 4 * (slot >> 1))
            q(f"v_mfma_f32_32x32x16_bf16 {vr(acc[slot], 16)}, {vr(A, 4)}, {B}, {'0' if n == 0 else vr(acc[slot], 16)}")

        ra = o.get("ra4", 3)
        for n in range(24):
            for slot in range(4):
                mfma(n, slot)
                if slot < 2:
                    rd(n + ra, (slot,))
        if ra == 2:
            rd(26)
        mfma(24, 1)
        rd(27)
        for slot in (1, 2, 3, 0):
            for n in range(24, 28):
                if (n, slot) != (24, 1):
                    mfma(n, slot)
        pk2, pl3, pk3 = Seq(), Seq(), Seq()
        self.poll_check(pk2, vPv, vH2fl, sH2fl, 5)
        pk2.mark("h2_seen2")
        self.h2_loads(2, breg[2], 22)
        self.poll_issue(pl3, vPv, vH2fl, sH2fl)
        self.poll_check(pk3, vPv, vH2fl, sH2fl, 6)
        pk3.mark("h2_seen3")
        self.h2_loads(3, breg[3], 23)
        plan = [(o.get("pub3_at", 18), pub3), (o.get("h2p2_check", 16), pk2), (o.get("h2p3_poll", 44), pl3), (o.get("h2p3_check", 60), pk3)]
        plan += spread(split(t["gl"]), 30, 44)
        for n, gq in enumerate(un1 + un2):
            plan.append((4 * (n // 2) + 3 + (n & 1), gq))
        xa = Seq()
        xa(f"v_xor_b32 {vT[2]}, {2 << 14}, {a}")
        xa(f"v_xor_b32 {vT[3]}, {3 << 14}, {a}")
        xa(f"v_xor_b32 {vT[4]}, {1 << 14}, {a}")
        plan += [(90, xa)]
        for s in range(1, 4):
            w = Seq()
            for g in range(4):
                w(f"ds_write_b128 {a}, {vr(acc[s] + 4 * g, 4)} offset:{(s - 1) * 4096 + g * 1024}")
            plan += spread(split(w), 96 + 4 * s + 2, min(96 + 4 * s + 5, 112))
        for pc in range(3):
            sq = Seq()
            self.stamp(sq, f"p4 piece{pc}")
            plan.append((28 * (pc + 1), sq))
        p.extend(weave(q, fill(q, [(60, 94, bs)], plan + self.dense("p", range(1, 112, 4)))))
        self.stamp(p, "p4 piece3")
        p.wait(lg0=True)
        p("s_barrier")
        for s in range(1, 4):
            for g in range(4):
                p(f"ds_read_b128 {vr(acc[s] + 4 * g, 4)}, {vT[1 + s]} offset:{(s - 1) * 4096 + g * 1024}")
        base = t["base"]
        fl = o.get("out_flags", "")
        for half in (0, 8):
            for s in range(1, 4):
                for x in range(half, half + 8, 2):
                    p(f"v_pk_add_f32 {vr(acc[0] + x, 2)}, {vr(acc[0] + x, 2)}, {vr(acc[s] + x, 2)}")
            for x in range(half, half + 8, 2):
                p(f"v_pk_fma_f32 {vr(acc[0] + x, 2)}, {vr(acc[0] + x, 2)}, {vr(V_KK, 2)}, {vr(base + x, 2)} op_sel:[0,1,0] op_sel_hi:[1,1,1]")
            for i in range(half // 2, half // 2 + 4):
                p(f"v_cvt_pk_bf16_f32 {vr(V_TMP + i)}, {vr(acc[0] + 2 * i)}, {vr(acc[0] + 2 * i + 1)}")
            p(f"buffer_store_dwordx4 {vr(V_TMP + half // 2, 4)}, {vOut}, {sOUT}, 0 offen offset:{half * 4} {fl}")
        self.advance_epoch(p)
        self.stamp(p, "out issued")

    def write_stamps(self, p):
        if self.diag:
            p.wait(vm0=True)
            self.stamp(p, "end")
            p(f"""
            s_cmp_lg_u32 s2, {self.opt.get("diag_wg", 73)}
            s_cbranch_scc1 L_end
            s_sub_u32 s98, s98, s96
            s_mul_i32 s98, s98, {self.diag[2]}
            s_lshr_b32 s98, s98, {4 if len(self.diag) > 3 else 0}
            s_memrealtime s[96:97]
            s_waitcnt lgkmcnt(0)
            L_diag:
            s_memrealtime s[100:101]
            s_waitcnt lgkmcnt(0)
            s_sub_u32 s100, s100, s96
            s_cmp_lt_u32 s100, s98
            s_cbranch_scc1 L_diag
            """)
        if not self.profile:
            return
        p.wait(vm0=True)
        self.stamp(p, "end")
        p("s_memrealtime s[100:101]")
        p.wait(lg0=True)
        p("v_writelane_b32 v254, s100, 1")
        p(f"""
        s_lshl_b32 {sT0}, s2, 2
        s_add_u32 {sT0}, {sT0}, {sw}
        s_lshl_b32 {sT0}, {sT0}, 8
        s_add_u32 {sT0}, {sT0}, {WS_STAMP}
        v_lshlrev_b32 {vP2}, 2, {vL}
        """)
        p(f"buffer_store_dword v254, {vP2}, {sWS}, {sT0} offen")

    def build(self):
        p = self.p
        t = {}
        self.prologue(p)
        self.p1(p, t)
        self.a1(p, t)
        self.p2(p, t)
        self.conv(p, t)
        self.p3(p, t)
        self.p4(p, t)
        self.write_stamps(p)
        p("L_end:")
        p("s_endpgm")
        assert len(self.stamps) + self.npoll <= 62, len(self.stamps)
        classes = {"p1cold": (self.opt.get("s_p1cold", 230), self.opt.get("l_p1cold", 1400)), "p1l2": (75, 400)}
        classes.update(mall=(115, 900), hand=(105, 900))
        for k in ("mall", "hand", "cold"):
            if "s_" + k in self.opt:
                classes[k] = (self.opt["s_" + k], self.opt.get("l_" + k, 900))
        self.log = []
        p = schedule(p, [b for _, _, b in sorted(self.bgs, key=lambda e: e[:2])], classes, self.log, self.opt.get("split_bg", 1), self.opt.get("depth", 10))
        body, items = finalize(p)
        head = open(__file__.replace("gen.py", "header.txt")).read()
        text = head + f"; @launch grid=(256,1,1) block=(256,1,1) lds={LDS_SIZE}\n"
        text += f""".amdgcn_target "amdgcn-amd-amdhsa--gfx950"
.text
.globl {NAME}_kernel
.p2align 8
.type {NAME}_kernel,@function
{NAME}_kernel:
.set CODE_BYTES, L_code_end - L_pc - 4
"""
        text += body
        text += f"""L_code_end:
.section .rodata,"a"
.p2align 6
.amdhsa_kernel {NAME}_kernel
  .amdhsa_next_free_vgpr 512
  .amdhsa_next_free_sgpr 102
  .amdhsa_accum_offset 256
  .amdhsa_group_segment_fixed_size 0
  .amdhsa_kernarg_size 120
  .amdhsa_user_sgpr_count 2
  .amdhsa_user_sgpr_kernarg_segment_ptr 1
  .amdhsa_system_sgpr_workgroup_id_x 1
.end_amdhsa_kernel
"""
        return text


if __name__ == "__main__":
    prof = "--profile" in sys.argv
    out = [a for a in sys.argv[1:] if not a.startswith("--")]
    diag = [a[7:].split(",") for a in sys.argv if a.startswith("--diag=")]
    opt = {}
    for a in sys.argv:
        if a.startswith("--o:"):
            k, v = a[4:].split("=")
            opt[k] = int(v) if v.lstrip("-").isdigit() else v
    g = Gen(profile=prof, diag=diag[0] if diag else None, opt=opt)
    text = g.build()
    path = out[0] if out else f"cdna_kernels/{NAME}.s"
    open(path, "w").write(text)
    if prof:
        open(path + ".stamps", "w").write("\n".join(g.stamps))
    print("wrote", path, len(text), "bytes")
    if "--log" in sys.argv:
        print("  ".join(f"{n}={t}" for n, t in g.log))
```

```python
import math
import struct
import sys

from asmdsl import Seq, Bg, finalize, schedule, weave, spread, split, fill

NAME = "gated_mix__ssm_conv_h3__mixer_s_mlp__prompt"

FLAG0, FLAG1, WS_EPOCH = 0x0, 0x20000, 0x40000
WS_H, WS_X1, WS_H2, WS_KVT, WS_YT = 0x100000, 0x300000, 0x500000, 0xC00000, 0xE00000
WS_STATS, WS_GATE, WS_STAMP = 0x1000000, 0x1080000, 0x1100000
WS_SIZE = 0x1200000

R0, R1, R2, R3, R4 = 0, 32768, 65536, 98304, 131072
KB, VB, A1R = R4, R4 + 9216, R4 + 17408
ST = R4 + 28672
ST_STAT, ST_CS, ST_CS3 = ST, ST + 1024, ST + 1536
KCOPY, KCH = 4288, 8576
CK, CU, UCH = R4, R4 + 17152, 4928
EX2, EXC = R2 + 12288, R4
YB = R4
LDS_SIZE = 163840

sX, sK, sV, sSK, sW1, sW2, sW3, sW4, sOUT, sWS, sDBG = [f"s[{4 + 4 * i}:{7 + 4 * i}]" for i in range(11)]
pSH, pD, pG = "s[48:49]", "s[50:51]", "s[52:53]"
sw, sth, skh, snh, sc, sj, sm, ssc = [f"s{i}" for i in range(54, 62)]
srot, sja, sEp, sOnes, sHi = "s62", "s63", "s64", "s65", "s66"
sOneLo, sOneHi = "s44", "s45"
sT0, sT1, sT2, sT3, sCnt = "s67", "s68", "s69", "s70", "s71"
sU = [f"s{i}" for i in range(72, 79)]
sFlag, sPriv = "s79", "s80"
sWsrc, sWlds, sW3b, sB, sC, sD, sE, sOob = [f"s{i}" for i in range(81, 89)]
sR = ["s46", "s47", "s3", "s95"]
sH2st, sH2fl, sH2ld, sX1ld, sStld = [f"s{i}" for i in range(89, 94)]
sj2 = "s94"
sYfl, sYld, sYlds, sGld = "s8", "s9", "s10", "s11"
sW2src, sIdle = "s0", "s1"
sQ = ["s12", "s13", "s14", "s15"]
sV4 = ["s20", "s21", "s22", "s23"]

vL, vL16, vTrX, vTrY, vTr0, vWs1, vWs, vW3s = [f"v{i}" for i in range(1, 9)]
vW3s1 = "v0"
vXs = [f"v{i}" for i in range(9, 13)]
vXr = [f"v{i}" for i in range(13, 17)]
vPoll, vP2, vZero, vCsA = "v17", "v18", "v19", "v20"
vT = [f"v{i}" for i in range(21, 27)] + ["v253"]
V_KK, V_SM = 28, 30
V_XRES, V_X1P = 32, 40
V_B, V_ACC, V_A, V_TMP = 48, 112, 176, 208
V_ONES = 244
V_SSM = 232
vPv, vPw, vKv, vKh = "v248", "v249", "v250", "v251"
V_SK = 252
vL128 = "v243"
vOut = "v27"
vH2fl, vY = "v252", "v9"
A_W2, A_PARK = 0, 128


def vr(b, n=1):
    return f"v{b}" if n == 1 else f"v[{b}:{b + n - 1}]"


def ar(b, n=1):
    return f"a{b}" if n == 1 else f"a[{b}:{b + n - 1}]"


def fbits(x):
    return "0x%08x" % struct.unpack("<I", struct.pack("<f", x))[0]


C0 = math.sqrt(2.0 / math.pi)
GK1 = -2.0 * C0 * math.log2(math.e)
GK2 = GK1 * 0.044715
SPIN_LIMIT = 400000


class Gen:
    def __init__(self, profile=False, diag=None, opt=None):
        self.profile = profile
        self.opt = opt or {}
        self.diag = diag
        self.p = Seq()
        self.nlabel = 0
        self.npoll = 0
        self.idle = (3 - self.opt.get('j2', 1)) & 7
        self.bgs = []
        self.stamps = []

    def label(self, base):
        self.nlabel += 1
        return f"L_{base}_{self.nlabel}"

    def stamp(self, p, name):
        p.mark("@" + name)
        if self.diag and name in self.diag[:2]:
            r = 96 + 2 * self.diag.index(name)
            p(f"{'s_memtime' if len(self.diag) > 3 else 's_memrealtime'} s[{r}:{r + 1}]")
            p.wait(lg0=True)
        if not self.profile:
            return
        only = self.opt.get("stamps")
        if only and name not in ("start", "end") and name not in only.split(",") and not name[-1].isdigit():
            return
        i = len(self.stamps)
        self.stamps.append(name)
        q = Seq()
        q("s_memrealtime s[100:101]" if self.opt.get("rt") else "s_memtime s[100:101]")
        q.wait(lg0=True)
        q(f"v_writelane_b32 v254, s100, {i + 2}")
        p.atomic(q)

    def dma(self, p, vaddr, srd, soff, imm=0, flags="", count=True):
        off = f" offset:{imm}" if imm else ""
        return p(f"buffer_load_dwordx4 {vaddr}, {srd}, {soff} offen{off} {flags} lds", count)

    def bg(self, seq, cls, after, prio):
        b = Bg(seq, cls, after, prio)
        self.bgs.append((prio, len(self.bgs), b))
        return b

    def dma_pair(self, v0, v1, srd, src_lines, lds_reg, lds, flags=""):
        g = Seq()
        g(f"s_add_u32 m0, {lds_reg}, {lds}")
        g(src_lines)
        self.dma(g, v0, srd, sB, flags=flags)
        return g, self.dma(g, v1, srd, sB, 1024, flags=flags)

    def dense(self, tag, positions):
        plan = []
        if tag[0] in str(self.opt.get("dense", "")):
            for n in positions:
                q = Seq()
                self.stamp(q, f"{tag}{n}")
                plan.append((n, q))
        return plan

    def emit(self, p, groups):
        for g in groups:
            p.extend(g)

    def poll_issue(self, p, dst, vaddr, soff, srd=sWS):
        t = p(f"buffer_load_dword {dst}, {vaddr}, {srd}, {soff} offen sc1")
        t.note = "few"
        return t

    def poll_check(self, p0, dst, vaddr, soff, need):
        p = Seq()
        a, b = self.label("poll"), self.label("pdone")
        p(f"s_mov_b32 {sCnt}, {SPIN_LIMIT}")
        p(f"s_add_u32 {sE}, {sEp}, {need}")
        p(f"v_subrev_u32 {dst}, {sE}, {dst}")
        p(f"v_cmp_lt_u32 vcc, {6 - need}, {dst}")
        p(f"s_cbranch_vccz {b}")
        p(f"{a}:")
        p(f"s_sleep {self.opt.get('poll_sleep', 3)}")
        p(f"s_sub_u32 {sCnt}, {sCnt}, 1")
        p(f"buffer_load_dword {dst}, {vaddr}, {sWS}, {soff} offen sc1", count=False)
        p("s_waitcnt vmcnt(0)")
        p(f"v_subrev_u32 {dst}, {sE}, {dst}")
        p(f"v_cmp_lt_u32 vcc, {6 - need}, {dst}")
        p(f"s_cbranch_vccz {b}")
        p(f"s_cmp_lg_u32 {sCnt}, 0")
        p(f"s_cbranch_scc1 {a}")
        p(f"{b}:")
        if self.profile:
            self.npoll += 1
            p(f"s_sub_u32 {sCnt}, {SPIN_LIMIT}, {sCnt}")
            p(f"v_writelane_b32 v254, {sCnt}, {64 - self.npoll}")
        p0.atomic(p)

    def masked(self, p0, mask, text):
        p = Seq()
        p(f"s_mov_b64 exec, {mask}")
        t = p(text)
        p("s_mov_b64 exec, -1")
        p0.atomic(p)
        return t

    def publish(self, p, toks, value, area):
        p(f"s_add_u32 {sE}, {sEp}, {value}")
        p(f"v_mov_b32 {vP2}, {sE}")
        p(f"s_add_u32 {sE}, {sFlag}, {area}")
        p.wait(vm=toks)
        return self.masked(p, 1, f"buffer_store_dword {vP2}, {vZero}, {sWS}, {sE} offen sc1")

    def half_sum(self, p, reg, tmp):
        p(f"v_mov_b32 {tmp}, {reg}")
        p(f"v_permlane32_swap_b32 {reg}, {tmp}")
        p(f"v_add_f32 {reg}, {reg}, {tmp}")

    def a_reads(self, p, dst, vaddr, off, areg=False):
        f = ar if areg else vr
        p(f"ds_read_b64_tr_b16 {f(dst, 2)}, {vaddr} offset:{off}")
        return p(f"ds_read_b64_tr_b16 {f(dst + 2, 2)}, {vaddr} offset:{off + 512}")

    def ln_consts(self, p, vsum, vsq):
        p(f"v_mul_f32 {vr(V_SM + 1)}, {fbits(-1.0 / 512)}, {vsum}")
        p(f"v_mul_f32 {vsq}, {fbits(1.0 / 512)}, {vsq}")
        p(f"v_fma_f32 {vsq}, -{vr(V_SM + 1)}, {vr(V_SM + 1)}, {vsq}")
        p(f"v_max_f32 {vsq}, 0, {vsq}")
        p(f"v_add_f32 {vsq}, {fbits(1e-5)}, {vsq}")
        p(f"v_rsq_f32 {vsum}, {vsq}")
        p(f"v_sqrt_f32 {vr(V_SM)}, {vsq}")
        p(f"v_mul_f32 {vr(V_KK)}, {fbits(GK1)}, {vsum}")
        p(f"v_mul_f32 {vsq}, {vsum}, {vsum}")
        p(f"v_mul_f32 {vsq}, {vsq}, {vsum}")
        p(f"v_mul_f32 {vr(V_KK + 1)}, {fbits(GK2)}, {vsq}")

    def gelu_packed(self, p, acc, cs, tmp, out, n=16):
        KK, SM = vr(V_KK, 2), vr(V_SM, 2)
        for b in range(0, n, 8):
            pr = [b + 2 * i for i in range(4)]
            t = lambda x: tmp + (x - b)
            for x in pr:
                p(f"v_pk_fma_f32 {vr(acc + x, 2)}, {vr(cs + x, 2)}, {SM}, {vr(acc + x, 2)} op_sel:[0,1,0] op_sel_hi:[1,1,1]")
            for x in pr:
                p(f"v_pk_mul_f32 {vr(t(x), 2)}, {vr(acc + x, 2)}, {vr(acc + x, 2)}")
            for x in pr:
                p(f"v_pk_fma_f32 {vr(t(x), 2)}, {vr(t(x), 2)}, {KK}, {KK} op_sel:[0,1,0] op_sel_hi:[1,1,0]")
            for x in pr:
                p(f"v_pk_mul_f32 {vr(t(x), 2)}, {vr(t(x), 2)}, {vr(acc + x, 2)}")
            for x in range(b, b + 8):
                p(f"v_exp_f32 {vr(t(x))}, {vr(t(x))}")
            for x in pr:
                p(f"v_pk_fma_f32 {vr(t(x), 2)}, {vr(t(x), 2)}, {SM}, {SM} op_sel:[0,0,0] op_sel_hi:[1,0,0]")
            for x in range(b, b + 8):
                p(f"v_rcp_f32 {vr(t(x))}, {vr(t(x))}")
            for x in pr:
                p(f"v_pk_mul_f32 {vr(t(x), 2)}, {vr(t(x), 2)}, {vr(acc + x, 2)}")
            for x in pr:
                p(f"v_cvt_pk_bf16_f32 {vr(out + x // 2)}, {vr(t(x))}, {vr(t(x) + 1)}")

    def prologue(self, p):
        p("s_cmp_ge_u32 s2, 256")
        p("s_cbranch_scc1 L_end")
        if self.profile:
            p("v_mov_b32 v254, 0")
            p("s_memrealtime s[100:101]")
            p.wait(lg0=True)
            p("v_writelane_b32 v254, s100, 0")
        self.stamp(p, "start")
        p("s_load_dwordx16 s[64:79], s[0:1], 0")
        p("s_getpc_b64 s[48:49]")
        p("L_pc:")
        p("s_lshr_b32 s50, s2, 3")
        p("s_lshl_b32 s50, s50, 10")
        p("v_lshlrev_b32 v1, 7, v0")
        p("v_add_u32 v2, s50, v1")
        p("v_cmp_gt_u32 vcc, 32, v0")
        p("v_cndmask_b32 v1, v2, v1, vcc")
        p("v_min_u32 v1, CODE_BYTES, v1")
        p("v_cmp_gt_u32 vcc, 40, v0")
        p("s_and_saveexec_b64 s[50:51], vcc")
        p("s_cbranch_execz L_nopf")
        p("global_load_dword v255, v1, s[48:49]", count=False)
        p("L_nopf:")
        p("s_mov_b64 exec, s[50:51]")
        row, t1, t2 = vT[0], vT[1], vT[2]
        sT0, sT1 = "s52", "s53"
        p(f"""
        v_lshrrev_b32 {vT[3]}, 6, v0
        v_and_b32 {vL}, 63, v0
        v_readfirstlane_b32 {sw}, {vT[3]}
        v_lshrrev_b32 {row}, 3, {vL}
        v_and_b32 {t2}, 7, {vL}
        s_and_b32 {sT0}, s2, 7
        s_lshr_b32 {sT1}, s2, 6
        s_lshl_b32 {sc}, {sT0}, 2
        s_add_u32 {sc}, {sc}, {sT1}
        s_bfe_u32 {sj}, s2, 0x30003
        s_add_u32 {srot}, {sj}, {sT1}
        s_and_b32 {srot}, {srot}, {self.opt.get("rot1", 3)}
        s_and_b32 {sth}, {sw}, 1
        s_lshr_b32 {skh}, {sw}, 1
        s_lshl_b32 {sPriv}, {sw}, 14
        """)
        p(f"""
        s_lshr_b32 {sT0}, {sj}, 2
        s_add_u32 {sT0}, {sT0}, 1
        s_sub_u32 {sT1}, 0, {sT0}
        s_bitcmp1_b32 {sj}, 1
        s_cselect_b32 {sT0}, {sT0}, {sT1}
        s_lshl_b32 {sT1}, {sc}, 6
        s_add_u32 {sT0}, {sT0}, {sT1}
        s_lshl_b32 {sT1}, {sth}, 5
        s_add_u32 {sT0}, {sT0}, {sT1}
        s_lshl_b32 {sT0}, {sT0}, 10
        s_lshl_b32 {sT1}, {skh}, 9
        s_add_u32 {sT0}, {sT0}, {sT1}
        v_lshrrev_b32 {t1}, 1, {row}
        v_xor_b32 {t1}, {t1}, {t2}
        v_lshlrev_b32 {t1}, 4, {t1}
        v_lshl_add_u32 {t1}, {row}, 10, {t1}
        v_add_u32 {vXs[0]}, {sT0}, {t1}
        v_xor_b32 {t1}, 64, {t1}
        v_add_u32 {t1}, {sT0}, {t1}
        v_add_u32 {vXs[1]}, {8192 - 1024}, {t1}
        v_add_u32 {vXs[2]}, 16384, {vXs[0]}
        v_add_u32 {vXs[3]}, {24576 - 1024}, {t1}
        s_mov_b32 s6, {1 << 21}
        s_mov_b32 s7, 0x20000
        s_mov_b32 s22, {1 << 19}
        s_mov_b32 s23, 0x20000
        s_lshl_b32 {sWlds}, {skh}, 15
        s_lshl_b32 {sT1}, {sth}, 12
        s_add_u32 {sWlds}, {sWlds}, {sT1}
        s_lshl_b32 {sWsrc}, {skh}, 18
        s_lshl_b32 {sT1}, {sth}, 15
        s_add_u32 {sWsrc}, {sWsrc}, {sT1}
        s_lshl_b32 {sT1}, {sj}, 7
        s_add_u32 {sWsrc}, {sWsrc}, {sT1}
        v_lshrrev_b32 {vT[4]}, 2, {vL}
        v_and_b32 {vT[4]}, 4, {vT[4]}
        v_xor_b32 {vT[4]}, {vT[4]}, {t2}
        v_lshlrev_b32 {vT[4]}, 4, {vT[4]}
        v_lshl_add_u32 {vWs}, {row}, 10, {vT[4]}
        v_add_u32 {vWs1}, 7168, {vWs}
        """)
        p.wait(lg0=True)
        p("s_mov_b64 s[4:5], s[64:65]")
        p("s_mov_b64 s[20:21], s[78:79]")
        for dst, off in ((40, 112), (24, 64), (28, 72), (32, 80), (52, 88), (36, 96)):
            p(f"s_load_dwordx2 s[{dst}:{dst + 1}], s[0:1], {off}")
        for dst, src in ((8, 66), (12, 68), (48, 70), (16, 72), (50, 74)):
            p(f"s_mov_b64 s[{dst}:{dst + 1}], s[{src}:{src + 1}]")
        self.set_rot(p)
        self.stamp(p, "karg")

    def set_rot(self, p):
        for pos in range(4):
            p(f"s_add_u32 {sR[pos]}, {srot}, {pos}")
            p(f"s_and_b32 {sR[pos]}, {sR[pos]}, 3")
            p(f"s_lshl_b32 {sR[pos]}, {sR[pos]}, 7")

    def kernargs2(self, p):
        sizes = (1 << 21, 1 << 21, 1 << 21, 1 << 21, 1 << 19, 1 << 19, 512 * 3584, 1792 * 1024, 1 << 21, WS_SIZE, 256)
        for i, n in enumerate(sizes):
            if i not in (0, 4, 10):
                p(f"s_mov_b32 s{6 + 4 * i}, {n}")
                p(f"s_mov_b32 s{7 + 4 * i}, 0x20000")
        p(f"v_lshlrev_b32 {vL16}, 4, {vL}")
        p(f"v_mov_b32 {vZero}, 0")

    def touch(self, kind, after, prio):
        if after == "none":
            return
        g = Seq()
        srd, lines = {"w2": (sW2, 4), "w3": (sW3, 14), "w4": (sW4, 14)}[kind]
        g(f"s_lshl_b32 {sB}, s2, 2")
        g(f"s_add_u32 {sB}, {sB}, {sw}")
        g(f"s_mul_i32 {sB}, {sB}, {lines * 128}")
        self.masked(g, (1 << lines) - 1, f"buffer_load_dword v255, {vL128}, {srd}, {sB} offen")
        self.bg(g, "fewcold", after, prio)

    def touch_slow(self, kind, after, prio):
        g = Seq()
        srd, lines = {"w2": (sW2, 4), "w4": (sW4, 14)}[kind]
        g(f"s_lshr_b32 {sB}, s2, 3")
        g(f"s_lshl_b32 {sB}, {sB}, 2")
        g(f"s_add_u32 {sB}, {sB}, {sw}")
        g(f"s_mul_i32 {sB}, {sB}, {lines * 1024}")
        g(f"v_lshlrev_b32 {vr(V_TMP + 4)}, 10, {vL}")
        self.masked(g, (1 << lines) - 1, f"buffer_load_dword v255, {vr(V_TMP + 4)}, {srd}, {sB} offen offset:384")
        self.bg(g, "fewcold", after, prio)

    def idle_touch(self, piece, after, prio):
        for n in range(4):
            g = Seq()
            g(f"s_add_u32 {sB}, {sIdle}, {n * 524288 + piece * 32768}")
            g(f"buffer_load_dword v255, {vL128}, {sW4}, {sB} offen")
            self.bg(g, "few", after, prio)

    def warm_flags(self, p):
        for i in range(4):
            p(f"v_mov_b32 {vr(V_TMP + 4 + i)}, {sEp}")
        p(f"v_lshrrev_b32 {vP2}, 3, {vL}")
        p(f"v_mul_u32_u24 {vP2}, {FLAG1 - 128}, {vP2}")
        p(f"v_add_u32 {vP2}, {vP2}, {vL16}")
        self.masked(p, "0xffff", f"buffer_store_dwordx4 {vr(V_TMP + 4, 4)}, {vP2}, {sWS}, {sFlag} offen sc1")

    def advance_epoch(self, p):
        p(f"""
        s_or_b32 {sT0}, s2, {sw}
        s_cmp_eq_u32 {sT0}, 0
        s_cselect_b32 {sT0}, 0, {WS_SIZE}
        s_add_u32 {sT0}, {sT0}, {WS_EPOCH}
        s_add_u32 {sT1}, {sEp}, 8
        v_mov_b32 {vP2}, {sT1}
        """)
        self.masked(p, 1, f"buffer_store_dword {vP2}, {vZero}, {sWS}, {sT0} offen sc1")

    def x_loads(self, pos, cls, after, prio):
        for a in (0, 2):
            g = Seq()
            g(f"s_add_u32 m0, {sPriv}, {R2 + (pos * 4 + a) * 1024}")
            fl = self.opt.get("x_nt", "")
            self.dma(g, vXs[a], sX, sR[pos], flags=fl)
            self.dma(g, vXs[a + 1], sX, sR[pos], 1024, flags=fl)
            self.bg(g, cls, after, prio)

    def setup2(self, p):
        row, t1, t2 = vT[0], vT[1], vT[2]
        p(f"""
        s_xor_b32 {snh}, {sth}, {skh}
        s_mov_b32 {sOneLo}, 0x00003f80
        s_mov_b32 {sOneHi}, 0x3f800000
        s_add_u32 {sj2}, {sj}, {self.opt.get("j2", 1)}
        s_and_b32 {sj2}, {sj2}, 7
        s_add_u32 {sja}, {sj}, {self.opt.get("ja", 2)}
        s_and_b32 {sja}, {sja}, 7
        s_mov_b32 {sOnes}, 0x3f803f80
        s_mov_b32 {sHi}, 0xffff0000
        s_lshl_b32 {sFlag}, {sc}, 3
        s_add_u32 {sFlag}, {sFlag}, {sj}
        s_lshl_b32 {sFlag}, {sFlag}, 2
        s_add_u32 {sFlag}, {sFlag}, {sw}
        s_lshl_b32 {sFlag}, {sFlag}, 7
        s_lshr_b32 {sT0}, {sc}, 3
        s_lshl_b32 {ssc}, {sT0}, 2
        s_and_b32 {sT0}, {sc}, 3
        s_add_u32 {ssc}, {ssc}, {sT0}
        s_bfe_u32 {sT0}, {sc}, 0x10002
        s_mul_i32 {sm}, {sT0}, 7
        s_add_u32 {sm}, {sm}, {sj}
        s_cmp_gt_u32 {sj}, {self.idle}
        s_cselect_b32 {sT0}, 1, 0
        s_sub_u32 {sm}, {sm}, {sT0}
        s_cmp_eq_u32 {sj}, {self.idle}
        s_cselect_b32 {sOob}, {WS_SIZE}, {WS_SIZE if self.opt.get("dbg_noP3") else 0}
        v_lshlrev_b32 {vL128}, 7, {vL}
        v_mul_u32_u24 {vW3s}, 3584, {row}
        v_add_u32 {vW3s}, {vW3s}, {vT[4]}
        v_add_u32 {vW3s1}, {8 * 3584 - 1024}, {vW3s}
        s_mul_i32 {sW3b}, {sw}, {128 * 3584}
        s_lshl_b32 {sT1}, {sm}, 8
        s_add_u32 {sW3b}, {sW3b}, {sT1}
        s_add_u32 {sW3b}, {sW3b}, {sOob}
        s_lshl_b32 {sT1}, {sja}, 7
        s_lshl_b32 {sT0}, {sc}, 16
        s_add_u32 {sT0}, {sT0}, {sT1}
        v_lshlrev_b32 {vKv}, 4, {t2}
        v_lshl_add_u32 {vKv}, {row}, 10, {vKv}
        v_add_u32 {vKv}, {sT0}, {vKv}
        v_subrev_u32 {vKh}, 8192, {vKv}
        """)

    def w12_loads(self, srd, pos, cls, after, prio, sWsrc=sWsrc):
        toks = []
        for i in (0, 2):
            src = f"s_lshl_b32 {sB}, {sR[pos]}, 9\ns_add_u32 {sB}, {sB}, {sWsrc}"
            if i:
                src += f"\ns_add_u32 {sB}, {sB}, 16384"
            g, tk = self.dma_pair(vWs, vWs1, srd, src, sWlds, R0 + pos * 8192 + i * 1024)
            self.bg(g, cls, after, prio)
            toks.append(tk)
        return toks

    def kv_loads(self, t, after, prio):
        g = Seq()
        g(f"s_mul_i32 {sB}, {sw}, 2304")
        g(f"s_add_u32 {sB}, {sB}, {A1R}")
        g(f"s_cmp_eq_u32 {sw}, 0")
        g(f"s_cselect_b32 m0, {KB}, {sB}")
        g(f"s_cselect_b32 {sB}, 0, {1 << 21}")
        self.dma(g, vKh, sK, sB, flags=self.opt.get("kv_nt", "nt"))
        g(f"""
        s_lshl_b32 {sB}, {sja}, 2
        s_add_u32 {sB}, {sB}, {sw}
        s_lshl_b32 {sB}, {sB}, 7
        v_and_b32 {vKh}, 15, {vL}
        v_lshl_add_u32 {vKh}, {vKh}, 3, {sB}
        """)
        g(f"global_load_dwordx2 {vr(V_SK, 2)}, {vKh}, {pSH}")
        self.bg(g, "fewcold", after, prio)
        t["kv"] = []
        for srd, base in ((sK, KB + 1024), (sV, VB)):
            g = Seq()
            g(f"s_lshl_b32 {sB}, {sw}, 11")
            g(f"s_add_u32 m0, {sB}, {base}")
            g(f"s_lshl_b32 {sB}, {sw}, 14")
            self.dma(g, vKv, srd, sB, flags=self.opt.get("kv_nt", "nt"))
            g(f"s_add_u32 {sB}, {sB}, 7168")
            t["kv"].append(self.dma(g, vKv, srd, sB, 1024, flags=self.opt.get("kv_nt", "nt")))
            self.bg(g, "cold", after, prio)

    def small_addrs(self, p):
        p(f"""
        s_lshl_b32 {sT0}, {sc}, 6
        s_lshl_b32 {sT1}, {sth}, 5
        s_add_u32 {sT0}, {sT0}, {sT1}
        s_lshl_b32 {sT0}, {sT0}, 10
        s_lshl_b32 {sT1}, {sj2}, 7
        s_lshl_b32 {sT2}, {snh}, 6
        s_add_u32 {sT1}, {sT1}, {sT2}
        v_and_b32 {vOut}, 31, {vL}
        v_lshrrev_b32 {vPv}, 5, {vL}
        v_lshlrev_b32 {vPv}, 4, {vPv}
        v_add_u32 {vPv}, {sT1}, {vPv}
        v_lshl_add_u32 {vOut}, {vOut}, 10, {vPv}
        v_add_u32 {vOut}, {sT0}, {vOut}
        s_lshl_b32 {sT0}, {sj}, 6
        s_lshl_b32 {sT1}, {sc}, 1
        s_add_u32 {sT0}, {sT0}, {sT1}
        s_add_u32 {sT0}, {sT0}, {sth}
        s_lshl_b32 {sT1}, {sT0}, 1
        v_mov_b32 {vPw}, {sT1}
        s_lshl_b32 {sT0}, {sT0}, 12
        s_lshl_b32 {sT1}, {skh}, 11
        s_add_u32 {sStld}, {sT0}, {sT1}
        """)

    def small_loads(self, after, prio_x, prio_s, after_s):
        nt = self.opt.get("ssm_nt", "nt")
        g = Seq()
        g(f"buffer_load_dwordx4 {vr(V_XRES, 4)}, {vOut}, {sX}, 0 offen")
        g(f"buffer_load_dwordx4 {vr(V_XRES + 4, 4)}, {vOut}, {sX}, 0 offen offset:32")
        self.bg(g, "mall", after, prio_x)
        g = Seq()
        g(f"global_load_dwordx4 {vr(V_X1P, 4)}, {vPv}, {pG}")
        g(f"global_load_dwordx4 {vr(V_X1P + 4, 4)}, {vPv}, {pG} offset:32")
        g(f"global_load_ushort {vr(V_SSM + 5)}, {vPw}, {pD}")
        self.bg(g, "few", after, prio_x)
        g = Seq()
        g(f"buffer_load_dwordx4 {vr(V_SSM, 4)}, {vL16}, {sSK}, {sStld} offen {nt}")
        g(f"buffer_load_dwordx4 {vr(V_SSM + 6, 4)}, {vL16}, {sSK}, {sStld} offen offset:1024 {nt}")
        self.bg(g, "cold", after_s, prio_s)
        g = Seq()
        g(f"buffer_load_dword {vr(V_SSM + 4)}, {vL16}, {sSK}, {sStld} offen offset:16 {nt}")
        g(f"buffer_load_dword {vr(V_SSM + 10)}, {vL16}, {sSK}, {sStld} offen offset:1040 {nt}")
        self.bg(g, "few", after_s, prio_s)

    def lds_addrs(self, p):
        a, b, c = vT[0], vT[1], vT[2]
        p(f"""
        v_lshrrev_b32 {a}, 5, {vL}
        v_lshlrev_b32 {vTr0}, 10, {a}
        v_lshlrev_b32 {vCsA}, 4, {a}
        v_bfe_u32 {a}, {vL}, 2, 2
        v_lshl_add_u32 {vTr0}, {a}, 7, {vTr0}
        v_lshrrev_b32 {a}, 1, {a}
        v_lshl_add_u32 {vTr0}, {a}, 6, {vTr0}
        v_bfe_u32 {a}, {vL}, 4, 1
        v_lshl_add_u32 {vTr0}, {a}, 5, {vTr0}
        v_and_b32 {a}, 1, {vL}
        v_lshl_add_u32 {vTr0}, {a}, 4, {vTr0}
        v_bfe_u32 {a}, {vL}, 1, 1
        v_lshl_add_u32 {vTr0}, {a}, 3, {vTr0}
        s_lshl_b32 {sT0}, {snh}, 6
        s_lshl_b32 {sT1}, {skh}, 15
        v_xor_b32 {vTrX}, {sT0}, {vTr0}
        v_add_u32 {vTrX}, {sT1}, {vTrX}
        v_xor_b32 {vTrY}, 64, {vTrX}
        v_bfe_u32 {a}, {vL}, 3, 2
        v_lshlrev_b32 {a}, 10, {a}
        v_and_b32 {b}, 7, {vL}
        v_lshl_add_u32 {a}, {b}, 7, {a}
        s_add_u32 {sT0}, {sPriv}, {R2}
        v_add_u32 {a}, {sT0}, {a}
        v_bfe_u32 {b}, {vL}, 1, 3
        v_lshrrev_b32 {c}, 5, {vL}
        v_xor_b32 {b}, {b}, {c}
        """)
        for s in range(4):
            p(f"v_xor_b32 {c}, {2 * s}, {b}")
            p(f"v_lshl_add_u32 {vXr[s]}, {c}, 4, {a}")
        p(f"""
        v_and_b32 {a}, 3, {vL}
        v_bfe_u32 {b}, {vL}, 2, 1
        v_bfe_u32 {c}, {vL}, 4, 1
        v_xor_b32 {b}, {b}, {c}
        v_or_b32 {a}, {a}, {b}
        v_cmp_eq_u32 vcc, 0, {a}
        v_mov_b32 {b}, {sOnes}
        v_cndmask_b32 {vr(V_ONES)}, 0, {b}, vcc
        v_cndmask_b32 {vr(V_ONES + 1)}, 0, {b}, vcc
        v_cndmask_b32 {vr(V_ONES + 2)}, 0, {b}, vcc
        v_cndmask_b32 {vr(V_ONES + 3)}, 0, {b}, vcc
        """)

    def dot_stats(self, p, regs, first):
        S, Q, S2, Q2 = vr(V_TMP), vr(V_TMP + 1), vr(V_TMP + 2), vr(V_TMP + 3)
        for n in range(0, len(regs), 2):
            a, b = vr(regs[n]), vr(regs[n + 1])
            if first and n == 0:
                p(f"v_dot2_f32_bf16 {S}, {a}, {sOnes}, 0")
                p(f"v_dot2_f32_bf16 {Q}, {a}, {a}, 0")
                p(f"v_dot2_f32_bf16 {S2}, {b}, {sOnes}, 0")
                p(f"v_dot2_f32_bf16 {Q2}, {b}, {b}, 0")
            else:
                p(f"v_dot2c_f32_bf16 {S}, {sOnes}, {a}")
                p(f"v_dot2c_f32_bf16 {Q}, {a}, {a}")
                p(f"v_dot2c_f32_bf16 {S2}, {sOnes}, {b}")
                p(f"v_dot2c_f32_bf16 {Q2}, {b}, {b}")

    def fold_stats(self, p):
        S, Q, S2, Q2 = vr(V_TMP), vr(V_TMP + 1), vr(V_TMP + 2), vr(V_TMP + 3)
        p(f"v_add_f32 {S}, {S}, {S2}")
        p(f"v_add_f32 {Q}, {Q}, {Q2}")
        p(f"v_mov_b32 {S2}, {S}")
        p(f"v_mov_b32 {Q2}, {Q}")
        p(f"v_permlane32_swap_b32 {S}, {S2}")
        p(f"v_permlane32_swap_b32 {Q}, {Q2}")
        p(f"v_add_f32 {S}, {S}, {S2}")
        p(f"v_add_f32 {Q}, {Q}, {Q2}")

    def p1(self, p, t):
        o = self.opt
        w1 = []
        rot = o.get("rot1", 3)
        for pos in range(4):
            cls = "cold" if pos < 4 // (bin(rot).count("1") * 2 or 1) else "l2"
            self.x_loads(pos, "p1" + cls, "go2" if pos else "go", 0)
            w1.append(self.w12_loads(sW1, pos, "p1" + cls, "go2" if pos else "go", 0))
        p.mark("go", limit=5000)
        p("s_nop 0")
        self.kernargs2(p)
        p.mark("go2")
        self.setup2(p)
        p(f"s_load_dword {sEp}, s[40:41], {WS_EPOCH}")
        self.lds_addrs(p)
        self.small_addrs(p)
        p(f"""
        v_and_b32 {vT[0]}, 31, {vL}
        s_lshl_b32 {sT0}, {sw}, 8
        s_add_u32 {sT0}, {sT0}, {ST_STAT}
        v_lshl_add_u32 {vT[1]}, {vT[0]}, 3, {sT0}
        v_xor_b32 {vPoll}, 512, {vT[1]}
        s_add_u32 {sT0}, {sPriv}, {R2}
        v_add_u32 {vT[2]}, {sT0}, {vL16}
        v_xor_b32 {vT[5]}, 32768, {vT[2]}
        s_lshl_b32 {sT0}, {snh}, 8
        s_lshl_b32 {sT1}, {skh}, 7
        s_add_u32 {sT1}, {sT1}, {sT0}
        s_add_u32 {sT1}, {sT1}, {ST_CS}
        v_lshl_add_u32 {vT[3]}, {vT[0]}, 2, {sT1}
        s_add_u32 {sT0}, {sT0}, {ST_CS}
        v_add_u32 {vT[4]}, {sT0}, {vCsA}
        s_lshl_b32 {sT0}, {sc}, 1
        s_add_u32 {sT0}, {sT0}, {sth}
        s_lshl_b32 {sT0}, {sT0}, 15
        s_lshl_b32 {sT1}, {sj}, 12
        s_add_u32 {sT1}, {sT0}, {sT1}
        s_lshl_b32 {sT2}, {snh}, 11
        s_add_u32 {sH2st}, {sT1}, {sT2}
        s_lshl_b32 {sT1}, {skh}, 14
        s_add_u32 {sT0}, {sT0}, {sT1}
        s_add_u32 {sX1ld}, {sT0}, {WS_H}
        """)
        self.w4_offsets(p)
        p(f"s_sub_u32 {sT0}, {sj2}, {sj}")
        p(f"s_lshl_b32 {sT0}, {sT0}, 7")
        p(f"s_add_u32 {sW2src}, {sWsrc}, {sT0}")
        p(f"""
        s_lshr_b32 {sT0}, s2, 6
        s_lshl_b32 {sT0}, {sT0}, 17
        s_lshl_b32 {sT1}, {sw}, 13
        s_add_u32 {sT0}, {sT0}, {sT1}
        s_sub_u32 {sT1}, {WS_SIZE}, {sOob}
        s_add_u32 {sIdle}, {sT0}, {sT1}
        """)
        for piece, key in ((1, "it1"), (2, "it2"), (0, "it0"), (3, "it3")):
            if o.get(key):
                self.idle_touch(piece, o[key], 8)
        self.warm_flags(p)
        p.mark("setup")
        self.stamp(p, "setup")
        self.kv_loads(t, "setup", 1)
        self.touch("w2", o.get("touch_w2", "setup"), 2)
        if o.get("slow_w2", 1):
            self.touch_slow("w2", "setup", 2)
        if o.get("slow_w4", 1):
            self.touch_slow("w4", o.get("slow_w4_at", "conv"), 7)
        self.small_loads("setup", 3, 4, o.get("ssm_after", "setup"))
        self.touch("w3", o.get("touch_w3", "setup"), 5)
        self.touch("w4", o.get("touch_w4", "conv"), 6)
        accX, accY, cs = V_ACC, V_ACC + 16, V_ACC + 32
        AB = [V_A, V_B + 32]

        def reads(q, pos):
            q.wait(vm=w1[pos][-1])
            q("s_barrier")
            q.mark(f"P1b{pos}")
            for s in range(4):
                q(f"ds_read_b128 {vr(V_B + 16 * (pos & 1) + 4 * s, 4)}, {vXr[s]} offset:{pos * 4096}")
            for s in range(4):
                self.a_reads(q, AB[pos & 1] + 8 * s + 4, vTrY, pos * 8192 + s * 2048)
            for s in range(4):
                self.a_reads(q, AB[pos & 1] + 8 * s, vTrX, pos * 8192 + s * 2048)

        reads(p, 0)
        self.stamp(p, "x0 landed")
        for pos in range(4):
            B0, A0 = V_B + 16 * (pos & 1), AB[pos & 1]
            self.dot_stats(p, list(range(B0, B0 + 16)), pos == 0)
            q = Seq()
            for s in range(4):
                q(f"v_mfma_f32_32x32x16_bf16 {vr(accY, 16)}, {vr(A0 + 8 * s + 4, 4)}, {vr(B0 + 4 * s, 4)}, {'0' if pos + s == 0 else vr(accY, 16)}")
            for s in range(4):
                q(f"v_mfma_f32_16x16x32_bf16 {vr(cs, 4)}, {vr(V_ONES, 4)}, {vr(A0 + 8 * s, 4)}, {'0' if pos + s == 0 else vr(cs, 4)}")
            for s in range(4):
                q(f"v_mfma_f32_32x32x16_bf16 {vr(accX, 16)}, {vr(A0 + 8 * s, 4)}, {vr(B0 + 4 * s, 4)}, {'0' if pos + s == 0 else vr(accX, 16)}")
            plan = []
            if pos < 3:
                r = Seq()
                reads(r, pos + 1)
                plan += spread(split(r), o.get("p1_rd0", 3), 11)
            if pos == 3:
                st = Seq()
                self.fold_stats(st)
                st(f"ds_write_b64 {vT[1]}, {vr(V_TMP, 2)}")
                wr = Seq()
                for g in range(4):
                    wr(f"ds_write_b128 {vT[2]}, {vr(accY + 4 * g, 4)} offset:{g * 1024}")
                wr(f"ds_write_b32 {vT[3]}, {vr(cs)}")
                plan += spread(split(st), 1, 4) + spread(split(wr), 9, 12)
            p.extend(weave(q, plan + self.dense(f"a{pos}_", (0, 4, 8, 12))))
        p.mark(force=9)
        self.stamp(p, "p1 mfma")
        p.wait(lg0=True)
        p("s_barrier")
        c0, c1 = V_A, V_A + 16
        S, Q, S2, Q2 = vr(V_TMP), vr(V_TMP + 1), vr(V_TMP + 2), vr(V_TMP + 3)
        p(f"ds_read_b64 {vr(V_TMP + 2, 2)}, {vPoll}")
        for g in range(4):
            p(f"ds_read_b128 {vr(accY + 4 * g, 4)}, {vT[5]} offset:{g * 1024}")
        for g in range(4):
            p(f"ds_read_b128 {vr(c0 + 4 * g, 4)}, {vT[4]} offset:{g * 32}")
            p(f"ds_read_b128 {vr(c1 + 4 * g, 4)}, {vT[4]} offset:{128 + g * 32}")
        p.mark("B1", limit=o.get("lim_g1", 0))
        p(f"v_add_f32 {S}, {S}, {S2}")
        p(f"v_add_f32 {Q}, {Q}, {Q2}")
        self.ln_consts(p, S, Q)
        for x in range(0, 16, 2):
            p(f"v_pk_add_f32 {vr(accX + x, 2)}, {vr(accX + x, 2)}, {vr(accY + x, 2)}")
        for x in range(0, 16, 2):
            p(f"v_pk_add_f32 {vr(c0 + x, 2)}, {vr(c0 + x, 2)}, {vr(c1 + x, 2)}")
        out = V_TMP + 8
        self.gelu_packed(p, accX, c0, V_TMP + 16, out)
        p(f"s_add_u32 {sT0}, {sH2st}, {WS_H}")
        s0 = p(f"buffer_store_dwordx4 {vr(out, 4)}, {vL16}, {sWS}, {sT0} offen sc1")
        s1 = p(f"buffer_store_dwordx4 {vr(out + 4, 4)}, {vL16}, {sWS}, {sT0} offen offset:1024 sc1")
        t["h"] = [s0, s1]
        p.mark("h_st", limit=o.get("lim_w2", 2000))
        self.stamp(p, "h stored")
        t["w2"] = []
        for pos in range(4):
            early = pos < o.get("w2_early", 0)
            t["w2"] += self.w12_loads(sW2, pos, "mall", f"P1b{pos + 2}" if early else "B1", o.get("prio_w2e", 3.5) if early else 11, sW2src)

    def h_flag(self, p, t):
        self.publish(p, t["h"], 1, FLAG0)
        if self.opt.get("rb_h", 0):
            p(f"s_add_u32 {sT0}, {sH2st}, {WS_H}")
            self.masked(p, "0xffff", f"buffer_load_dword v255, {vL128}, {sWS}, {sT0} offen sc1").note = "few"
        p.mark("h_flag", limit=self.opt.get("lim_hflag", 1500))
        self.stamp(p, "h flag")

    def a1(self, p, t):
        kk, vv, o = V_B, V_B + 12, V_TMP
        sk = V_SK
        a, b = vT[0], vT[1]
        p(f"""
        v_lshrrev_b32 {a}, 4, {vL}
        v_lshlrev_b32 {a}, 11, {a}
        v_bfe_u32 {b}, {vL}, 2, 2
        v_lshl_add_u32 {a}, {b}, 7, {a}
        v_and_b32 {b}, 3, {vL}
        v_lshl_add_u32 {a}, {b}, 3, {a}
        s_lshl_b32 {sT0}, {sw}, 5
        s_add_u32 {sT0}, {sT0}, {KB}
        v_add_u32 {a}, {sT0}, {a}
        """)
        p.wait(vm=t["kv"])
        p("s_barrier")
        p.mark("Bkv")
        for rd in range(5):
            p(f"ds_read_b64_tr_b16 {vr(kk + 2 * rd, 2)}, {a} offset:{(4 + 4 * rd) * 128}")
        for rd in range(4):
            p(f"ds_read_b64_tr_b16 {vr(vv + 2 * rd, 2)}, {a} offset:{(VB - KB) + 4 * rd * 128}")
        c10, c32, c0, c21, c3 = V_A, V_A + 1, V_A + 2, V_A + 3, V_A + 4
        p(f"v_alignbit_b32 {vr(c10)}, {vr(sk)}, {vr(sk)}, 16")
        p(f"v_alignbit_b32 {vr(c32)}, {vr(sk + 1)}, {vr(sk + 1)}, 16")
        p(f"v_and_b32 {vr(c0)}, 0xffff, {vr(sk)}")
        p(f"v_and_b32 {vr(c3)}, {sHi}, {vr(sk + 1)}")
        p(f"v_and_b32 {vr(c21)}, 0xffff, {vr(sk + 1)}")
        p(f"v_and_or_b32 {vr(c21)}, {vr(sk)}, {sHi}, {vr(c21)}")
        p(f"""
        v_and_b32 {vT[3]}, 3, {vL}
        v_bfe_u32 {vT[2]}, {vL}, 2, 1
        v_lshlrev_b32 {vT[3]}, 9, {vT[3]}
        v_lshl_add_u32 {vPoll}, {vT[2]}, 8, {vT[3]}
        s_lshl_b32 {sC}, {sc}, 12
        s_lshl_b32 {sT1}, {skh}, 11
        s_add_u32 {sC}, {sC}, {sT1}
        s_lshl_b32 {sT1}, {sth}, 7
        s_add_u32 {sC}, {sC}, {sT1}
        """)
        f = V_ACC
        q = Seq()
        for i in range(8):
            q(f"v_dot2_f32_bf16 {vr(f + 2 * i)}, {vr(kk + i)}, {vr(c3)}, 0")
            q(f"v_dot2_f32_bf16 {vr(f + 2 * i + 1)}, {vr(kk + i + 1)}, {vr(c32)}, 0")
        for i in range(8):
            q(f"v_dot2_f32_bf16 {vr(f + 2 * i)}, {vr(kk + i + 1)}, {vr(c21)}, {vr(f + 2 * i)}")
            q(f"v_dot2_f32_bf16 {vr(f + 2 * i + 1)}, {vr(kk + i + 2)}, {vr(c10)}, {vr(f + 2 * i + 1)}")
        for i in range(8):
            q(f"v_dot2_f32_bf16 {vr(f + 2 * i)}, {vr(kk + i + 2)}, {vr(c0)}, {vr(f + 2 * i)}")
        for i in range(8):
            q(f"v_lshlrev_b32 {vr(f + 16 + 2 * i)}, 16, {vr(vv + i)}")
            q(f"v_and_b32 {vr(f + 17 + 2 * i)}, {sHi}, {vr(vv + i)}")
        for i in range(8):
            q(f"v_pk_mul_f32 {vr(f + 2 * i, 2)}, {vr(f + 2 * i, 2)}, {vr(f + 16 + 2 * i, 2)}")
        for i in range(8):
            q(f"v_cvt_pk_bf16_f32 {vr(o + i)}, {vr(f + 15 - 2 * i)}, {vr(f + 14 - 2 * i)}")
        mode = self.opt.get("a1_first", 40)
        if mode > 1:
            hf = Seq()
            self.h_flag(hf, t)
            q = weave(q, [(mode, hf)], kinds=("valu",))
        p.extend(q)
        if mode == 0:
            self.h_flag(p, t)
        p(f"""
        v_and_b32 {a}, 15, {vL}
        v_mul_u32_u24 {a}, 144, {a}
        v_lshrrev_b32 {b}, 4, {vL}
        v_sub_u32 {b}, 3, {b}
        v_lshl_add_u32 {a}, {b}, 5, {a}
        s_mul_i32 {sT0}, {sw}, 2304
        s_add_u32 {sT0}, {sT0}, {A1R}
        v_add_u32 {a}, {sT0}, {a}
        """)
        p(f"ds_write_b128 {a}, {vr(o, 4)}")
        w2 = p(f"ds_write_b128 {a}, {vr(o + 4, 4)} offset:16")
        p(f"""
        v_lshrrev_b32 {a}, 3, {vL}
        v_and_b32 {b}, 7, {vL}
        v_lshlrev_b32 {b}, 4, {b}
        v_lshl_add_u32 {vT[2]}, {a}, 12, {b}
        v_mul_u32_u24 {a}, 144, {a}
        v_add3_u32 {a}, {a}, {b}, {sT0}
        s_lshl_b32 {sT0}, {sja}, 18
        s_lshl_b32 {sT1}, {sw}, 16
        s_add_u32 {sT0}, {sT0}, {sT1}
        s_sub_u32 {sT1}, 31, {sc}
        s_lshl_b32 {sT1}, {sT1}, 7
        s_add_u32 {sT0}, {sT0}, {sT1}
        s_add_u32 {sT0}, {sT0}, {WS_KVT}
        s_add_u32 {sT1}, {sT0}, 32768
        """)
        p.wait(lg=w2)
        p(f"ds_read_b128 {vr(o + 8, 4)}, {a}")
        p(f"ds_read_b128 {vr(o + 12, 4)}, {a} offset:{8 * 144}")
        s0 = p(f"buffer_store_dwordx4 {vr(o + 8, 4)}, {vT[2]}, {sWS}, {sT0} offen sc1")
        s1 = p(f"buffer_store_dwordx4 {vr(o + 12, 4)}, {vT[2]}, {sWS}, {sT1} offen sc1")
        t["kvt"] = [s0, s1]
        self.stamp(p, "a1 done")
        if self.opt.get("a1_first", 40) == 1:
            self.h_flag(p, t)

    def w3_loads(self, line, lds, after, prio, blocks=range(0, 16, 2)):
        toks = []
        for i in blocks:
            g, tk = self.dma_pair(vW3s, vW3s1, sW3, f"s_add_u32 {sB}, {sW3b}, {line * 128 + i * 8 * 3584}", sPriv, lds + i * 1024)
            self.bg(g, "mall", after, prio)
            toks.append(tk)
        return toks

    def w4_offsets(self, p):
        p(f"s_mul_i32 {sT0}, {sw}, 7")
        p(f"s_lshl_b32 {sT2}, {sj2}, 7")
        if self.opt.get("dbg_now4"):
            p(f"s_add_u32 {sT2}, {sT2}, {WS_SIZE}")
        for u in range(7):
            p(f"""
            s_add_u32 {sT1}, {sT0}, {u}
            s_lshr_b32 {sU[u]}, {sT1}, 1
            s_lshl_b32 {sU[u]}, {sU[u]}, 17
            s_and_b32 {sT1}, {sT1}, 1
            s_lshl_b32 {sT1}, {sT1}, 14
            s_add_u32 {sU[u]}, {sU[u]}, {sT1}
            s_add_u32 {sU[u]}, {sU[u]}, {sT2}
            """)

    def w4_loads(self, piece, lds, after, prio):
        toks = []
        for u in range(7):
            oob = WS_SIZE if piece == 3 and u < self.opt.get("dbg_p3", 0) else 0
            g, tk = self.dma_pair(vWs, vWs1, sW4, f"s_add_u32 {sB}, {sU[u]}, {piece * 32768 + oob}", sPriv, lds + u * 2048)
            self.bg(g, "mall", after, prio)
            toks.append(tk)
        return toks

    def w4_park(self, piece, areg, after, prio):
        for u in range(7):
            g = Seq()
            g(f"s_add_u32 {sB}, {sU[u]}, {piece * 32768}")
            g(f"buffer_load_dwordx4 {ar(areg + 8 * u, 4)}, {vWs}, {sW4}, {sB} offen")
            g(f"buffer_load_dwordx4 {ar(areg + 8 * u + 4, 4)}, {vWs1}, {sW4}, {sB} offen offset:1024")
            self.bg(g, "mall", after, prio)

    def w4_unpark_groups(self, areg, vaddr):
        groups, toks = [], []
        for n in range(14):
            g = Seq()
            toks.append(g(f"ds_write_b128 {vaddr}, {ar(areg + 4 * n, 4)} offset:{n * 1024}"))
            groups.append(g)
        return groups, toks

    def gate_partial(self, p):
        g, g2 = vr(V_TMP), vr(V_TMP + 1)
        for i in range(0, 8, 2):
            p(f"v_dot2_f32_bf16 {g}, {vr(V_XRES + i)}, {vr(V_X1P + i)}, {'0' if i == 0 else g}")
            p(f"v_dot2_f32_bf16 {g2}, {vr(V_XRES + i + 1)}, {vr(V_X1P + i + 1)}, {'0' if i == 0 else g2}")
        p(f"""
        s_lshl_b32 {sT3}, {sc}, 1
        s_add_u32 {sT3}, {sT3}, {sth}
        s_lshl_b32 {sD}, {sT3}, 11
        s_lshl_b32 {sT1}, {sj2}, 1
        s_add_u32 {sT1}, {sT1}, {snh}
        s_lshl_b32 {sT1}, {sT1}, 7
        s_add_u32 {sD}, {sD}, {sT1}
        v_lshlrev_b32 {vT[5]}, 2, {vL}
        s_add_u32 {sD}, {sD}, {WS_GATE}
        """)
        p(f"v_add_f32 {g}, {g}, {g2}")
        self.half_sum(p, g, g2)
        self.masked(p, "0xffffffff", f"buffer_store_dword {g}, {vT[5]}, {sWS}, {sD} offen sc1")

    def stage_conv_k(self, p):
        a, b = vT[0], vT[1]
        d = V_SSM
        o = V_TMP + 8
        p(f"""
        s_mul_i32 {sT0}, {sth}, {KCH}
        s_add_u32 {sT0}, {sT0}, {CK}
        s_lshl_b32 {sT1}, {skh}, 11
        s_add_u32 {sT1}, {sT1}, {sT0}
        v_add_u32 {a}, {sT1}, {vL16}
        v_cmp_eq_u32 vcc, 63, {vL}
        s_cmp_eq_u32 {skh}, 1
        s_cselect_b64 vcc, vcc, 0
        v_cndmask_b32 {vr(d + 10)}, {vr(d + 10)}, {vZero}, vcc
        """)
        p(f"ds_write_b128 {a}, {vr(d, 4)} offset:64")
        p(f"ds_write_b128 {a}, {vr(d + 6, 4)} offset:{64 + 1024}")
        for i in range(4):
            p(f"v_alignbit_b32 {vr(o + i)}, {vr(d + i + 1)}, {vr(d + i)}, 16")
            p(f"v_alignbit_b32 {vr(o + 4 + i)}, {vr(d + 7 + i)}, {vr(d + 6 + i)}, 16")
        p(f"ds_write_b128 {a}, {vr(o, 4)} offset:{KCOPY + 64}")
        p(f"ds_write_b128 {a}, {vr(o + 4, 4)} offset:{KCOPY + 64 + 1024}")
        p(f"""
        s_mul_i32 {sT1}, {skh}, {64 + 4096}
        s_add_u32 {sT1}, {sT1}, {sT0}
        v_and_b32 {b}, 15, {vL}
        v_lshl_add_u32 {a}, {b}, 2, {sT1}
        v_readfirstlane_b32 {sT2}, {vr(d)}
        s_lshl_b32 {sT2}, {sT2}, 16
        s_cmp_eq_u32 {skh}, 0
        s_cselect_b32 {sT2}, {sT2}, 0
        v_cmp_eq_u32 vcc, 15, {b}
        v_mov_b32 {b}, {sT2}
        v_cndmask_b32 {b}, 0, {b}, vcc
        """)
        p(f"ds_write_b32 {a}, {vZero}")
        p(f"ds_write_b32 {a}, {b} offset:{KCOPY}")
        p(f"""
        s_mul_i32 {sT0}, {sth}, {UCH}
        s_add_u32 {sT0}, {sT0}, {CU}
        s_lshl_b32 {sT1}, {skh}, 8
        s_add_u32 {sT1}, {sT1}, {sT0}
        v_lshl_add_u32 {a}, {vL}, 2, {sT1}
        v_and_b32 {b}, 7, {vL}
        v_lshl_add_u32 {b}, {b}, 2, {sT0}
        """)
        p(f"ds_write_b32 {a}, {vZero} offset:{32 + 4096}")
        p(f"ds_write_b32 {a}, {vZero} offset:{32 + 4096 + 256}")
        p(f"ds_write_b32 {b}, {vZero}")

    def p2(self, p, t):
        o = self.opt
        self.gate_partial(p)
        for pos in range(4):
            p(f"s_lshl_b32 {sQ[pos]}, {sR[pos]}, 5")
            p(f"s_add_u32 {sQ[pos]}, {sQ[pos]}, {sX1ld}")
        self.publish(p, t["kvt"], 1, FLAG1)
        p.wait(vm=t["w2"][o.get("hpoll_wait", 7)])
        self.poll_issue(p, vPv, vPoll, sC)
        self.poll_check(p, vPv, vPoll, sC, 1)
        p.mark("h_seen", limit=self.opt.get("lim_def", 1500))
        self.stamp(p, "h seen")
        for pos in range(4):
            for s in (0, 2):
                g = Seq()
                for x in (s, s + 1):
                    g(f"buffer_load_dwordx4 {vr(V_B + 16 * pos + 4 * x, 4)}, {vL16}, {sWS}, {sQ[pos]} offen offset:{x * 1024} sc1")
                self.bg(g, "hand", "h_seen", 10)
        p(f"""
        v_and_b32 {vKv}, 31, {vL}
        v_lshlrev_b32 {vKv}, 12, {vKv}
        s_sub_u32 {sD}, {sj}, {self.opt.get("ja", 2)}
        s_and_b32 {sD}, {sD}, 7
        s_lshl_b32 {sD}, {sD}, 9
        s_lshr_b32 {sT3}, {sc}, 3
        s_lshl_b32 {sT3}, {sT3}, 7
        s_add_u32 {sD}, {sD}, {sT3}
        s_add_u32 {sD}, {sD}, {FLAG1}
        s_add_u32 {sT3}, {sPriv}, {EX2}
        v_add_u32 {vT[2]}, {sT3}, {vL16}
        v_xor_b32 {vT[3]}, 32768, {vT[2]}
        s_sub_u32 {sT0}, {sj2}, {sj}
        s_lshl_b32 {sT0}, {sT0}, 12
        s_add_u32 {sT0}, {sT0}, {sH2st}
        s_add_u32 {sH2st}, {sT0}, {WS_X1}
        s_lshl_b32 {sT3}, {sc}, 1
        s_add_u32 {sT3}, {sT3}, {sth}
        s_lshl_b32 {sC}, {sT3}, 12
        s_lshl_b32 {sT1}, {sj2}, 9
        s_add_u32 {sC}, {sC}, {sT1}
        s_lshl_b32 {sT1}, {snh}, 8
        s_add_u32 {sC}, {sC}, {sT1}
        s_add_u32 {sC}, {sC}, {WS_STATS}
        v_lshlrev_b32 {vKh}, 3, {vL}
        """)
        p.wait(vm=t["w2"], lg0=True)
        p("s_barrier")
        p.mark("Bp2")
        t["l0"] = self.w3_loads(0, R2, o.get("l0_after", "Bp2"), 30, range(0, 12, 2)) + self.w3_loads(0, R2, "conv", 29, (12, 14))
        accX, accY = V_ACC, V_ACC + 16
        q = Seq()

        for ks in range(3):
            self.a_reads(q, V_A + 8 * ks + 4, vTrY, ks * 2048)
            self.a_reads(q, V_A + 8 * ks, vTrX, ks * 2048)
        self.stage_conv_k(q)
        for ks in range(13):
            z = ks == 0
            A, B, N = V_A + 8 * (ks % 4), V_B + 4 * ks, V_A + 8 * ((ks + 3) % 4)
            q(f"v_mfma_f32_32x32x16_bf16 {vr(accY, 16)}, {vr(A + 4, 4)}, {vr(B, 4)}, {'0' if z else vr(accY, 16)}")
            self.a_reads(q, N + 4, vTrY, (ks + 3) * 2048)
            q(f"v_mfma_f32_32x32x16_bf16 {vr(accX, 16)}, {vr(A, 4)}, {vr(B, 4)}, {'0' if z else vr(accX, 16)}")
            self.a_reads(q, N, vTrX, (ks + 3) * 2048)
        for ks in range(13, 16):
            q(f"v_mfma_f32_32x32x16_bf16 {vr(accY, 16)}, {vr(V_A + 8 * (ks % 4) + 4, 4)}, {vr(V_B + 4 * ks, 4)}, {vr(accY, 16)}")
        for ks in range(13, 16):
            q(f"v_mfma_f32_32x32x16_bf16 {vr(accX, 16)}, {vr(V_A + 8 * (ks % 4), 4)}, {vr(V_B + 4 * ks, 4)}, {vr(accX, 16)}")
        pub, pl, lim = Seq(), Seq(), Seq()
        lim.mark(limit=o.get("lim_p2", 1300))
        self.poll_issue(pl, vPw, vKv, sD)
        p.extend(weave(q, [(16, lim), (o.get("kvt_poll_at", 30), Seq() if o.get("kvt_late", 0) else pl)] + self.dense("a5_", (0, 1, 8, 16, 24, 32))))
        for g in range(4):
            p(f"ds_write_b128 {vT[2]}, {vr(accY + 4 * g, 4)} offset:{g * 1024}")
        p.mark(limit=o.get("lim_e2", 1100))
        self.stamp(p, "p2 mfma")
        p.wait(lg0=True)
        p("s_barrier")
        p.mark("B2")
        t["l1"] = self.w3_loads(1, R0, "B2", 31)
        for g in range(4):
            p(f"ds_read_b128 {vr(accY + 4 * g, 4)}, {vT[3]} offset:{g * 1024}")
        for i in range(8):
            p(f"v_dot2c_f32_bf16 {vr(accX + 2 * i)}, {sOneLo}, {vr(V_XRES + i)}")
            p(f"v_dot2c_f32_bf16 {vr(accX + 2 * i + 1)}, {sOneHi}, {vr(V_XRES + i)}")
        for x in range(0, 16, 2):
            p(f"v_pk_add_f32 {vr(accX + x, 2)}, {vr(accX + x, 2)}, {vr(accY + x, 2)}")
        for i in range(8):
            p(f"v_cvt_pk_bf16_f32 {vr(V_X1P + i)}, {vr(accX + 2 * i)}, {vr(accX + 2 * i + 1)}")
        s0 = p(f"buffer_store_dwordx4 {vr(V_X1P, 4)}, {vL16}, {sWS}, {sH2st} offen sc1")
        s1 = p(f"buffer_store_dwordx4 {vr(V_X1P + 4, 4)}, {vL16}, {sWS}, {sH2st} offen offset:1024 sc1")
        self.dot_stats(p, list(range(V_X1P, V_X1P + 8)), True)
        self.fold_stats(p)
        s2 = self.masked(p, "0xffffffff", f"buffer_store_dwordx2 {vr(V_TMP, 2)}, {vKh}, {sWS}, {sC} offen sc1")
        t["x1"] = [s0, s1, s2]
        self.stamp(p, "x1 stored")

    def conv(self, p, t):
        o = self.opt
        p(f"""
        s_lshl_b32 {sT0}, {sj}, 6
        s_lshl_b32 {sT1}, {sc}, 1
        s_add_u32 {sT0}, {sT0}, {sT1}
        s_add_u32 {sT0}, {sT0}, {sth}
        s_lshl_b32 {sT0}, {sT0}, 12
        s_lshl_b32 {sT1}, {skh}, 11
        s_add_u32 {sT0}, {sT0}, {sT1}
        s_add_u32 {sT0}, {sT0}, {WS_KVT}
        s_mul_i32 {sT2}, {sth}, {UCH}
        s_add_u32 {sT1}, {sT1}, {sT2}
        """)
        def kvt_part(p):
            p(f"s_mov_b32 {sT0}, {sYld}")
            p(f"s_mov_b32 {sT1}, {sYlds}")
            self.poll_check(p, vPw, vKv, sD, 1)
            self.stamp(p, "kvt seen")
            g = Seq()
            g(f"s_add_u32 m0, {sT1}, {CU + 32}")
            self.dma(g, vL16, sWS, sT0, 0, "sc1").note = "hand"
            u = self.dma(g, vL16, sWS, sT0, 1024, "sc1")
            u.note = "hand"
            p.atomic(g)
            return u

        late = o.get("kvt_late", 0)
        p(f"s_mov_b32 {sYld}, {sT0}")
        p(f"s_mov_b32 {sYlds}, {sT1}")
        if late:
            self.poll_issue(p, vPw, vKv, sD)
        else:
            u = kvt_part(p)
        p.mark("x1_st", limit=o.get("lim_conv", 1800), depth=o.get("depth2", 10))
        vA = [vXs[1], vXs[2], vXs[3], vXr[0], vXr[1]]
        vB = vXr[2]
        a, b = vT[0], vT[1]
        p(f"""
        v_and_b32 {a}, 15, {vL}
        v_lshrrev_b32 {b}, 4, {vL}
        v_lshlrev_b32 {b}, 4, {b}
        s_lshl_b32 {sT1}, {skh}, 8
        s_add_u32 {sT2}, {sT2}, {sT1}
        s_add_u32 {sT2}, {sT2}, {CU + 480}
        v_lshlrev_b32 {vB}, 5, {a}
        v_sub_u32 {vB}, {b}, {vB}
        v_add_u32 {vB}, {sT2}, {vB}
        v_add_u32 {vA[0]}, 1, {a}
        v_and_b32 {vA[0]}, 30, {vA[0]}
        v_lshl_add_u32 {vA[0]}, {vA[0]}, 1, {b}
        v_and_b32 {a}, 1, {a}
        v_xor_b32 {a}, 1, {a}
        v_mul_u32_u24 {a}, {KCOPY}, {a}
        s_mul_i32 {sT0}, {sth}, {KCH}
        s_add_u32 {sT0}, {sT0}, {sT1}
        s_add_u32 {sT0}, {sT0}, {CK}
        v_add3_u32 {vA[0]}, {vA[0]}, {a}, {sT0}
        """)
        for i in range(1, 4):
            p(f"v_add_u32 {vA[i]}, {1024 * i}, {vA[0]}")
        p(f"s_cmp_eq_u32 {skh}, 0")
        p(f"s_cselect_b32 {sT0}, 4096, 0")
        p(f"v_add_u32 {vA[4]}, {sT0}, {vA[0]}")
        p(f"""
        v_and_b32 {vT[3]}, 7, {vL}
        v_bfe_u32 {vT[4]}, {vL}, 3, 1
        v_lshlrev_b32 {vT[3]}, 9, {vT[3]}
        v_lshl_add_u32 {vPoll}, {vT[4]}, 8, {vT[3]}
        s_lshl_b32 {sT2}, {ssc}, 1
        s_add_u32 {sT2}, {sT2}, {skh}
        s_lshl_b32 {sC}, {sT2}, 12
        s_lshl_b32 {sT1}, {sth}, 7
        s_add_u32 {sC}, {sC}, {sT1}
        s_mul_i32 {sH2st}, {sT2}, 229376
        s_lshl_b32 {sT1}, {sm}, 12
        s_add_u32 {sH2st}, {sH2st}, {sT1}
        s_lshl_b32 {sT1}, {sth}, 10
        s_add_u32 {sH2st}, {sH2st}, {sT1}
        s_add_u32 {sH2st}, {sH2st}, {WS_H2}
        s_add_u32 {sH2st}, {sH2st}, {sOob}
        s_lshl_b32 {sT2}, {ssc}, 2
        s_add_u32 {sT2}, {sT2}, {sw}
        s_lshl_b32 {sX1ld}, {sT2}, 15
        s_add_u32 {sX1ld}, {sX1ld}, {WS_X1}
        s_add_u32 {sX1ld}, {sX1ld}, {sOob}
        s_lshl_b32 {sStld}, {sT2}, 12
        s_add_u32 {sStld}, {sStld}, {WS_STATS}
        s_add_u32 {sStld}, {sStld}, {sOob}
        s_add_u32 {srot}, {sw}, {sj}
        s_and_b32 {srot}, {srot}, 3
        """)
        self.set_rot(p)
        for pos in range(4):
            p(f"s_lshl_b32 {sQ[pos]}, {sR[pos]}, 6")
            p(f"s_add_u32 {sQ[pos]}, {sQ[pos]}, {sX1ld}")
            p(f"s_add_u32 {sV4[pos]}, {sQ[pos]}, 4096")
        if not late:
            self.late_addrs(p)
        self.publish(p, t["x1"], 2, FLAG0)
        if late:
            u = kvt_part(p)
            self.late_addrs(p)
        p.mark("x1_flag")
        self.stamp(p, "x1 flag")
        p.wait(vm=u, lg0=True)
        p("s_barrier")
        p.mark("conv")
        self.stamp(p, "conv start")
        self.w4_park(1, A_PARK, o.get("park2_after", "conv2"), 40)
        acc, AF = V_ACC + 32, V_A
        BF = [V_B, V_B + 32]
        BX = V_TMP
        q = Seq()
        order = (0, 7, 1, 6, 2, 5, 3, 4)
        rows = [(0, 8)] + [(rho, aa) for rho in range(4) for aa in order]

        def rdA(n):
            rho, aa = rows[n]
            of = (64 * rho + 512 * (aa & 1)) // 4
            q(f"ds_read2_b32 {vr(AF + 4 * (n % 8), 2)}, {vA[aa >> 1]} offset0:{of} offset1:{of + 1}")
            q(f"ds_read2_b32 {vr(AF + 4 * (n % 8) + 2, 2)}, {vA[aa >> 1]} offset0:{of + 2} offset1:{of + 3}")

        def rdB(bb, rho):
            d = BX if bb < 0 else BF[rho & 1] + 4 * bb
            q(f"ds_read_b128 {vr(d, 4)}, {vB} offset:{3584 - 512 * bb + 64 * rho}")

        rdA(0)
        rdB(-1, 0)
        rdA(1)
        for bb in range(7, 1, -1):
            rdB(bb, 0)
        late = [lambda: rdB(1, 0), lambda: rdB(0, 0), lambda: rdA(2), lambda: rdA(3), lambda: rdA(4)]
        started = set()
        for n, (rho, aa) in enumerate(rows):
            bs = list(range(7 - aa, -1, -1)) + ([-1] if rho == 0 and aa > 0 else [])
            for k, bb in enumerate(bs):
                d = vr(acc + 4 * (aa + bb), 4)
                B = BX if bb < 0 else BF[rho & 1] + 4 * bb
                q(f"v_mfma_f32_16x16x32_bf16 {d}, {vr(AF + 4 * (n % 8), 4)}, {vr(B, 4)}, {d if aa + bb in started else '0'}")
                started.add(aa + bb)
                if late:
                    late.pop(0)()
                if k == 0 and n + 5 < len(rows):
                    rdA(n + 5)
                if k == len(bs) // 2 and n > 0 and rho < 3:
                    rdB(7 - (n - 1) % 8, rho + 1)
        pl, pk, m2 = Seq(), Seq(), Seq()
        pl.mark(limit=o.get("lim_x1poll", 1100))
        pp = o.get("x1_poll_at", 80)
        pl2 = Seq()
        self.poll_issue(pl2, vPv, vPoll, sC)
        pl2.mark(limit=o.get("lim_x1poll2", 1100))
        self.poll_check(pk, vPv, vPoll, sC, 2)
        pk.mark("x1_seen", limit=self.opt.get("lim_def", 1500))
        self.stamp(pk, "x1 seen")
        m2.mark("conv2")
        for ks in range(0, 32, 2):
            g = Seq()
            base = (sV4 if ks % 8 >= 4 else sQ)[ks // 8]
            for x in (ks, ks + 1):
                g(f"buffer_load_dwordx4 {ar(4 * x, 4)}, {vL16}, {sWS}, {base} offen offset:{(x % 4) * 1024} sc1")
            self.bg(g, "hand", "x1_seen", 12)
        plan = [(max(pp - 20, 1), pl), (pp, pl2), (o.get("x1_check_at", 116), pk), (o.get("conv2_at", 1), m2)] + self.dense("c", range(1, 152, 12))
        ad = Seq()
        ad(f"""
        s_lshl_b32 {sT0}, {sw}, 12
        s_add_u32 {sT0}, {sT0}, {EXC}
        v_add_u32 {vT[3]}, {sT0}, {vL16}
        v_xor_b32 {a}, 8192, {vT[3]}
        v_and_b32 {b}, 15, {vL}
        v_lshlrev_b32 {b}, 5, {b}
        v_lshrrev_b32 {vT[2]}, 4, {vL}
        v_lshl_add_u32 {b}, {vT[2]}, 3, {b}
        s_mul_i32 {sT1}, {sth}, {UCH}
        s_add_u32 {sT1}, {sT1}, {CU + 4120 - 1536}
        s_lshl_b32 {sT2}, {skh}, 11
        s_sub_u32 {sT1}, {sT1}, {sT2}
        v_sub_u32 {vT[2]}, {sT1}, {b}
        s_xor_b32 {sT0}, {sT0}, 8192
        v_add_u32 {b}, {sT0}, {b}
        v_lshlrev_b32 {vr(V_SSM + 5)}, 16, {vr(V_SSM + 5)}
        v_and_b32 {vT[4]}, 8, {vL}
        v_cmp_eq_u32 vcc, 0, {vT[4]}
        """)
        sel = Seq()
        sel(f"v_and_b32 {vT[4]}, 8, {vL}")
        sel(f"v_cmp_eq_u32 vcc, 0, {vT[4]}")
        for n in range(4):
            sel(f"v_cndmask_b32 {vr(V_SSM + n)}, {vr(V_ONES + n)}, {vZero}, vcc")
        for n in range(4):
            sel(f"v_cndmask_b32 {vr(V_ONES + n)}, {vZero}, {vr(V_ONES + n)}, vcc")
        sel(f"""
        v_lshlrev_b32 {vT[5]}, 2, {vL}
        v_add_u32 {vT[5]}, {ST}, {vT[5]}
        s_lshl_b32 {sT0}, {sw}, 8
        v_add_u32 {vT[6]}, {sT0}, {vT[5]}
        s_add_u32 {sT0}, {sT0}, {ST + 3072}
        v_add_u32 {vCsA}, {sT0}, {vCsA}
        """)
        ad.items = ad.items[:-2]
        p.extend(weave(q, fill(q, [(104, 126, split(ad)), (128, 150, split(sel))], plan)))
        self.stamp(p, "conv mfma")
        p.wait(vm=t["l0"])
        x = Seq()
        hi, join = self.label("convhi"), self.label("convjoin")
        x("s_barrier")
        t["ph1"] = self.behead(self.p3_phase(R2, V_ACC, V_ACC + 16, V_TMP))
        x.extend(t["ph1"][0])
        x(f"s_cmp_lg_u32 {skh}, 0")
        x(f"s_cbranch_scc1 {hi}")
        for half, tail in ((16, f"s_branch {join}\n{hi}:"), (0, f"{join}:")):
            for n in range(4):
                x(f"ds_write_b128 {vT[3]}, {vr(acc + half + 4 * n, 4)} offset:{n * 1024}", count=(half == 0))
            x("s_waitcnt lgkmcnt(0)")
            x("s_barrier")
            for n in range(4):
                x(f"ds_read_b128 {vr(acc + half + 4 * n, 4)}, {a} offset:{n * 1024}", count=(half == 0))
            x(tail)
        t["cx"] = x.items[-2]
        p.atomic(x)
        p.mark("conv_end")
        self.stamp(p, "conv done")
        e = Seq()
        uu, tmp = V_B + 16, V_B + 32
        for n in range(4):
            e(f"ds_read_b64 {vr(uu + 2 * n, 2)}, {vT[2]} offset:{1536 - 512 * n}")
        e.wait(lg=t["cx"])
        for n in range(16):
            e(f"v_add_f32 {vr(acc + n)}, {vr(acc + n)}, {vr(acc + 16 + n)}")
        for n in range(4):
            e(f"v_and_b32 {vr(tmp)}, {sHi}, {vr(uu + 2 * n + 1)}")
            e(f"v_lshlrev_b32 {vr(tmp + 1)}, 16, {vr(uu + 2 * n + 1)}")
            e(f"v_and_b32 {vr(tmp + 2)}, {sHi}, {vr(uu + 2 * n)}")
            e(f"v_lshlrev_b32 {vr(tmp + 3)}, 16, {vr(uu + 2 * n)}")
            for r in range(4):
                e(f"v_fmac_f32 {vr(acc + 4 * n + r)}, {vr(V_SSM + 5)}, {vr(tmp + r)}")
        for n in range(8):
            e(f"v_cvt_pk_bf16_f32 {vr(uu + n)}, {vr(acc + 2 * n)}, {vr(acc + 2 * n + 1)}")
        for n in range(4):
            e(f"ds_write_b64 {b}, {vr(uu + 2 * n, 2)} offset:{n * 512}")
        e(f"ds_read_b128 {vr(uu + 8, 4)}, {a}")
        e(f"ds_read_b128 {vr(uu + 12, 4)}, {a} offset:1024")
        e(f"""
        v_lshrrev_b32 {b}, 3, {vL}
        v_and_b32 {vT[2]}, 7, {vL}
        v_lshlrev_b32 {vT[2]}, 4, {vT[2]}
        v_lshl_add_u32 {b}, {b}, 13, {vT[2]}
        s_lshl_b32 {sT2}, {sj}, 18
        s_lshl_b32 {sT1}, {skh}, 17
        s_add_u32 {sT2}, {sT2}, {sT1}
        s_lshl_b32 {sT1}, {sc}, 1
        s_add_u32 {sT1}, {sT1}, {sth}
        s_lshl_b32 {sT1}, {sT1}, 7
        s_add_u32 {sT2}, {sT2}, {sT1}
        s_add_u32 {sT2}, {sT2}, {WS_YT}
        s_add_u32 {sT1}, {sT2}, 65536
        """)
        s0 = e(f"buffer_store_dwordx4 {vr(uu + 8, 4)}, {b}, {sWS}, {sT2} offen sc1")
        s1 = e(f"buffer_store_dwordx4 {vr(uu + 12, 4)}, {b}, {sWS}, {sT1} offen sc1")
        t["y"], t["conv_epi"] = [s0, s1], e

    @staticmethod
    def behead(q):
        n = next(i for i, it in enumerate(q.items) if it.kind in ("mfma32", "mfma16"))
        while q.items[n - 1].kind == "wait":
            n -= 1
        head, body = Seq(), Seq()
        head.items, body.items = q.items[:n], q.items[n:]
        return head, body

    def p3_phase(self, base, accA, accB, cs):
        q = Seq()
        regs = [(vXr[0], vXr[1]), (vXr[2], vXr[3])]

        def setblk(blk):
            r0, r1 = regs[blk & 1]
            q(f"s_lshl_b32 {sT0}, {sR[blk]}, 7")
            q(f"s_add_u32 {sT0}, {sT0}, {base}")
            q(f"v_add_u32 {r0}, {sT0}, {vTr0}")
            q(f"v_xor_b32 {r1}, 64, {r0}")

        def rd(ks, half):
            if ks < 32:
                tok[ks] = self.a_reads(q, V_A + 8 * (ks % 4) + 4 * half, regs[(ks >> 3) & 1][half], (ks & 7) * 2048)

        tok = {}
        setblk(0)
        ra = self.opt.get("ra2", 3)
        for ks in range(ra):
            rd(ks, 0)
            rd(ks, 1)
        setblk(1)
        for ks in range(32):
            A = V_A + 8 * (ks % 4)
            z = ks == 0
            q.wait(lg=tok[ks])
            q(f"v_mfma_f32_32x32x16_bf16 {vr(accA, 16)}, {vr(A, 4)}, {ar(4 * ks, 4)}, {'0' if z else vr(accA, 16)}")
            rd(ks + ra, 0)
            q(f"v_mfma_f32_32x32x16_bf16 {vr(accB, 16)}, {vr(A + 4, 4)}, {ar(4 * ks, 4)}, {'0' if z else vr(accB, 16)}")
            rd(ks + ra, 1)
            if ks < 8:
                q(f"v_mfma_f32_16x16x32_bf16 {vr(cs, 4)}, {vr(V_ONES, 4)}, {vr(A, 4)}, {'0' if z else vr(cs, 4)}")
                q(f"v_mfma_f32_16x16x32_bf16 {vr(cs, 4)}, {vr(V_SSM, 4)}, {vr(A + 4, 4)}, {vr(cs, 4)}")
            if ks in (8, 16):
                setblk(ks // 8 + 1)
        return q

    def p3_tile(self, base, half, acc, cs=None):
        q = Seq()
        regs = [vXr[0], vXr[2]]
        tok = {}

        def setblk(blk):
            q(f"s_lshl_b32 {sT0}, {sR[blk]}, 7")
            q(f"s_add_u32 {sT0}, {sT0}, {base}")
            q(f"v_add_u32 {regs[blk & 1]}, {sT0}, {vTr0}")
            if half:
                q(f"v_xor_b32 {regs[blk & 1]}, 64, {regs[blk & 1]}")

        def rd(ks):
            if ks < 32:
                tok[ks] = self.a_reads(q, V_A + 4 * (ks % 6), regs[(ks >> 3) & 1], (ks & 7) * 2048)

        setblk(0)
        X = V_ACC + 32
        if cs is not None:
            q(f"v_xor_b32 {vXr[1]}, 64, {vXr[0]}")
            for ks in range(3):
                self.a_reads(q, X + 4 * ks, vXr[1], ks * 2048)
        ra = self.opt.get("ra1", 5)
        for ks in range(ra):
            rd(ks)
        setblk(1)
        for ks in range(32):
            A = V_A + 4 * (ks % 6)
            q(f"v_mfma_f32_32x32x16_bf16 {vr(acc, 16)}, {vr(A, 4)}, {ar(4 * ks, 4)}, {'0' if ks == 0 else vr(acc, 16)}")
            rd(ks + ra)
            if cs is not None and ks < 8:
                q(f"v_mfma_f32_16x16x32_bf16 {vr(cs, 4)}, {vr(V_ONES, 4)}, {vr(A, 4)}, {'0' if ks == 0 else vr(cs, 4)}")
            if cs is not None and ks < 8:
                if ks + 3 < 8:
                    self.a_reads(q, X + 4 * ((ks + 3) % 4), vXr[1], (ks + 3) * 2048)
                q(f"v_mfma_f32_16x16x32_bf16 {vr(cs, 4)}, {vr(V_SSM, 4)}, {vr(X + 4 * (ks % 4), 4)}, {vr(cs, 4)}")
            if ks in (6, 14):
                setblk(ks // 8 + 2)
            if half:
                q.mark(f"t3_{ks}")
        return q

    def cs_exchange(self, table, cs, dstA, dstB):
        w, r, a, b = Seq(), Seq(), Seq(), Seq()
        tok = w(f"ds_write_b32 {vT[6]}, {vr(cs)} offset:{table - ST}")
        r.wait(lg=tok)
        r("s_barrier")
        for n in range(4):
            r(f"ds_read_b32 {vr(cs + n)}, {vT[5]} offset:{table - ST + n * 256}")
        r(f"v_add_f32 {vr(cs)}, {vr(cs)}, {vr(cs + 1)}")
        r(f"v_add_f32 {vr(cs + 2)}, {vr(cs + 2)}, {vr(cs + 3)}")
        r(f"v_add_f32 {vr(cs)}, {vr(cs)}, {vr(cs + 2)}")
        r(f"ds_write_b32 {vT[6]}, {vr(cs)} offset:3072")
        for n in range(4):
            a(f"ds_read_b128 {vr(dstA + 4 * n, 4)}, {vCsA} offset:{n * 32}")
            b(f"ds_read_b128 {vr(dstB + 4 * n, 4)}, {vCsA} offset:{128 + n * 32}")
        return w, r, a, b

    def gelu_plain(self, p, acc, cs, tmp, out):
        K1, K2, SD, NM = vr(V_KK), vr(V_KK + 1), vr(V_SM), vr(V_SM + 1)
        for b in range(0, 16, 4):
            xs = range(b, b + 4)
            T = lambda x: vr(tmp + (x & 7))
            for x in xs:
                p(f"v_fmac_f32 {vr(acc + x)}, {vr(cs + x)}, {NM}")
            for x in xs:
                p(f"v_mul_f32 {T(x)}, {vr(acc + x)}, {vr(acc + x)}")
            for x in xs:
                p(f"v_fma_f32 {T(x)}, {T(x)}, {K2}, {K1}")
            for x in xs:
                p(f"v_mul_f32 {T(x)}, {T(x)}, {vr(acc + x)}")
            for x in xs:
                p(f"v_exp_f32 {T(x)}, {T(x)}")
            for x in xs:
                p(f"v_fma_f32 {T(x)}, {T(x)}, {SD}, {SD}")
            for x in xs:
                p(f"v_rcp_f32 {T(x)}, {T(x)}")
            for x in xs:
                p(f"v_mul_f32 {T(x)}, {T(x)}, {vr(acc + x)}")
            for x in (b, b + 2):
                p(f"v_cvt_pk_bf16_f32 {vr(out + x // 2)}, {T(x)}, {T(x + 1)}")

    def h2_tile(self, acc, cs16, out, plain=False):
        q = Seq()
        (self.gelu_plain if plain else self.gelu_packed)(q, acc, cs16, V_TMP + 16, out)
        s0 = q(f"buffer_store_dwordx4 {vr(out, 4)}, {vL16}, {sWS}, {sH2st} offen sc1")
        s1 = q(f"buffer_store_dwordx4 {vr(out + 4, 4)}, {vL16}, {sWS}, {sH2st} offen offset:2048 sc1")
        q(f"s_add_u32 {sH2st}, {sH2st}, 57344")
        q("s_nop 0")
        return q, [s0, s1]

    def h2_loads(self, piece, reg, prio, freed=None):
        for u in range(7):
            g = Seq()
            g(f"s_add_u32 {sB}, {sH2ld}, {piece * 57344 + u * 2048}")
            for i in range(2):
                g(f"buffer_load_dwordx4 {reg(8 * u + 4 * i)}, {vXs[1 + i]}, {sWS}, {sB} offen sc1")
            self.bg(g, "hand", (f"h2_seen{piece}", f"t3_{freed + 2 * u + 1}") if freed is not None else f"h2_seen{piece}", prio)

    def late_addrs(self, p):
        a, b = vT[0], vT[1]
        o = self.opt
        p(f"""
        s_lshl_b32 {sYfl}, {sj2}, 9
        s_lshr_b32 {sT1}, {sc}, 4
        s_lshl_b32 {sT1}, {sT1}, 8
        s_add_u32 {sYfl}, {sYfl}, {sT1}
        s_add_u32 {sYfl}, {sYfl}, {FLAG1}
        v_and_b32 {a}, 3, {vL}
        s_mul_i32 {sT1}, {sth}, 3
        v_add_u32 {a}, {sT1}, {a}
        v_add_u32 {b}, {8 - self.idle}, {a}
        v_lshrrev_b32 {b}, 3, {b}
        v_add_u32 {a}, {a}, {b}
        v_bfe_u32 {b}, {vL}, 2, 1
        v_lshlrev_b32 {a}, 9, {a}
        v_lshl_add_u32 {vH2fl}, {b}, 7, {a}
        s_lshr_b32 {sT2}, {sc}, 3
        s_lshl_b32 {sT2}, {sT2}, 3
        s_lshl_b32 {sT1}, {skh}, 2
        s_add_u32 {sT2}, {sT2}, {sT1}
        s_bfe_u32 {sT1}, {sc}, 0x20001
        s_add_u32 {sT2}, {sT2}, {sT1}
        s_lshl_b32 {sT2}, {sT2}, 12
        s_and_b32 {sT1}, {sc}, 1
        s_lshl_b32 {sT1}, {sT1}, 8
        s_add_u32 {sH2fl}, {sT2}, {sT1}
        s_mul_i32 {sT2}, {sw}, {7 * 2048}
        s_mul_i32 {sT1}, {sc}, 229376
        s_add_u32 {sT1}, {sT1}, {sT2}
        s_add_u32 {sH2ld}, {sT1}, {WS_H2 + (WS_SIZE if o.get("dbg_noh2") else 0)}
        s_lshl_b32 {sT2}, {skh}, 15
        s_sub_u32 {sT2}, {sPriv}, {sT2}
        v_add_u32 {vTrX}, {sT2}, {vTrX}
        v_add_u32 {vTrY}, {sT2}, {vTrY}
        v_lshrrev_b32 {a}, 5, {vL}
        v_lshl_add_u32 {vKv}, {a}, 7, {vKv}
        v_lshlrev_b32 {a}, 10, {a}
        v_bfe_u32 {b}, {vL}, 2, 2
        v_lshl_add_u32 {a}, {b}, 7, {a}
        v_bfe_u32 {b}, {vL}, 4, 1
        v_lshl_add_u32 {a}, {b}, 5, {a}
        v_and_b32 {b}, 3, {vL}
        v_lshl_add_u32 {a}, {b}, 3, {a}
        s_lshl_b32 {sT2}, {snh}, 12
        s_lshl_b32 {sT1}, {sth}, 6
        s_add_u32 {sT2}, {sT2}, {sT1}
        s_add_u32 {sT2}, {sT2}, {YB}
        v_add_u32 {vY}, {sT2}, {a}
        s_lshl_b32 {sYld}, {sj2}, 5
        s_add_u32 {sYld}, {sYld}, {sc}
        s_lshl_b32 {sYld}, {sYld}, 13
        s_lshl_b32 {sT1}, {sw}, 11
        s_add_u32 {sYld}, {sYld}, {sT1}
        s_add_u32 {sYld}, {sYld}, {WS_YT}
        s_add_u32 {sYlds}, {sT1}, {YB}
        s_lshl_b32 {sGld}, {sc}, 1
        s_add_u32 {sGld}, {sGld}, {sth}
        s_lshl_b32 {sGld}, {sGld}, 11
        s_add_u32 {sGld}, {sGld}, {WS_GATE}
        """)

    def p3(self, p, t):
        o = self.opt
        T0, T1, T2, T3 = V_ACC, V_ACC + 16, V_ACC, V_ACC + 32
        cs, stt = V_TMP, V_B
        a, b = vT[0], vT[1]
        p.mark("p3")
        for i in range(0, 8, 2):
            g = Seq()
            for x in (i, i + 1):
                g(f"buffer_load_dwordx2 {vr(stt + 2 * x, 2)}, {vKh}, {sWS}, {sStld} offen offset:{x * 512} sc1")
            self.bg(g, "few", "p3", o.get("prio_stats", 11))
        ypub, lim, ln = Seq(), Seq(), Seq()
        self.publish(ypub, t["y"], 2, FLAG1)
        lim.mark(limit=o.get("lim_g0", 1100))
        for x in (0, 1):
            ln(f"v_add_f32 {vr(stt + x)}, {vr(stt + x)}, {vr(stt + 2 + x)}")
        for i in range(1, 4):
            for x in (0, 1):
                ln(f"v_add_f32 {vr(stt + x)}, {vr(stt + x)}, {vr(stt + 4 * i + x)}")
                ln(f"v_add_f32 {vr(stt + x)}, {vr(stt + x)}, {vr(stt + 4 * i + 2 + x)}")
        self.half_sum(ln, vr(stt), vr(stt + 2))
        self.half_sum(ln, vr(stt + 1), vr(stt + 3))
        self.ln_consts(ln, vr(stt), vr(stt + 1))
        csA, csB = V_B + 44, V_ACC + 48
        cw, cr, ca, cb = self.cs_exchange(ST + 2048, cs, csA, csB)
        q = t["ph1"][1]
        fixed = [(36, cw), (o.get("ypub_at", 76), ypub), (o.get("lim_g0_at", 66), lim)] + self.dense("i", range(1, 80, self.opt.get("dstep", 8)))
        streams = [(2, 46, split(t["conv_epi"])), (47, 53, split(cr)), (54, 72, split(ln)), (73, 78, split(ca) + split(cb))]
        p.extend(weave(q, fill(q, streams, fixed)))
        self.stamp(p, "p3 t01")
        q0, st0 = self.h2_tile(T0, csA, V_TMP)
        p.extend(q0)
        p.mark(limit=o.get("lim_g1b", 1100))
        self.stamp(p, "h2 p0 st")
        p.wait(vm=t["l1"])
        p("s_barrier")
        p.mark("B3")
        head2, body2 = self.behead(self.p3_tile(R0, 0, V_ACC, cs))
        p.extend(head2)
        q1, st1 = self.h2_tile(T1, csB, V_TMP + 8)
        p.extend(q1)
        p.mark(limit=self.opt.get("lim_def", 1500))
        p(f"""
        s_lshl_b32 {sT2}, {sth}, 10
        v_add_u32 {vXs[1]}, {sT2}, {vL16}
        v_xor_b32 {vXs[2]}, 1024, {vXs[1]}
        v_add_u32 {vXs[3]}, {sPriv}, {vL16}
        v_lshlrev_b32 {b}, 2, {vL}
        """)
        self.stamp(p, "h2 p1 st")
        w0t = self.w4_loads(0, R2, "B3", 32)
        self.w4_park(2, A_PARK + 56, o.get("park3_after", "conv2"), 41)
        pub0, pub1, pub2, ypl, ypk, hpl, hpk, yd, gl, lim, lim2 = (Seq() for _ in range(11))
        self.publish(pub0, st0, 3, FLAG0)
        self.stamp(pub0, "h2 p0 flag")
        self.publish(pub1, st1, 4, FLAG0)
        self.poll_issue(ypl, vPw, vKv, sYfl)
        self.poll_check(ypk, vPw, vKv, sYfl, 2)
        yd(f"s_mov_b32 m0, {sYlds}")
        self.dma(yd, vL16, sWS, sYld, 0, "sc1")
        ytok = self.dma(yd, vL16, sWS, sYld, 1024, "sc1")
        ypk.atomic(yd)
        T2, T3, csA2, csB2 = V_ACC, V_ACC + 16, V_ACC + 32, V_ACC + 48
        cw, cr, ca, cb = self.cs_exchange(ST, cs, csA2, csB2)
        q = body2
        lim.mark(limit=o.get("lim_g2", 1100))
        fixed = [(o.get("pub0_at", 2), pub0), (o.get("pub1_at", 22), pub1), (28, cw), (o.get("lim_g2_at", 36), lim)]
        streams = [(32, 38, split(cr)), (40, 47, split(ca) + split(cb))]
        p.extend(weave(q, fill(q, streams, fixed + self.dense("j", range(1, 48, self.opt.get("dstep", 6))))))
        self.stamp(p, "p3 t2")
        self.poll_issue(hpl, vPv, vH2fl, sH2fl)
        hmid = o.get("h2_poll_mid", 30)
        if not hmid:
            p.extend(hpl)
        if not o.get("y_poll_at"):
            p.extend(ypl)
        head3, body3 = self.behead(self.p3_tile(R0, 1, T3))
        p.extend(head3)
        q2, st2 = self.h2_tile(T2, csA2, V_TMP)
        p.extend(weave(q2, [(hmid, hpl)], kinds=("trans",)) if hmid else q2)
        self.stamp(p, "g2 done")
        p.mark(limit=self.opt.get("lim_def", 1500))
        self.publish(pub2, st2, 5, FLAG0)
        self.poll_check(hpk, vPv, vH2fl, sH2fl, 4)
        hpk.mark("h2_seen0")
        self.stamp(hpk, "h2 seen")
        self.h2_loads(0, lambda r: vr(V_B + r, 4), 20)
        hpk.mark("h2_seen1")
        hpk("s_nop 0")
        self.h2_loads(1, lambda r: ar(r, 4), 21, freed=0)
        gt = V_B + 56
        for i in range(8):
            gl(f"buffer_load_dword {vr(gt + i)}, {b}, {sWS}, {sGld} offen offset:{i * 256} sc1").note = "few"
        q = body3
        lim2.mark(limit=o.get("lim_g3", 1100))
        fixed = [(o.get("h2_check_at", 14), hpk), (o.get("y_check_at", 16), ypk), (o.get("pub2_at", 30), pub2), (o.get("lim_g3_at", 20), lim2)]
        if o.get("y_poll_at"):
            fixed.append((o["y_poll_at"], ypl))
        p.extend(weave(q, fill(q, [], fixed + self.dense("k", range(1, 32, 4)))))
        self.stamp(p, "p3 t23")
        p.wait(vm=ytok)
        p("s_barrier")
        p.mark("B4")
        w1t = self.w4_loads(3, R0, "B4", o.get("prio_p3", 22.5))
        p(f"v_add_u32 {vXr[0]}, {R2}, {vTrX}")
        p(f"v_add_u32 {vXr[1]}, {R2}, {vTrY}")
        p(f"v_add_u32 {vXr[2]}, {R2}, {vXs[3]}")
        for n in range(o.get("ra4", 3)):
            p.wait(vm=w0t[n])
            for h in range(2):
                self.a_reads(p, V_A + 8 * n + 4 * h, vXr[h], n * 2048)
        q3, st3 = self.h2_tile(T3, csB2, V_TMP + 8)
        p.extend(q3)
        p.mark(limit=self.opt.get("lim_def", 1500))
        self.poll_issue(p, vPv, vH2fl, sH2fl)
        t["gl"] = gl
        a = vY
        self.stamp(p, "p3 done")
        bs = Seq()
        yy, base = V_TMP, V_TMP + 16
        for i in range(4):
            bs(f"ds_read_b64_tr_b16 {vr(yy + 2 * i, 2)}, {a} offset:{(i >> 1) * 2048 + (i & 1) * 512}")
        for i in range(1, 8):
            bs(f"v_add_f32 {vr(gt)}, {vr(gt)}, {vr(gt + i)}")
        self.half_sum(bs, vr(gt), vr(gt + 1))
        G, OM = vr(V_KK), vr(V_KK + 1)
        bs(f"v_mul_f32 {vr(gt)}, {fbits(-math.log2(math.e))}, {vr(gt)}")
        bs(f"v_exp_f32 {vr(gt)}, {vr(gt)}")
        bs(f"v_add_f32 {vr(gt)}, 1.0, {vr(gt)}")
        bs(f"v_rcp_f32 {G}, {vr(gt)}")
        bs(f"v_sub_f32 {OM}, 1.0, {G}")
        for i in range(8):
            for h, un in ((0, "v_lshlrev_b32 {d}, 16, {s}"), (1, "v_and_b32 {d}, " + sHi + ", {s}")):
                t0, t1, d = vr(gt + 2 * h), vr(gt + 2 * h + 1), vr(base + 2 * i + h)
                bs(un.format(d=t0, s=vr(yy + i)))
                bs(un.format(d=t1, s=vr(V_XRES + i)))
                bs(un.format(d=d, s=vr(V_X1P + i)))
                bs(f"v_mul_f32 {t0}, {t0}, {t1}")
                bs(f"v_mul_f32 {d}, {d}, {OM}")
                bs(f"v_fmac_f32 {d}, {t0}, {G}")
        t.update(st3=st3, w0t=w0t, w1t=w1t, base=base, bs=bs)

    def p4(self, p, t):
        o = self.opt
        acc = [V_ACC + 16 * i for i in range(4)]
        breg = [lambda r: vr(V_B + r, 4), lambda r: ar(r, 4), lambda r: ar(56 + r, 4), lambda r: vr(V_B + r, 4)]
        areg = [(vXr[0], vXr[1])] * 3 + [(vTrX, vTrY)]
        pub3 = Seq()
        self.publish(pub3, t["st3"], 6, FLAG0)
        un1, _ = self.w4_unpark_groups(A_PARK, vXr[2])
        un2, _ = self.w4_unpark_groups(A_PARK + 56, vXr[2])
        bs = split(t["bs"])
        a = vXr[2]
        q = Seq()
        steps = [(pc, u) for pc in range(4) for u in range(7)]

        def rd(n, halves=(0, 1)):
            pc, u = steps[n]
            if pc in (0, 3) and 0 in halves:
                q.wait(vm=t["w0t" if pc == 0 else "w1t"][u])
            for h in halves:
                self.a_reads(q, V_A + 8 * (n % 4) + 4 * h, areg[pc][h], u * 2048)

        def mfma(n, slot):
            pc, u = steps[n]
            A = V_A + 8 * (n % 4) + 4 * (slot & 1)
            B = breg[pc](8 * u + 4 * (slot >> 1))
            q(f"v_mfma_f32_32x32x16_bf16 {vr(acc[slot], 16)}, {vr(A, 4)}, {B}, {'0' if n == 0 else vr(acc[slot], 16)}")

        ra = o.get("ra4", 3)
        for n in range(24):
            for slot in range(4):
                mfma(n, slot)
                if slot < 2:
                    rd(n + ra, (slot,))
        if ra == 2:
            rd(26)
        mfma(24, 1)
        rd(27)
        for slot in (1, 2, 3, 0):
            for n in range(24, 28):
                if (n, slot) != (24, 1):
                    mfma(n, slot)
        pk2, pl3, pk3 = Seq(), Seq(), Seq()
        self.poll_check(pk2, vPv, vH2fl, sH2fl, 5)
        pk2.mark("h2_seen2")
        self.h2_loads(2, breg[2], 22)
        self.poll_issue(pl3, vPv, vH2fl, sH2fl)
        self.poll_check(pk3, vPv, vH2fl, sH2fl, 6)
        pk3.mark("h2_seen3")
        self.h2_loads(3, breg[3], 23)
        plan = [(o.get("pub3_at", 18), pub3), (o.get("h2p2_check", 16), pk2), (o.get("h2p3_poll", 52), pl3), (o.get("h2p3_check", 68), pk3)]
        plan += spread(split(t["gl"]), 30, 44)
        for n, gq in enumerate(un1 + un2):
            plan.append((4 * (n // 2) + 3 + (n & 1), gq))
        xa = Seq()
        xa(f"v_xor_b32 {vT[2]}, {2 << 14}, {a}")
        xa(f"v_xor_b32 {vT[3]}, {3 << 14}, {a}")
        xa(f"v_xor_b32 {vT[4]}, {1 << 14}, {a}")
        via_lds = o.get("out_lds", 0)
        (xa if via_lds else Seq())(f"""
        v_and_b32 {vKv}, 31, {vL}
        s_lshl_b32 {sT0}, {sth}, 5
        v_add_u32 {vKv}, {sT0}, {vKv}
        v_mul_u32_u24 {vKv}, 144, {vKv}
        v_lshrrev_b32 {vKh}, 5, {vL}
        v_lshl_add_u32 {vKv}, {vKh}, 4, {vKv}
        s_lshl_b32 {sT0}, {snh}, 6
        v_add_u32 {vKv}, {sT0}, {vKv}
        v_lshrrev_b32 {vKh}, 3, {vL}
        v_and_b32 {vPw}, 7, {vL}
        v_lshlrev_b32 {vPw}, 4, {vPw}
        v_lshl_add_u32 {vOut}, {vKh}, 10, {vPw}
        v_mul_u32_u24 {vKh}, 144, {vKh}
        s_mul_i32 {sT0}, {sw}, {16 * 144}
        v_add3_u32 {vKh}, {vKh}, {vPw}, {sT0}
        s_lshl_b32 {sC}, {sc}, 16
        s_lshl_b32 {sT0}, {sw}, 14
        s_add_u32 {sC}, {sC}, {sT0}
        s_lshl_b32 {sT0}, {sj2}, 7
        s_add_u32 {sC}, {sC}, {sT0}
        s_add_u32 {sD}, {sC}, 8192
        s_nop 0
        """)
        plan += spread(split(xa), 86, 96)
        for s in range(1, 4):
            w = Seq()
            for g in range(4):
                w(f"ds_write_b128 {a}, {vr(acc[s] + 4 * g, 4)} offset:{(s - 1) * 4096 + g * 1024}")
            plan += spread(split(w), 96 + 4 * s + 2, min(96 + 4 * s + 5, 112))
        for pc in range(3):
            sq = Seq()
            self.stamp(sq, f"p4 piece{pc}")
            plan.append((28 * (pc + 1), sq))
        p.extend(weave(q, fill(q, [(60, 94, bs)], plan + self.dense("p", range(1, 112, 4)))))
        self.stamp(p, "p4 piece3")
        p.wait(lg0=True)
        p("s_barrier")
        for s in range(1, 4):
            for g in range(4):
                p(f"ds_read_b128 {vr(acc[s] + 4 * g, 4)}, {vT[1 + s]} offset:{(s - 1) * 4096 + g * 1024}")
        base = t["base"]
        fl = o.get("out_flags", "")
        for half in (0, 8):
            for s in range(1, 4):
                for x in range(half, half + 8, 2):
                    p(f"v_pk_add_f32 {vr(acc[0] + x, 2)}, {vr(acc[0] + x, 2)}, {vr(acc[s] + x, 2)}")
            for x in range(half, half + 8, 2):
                p(f"v_pk_fma_f32 {vr(acc[0] + x, 2)}, {vr(acc[0] + x, 2)}, {vr(V_KK, 2)}, {vr(base + x, 2)} op_sel:[0,1,0] op_sel_hi:[1,1,1]")
            for i in range(half // 2, half // 2 + 4):
                p(f"v_cvt_pk_bf16_f32 {vr(V_TMP + i)}, {vr(acc[0] + 2 * i)}, {vr(acc[0] + 2 * i + 1)}")
            if via_lds:
                p(f"ds_write_b128 {vKv}, {vr(V_TMP + half // 2, 4)} offset:{R0 + half * 4}")
            else:
                p(f"buffer_store_dwordx4 {vr(V_TMP + half // 2, 4)}, {vOut}, {sOUT}, 0 offen offset:{half * 4} {fl}")
        if via_lds:
            p.wait(lg0=True)
            p("s_barrier")
            p(f"ds_read_b128 {vr(V_TMP + 8, 4)}, {vKh} offset:{R0}")
            p(f"ds_read_b128 {vr(V_TMP + 12, 4)}, {vKh} offset:{R0 + 8 * 144}")
            p(f"buffer_store_dwordx4 {vr(V_TMP + 8, 4)}, {vOut}, {sOUT}, {sC} offen {fl}")
            p(f"buffer_store_dwordx4 {vr(V_TMP + 12, 4)}, {vOut}, {sOUT}, {sD} offen {fl}")
        self.advance_epoch(p)
        self.stamp(p, "out issued")

    def write_stamps(self, p):
        if self.diag:
            p.wait(vm0=True)
            self.stamp(p, "end")
            p(f"""
            s_cmp_lg_u32 s2, {self.opt.get("diag_wg", 73)}
            s_cbranch_scc1 L_end
            s_sub_u32 s98, s98, s96
            s_mul_i32 s98, s98, {self.diag[2]}
            s_lshr_b32 s98, s98, {4 if len(self.diag) > 3 else 0}
            s_memrealtime s[96:97]
            s_waitcnt lgkmcnt(0)
            L_diag:
            s_memrealtime s[100:101]
            s_waitcnt lgkmcnt(0)
            s_sub_u32 s100, s100, s96
            s_cmp_lt_u32 s100, s98
            s_cbranch_scc1 L_diag
            """)
        if not self.profile:
            return
        p.wait(vm0=True)
        self.stamp(p, "end")
        p("s_memrealtime s[100:101]")
        p.wait(lg0=True)
        p("v_writelane_b32 v254, s100, 1")
        p(f"""
        s_lshl_b32 {sT0}, s2, 2
        s_add_u32 {sT0}, {sT0}, {sw}
        s_lshl_b32 {sT0}, {sT0}, 8
        s_add_u32 {sT0}, {sT0}, {WS_STAMP}
        v_lshlrev_b32 {vP2}, 2, {vL}
        """)
        p(f"buffer_store_dword v254, {vP2}, {sWS}, {sT0} offen sc1")

    def build(self):
        p = self.p
        t = {}
        self.prologue(p)
        self.p1(p, t)
        self.a1(p, t)
        self.p2(p, t)
        self.conv(p, t)
        self.p3(p, t)
        self.p4(p, t)
        self.write_stamps(p)
        p("L_end:")
        p("s_endpgm")
        assert len(self.stamps) + self.npoll <= 62, len(self.stamps)
        classes = {"p1cold": (self.opt.get("s_p1cold", 230), self.opt.get("l_p1cold", 1400)), "p1l2": (75, 400)}
        classes.update(mall=(115, 900), hand=(105, 900))
        for k in ("mall", "hand", "cold"):
            if "s_" + k in self.opt:
                classes[k] = (self.opt["s_" + k], self.opt.get("l_" + k, 900))
        self.log = []
        p = schedule(p, [b for _, _, b in sorted(self.bgs, key=lambda e: e[:2])], classes, self.log, self.opt.get("split_bg", 1), self.opt.get("depth", 10))
        body, items = finalize(p)
        head = open(__file__.replace("gen.py", "header.txt")).read()
        text = head + f"; @launch grid=(256,1,1) block=(256,1,1) lds={LDS_SIZE}\n"
        text += f""".amdgcn_target "amdgcn-amd-amdhsa--gfx950"
.text
.globl {NAME}_kernel
.p2align 8
.type {NAME}_kernel,@function
{NAME}_kernel:
.set CODE_BYTES, L_code_end - L_pc - 4
"""
        text += body
        text += f"""L_code_end:
.section .rodata,"a"
.p2align 6
.amdhsa_kernel {NAME}_kernel
  .amdhsa_next_free_vgpr 512
  .amdhsa_next_free_sgpr 102
  .amdhsa_accum_offset 256
  .amdhsa_group_segment_fixed_size 0
  .amdhsa_kernarg_size 120
  .amdhsa_user_sgpr_count 2
  .amdhsa_user_sgpr_kernarg_segment_ptr 1
  .amdhsa_system_sgpr_workgroup_id_x 1
.end_amdhsa_kernel
"""
        return text


if __name__ == "__main__":
    prof = "--profile" in sys.argv
    out = [a for a in sys.argv[1:] if not a.startswith("--")]
    diag = [a[7:].split(",") for a in sys.argv if a.startswith("--diag=")]
    opt = {}
    for a in sys.argv:
        if a.startswith("--o:"):
            k, v = a[4:].split("=")
            opt[k] = int(v) if v.lstrip("-").isdigit() else v
    g = Gen(profile=prof, diag=diag[0] if diag else None, opt=opt)
    text = g.build()
    path = out[0] if out else f"cdna_kernels/{NAME}.s"
    open(path, "w").write(text)
    if prof:
        open(path + ".stamps", "w").write("\n".join(g.stamps))
    print("wrote", path, len(text), "bytes")
    if "--log" in sys.argv:
        print("  ".join(f"{n}={t}" for n, t in g.log))
```

```python
import math
import struct
import sys

from asmdsl import Seq, Bg, finalize, schedule, weave, spread, split, fill

NAME = "gated_mix__ssm_conv_h3__mixer_s_mlp__prompt"

FLAG0, FLAG1, WS_EPOCH = 0x0, 0x20000, 0x40000
WS_H, WS_X1, WS_H2, WS_KVT, WS_YT = 0x100000, 0x300000, 0x500000, 0xC00000, 0xE00000
WS_STATS, WS_GATE, WS_STAMP = 0x1000000, 0x1080000, 0x1100000
WS_SIZE = 0x1200000

R0, R1, R2, R3, R4 = 0, 32768, 65536, 98304, 131072
KB, VB, A1R = R4, R4 + 9216, R4 + 17408
ST = R4 + 28672
ST_STAT, ST_CS, ST_CS3 = ST, ST + 1024, ST + 1536
KCOPY, KCH = 4288, 8576
CK, CU, UCH = R4, R4 + 17152, 4928
EX2, EXC = R2 + 12288, R4
YB = R4
LDS_SIZE = 163840

sX, sK, sV, sSK, sW1, sW2, sW3, sW4, sOUT, sWS, sDBG = [f"s[{4 + 4 * i}:{7 + 4 * i}]" for i in range(11)]
pSH, pD, pG = "s[48:49]", "s[50:51]", "s[52:53]"
sw, sth, skh, snh, sc, sj, sm, ssc = [f"s{i}" for i in range(54, 62)]
srot, sja, sEp, sOnes, sHi = "s62", "s63", "s64", "s65", "s66"
sOneLo, sOneHi = "s44", "s45"
sT0, sT1, sT2, sT3, sCnt = "s67", "s68", "s69", "s70", "s71"
sU = [f"s{i}" for i in range(72, 79)]
sFlag, sPriv = "s79", "s80"
sWsrc, sWlds, sW3b, sB, sC, sD, sE, sOob = [f"s{i}" for i in range(81, 89)]
sR = ["s46", "s47", "s3", "s95"]
sH2st, sH2fl, sH2ld, sX1ld, sStld = [f"s{i}" for i in range(89, 94)]
sj2 = "s94"
sYfl, sYld, sYlds, sGld = "s8", "s9", "s10", "s11"
sW2src, sIdle = "s0", "s1"
sQ = ["s12", "s13", "s14", "s15"]
sV4 = ["s20", "s21", "s22", "s23"]

vL, vL16, vTrX, vTrY, vTr0, vWs1, vWs, vW3s = [f"v{i}" for i in range(1, 9)]
vW3s1 = "v0"
vXs = [f"v{i}" for i in range(9, 13)]
vXr = [f"v{i}" for i in range(13, 17)]
vPoll, vP2, vZero, vCsA = "v17", "v18", "v19", "v20"
vT = [f"v{i}" for i in range(21, 27)] + ["v253"]
V_KK, V_SM = 28, 30
V_XRES, V_X1P = 32, 40
V_B, V_ACC, V_A, V_TMP = 48, 112, 176, 208
V_ONES = 244
V_SSM = 232
vPv, vPw, vKv, vKh = "v248", "v249", "v250", "v251"
V_SK = 252
vL128 = "v243"
vOut = "v27"
vH2fl, vY = "v252", "v9"
A_W2, A_PARK = 0, 128


def vr(b, n=1):
    return f"v{b}" if n == 1 else f"v[{b}:{b + n - 1}]"


def ar(b, n=1):
    return f"a{b}" if n == 1 else f"a[{b}:{b + n - 1}]"


def fbits(x):
    return "0x%08x" % struct.unpack("<I", struct.pack("<f", x))[0]


C0 = math.sqrt(2.0 / math.pi)
GK1 = -2.0 * C0 * math.log2(math.e)
GK2 = GK1 * 0.044715
SPIN_LIMIT = 400000


class Gen:
    def __init__(self, profile=False, diag=None, opt=None):
        self.profile = profile
        self.opt = opt or {}
        self.diag = diag
        self.p = Seq()
        self.nlabel = 0
        self.npoll = 0
        self.idle = (3 - self.opt.get('j2', 1)) & 7
        self.bgs = []
        self.stamps = []

    def label(self, base):
        self.nlabel += 1
        return f"L_{base}_{self.nlabel}"

    def stamp(self, p, name):
        p.mark("@" + name)
        if self.diag and name in self.diag[:2]:
            r = 96 + 2 * self.diag.index(name)
            p(f"{'s_memtime' if len(self.diag) > 3 else 's_memrealtime'} s[{r}:{r + 1}]")
            p.wait(lg0=True)
        if not self.profile:
            return
        only = self.opt.get("stamps")
        if only and name not in ("start", "end") and name not in only.split(",") and (self.opt.get("nodigit") or not name[-1].isdigit()):
            return
        i = len(self.stamps)
        self.stamps.append(name)
        q = Seq()
        q("s_memrealtime s[100:101]" if self.opt.get("rt") else "s_memtime s[100:101]")
        q.wait(lg0=True)
        q(f"v_writelane_b32 v254, s100, {i + 2}")
        p.atomic(q)

    def dma(self, p, vaddr, srd, soff, imm=0, flags="", count=True):
        off = f" offset:{imm}" if imm else ""
        return p(f"buffer_load_dwordx4 {vaddr}, {srd}, {soff} offen{off} {flags} lds", count)

    def bg(self, seq, cls, after, prio):
        b = Bg(seq, cls, after, prio)
        self.bgs.append((prio, len(self.bgs), b))
        return b

    def dma_pair(self, v0, v1, srd, src_lines, lds_reg, lds, flags=""):
        g = Seq()
        g(f"s_add_u32 m0, {lds_reg}, {lds}")
        g(src_lines)
        self.dma(g, v0, srd, sB, flags=flags)
        return g, self.dma(g, v1, srd, sB, 1024, flags=flags)

    def dense(self, tag, positions):
        plan = []
        if tag[0] in str(self.opt.get("dense", "")):
            for n in positions:
                q = Seq()
                self.stamp(q, f"{tag}{n}")
                plan.append((n, q))
        return plan

    def emit(self, p, groups):
        for g in groups:
            p.extend(g)

    def poll_issue(self, p, dst, vaddr, soff, srd=sWS):
        t = p(f"buffer_load_dword {dst}, {vaddr}, {srd}, {soff} offen sc1")
        t.note = "few"
        return t

    def poll_check(self, p0, dst, vaddr, soff, need):
        p = Seq()
        a, b = self.label("poll"), self.label("pdone")
        p(f"s_mov_b32 {sCnt}, {SPIN_LIMIT}")
        p(f"s_add_u32 {sE}, {sEp}, {need}")
        p(f"v_subrev_u32 {dst}, {sE}, {dst}")
        p(f"v_cmp_lt_u32 vcc, {6 - need}, {dst}")
        p(f"s_cbranch_vccz {b}")
        p(f"{a}:")
        p(f"s_sleep {self.opt.get('poll_sleep', 3)}")
        p(f"s_sub_u32 {sCnt}, {sCnt}, 1")
        p(f"buffer_load_dword {dst}, {vaddr}, {sWS}, {soff} offen sc1", count=False)
        p("s_waitcnt vmcnt(0)")
        p(f"v_subrev_u32 {dst}, {sE}, {dst}")
        p(f"v_cmp_lt_u32 vcc, {6 - need}, {dst}")
        p(f"s_cbranch_vccz {b}")
        p(f"s_cmp_lg_u32 {sCnt}, 0")
        p(f"s_cbranch_scc1 {a}")
        p(f"{b}:")
        if self.profile:
            self.npoll += 1
            p(f"s_sub_u32 {sCnt}, {SPIN_LIMIT}, {sCnt}")
            p(f"v_writelane_b32 v254, {sCnt}, {64 - self.npoll}")
        p0.atomic(p)

    def masked(self, p0, mask, text):
        p = Seq()
        p(f"s_mov_b64 exec, {mask}")
        t = p(text)
        p("s_mov_b64 exec, -1")
        p0.atomic(p)
        return t

    def readback(self, p, key, text, mask="0xffff"):
        if self.opt.get(key):
            self.masked(p, mask, text).note = "few"

    def publish(self, p, toks, value, area):
        p(f"s_add_u32 {sE}, {sEp}, {value}")
        p(f"v_mov_b32 {vP2}, {sE}")
        p(f"s_add_u32 {sE}, {sFlag}, {area}")
        p.wait(vm=toks)
        return self.masked(p, 1, f"buffer_store_dword {vP2}, {vZero}, {sWS}, {sE} offen sc1")

    def half_sum(self, p, reg, tmp):
        p(f"v_mov_b32 {tmp}, {reg}")
        p(f"v_permlane32_swap_b32 {reg}, {tmp}")
        p(f"v_add_f32 {reg}, {reg}, {tmp}")

    def a_reads(self, p, dst, vaddr, off, areg=False):
        f = ar if areg else vr
        p(f"ds_read_b64_tr_b16 {f(dst, 2)}, {vaddr} offset:{off}")
        return p(f"ds_read_b64_tr_b16 {f(dst + 2, 2)}, {vaddr} offset:{off + 512}")

    def ln_consts(self, p, vsum, vsq):
        p(f"v_mul_f32 {vr(V_SM + 1)}, {fbits(-1.0 / 512)}, {vsum}")
        p(f"v_mul_f32 {vsq}, {fbits(1.0 / 512)}, {vsq}")
        p(f"v_fma_f32 {vsq}, -{vr(V_SM + 1)}, {vr(V_SM + 1)}, {vsq}")
        p(f"v_max_f32 {vsq}, 0, {vsq}")
        p(f"v_add_f32 {vsq}, {fbits(1e-5)}, {vsq}")
        p(f"v_rsq_f32 {vsum}, {vsq}")
        p(f"v_sqrt_f32 {vr(V_SM)}, {vsq}")
        p(f"v_mul_f32 {vr(V_KK)}, {fbits(GK1)}, {vsum}")
        p(f"v_mul_f32 {vsq}, {vsum}, {vsum}")
        p(f"v_mul_f32 {vsq}, {vsq}, {vsum}")
        p(f"v_mul_f32 {vr(V_KK + 1)}, {fbits(GK2)}, {vsq}")

    def gelu_packed(self, p, acc, cs, tmp, out, n=16):
        KK, SM = vr(V_KK, 2), vr(V_SM, 2)
        for b in range(0, n, 8):
            pr = [b + 2 * i for i in range(4)]
            t = lambda x: tmp + (x - b)
            if self.opt.get("align", 1):
                p(".p2align 3")
            for x in pr:
                p(f"v_pk_fma_f32 {vr(acc + x, 2)}, {vr(cs + x, 2)}, {SM}, {vr(acc + x, 2)} op_sel:[0,1,0] op_sel_hi:[1,1,1]")
            for x in pr:
                p(f"v_pk_mul_f32 {vr(t(x), 2)}, {vr(acc + x, 2)}, {vr(acc + x, 2)}")
            for x in pr:
                p(f"v_pk_fma_f32 {vr(t(x), 2)}, {vr(t(x), 2)}, {KK}, {KK} op_sel:[0,1,0] op_sel_hi:[1,1,0]")
            for x in pr:
                p(f"v_pk_mul_f32 {vr(t(x), 2)}, {vr(t(x), 2)}, {vr(acc + x, 2)}")
            for x in range(b, b + 8):
                p(f"v_exp_f32 {vr(t(x))}, {vr(t(x))}")
            for x in pr:
                p(f"v_pk_fma_f32 {vr(t(x), 2)}, {vr(t(x), 2)}, {SM}, {SM} op_sel:[0,0,0] op_sel_hi:[1,0,0]")
            for x in range(b, b + 8):
                p(f"v_rcp_f32 {vr(t(x))}, {vr(t(x))}")
            for x in pr:
                p(f"v_pk_mul_f32 {vr(t(x), 2)}, {vr(t(x), 2)}, {vr(acc + x, 2)}")
            for x in pr:
                p(f"v_cvt_pk_bf16_f32 {vr(out + x // 2)}, {vr(t(x))}, {vr(t(x) + 1)}")

    def prologue(self, p):
        p("s_cmp_ge_u32 s2, 256")
        p("s_cbranch_scc1 L_end")
        if self.profile:
            p("v_mov_b32 v254, 0")
            p("s_memrealtime s[100:101]")
            p.wait(lg0=True)
            p("v_writelane_b32 v254, s100, 0")
        self.stamp(p, "start")
        p("s_load_dwordx16 s[64:79], s[0:1], 0")
        p("s_getpc_b64 s[48:49]")
        p("L_pc:")
        p("s_lshr_b32 s50, s2, 3")
        p("s_lshl_b32 s50, s50, 10")
        p("v_lshlrev_b32 v1, 7, v0")
        p("v_add_u32 v2, s50, v1")
        p("v_cmp_gt_u32 vcc, 32, v0")
        p("v_cndmask_b32 v1, v2, v1, vcc")
        p("v_min_u32 v1, CODE_BYTES, v1")
        p("v_cmp_gt_u32 vcc, 40, v0")
        p("s_and_saveexec_b64 s[50:51], vcc")
        p("s_cbranch_execz L_nopf")
        p("global_load_dword v255, v1, s[48:49]", count=False)
        p("L_nopf:")
        p("s_mov_b64 exec, s[50:51]")
        row, t1, t2 = vT[0], vT[1], vT[2]
        sT0, sT1 = "s52", "s53"
        p(f"""
        v_lshrrev_b32 {vT[3]}, 6, v0
        v_and_b32 {vL}, 63, v0
        v_readfirstlane_b32 {sw}, {vT[3]}
        v_lshrrev_b32 {row}, 3, {vL}
        v_and_b32 {t2}, 7, {vL}
        s_and_b32 {sT0}, s2, 7
        s_lshr_b32 {sT1}, s2, 6
        s_lshl_b32 {sc}, {sT0}, 2
        s_add_u32 {sc}, {sc}, {sT1}
        s_bfe_u32 {sj}, s2, 0x30003
        s_add_u32 {srot}, {sj}, {sT1}
        s_and_b32 {srot}, {srot}, {self.opt.get("rot1", 3)}
        s_and_b32 {sth}, {sw}, 1
        s_lshr_b32 {skh}, {sw}, 1
        s_lshl_b32 {sPriv}, {sw}, 14
        """)
        p(f"""
        s_lshr_b32 {sT0}, {sj}, 2
        s_add_u32 {sT0}, {sT0}, 1
        s_sub_u32 {sT1}, 0, {sT0}
        s_bitcmp1_b32 {sj}, 1
        s_cselect_b32 {sT0}, {sT0}, {sT1}
        s_lshl_b32 {sT1}, {sc}, 6
        s_add_u32 {sT0}, {sT0}, {sT1}
        s_lshl_b32 {sT1}, {sth}, 5
        s_add_u32 {sT0}, {sT0}, {sT1}
        s_lshl_b32 {sT0}, {sT0}, 10
        s_lshl_b32 {sT1}, {skh}, 9
        s_add_u32 {sT0}, {sT0}, {sT1}
        v_lshrrev_b32 {t1}, 1, {row}
        v_xor_b32 {t1}, {t1}, {t2}
        v_lshlrev_b32 {t1}, 4, {t1}
        v_lshl_add_u32 {t1}, {row}, 10, {t1}
        v_add_u32 {vXs[0]}, {sT0}, {t1}
        v_xor_b32 {t1}, 64, {t1}
        v_add_u32 {t1}, {sT0}, {t1}
        v_add_u32 {vXs[1]}, {8192 - 1024}, {t1}
        v_add_u32 {vXs[2]}, 16384, {vXs[0]}
        v_add_u32 {vXs[3]}, {24576 - 1024}, {t1}
        s_mov_b32 s6, {1 << 21}
        s_mov_b32 s7, 0x20000
        s_mov_b32 s22, {1 << 19}
        s_mov_b32 s23, 0x20000
        s_lshl_b32 {sWlds}, {skh}, 15
        s_lshl_b32 {sT1}, {sth}, 12
        s_add_u32 {sWlds}, {sWlds}, {sT1}
        s_lshl_b32 {sWsrc}, {skh}, 18
        s_lshl_b32 {sT1}, {sth}, 15
        s_add_u32 {sWsrc}, {sWsrc}, {sT1}
        s_lshl_b32 {sT1}, {sj}, 7
        s_add_u32 {sWsrc}, {sWsrc}, {sT1}
        v_lshrrev_b32 {vT[4]}, 2, {vL}
        v_and_b32 {vT[4]}, 4, {vT[4]}
        v_xor_b32 {vT[4]}, {vT[4]}, {t2}
        v_lshlrev_b32 {vT[4]}, 4, {vT[4]}
        v_lshl_add_u32 {vWs}, {row}, 10, {vT[4]}
        v_add_u32 {vWs1}, 7168, {vWs}
        """)
        p.wait(lg0=True)
        p("s_mov_b64 s[4:5], s[64:65]")
        p("s_mov_b64 s[20:21], s[78:79]")
        for dst, off in ((40, 112), (24, 64), (28, 72), (32, 80), (52, 88), (36, 96)):
            p(f"s_load_dwordx2 s[{dst}:{dst + 1}], s[0:1], {off}")
        for dst, src in ((8, 66), (12, 68), (48, 70), (16, 72), (50, 74)):
            p(f"s_mov_b64 s[{dst}:{dst + 1}], s[{src}:{src + 1}]")
        self.set_rot(p)
        self.stamp(p, "karg")

    def set_rot(self, p):
        for pos in range(4):
            p(f"s_add_u32 {sR[pos]}, {srot}, {pos}")
            p(f"s_and_b32 {sR[pos]}, {sR[pos]}, 3")
            p(f"s_lshl_b32 {sR[pos]}, {sR[pos]}, 7")

    def kernargs2(self, p):
        sizes = (1 << 21, 1 << 21, 1 << 21, 1 << 21, 1 << 19, 1 << 19, 512 * 3584, 1792 * 1024, 1 << 21, WS_SIZE, 256)
        for i, n in enumerate(sizes):
            if i not in (0, 4, 10):
                p(f"s_mov_b32 s{6 + 4 * i}, {n}")
                p(f"s_mov_b32 s{7 + 4 * i}, 0x20000")
        p(f"v_lshlrev_b32 {vL16}, 4, {vL}")
        p(f"v_mov_b32 {vZero}, 0")

    def touch(self, kind, after, prio):
        if after == "none":
            return
        g = Seq()
        srd, lines = {"w2": (sW2, 4), "w3": (sW3, 14), "w4": (sW4, 14)}[kind]
        g(f"s_lshl_b32 {sB}, s2, 2")
        g(f"s_add_u32 {sB}, {sB}, {sw}")
        g(f"s_mul_i32 {sB}, {sB}, {lines * 128}")
        self.masked(g, (1 << lines) - 1, f"buffer_load_dword v255, {vL128}, {srd}, {sB} offen")
        self.bg(g, "fewcold", after, prio)

    def touch_slow(self, kind, after, prio):
        g = Seq()
        srd, lines = {"w2": (sW2, 4), "w4": (sW4, 14)}[kind]
        g(f"s_lshr_b32 {sB}, s2, 3")
        g(f"s_lshl_b32 {sB}, {sB}, 2")
        g(f"s_add_u32 {sB}, {sB}, {sw}")
        g(f"s_mul_i32 {sB}, {sB}, {lines * 1024}")
        g(f"v_lshlrev_b32 {vr(V_TMP + 4)}, 10, {vL}")
        self.masked(g, (1 << lines) - 1, f"buffer_load_dword v255, {vr(V_TMP + 4)}, {srd}, {sB} offen offset:384")
        self.bg(g, "fewcold", after, prio)

    def idle_touch(self, piece, after, prio):
        for n in range(4):
            g = Seq()
            g(f"s_add_u32 {sB}, {sIdle}, {n * 524288 + piece * 32768}")
            g(f"buffer_load_dword v255, {vL128}, {sW4}, {sB} offen")
            self.bg(g, "few", after, prio)

    def warm_flags(self, p):
        for i in range(4):
            p(f"v_mov_b32 {vr(V_TMP + 4 + i)}, {sEp}")
        p(f"v_lshrrev_b32 {vP2}, 3, {vL}")
        p(f"v_mul_u32_u24 {vP2}, {FLAG1 - 128}, {vP2}")
        p(f"v_add_u32 {vP2}, {vP2}, {vL16}")
        self.masked(p, "0xffff", f"buffer_store_dwordx4 {vr(V_TMP + 4, 4)}, {vP2}, {sWS}, {sFlag} offen sc1")

    def advance_epoch(self, p):
        p(f"""
        s_or_b32 {sT0}, s2, {sw}
        s_cmp_eq_u32 {sT0}, 0
        s_cselect_b32 {sT0}, 0, {WS_SIZE}
        s_add_u32 {sT0}, {sT0}, {WS_EPOCH}
        s_add_u32 {sT1}, {sEp}, 8
        v_mov_b32 {vP2}, {sT1}
        """)
        self.masked(p, 1, f"buffer_store_dword {vP2}, {vZero}, {sWS}, {sT0} offen sc1")

    def x_loads(self, pos, cls, after, prio):
        for a in (0, 2):
            g = Seq()
            g(f"s_add_u32 m0, {sPriv}, {R2 + (pos * 4 + a) * 1024}")
            fl = self.opt.get("x_nt", "")
            self.dma(g, vXs[a], sX, sR[pos], flags=fl)
            self.dma(g, vXs[a + 1], sX, sR[pos], 1024, flags=fl)
            self.bg(g, cls, after, prio)

    def setup2(self, p):
        row, t1, t2 = vT[0], vT[1], vT[2]
        p(f"""
        s_xor_b32 {snh}, {sth}, {skh}
        s_mov_b32 {sOneLo}, 0x00003f80
        s_mov_b32 {sOneHi}, 0x3f800000
        s_add_u32 {sj2}, {sj}, {self.opt.get("j2", 1)}
        s_and_b32 {sj2}, {sj2}, 7
        s_add_u32 {sja}, {sj}, {self.opt.get("ja", 2)}
        s_and_b32 {sja}, {sja}, 7
        s_mov_b32 {sOnes}, 0x3f803f80
        s_mov_b32 {sHi}, 0xffff0000
        s_lshl_b32 {sFlag}, {sc}, 3
        s_add_u32 {sFlag}, {sFlag}, {sj}
        s_lshl_b32 {sFlag}, {sFlag}, 2
        s_add_u32 {sFlag}, {sFlag}, {sw}
        s_lshl_b32 {sFlag}, {sFlag}, 7
        s_lshr_b32 {sT0}, {sc}, 3
        s_lshl_b32 {ssc}, {sT0}, 2
        s_and_b32 {sT0}, {sc}, 3
        s_add_u32 {ssc}, {ssc}, {sT0}
        {"" if self.opt.get("pair", 1) else f"s_lshr_b32 {ssc}, {sc}, 1"}
        s_bfe_u32 {sT0}, {sc}, {"0x10002" if self.opt.get("pair", 1) else "0x10000"}
        s_mul_i32 {sm}, {sT0}, 7
        s_add_u32 {sm}, {sm}, {sj}
        s_cmp_gt_u32 {sj}, {self.idle}
        s_cselect_b32 {sT0}, 1, 0
        s_sub_u32 {sm}, {sm}, {sT0}
        s_cmp_eq_u32 {sj}, {self.idle}
        s_cselect_b32 {sOob}, {WS_SIZE}, {WS_SIZE if self.opt.get("dbg_noP3") else 0}
        v_lshlrev_b32 {vL128}, 7, {vL}
        v_mul_u32_u24 {vW3s}, 3584, {row}
        v_add_u32 {vW3s}, {vW3s}, {vT[4]}
        v_add_u32 {vW3s1}, {8 * 3584 - 1024}, {vW3s}
        s_mul_i32 {sW3b}, {sw}, {128 * 3584}
        s_lshl_b32 {sT1}, {sm}, 8
        s_add_u32 {sW3b}, {sW3b}, {sT1}
        s_add_u32 {sW3b}, {sW3b}, {sOob}
        s_lshl_b32 {sT1}, {sja}, 7
        s_lshl_b32 {sT0}, {sc}, 16
        s_add_u32 {sT0}, {sT0}, {sT1}
        v_lshlrev_b32 {vKv}, 4, {t2}
        v_lshl_add_u32 {vKv}, {row}, 10, {vKv}
        v_add_u32 {vKv}, {sT0}, {vKv}
        v_subrev_u32 {vKh}, 8192, {vKv}
        """)

    def w12_loads(self, srd, pos, cls, after, prio, sWsrc=sWsrc):
        toks = []
        for i in (0, 2):
            src = f"s_lshl_b32 {sB}, {sR[pos]}, 9\ns_add_u32 {sB}, {sB}, {sWsrc}"
            if i:
                src += f"\ns_add_u32 {sB}, {sB}, 16384"
            g, tk = self.dma_pair(vWs, vWs1, srd, src, sWlds, R0 + pos * 8192 + i * 1024)
            self.bg(g, cls, after, prio)
            toks.append(tk)
        return toks

    def kv_loads(self, t, after, prio):
        g = Seq()
        g(f"s_mul_i32 {sB}, {sw}, 2304")
        g(f"s_add_u32 {sB}, {sB}, {A1R}")
        g(f"s_cmp_eq_u32 {sw}, 0")
        g(f"s_cselect_b32 m0, {KB}, {sB}")
        g(f"s_cselect_b32 {sB}, 0, {1 << 21}")
        self.dma(g, vKh, sK, sB, flags=self.opt.get("kv_nt", "nt"))
        g(f"""
        s_lshl_b32 {sB}, {sja}, 2
        s_add_u32 {sB}, {sB}, {sw}
        s_lshl_b32 {sB}, {sB}, 7
        v_and_b32 {vKh}, 15, {vL}
        v_lshl_add_u32 {vKh}, {vKh}, 3, {sB}
        """)
        g(f"global_load_dwordx2 {vr(V_SK, 2)}, {vKh}, {pSH}")
        self.bg(g, "fewcold", after, prio)
        t["kv"] = []
        for srd, base in ((sK, KB + 1024), (sV, VB)):
            g = Seq()
            g(f"s_lshl_b32 {sB}, {sw}, 11")
            g(f"s_add_u32 m0, {sB}, {base}")
            g(f"s_lshl_b32 {sB}, {sw}, 14")
            self.dma(g, vKv, srd, sB, flags=self.opt.get("kv_nt", "nt"))
            g(f"s_add_u32 {sB}, {sB}, 7168")
            t["kv"].append(self.dma(g, vKv, srd, sB, 1024, flags=self.opt.get("kv_nt", "nt")))
            self.bg(g, "cold", after, prio)

    def small_addrs(self, p):
        p(f"""
        s_lshl_b32 {sT0}, {sc}, 6
        s_lshl_b32 {sT1}, {sth}, 5
        s_add_u32 {sT0}, {sT0}, {sT1}
        s_lshl_b32 {sT0}, {sT0}, 10
        s_lshl_b32 {sT1}, {sj2}, 7
        s_lshl_b32 {sT2}, {snh}, 6
        s_add_u32 {sT1}, {sT1}, {sT2}
        v_and_b32 {vOut}, 31, {vL}
        v_lshrrev_b32 {vPv}, 5, {vL}
        v_lshlrev_b32 {vPv}, 4, {vPv}
        v_add_u32 {vPv}, {sT1}, {vPv}
        v_lshl_add_u32 {vOut}, {vOut}, 10, {vPv}
        v_add_u32 {vOut}, {sT0}, {vOut}
        s_lshl_b32 {sT0}, {sj}, 6
        s_lshl_b32 {sT1}, {sc}, 1
        s_add_u32 {sT0}, {sT0}, {sT1}
        s_add_u32 {sT0}, {sT0}, {sth}
        s_lshl_b32 {sT1}, {sT0}, 1
        v_mov_b32 {vPw}, {sT1}
        s_lshl_b32 {sT0}, {sT0}, 12
        s_lshl_b32 {sT1}, {skh}, 11
        s_add_u32 {sStld}, {sT0}, {sT1}
        """)

    def small_loads(self, after, prio_x, prio_s, after_s):
        nt = self.opt.get("ssm_nt", "nt")
        g = Seq()
        g(f"buffer_load_dwordx4 {vr(V_XRES, 4)}, {vOut}, {sX}, 0 offen")
        g(f"buffer_load_dwordx4 {vr(V_XRES + 4, 4)}, {vOut}, {sX}, 0 offen offset:32")
        self.bg(g, "mall", after, prio_x)
        g = Seq()
        g(f"global_load_dwordx4 {vr(V_X1P, 4)}, {vPv}, {pG}")
        g(f"global_load_dwordx4 {vr(V_X1P + 4, 4)}, {vPv}, {pG} offset:32")
        g(f"global_load_ushort {vr(V_SSM + 5)}, {vPw}, {pD}")
        self.bg(g, "few", after, prio_x)
        g = Seq()
        g(f"buffer_load_dwordx4 {vr(V_SSM, 4)}, {vL16}, {sSK}, {sStld} offen {nt}")
        g(f"buffer_load_dwordx4 {vr(V_SSM + 6, 4)}, {vL16}, {sSK}, {sStld} offen offset:1024 {nt}")
        self.bg(g, "cold", after_s, prio_s)
        g = Seq()
        g(f"buffer_load_dword {vr(V_SSM + 4)}, {vL16}, {sSK}, {sStld} offen offset:16 {nt}")
        g(f"buffer_load_dword {vr(V_SSM + 10)}, {vL16}, {sSK}, {sStld} offen offset:1040 {nt}")
        self.bg(g, "few", after_s, prio_s)

    def lds_addrs(self, p):
        a, b, c = vT[0], vT[1], vT[2]
        p(f"""
        v_lshrrev_b32 {a}, 5, {vL}
        v_lshlrev_b32 {vTr0}, 10, {a}
        v_lshlrev_b32 {vCsA}, 4, {a}
        v_bfe_u32 {a}, {vL}, 2, 2
        v_lshl_add_u32 {vTr0}, {a}, 7, {vTr0}
        v_lshrrev_b32 {a}, 1, {a}
        v_lshl_add_u32 {vTr0}, {a}, 6, {vTr0}
        v_bfe_u32 {a}, {vL}, 4, 1
        v_lshl_add_u32 {vTr0}, {a}, 5, {vTr0}
        v_and_b32 {a}, 1, {vL}
        v_lshl_add_u32 {vTr0}, {a}, 4, {vTr0}
        v_bfe_u32 {a}, {vL}, 1, 1
        v_lshl_add_u32 {vTr0}, {a}, 3, {vTr0}
        s_lshl_b32 {sT0}, {snh}, 6
        s_lshl_b32 {sT1}, {skh}, 15
        v_xor_b32 {vTrX}, {sT0}, {vTr0}
        v_add_u32 {vTrX}, {sT1}, {vTrX}
        v_xor_b32 {vTrY}, 64, {vTrX}
        v_bfe_u32 {a}, {vL}, 3, 2
        v_lshlrev_b32 {a}, 10, {a}
        v_and_b32 {b}, 7, {vL}
        v_lshl_add_u32 {a}, {b}, 7, {a}
        s_add_u32 {sT0}, {sPriv}, {R2}
        v_add_u32 {a}, {sT0}, {a}
        v_bfe_u32 {b}, {vL}, 1, 3
        v_lshrrev_b32 {c}, 5, {vL}
        v_xor_b32 {b}, {b}, {c}
        """)
        for s in range(4):
            p(f"v_xor_b32 {c}, {2 * s}, {b}")
            p(f"v_lshl_add_u32 {vXr[s]}, {c}, 4, {a}")
        p(f"""
        v_and_b32 {a}, 3, {vL}
        v_bfe_u32 {b}, {vL}, 2, 1
        v_bfe_u32 {c}, {vL}, 4, 1
        v_xor_b32 {b}, {b}, {c}
        v_or_b32 {a}, {a}, {b}
        v_cmp_eq_u32 vcc, 0, {a}
        v_mov_b32 {b}, {sOnes}
        v_cndmask_b32 {vr(V_ONES)}, 0, {b}, vcc
        v_cndmask_b32 {vr(V_ONES + 1)}, 0, {b}, vcc
        v_cndmask_b32 {vr(V_ONES + 2)}, 0, {b}, vcc
        v_cndmask_b32 {vr(V_ONES + 3)}, 0, {b}, vcc
        """)

    def dot_stats(self, p, regs, first):
        S, Q, S2, Q2 = vr(V_TMP), vr(V_TMP + 1), vr(V_TMP + 2), vr(V_TMP + 3)
        for n in range(0, len(regs), 2):
            a, b = vr(regs[n]), vr(regs[n + 1])
            if first and n == 0:
                p(f"v_dot2_f32_bf16 {S}, {a}, {sOnes}, 0")
                p(f"v_dot2_f32_bf16 {Q}, {a}, {a}, 0")
                p(f"v_dot2_f32_bf16 {S2}, {b}, {sOnes}, 0")
                p(f"v_dot2_f32_bf16 {Q2}, {b}, {b}, 0")
            else:
                p(f"v_dot2c_f32_bf16 {S}, {sOnes}, {a}")
                p(f"v_dot2c_f32_bf16 {Q}, {a}, {a}")
                p(f"v_dot2c_f32_bf16 {S2}, {sOnes}, {b}")
                p(f"v_dot2c_f32_bf16 {Q2}, {b}, {b}")

    def fold_stats(self, p):
        S, Q, S2, Q2 = vr(V_TMP), vr(V_TMP + 1), vr(V_TMP + 2), vr(V_TMP + 3)
        p(f"v_add_f32 {S}, {S}, {S2}")
        p(f"v_add_f32 {Q}, {Q}, {Q2}")
        p(f"v_mov_b32 {S2}, {S}")
        p(f"v_mov_b32 {Q2}, {Q}")
        p(f"v_permlane32_swap_b32 {S}, {S2}")
        p(f"v_permlane32_swap_b32 {Q}, {Q2}")
        p(f"v_add_f32 {S}, {S}, {S2}")
        p(f"v_add_f32 {Q}, {Q}, {Q2}")

    def p1(self, p, t):
        o = self.opt
        w1 = []
        rot = o.get("rot1", 3)
        for pos in range(4):
            cls = "cold" if pos < o.get("p1_ncold", 4 // (bin(rot).count("1") * 2 or 1)) else "l2"
            self.x_loads(pos, "p1" + cls, "go2" if pos else "go", 0)
            w1.append(self.w12_loads(sW1, pos, "p1" + cls, "go2" if pos else "go", 0))
        p.mark("go", limit=5000, depth=o.get("depth0", 8))
        p("s_nop 0")
        self.kernargs2(p)
        p.mark("go2")
        self.setup2(p)
        p(f"s_load_dword {sEp}, s[40:41], {WS_EPOCH}")
        self.lds_addrs(p)
        self.small_addrs(p)
        p(f"""
        v_and_b32 {vT[0]}, 31, {vL}
        s_lshl_b32 {sT0}, {sw}, 8
        s_add_u32 {sT0}, {sT0}, {ST_STAT}
        v_lshl_add_u32 {vT[1]}, {vT[0]}, 3, {sT0}
        v_xor_b32 {vPoll}, 512, {vT[1]}
        s_add_u32 {sT0}, {sPriv}, {R2}
        v_add_u32 {vT[2]}, {sT0}, {vL16}
        v_xor_b32 {vT[5]}, 32768, {vT[2]}
        s_lshl_b32 {sT0}, {snh}, 8
        s_lshl_b32 {sT1}, {skh}, 7
        s_add_u32 {sT1}, {sT1}, {sT0}
        s_add_u32 {sT1}, {sT1}, {ST_CS}
        v_lshl_add_u32 {vT[3]}, {vT[0]}, 2, {sT1}
        s_add_u32 {sT0}, {sT0}, {ST_CS}
        v_add_u32 {vT[4]}, {sT0}, {vCsA}
        s_lshl_b32 {sT0}, {sc}, 1
        s_add_u32 {sT0}, {sT0}, {sth}
        s_lshl_b32 {sT0}, {sT0}, 15
        s_lshl_b32 {sT1}, {sj}, 12
        s_add_u32 {sT1}, {sT0}, {sT1}
        s_lshl_b32 {sT2}, {snh}, 11
        s_add_u32 {sH2st}, {sT1}, {sT2}
        s_lshl_b32 {sT1}, {skh}, 14
        s_add_u32 {sT0}, {sT0}, {sT1}
        s_add_u32 {sX1ld}, {sT0}, {WS_H}
        """)
        self.w4_offsets(p)
        p(f"s_sub_u32 {sT0}, {sj2}, {sj}")
        p(f"s_lshl_b32 {sT0}, {sT0}, 7")
        p(f"s_add_u32 {sW2src}, {sWsrc}, {sT0}")
        p(f"""
        s_lshr_b32 {sT0}, s2, 6
        s_lshl_b32 {sT0}, {sT0}, 17
        s_lshl_b32 {sT1}, {sw}, 13
        s_add_u32 {sT0}, {sT0}, {sT1}
        s_sub_u32 {sT1}, {WS_SIZE}, {sOob}
        s_add_u32 {sIdle}, {sT0}, {sT1}
        """)
        for piece, key in ((1, "it1"), (2, "it2"), (0, "it0"), (3, "it3")):
            if o.get(key):
                self.idle_touch(piece, o[key], 8)
        self.warm_flags(p)
        p.mark("setup")
        self.stamp(p, "setup")
        self.kv_loads(t, "setup", 1)
        self.touch("w2", o.get("touch_w2", "setup"), 2)
        if o.get("slow_w2", 1):
            self.touch_slow("w2", "setup", 2)
        if o.get("slow_w4", 1):
            self.touch_slow("w4", o.get("slow_w4_at", "conv"), 7)
        self.small_loads("setup", 3, 4, o.get("ssm_after", "setup"))
        self.touch("w3", o.get("touch_w3", "setup"), 5)
        self.touch("w4", o.get("touch_w4", "conv"), 6)
        accX, accY, cs = V_ACC, V_ACC + 16, V_ACC + 32
        AB = [V_A, V_B + 32]

        def reads(q, pos):
            q.wait(vm=w1[pos][-1])
            q("s_barrier")
            q.mark(f"P1b{pos}")
            for s in range(4):
                q(f"ds_read_b128 {vr(V_B + 16 * (pos & 1) + 4 * s, 4)}, {vXr[s]} offset:{pos * 4096}")
            for s in range(4):
                self.a_reads(q, AB[pos & 1] + 8 * s + 4, vTrY, pos * 8192 + s * 2048)
            for s in range(4):
                self.a_reads(q, AB[pos & 1] + 8 * s, vTrX, pos * 8192 + s * 2048)

        reads(p, 0)
        self.stamp(p, "x0 landed")
        for pos in range(4):
            B0, A0 = V_B + 16 * (pos & 1), AB[pos & 1]
            self.dot_stats(p, list(range(B0, B0 + 16)), pos == 0)
            q = Seq()
            for s in range(4):
                q(f"v_mfma_f32_32x32x16_bf16 {vr(accY, 16)}, {vr(A0 + 8 * s + 4, 4)}, {vr(B0 + 4 * s, 4)}, {'0' if pos + s == 0 else vr(accY, 16)}")
            for s in range(4):
                q(f"v_mfma_f32_16x16x32_bf16 {vr(cs, 4)}, {vr(V_ONES, 4)}, {vr(A0 + 8 * s, 4)}, {'0' if pos + s == 0 else vr(cs, 4)}")
            for s in range(4):
                q(f"v_mfma_f32_32x32x16_bf16 {vr(accX, 16)}, {vr(A0 + 8 * s, 4)}, {vr(B0 + 4 * s, 4)}, {'0' if pos + s == 0 else vr(accX, 16)}")
            plan = []
            if pos < 3:
                r = Seq()
                reads(r, pos + 1)
                plan += spread(split(r), o.get("p1_rd0", 2), 11)
            if pos == 3:
                st = Seq()
                self.fold_stats(st)
                st(f"ds_write_b64 {vT[1]}, {vr(V_TMP, 2)}")
                wr = Seq()
                for g in range(4):
                    wr(f"ds_write_b128 {vT[2]}, {vr(accY + 4 * g, 4)} offset:{g * 1024}")
                wr(f"ds_write_b32 {vT[3]}, {vr(cs)}")
                plan += spread(split(st), 1, 4) + spread(split(wr), 9, 12)
            p.extend(weave(q, plan + self.dense(f"a{pos}_", (0, 4, 8, 12))))
        p.mark(force=9)
        self.stamp(p, "p1 mfma")
        p.wait(lg0=True)
        p("s_barrier")
        c0, c1 = V_A, V_A + 16
        S, Q, S2, Q2 = vr(V_TMP), vr(V_TMP + 1), vr(V_TMP + 2), vr(V_TMP + 3)
        p(f"ds_read_b64 {vr(V_TMP + 2, 2)}, {vPoll}")
        for g in range(4):
            p(f"ds_read_b128 {vr(accY + 4 * g, 4)}, {vT[5]} offset:{g * 1024}")
        for g in range(4):
            p(f"ds_read_b128 {vr(c0 + 4 * g, 4)}, {vT[4]} offset:{g * 32}")
            p(f"ds_read_b128 {vr(c1 + 4 * g, 4)}, {vT[4]} offset:{128 + g * 32}")
        p.mark("B1", limit=o.get("lim_g1", 0), depth=o.get("depth", 10))
        p(f"v_add_f32 {S}, {S}, {S2}")
        p(f"v_add_f32 {Q}, {Q}, {Q2}")
        self.ln_consts(p, S, Q)
        for x in range(0, 16, 2):
            p(f"v_pk_add_f32 {vr(accX + x, 2)}, {vr(accX + x, 2)}, {vr(accY + x, 2)}")
        for x in range(0, 16, 2):
            p(f"v_pk_add_f32 {vr(c0 + x, 2)}, {vr(c0 + x, 2)}, {vr(c1 + x, 2)}")
        out = V_TMP + 8
        self.gelu_packed(p, accX, c0, V_TMP + 16, out)
        p(f"s_add_u32 {sT0}, {sH2st}, {WS_H}")
        s0 = p(f"buffer_store_dwordx4 {vr(out, 4)}, {vL16}, {sWS}, {sT0} offen sc1")
        s1 = p(f"buffer_store_dwordx4 {vr(out + 4, 4)}, {vL16}, {sWS}, {sT0} offen offset:1024 sc1")
        t["h"] = [s0, s1]
        p.mark("h_st", limit=o.get("lim_w2", 2000))
        self.stamp(p, "h stored")
        t["w2"] = []
        for pos in range(4):
            early = pos < o.get("w2_early", 0)
            t["w2"] += self.w12_loads(sW2, pos, "mall", f"P1b{pos + 2}" if early else "B1", o.get("prio_w2e", 3.5) if early else 11, sW2src)

    def h_flag(self, p, t):
        self.publish(p, t["h"], 1, FLAG0)
        if self.opt.get("rb_h", 0):
            p(f"s_add_u32 {sT0}, {sH2st}, {WS_H}")
            self.masked(p, "0xffff", f"buffer_load_dword v255, {vL128}, {sWS}, {sT0} offen sc1").note = "few"
        p.mark("h_flag", limit=self.opt.get("lim_hflag", 1500))
        self.stamp(p, "h flag")

    def a1(self, p, t):
        kk, vv, o = V_B, V_B + 12, V_TMP
        sk = V_SK
        a, b = vT[0], vT[1]
        p(f"""
        v_lshrrev_b32 {a}, 4, {vL}
        v_lshlrev_b32 {a}, 11, {a}
        v_bfe_u32 {b}, {vL}, 2, 2
        v_lshl_add_u32 {a}, {b}, 7, {a}
        v_and_b32 {b}, 3, {vL}
        v_lshl_add_u32 {a}, {b}, 3, {a}
        s_lshl_b32 {sT0}, {sw}, 5
        s_add_u32 {sT0}, {sT0}, {KB}
        v_add_u32 {a}, {sT0}, {a}
        """)
        p.wait(vm=t["kv"])
        p("s_barrier")
        p.mark("Bkv")
        for rd in range(5):
            p(f"ds_read_b64_tr_b16 {vr(kk + 2 * rd, 2)}, {a} offset:{(4 + 4 * rd) * 128}")
        for rd in range(4):
            p(f"ds_read_b64_tr_b16 {vr(vv + 2 * rd, 2)}, {a} offset:{(VB - KB) + 4 * rd * 128}")
        c10, c32, c0, c21, c3 = V_A, V_A + 1, V_A + 2, V_A + 3, V_A + 4
        p(f"v_alignbit_b32 {vr(c10)}, {vr(sk)}, {vr(sk)}, 16")
        p(f"v_alignbit_b32 {vr(c32)}, {vr(sk + 1)}, {vr(sk + 1)}, 16")
        p(f"v_and_b32 {vr(c0)}, 0xffff, {vr(sk)}")
        p(f"v_and_b32 {vr(c3)}, {sHi}, {vr(sk + 1)}")
        p(f"v_and_b32 {vr(c21)}, 0xffff, {vr(sk + 1)}")
        p(f"v_and_or_b32 {vr(c21)}, {vr(sk)}, {sHi}, {vr(c21)}")
        p(f"""
        v_and_b32 {vT[3]}, 3, {vL}
        v_bfe_u32 {vT[2]}, {vL}, 2, 1
        v_lshlrev_b32 {vT[3]}, 9, {vT[3]}
        v_lshl_add_u32 {vPoll}, {vT[2]}, 8, {vT[3]}
        s_lshl_b32 {sC}, {sc}, 12
        s_lshl_b32 {sT1}, {skh}, 11
        s_add_u32 {sC}, {sC}, {sT1}
        s_lshl_b32 {sT1}, {sth}, 7
        s_add_u32 {sC}, {sC}, {sT1}
        """)
        f = V_ACC
        q = Seq()
        for i in range(8):
            q(f"v_dot2_f32_bf16 {vr(f + 2 * i)}, {vr(kk + i)}, {vr(c3)}, 0")
            q(f"v_dot2_f32_bf16 {vr(f + 2 * i + 1)}, {vr(kk + i + 1)}, {vr(c32)}, 0")
        for i in range(8):
            q(f"v_dot2_f32_bf16 {vr(f + 2 * i)}, {vr(kk + i + 1)}, {vr(c21)}, {vr(f + 2 * i)}")
            q(f"v_dot2_f32_bf16 {vr(f + 2 * i + 1)}, {vr(kk + i + 2)}, {vr(c10)}, {vr(f + 2 * i + 1)}")
        for i in range(8):
            q(f"v_dot2_f32_bf16 {vr(f + 2 * i)}, {vr(kk + i + 2)}, {vr(c0)}, {vr(f + 2 * i)}")
        for i in range(8):
            q(f"v_lshlrev_b32 {vr(f + 16 + 2 * i)}, 16, {vr(vv + i)}")
            q(f"v_and_b32 {vr(f + 17 + 2 * i)}, {sHi}, {vr(vv + i)}")
        for i in range(8):
            q(f"v_pk_mul_f32 {vr(f + 2 * i, 2)}, {vr(f + 2 * i, 2)}, {vr(f + 16 + 2 * i, 2)}")
        for i in range(8):
            q(f"v_cvt_pk_bf16_f32 {vr(o + i)}, {vr(f + 15 - 2 * i)}, {vr(f + 14 - 2 * i)}")
        mode = self.opt.get("a1_first", 60)
        if mode > 1:
            hf = Seq()
            self.h_flag(hf, t)
            q = weave(q, [(mode, hf)], kinds=("valu",))
        p.extend(q)
        if mode == 0:
            self.h_flag(p, t)
        p(f"""
        v_and_b32 {a}, 15, {vL}
        v_mul_u32_u24 {a}, 144, {a}
        v_lshrrev_b32 {b}, 4, {vL}
        v_sub_u32 {b}, 3, {b}
        v_lshl_add_u32 {a}, {b}, 5, {a}
        s_mul_i32 {sT0}, {sw}, 2304
        s_add_u32 {sT0}, {sT0}, {A1R}
        v_add_u32 {a}, {sT0}, {a}
        """)
        p(f"ds_write_b128 {a}, {vr(o, 4)}")
        w2 = p(f"ds_write_b128 {a}, {vr(o + 4, 4)} offset:16")
        p(f"""
        v_lshrrev_b32 {a}, 3, {vL}
        v_and_b32 {b}, 7, {vL}
        v_lshlrev_b32 {b}, 4, {b}
        v_lshl_add_u32 {vT[2]}, {a}, 12, {b}
        v_mul_u32_u24 {a}, 144, {a}
        v_add3_u32 {a}, {a}, {b}, {sT0}
        s_lshl_b32 {sT0}, {sja}, 18
        s_lshl_b32 {sT1}, {sw}, 16
        s_add_u32 {sT0}, {sT0}, {sT1}
        s_sub_u32 {sT1}, 31, {sc}
        s_lshl_b32 {sT1}, {sT1}, 7
        s_add_u32 {sT0}, {sT0}, {sT1}
        s_add_u32 {sT0}, {sT0}, {WS_KVT}
        s_add_u32 {sT1}, {sT0}, 32768
        """)
        p.wait(lg=w2)
        p(f"ds_read_b128 {vr(o + 8, 4)}, {a}")
        p(f"ds_read_b128 {vr(o + 12, 4)}, {a} offset:{8 * 144}")
        s0 = p(f"buffer_store_dwordx4 {vr(o + 8, 4)}, {vT[2]}, {sWS}, {sT0} offen sc1")
        s1 = p(f"buffer_store_dwordx4 {vr(o + 12, 4)}, {vT[2]}, {sWS}, {sT1} offen sc1")
        t["kvt"] = [s0, s1]
        self.stamp(p, "a1 done")
        if self.opt.get("a1_first", 60) == 1:
            self.h_flag(p, t)

    def w3_loads(self, line, lds, after, prio, blocks=range(0, 16, 2)):
        toks = []
        for i in blocks:
            g, tk = self.dma_pair(vW3s, vW3s1, sW3, f"s_add_u32 {sB}, {sW3b}, {line * 128 + i * 8 * 3584}", sPriv, lds + i * 1024)
            self.bg(g, "mall", after, prio)
            toks.append(tk)
        return toks

    def w4_offsets(self, p):
        p(f"s_mul_i32 {sT0}, {sw}, 7")
        p(f"s_lshl_b32 {sT2}, {sj2}, 7")
        if self.opt.get("dbg_now4"):
            p(f"s_add_u32 {sT2}, {sT2}, {WS_SIZE}")
        for u in range(7):
            p(f"""
            s_add_u32 {sT1}, {sT0}, {u}
            s_lshr_b32 {sU[u]}, {sT1}, 1
            s_lshl_b32 {sU[u]}, {sU[u]}, 17
            s_and_b32 {sT1}, {sT1}, 1
            s_lshl_b32 {sT1}, {sT1}, 14
            s_add_u32 {sU[u]}, {sU[u]}, {sT1}
            s_add_u32 {sU[u]}, {sU[u]}, {sT2}
            """)

    def w4_loads(self, piece, lds, after, prio):
        toks = []
        for u in range(7):
            oob = WS_SIZE if piece == 3 and u < self.opt.get("dbg_p3", 0) else 0
            g, tk = self.dma_pair(vWs, vWs1, sW4, f"s_add_u32 {sB}, {sU[u]}, {piece * 32768 + oob}", sPriv, lds + u * 2048)
            self.bg(g, "mall", after, prio)
            toks.append(tk)
        return toks

    def w4_park(self, piece, areg, after, prio):
        for u in range(7):
            g = Seq()
            g(f"s_add_u32 {sB}, {sU[u]}, {piece * 32768}")
            g(f"buffer_load_dwordx4 {ar(areg + 8 * u, 4)}, {vWs}, {sW4}, {sB} offen")
            g(f"buffer_load_dwordx4 {ar(areg + 8 * u + 4, 4)}, {vWs1}, {sW4}, {sB} offen offset:1024")
            self.bg(g, "mall", after, prio)

    def w4_unpark_groups(self, areg, vaddr):
        groups, toks = [], []
        for n in range(14):
            g = Seq()
            toks.append(g(f"ds_write_b128 {vaddr}, {ar(areg + 4 * n, 4)} offset:{n * 1024}"))
            groups.append(g)
        return groups, toks

    def gate_partial(self, p):
        g, g2 = vr(V_TMP), vr(V_TMP + 1)
        for i in range(0, 8, 2):
            p(f"v_dot2_f32_bf16 {g}, {vr(V_XRES + i)}, {vr(V_X1P + i)}, {'0' if i == 0 else g}")
            p(f"v_dot2_f32_bf16 {g2}, {vr(V_XRES + i + 1)}, {vr(V_X1P + i + 1)}, {'0' if i == 0 else g2}")
        p(f"""
        s_lshl_b32 {sT3}, {sc}, 1
        s_add_u32 {sT3}, {sT3}, {sth}
        s_lshl_b32 {sD}, {sT3}, 11
        s_lshl_b32 {sT1}, {sj2}, 1
        s_add_u32 {sT1}, {sT1}, {snh}
        s_lshl_b32 {sT1}, {sT1}, 7
        s_add_u32 {sD}, {sD}, {sT1}
        v_lshlrev_b32 {vT[5]}, 2, {vL}
        s_add_u32 {sD}, {sD}, {WS_GATE}
        """)
        p(f"v_add_f32 {g}, {g}, {g2}")
        self.half_sum(p, g, g2)
        self.masked(p, "0xffffffff", f"buffer_store_dword {g}, {vT[5]}, {sWS}, {sD} offen sc1")

    def stage_conv_k(self, p):
        a, b = vT[0], vT[1]
        d = V_SSM
        o = V_TMP + 8
        p(f"""
        s_mul_i32 {sT0}, {sth}, {KCH}
        s_add_u32 {sT0}, {sT0}, {CK}
        s_lshl_b32 {sT1}, {skh}, 11
        s_add_u32 {sT1}, {sT1}, {sT0}
        v_add_u32 {a}, {sT1}, {vL16}
        v_cmp_eq_u32 vcc, 63, {vL}
        s_cmp_eq_u32 {skh}, 1
        s_cselect_b64 vcc, vcc, 0
        v_cndmask_b32 {vr(d + 10)}, {vr(d + 10)}, {vZero}, vcc
        """)
        p(f"ds_write_b128 {a}, {vr(d, 4)} offset:64")
        p(f"ds_write_b128 {a}, {vr(d + 6, 4)} offset:{64 + 1024}")
        for i in range(4):
            p(f"v_alignbit_b32 {vr(o + i)}, {vr(d + i + 1)}, {vr(d + i)}, 16")
            p(f"v_alignbit_b32 {vr(o + 4 + i)}, {vr(d + 7 + i)}, {vr(d + 6 + i)}, 16")
        p(f"ds_write_b128 {a}, {vr(o, 4)} offset:{KCOPY + 64}")
        p(f"ds_write_b128 {a}, {vr(o + 4, 4)} offset:{KCOPY + 64 + 1024}")
        p(f"""
        s_mul_i32 {sT1}, {skh}, {64 + 4096}
        s_add_u32 {sT1}, {sT1}, {sT0}
        v_and_b32 {b}, 15, {vL}
        v_lshl_add_u32 {a}, {b}, 2, {sT1}
        v_readfirstlane_b32 {sT2}, {vr(d)}
        s_lshl_b32 {sT2}, {sT2}, 16
        s_cmp_eq_u32 {skh}, 0
        s_cselect_b32 {sT2}, {sT2}, 0
        v_cmp_eq_u32 vcc, 15, {b}
        v_mov_b32 {b}, {sT2}
        v_cndmask_b32 {b}, 0, {b}, vcc
        """)
        p(f"ds_write_b32 {a}, {vZero}")
        p(f"ds_write_b32 {a}, {b} offset:{KCOPY}")
        p(f"""
        s_mul_i32 {sT0}, {sth}, {UCH}
        s_add_u32 {sT0}, {sT0}, {CU}
        s_lshl_b32 {sT1}, {skh}, 8
        s_add_u32 {sT1}, {sT1}, {sT0}
        v_lshl_add_u32 {a}, {vL}, 2, {sT1}
        v_and_b32 {b}, 7, {vL}
        v_lshl_add_u32 {b}, {b}, 2, {sT0}
        """)
        p(f"ds_write_b32 {a}, {vZero} offset:{32 + 4096}")
        p(f"ds_write_b32 {a}, {vZero} offset:{32 + 4096 + 256}")
        p(f"ds_write_b32 {b}, {vZero}")

    def p2(self, p, t):
        o = self.opt
        self.gate_partial(p)
        for pos in range(4):
            p(f"s_lshl_b32 {sQ[pos]}, {sR[pos]}, 5")
            p(f"s_add_u32 {sQ[pos]}, {sQ[pos]}, {sX1ld}")
        self.publish(p, t["kvt"], 1, FLAG1)
        p.wait(vm=t["w2"][o.get("hpoll_wait", 7)])
        self.poll_issue(p, vPv, vPoll, sC)
        self.poll_check(p, vPv, vPoll, sC, 1)
        p.mark("h_seen", depth=o.get("depth_h", 10), limit=self.opt.get("lim_def", 1300))
        self.stamp(p, "h seen")
        for pos in range(4):
            for s in (0, 2):
                g = Seq()
                for x in (s, s + 1):
                    g(f"buffer_load_dwordx4 {vr(V_B + 16 * pos + 4 * x, 4)}, {vL16}, {sWS}, {sQ[pos]} offen offset:{x * 1024} sc1")
                self.bg(g, "hand", "h_seen", 10)
        p(f"""
        v_and_b32 {vKv}, 31, {vL}
        v_lshlrev_b32 {vKv}, 12, {vKv}
        s_sub_u32 {sD}, {sj}, {self.opt.get("ja", 2)}
        s_and_b32 {sD}, {sD}, 7
        s_lshl_b32 {sD}, {sD}, 9
        s_lshr_b32 {sT3}, {sc}, 3
        s_lshl_b32 {sT3}, {sT3}, 7
        s_add_u32 {sD}, {sD}, {sT3}
        s_add_u32 {sD}, {sD}, {FLAG1}
        s_add_u32 {sT3}, {sPriv}, {EX2}
        v_add_u32 {vT[2]}, {sT3}, {vL16}
        v_xor_b32 {vT[3]}, 32768, {vT[2]}
        s_sub_u32 {sT0}, {sj2}, {sj}
        s_lshl_b32 {sT0}, {sT0}, 12
        s_add_u32 {sT0}, {sT0}, {sH2st}
        s_add_u32 {sH2st}, {sT0}, {WS_X1}
        s_lshl_b32 {sT3}, {sc}, 1
        s_add_u32 {sT3}, {sT3}, {sth}
        s_lshl_b32 {sC}, {sT3}, 12
        s_lshl_b32 {sT1}, {sj2}, 9
        s_add_u32 {sC}, {sC}, {sT1}
        s_lshl_b32 {sT1}, {snh}, 8
        s_add_u32 {sC}, {sC}, {sT1}
        s_add_u32 {sC}, {sC}, {WS_STATS}
        v_lshlrev_b32 {vKh}, 3, {vL}
        """)
        p.wait(vm=t["w2"], lg0=True)
        p("s_barrier")
        p.mark("Bp2")
        t["l0"] = self.w3_loads(0, R2, o.get("l0_after", "Bp2"), 30, range(0, 12, 2)) + self.w3_loads(0, R2, "conv", 29, (12, 14))
        accX, accY = V_ACC, V_ACC + 16
        q = Seq()

        for ks in range(3):
            self.a_reads(q, V_A + 8 * ks + 4, vTrY, ks * 2048)
            self.a_reads(q, V_A + 8 * ks, vTrX, ks * 2048)
        self.stage_conv_k(q)
        for ks in range(13):
            z = ks == 0
            A, B, N = V_A + 8 * (ks % 4), V_B + 4 * ks, V_A + 8 * ((ks + 3) % 4)
            q(f"v_mfma_f32_32x32x16_bf16 {vr(accY, 16)}, {vr(A + 4, 4)}, {vr(B, 4)}, {'0' if z else vr(accY, 16)}")
            self.a_reads(q, N + 4, vTrY, (ks + 3) * 2048)
            q(f"v_mfma_f32_32x32x16_bf16 {vr(accX, 16)}, {vr(A, 4)}, {vr(B, 4)}, {'0' if z else vr(accX, 16)}")
            self.a_reads(q, N, vTrX, (ks + 3) * 2048)
        for ks in range(13, 16):
            q(f"v_mfma_f32_32x32x16_bf16 {vr(accY, 16)}, {vr(V_A + 8 * (ks % 4) + 4, 4)}, {vr(V_B + 4 * ks, 4)}, {vr(accY, 16)}")
        for ks in range(13, 16):
            q(f"v_mfma_f32_32x32x16_bf16 {vr(accX, 16)}, {vr(V_A + 8 * (ks % 4), 4)}, {vr(V_B + 4 * ks, 4)}, {vr(accX, 16)}")
        pub, pl, lim = Seq(), Seq(), Seq()
        lim.mark(limit=o.get("lim_p2", 1300))
        self.poll_issue(pl, vPw, vKv, sD)
        p.extend(weave(q, [(16, lim), (o.get("kvt_poll_at", 26), Seq() if o.get("kvt_late", 0) else pl)] + self.dense("a5_", (0, 1, 8, 16, 24, 32))))
        for g in range(4):
            p(f"ds_write_b128 {vT[2]}, {vr(accY + 4 * g, 4)} offset:{g * 1024}")
        p.mark(limit=o.get("lim_e2", 1100))
        self.stamp(p, "p2 mfma")
        p.wait(lg0=True)
        p("s_barrier")
        p.mark("B2")
        t["l1"] = self.w3_loads(1, R0, "B2", 31)
        for g in range(4):
            p(f"ds_read_b128 {vr(accY + 4 * g, 4)}, {vT[3]} offset:{g * 1024}")
        for i in range(8):
            p(f"v_dot2c_f32_bf16 {vr(accX + 2 * i)}, {sOneLo}, {vr(V_XRES + i)}")
            p(f"v_dot2c_f32_bf16 {vr(accX + 2 * i + 1)}, {sOneHi}, {vr(V_XRES + i)}")
        for x in range(0, 16, 2):
            p(f"v_pk_add_f32 {vr(accX + x, 2)}, {vr(accX + x, 2)}, {vr(accY + x, 2)}")
        for i in range(8):
            p(f"v_cvt_pk_bf16_f32 {vr(V_X1P + i)}, {vr(accX + 2 * i)}, {vr(accX + 2 * i + 1)}")
        if o.get("rb_x1"):
            p(f"s_mov_b32 {sIdle}, {sH2st}")
        s0 = p(f"buffer_store_dwordx4 {vr(V_X1P, 4)}, {vL16}, {sWS}, {sH2st} offen sc1")
        s1 = p(f"buffer_store_dwordx4 {vr(V_X1P + 4, 4)}, {vL16}, {sWS}, {sH2st} offen offset:1024 sc1")
        self.dot_stats(p, list(range(V_X1P, V_X1P + 8)), True)
        self.fold_stats(p)
        s2 = self.masked(p, "0xffffffff", f"buffer_store_dwordx2 {vr(V_TMP, 2)}, {vKh}, {sWS}, {sC} offen sc1")
        t["x1"] = [s0, s1, s2]
        self.stamp(p, "x1 stored")

    def conv(self, p, t):
        o = self.opt
        p(f"""
        s_lshl_b32 {sT0}, {sj}, 6
        s_lshl_b32 {sT1}, {sc}, 1
        s_add_u32 {sT0}, {sT0}, {sT1}
        s_add_u32 {sT0}, {sT0}, {sth}
        s_lshl_b32 {sT0}, {sT0}, 12
        s_lshl_b32 {sT1}, {skh}, 11
        s_add_u32 {sT0}, {sT0}, {sT1}
        s_add_u32 {sT0}, {sT0}, {WS_KVT}
        s_mul_i32 {sT2}, {sth}, {UCH}
        s_add_u32 {sT1}, {sT1}, {sT2}
        """)
        def kvt_part(p):
            p(f"s_mov_b32 {sT0}, {sYld}")
            p(f"s_mov_b32 {sT1}, {sYlds}")
            self.poll_check(p, vPw, vKv, sD, 1)
            self.stamp(p, "kvt seen")
            g = Seq()
            g(f"s_add_u32 m0, {sT1}, {CU + 32}")
            self.dma(g, vL16, sWS, sT0, 0, "sc1").note = "hand"
            u = self.dma(g, vL16, sWS, sT0, 1024, "sc1")
            u.note = "hand"
            p.atomic(g)
            return u

        late = o.get("kvt_late", 0)
        p(f"s_mov_b32 {sYld}, {sT0}")
        p(f"s_mov_b32 {sYlds}, {sT1}")
        if late:
            self.poll_issue(p, vPw, vKv, sD)
        else:
            u = kvt_part(p)
        p.mark("x1_st", limit=o.get("lim_conv", 1500), depth=o.get("depth2", 10))
        vA = [vXs[1], vXs[2], vXs[3], vXr[0], vXr[1]]
        vB = vXr[2]
        a, b = vT[0], vT[1]
        p(f"""
        v_and_b32 {a}, 15, {vL}
        v_lshrrev_b32 {b}, 4, {vL}
        v_lshlrev_b32 {b}, 4, {b}
        s_lshl_b32 {sT1}, {skh}, 8
        s_add_u32 {sT2}, {sT2}, {sT1}
        s_add_u32 {sT2}, {sT2}, {CU + 480}
        v_lshlrev_b32 {vB}, 5, {a}
        v_sub_u32 {vB}, {b}, {vB}
        v_add_u32 {vB}, {sT2}, {vB}
        v_add_u32 {vA[0]}, 1, {a}
        v_and_b32 {vA[0]}, 30, {vA[0]}
        v_lshl_add_u32 {vA[0]}, {vA[0]}, 1, {b}
        v_and_b32 {a}, 1, {a}
        v_xor_b32 {a}, 1, {a}
        v_mul_u32_u24 {a}, {KCOPY}, {a}
        s_mul_i32 {sT0}, {sth}, {KCH}
        s_add_u32 {sT0}, {sT0}, {sT1}
        s_add_u32 {sT0}, {sT0}, {CK}
        v_add3_u32 {vA[0]}, {vA[0]}, {a}, {sT0}
        """)
        for i in range(1, 4):
            p(f"v_add_u32 {vA[i]}, {1024 * i}, {vA[0]}")
        p(f"s_cmp_eq_u32 {skh}, 0")
        p(f"s_cselect_b32 {sT0}, 4096, 0")
        p(f"v_add_u32 {vA[4]}, {sT0}, {vA[0]}")
        p(f"""
        v_and_b32 {vT[3]}, 7, {vL}
        v_bfe_u32 {vT[4]}, {vL}, 3, 1
        v_lshlrev_b32 {vT[3]}, 9, {vT[3]}
        v_lshl_add_u32 {vPoll}, {vT[4]}, 8, {vT[3]}
        s_lshl_b32 {sT2}, {ssc}, 1
        s_add_u32 {sT2}, {sT2}, {skh}
        s_lshl_b32 {sC}, {sT2}, 12
        s_lshl_b32 {sT1}, {sth}, 7
        s_add_u32 {sC}, {sC}, {sT1}
        s_mul_i32 {sH2st}, {sT2}, 229376
        s_lshl_b32 {sT1}, {sm}, 12
        s_add_u32 {sH2st}, {sH2st}, {sT1}
        s_lshl_b32 {sT1}, {sth}, 10
        s_add_u32 {sH2st}, {sH2st}, {sT1}
        s_add_u32 {sH2st}, {sH2st}, {WS_H2}
        s_add_u32 {sH2st}, {sH2st}, {sOob}
        s_lshl_b32 {sT2}, {ssc}, 2
        s_add_u32 {sT2}, {sT2}, {sw}
        s_lshl_b32 {sX1ld}, {sT2}, 15
        s_add_u32 {sX1ld}, {sX1ld}, {WS_X1}
        s_add_u32 {sX1ld}, {sX1ld}, {sOob}
        s_lshl_b32 {sStld}, {sT2}, 12
        s_add_u32 {sStld}, {sStld}, {WS_STATS}
        s_add_u32 {sStld}, {sStld}, {sOob}
        s_add_u32 {srot}, {sw}, {sj}
        s_and_b32 {srot}, {srot}, 3
        """)
        self.set_rot(p)
        for pos in range(4):
            p(f"s_lshl_b32 {sQ[pos]}, {sR[pos]}, 6")
            p(f"s_add_u32 {sQ[pos]}, {sQ[pos]}, {sX1ld}")
            p(f"s_add_u32 {sV4[pos]}, {sQ[pos]}, 4096")
        if not late:
            self.late_addrs(p)
        self.publish(p, t["x1"], 2, FLAG0)
        self.readback(p, "rb_x1", f"buffer_load_dword v255, {vL128}, {sWS}, {sIdle} offen sc1")
        if late:
            u = kvt_part(p)
            self.late_addrs(p)
        p.mark("x1_flag")
        self.stamp(p, "x1 flag")
        p.wait(vm=u, lg0=True)
        p("s_barrier")
        p.mark("conv")
        self.stamp(p, "conv start")
        self.w4_park(1, A_PARK, o.get("park2_after", "conv2"), 40)
        acc, AF = V_ACC + 32, V_A
        BF = [V_B, V_B + 32]
        BX = V_TMP
        q = Seq()
        order = (0, 7, 1, 6, 2, 5, 3, 4)
        rows = [(0, 8)] + [(rho, aa) for rho in range(4) for aa in order]

        def rdA(n):
            rho, aa = rows[n]
            of = (64 * rho + 512 * (aa & 1)) // 4
            q(f"ds_read2_b32 {vr(AF + 4 * (n % 8), 2)}, {vA[aa >> 1]} offset0:{of} offset1:{of + 1}")
            q(f"ds_read2_b32 {vr(AF + 4 * (n % 8) + 2, 2)}, {vA[aa >> 1]} offset0:{of + 2} offset1:{of + 3}")

        def rdB(bb, rho):
            d = BX if bb < 0 else BF[rho & 1] + 4 * bb
            q(f"ds_read_b128 {vr(d, 4)}, {vB} offset:{3584 - 512 * bb + 64 * rho}")

        rdA(0)
        rdB(-1, 0)
        rdA(1)
        for bb in range(7, 1, -1):
            rdB(bb, 0)
        late = [lambda: rdB(1, 0), lambda: rdB(0, 0), lambda: rdA(2), lambda: rdA(3), lambda: rdA(4)]
        started = set()
        for n, (rho, aa) in enumerate(rows):
            bs = list(range(7 - aa, -1, -1)) + ([-1] if rho == 0 and aa > 0 else [])
            for k, bb in enumerate(bs):
                d = vr(acc + 4 * (aa + bb), 4)
                B = BX if bb < 0 else BF[rho & 1] + 4 * bb
                q(f"v_mfma_f32_16x16x32_bf16 {d}, {vr(AF + 4 * (n % 8), 4)}, {vr(B, 4)}, {d if aa + bb in started else '0'}")
                started.add(aa + bb)
                if late:
                    late.pop(0)()
                if k == 0 and n + 5 < len(rows):
                    rdA(n + 5)
                if k == len(bs) // 2 and n > 0 and rho < 3:
                    rdB(7 - (n - 1) % 8, rho + 1)
        pl, pk, m2 = Seq(), Seq(), Seq()
        pl.mark(limit=o.get("lim_x1poll", 1400))
        pp = o.get("x1_poll_at", 80)
        pl2 = Seq()
        self.poll_issue(pl2, vPv, vPoll, sC)
        pl2.mark(limit=o.get("lim_x1poll2", 1100))
        self.poll_check(pk, vPv, vPoll, sC, 2)
        pk.mark("x1_seen", depth=o.get("depth_x", 10), limit=self.opt.get("lim_def", 1300))
        self.stamp(pk, "x1 seen")
        m2.mark("conv2")
        for ks in range(0, 32, 2):
            g = Seq()
            base = (sV4 if ks % 8 >= 4 else sQ)[ks // 8]
            for x in (ks, ks + 1):
                g(f"buffer_load_dwordx4 {ar(4 * x, 4)}, {vL16}, {sWS}, {base} offen offset:{(x % 4) * 1024} sc1")
            self.bg(g, "hand", "x1_seen", 12)
        plan = [(max(pp - 20, 1), pl), (pp, pl2), (o.get("x1_check_at", 116), pk), (o.get("conv2_at", 1), m2)] + self.dense("c", range(1, 152, 12))
        ad = Seq()
        ad(f"""
        s_lshl_b32 {sT0}, {sw}, 12
        s_add_u32 {sT0}, {sT0}, {EXC}
        v_add_u32 {vT[3]}, {sT0}, {vL16}
        v_xor_b32 {a}, 8192, {vT[3]}
        v_and_b32 {b}, 15, {vL}
        v_lshlrev_b32 {b}, 5, {b}
        v_lshrrev_b32 {vT[2]}, 4, {vL}
        v_lshl_add_u32 {b}, {vT[2]}, 3, {b}
        s_mul_i32 {sT1}, {sth}, {UCH}
        s_add_u32 {sT1}, {sT1}, {CU + 4120 - 1536}
        s_lshl_b32 {sT2}, {skh}, 11
        s_sub_u32 {sT1}, {sT1}, {sT2}
        v_sub_u32 {vT[2]}, {sT1}, {b}
        s_xor_b32 {sT0}, {sT0}, 8192
        v_add_u32 {b}, {sT0}, {b}
        v_lshlrev_b32 {vr(V_SSM + 5)}, 16, {vr(V_SSM + 5)}
        v_and_b32 {vT[4]}, 8, {vL}
        v_cmp_eq_u32 vcc, 0, {vT[4]}
        """)
        sel = Seq()
        sel(f"v_and_b32 {vT[4]}, 8, {vL}")
        sel(f"v_cmp_eq_u32 vcc, 0, {vT[4]}")
        for n in range(4):
            sel(f"v_cndmask_b32 {vr(V_SSM + n)}, {vr(V_ONES + n)}, {vZero}, vcc")
        for n in range(4):
            sel(f"v_cndmask_b32 {vr(V_ONES + n)}, {vZero}, {vr(V_ONES + n)}, vcc")
        sel(f"""
        v_lshlrev_b32 {vT[5]}, 2, {vL}
        v_add_u32 {vT[5]}, {ST}, {vT[5]}
        s_lshl_b32 {sT0}, {sw}, 8
        v_add_u32 {vT[6]}, {sT0}, {vT[5]}
        s_add_u32 {sT0}, {sT0}, {ST + 3072}
        v_add_u32 {vCsA}, {sT0}, {vCsA}
        """)
        ad.items = ad.items[:-2]
        p.extend(weave(q, fill(q, [(104, 126, split(ad)), (128, 150, split(sel))], plan)))
        self.stamp(p, "conv mfma")
        p.wait(vm=t["l0"])
        x = Seq()
        hi, join = self.label("convhi"), self.label("convjoin")
        x("s_barrier")
        t["ph1"] = self.behead(self.p3_phase(R2, V_ACC, V_ACC + 16, V_TMP))
        x.extend(t["ph1"][0])
        x(f"s_cmp_lg_u32 {skh}, 0")
        x(f"s_cbranch_scc1 {hi}")
        for half, tail in ((16, f"s_branch {join}\n{hi}:"), (0, f"{join}:")):
            for n in range(4):
                x(f"ds_write_b128 {vT[3]}, {vr(acc + half + 4 * n, 4)} offset:{n * 1024}", count=(half == 0))
            x("s_waitcnt lgkmcnt(0)")
            x("s_barrier")
            for n in range(4):
                x(f"ds_read_b128 {vr(acc + half + 4 * n, 4)}, {a} offset:{n * 1024}", count=(half == 0))
            x(tail)
        t["cx"] = x.items[-2]
        p.atomic(x)
        p.mark("conv_end")
        self.stamp(p, "conv done")
        e = Seq()
        uu, tmp = V_B + 16, V_B + 32
        for n in range(4):
            e(f"ds_read_b64 {vr(uu + 2 * n, 2)}, {vT[2]} offset:{1536 - 512 * n}")
        e.wait(lg=t["cx"])
        for n in range(16):
            e(f"v_add_f32 {vr(acc + n)}, {vr(acc + n)}, {vr(acc + 16 + n)}")
        for n in range(4):
            e(f"v_and_b32 {vr(tmp)}, {sHi}, {vr(uu + 2 * n + 1)}")
            e(f"v_lshlrev_b32 {vr(tmp + 1)}, 16, {vr(uu + 2 * n + 1)}")
            e(f"v_and_b32 {vr(tmp + 2)}, {sHi}, {vr(uu + 2 * n)}")
            e(f"v_lshlrev_b32 {vr(tmp + 3)}, 16, {vr(uu + 2 * n)}")
            for r in range(4):
                e(f"v_fmac_f32 {vr(acc + 4 * n + r)}, {vr(V_SSM + 5)}, {vr(tmp + r)}")
        for n in range(8):
            e(f"v_cvt_pk_bf16_f32 {vr(uu + n)}, {vr(acc + 2 * n)}, {vr(acc + 2 * n + 1)}")
        for n in range(4):
            e(f"ds_write_b64 {b}, {vr(uu + 2 * n, 2)} offset:{n * 512}")
        e(f"ds_read_b128 {vr(uu + 8, 4)}, {a}")
        e(f"ds_read_b128 {vr(uu + 12, 4)}, {a} offset:1024")
        e(f"""
        v_lshrrev_b32 {b}, 3, {vL}
        v_and_b32 {vT[2]}, 7, {vL}
        v_lshlrev_b32 {vT[2]}, 4, {vT[2]}
        v_lshl_add_u32 {b}, {b}, 13, {vT[2]}
        s_lshl_b32 {sT2}, {sj}, 18
        s_lshl_b32 {sT1}, {skh}, 17
        s_add_u32 {sT2}, {sT2}, {sT1}
        s_lshl_b32 {sT1}, {sc}, 1
        s_add_u32 {sT1}, {sT1}, {sth}
        s_lshl_b32 {sT1}, {sT1}, 7
        s_add_u32 {sT2}, {sT2}, {sT1}
        s_add_u32 {sT2}, {sT2}, {WS_YT}
        s_add_u32 {sT1}, {sT2}, 65536
        """)
        s0 = e(f"buffer_store_dwordx4 {vr(uu + 8, 4)}, {b}, {sWS}, {sT2} offen sc1")
        s1 = e(f"buffer_store_dwordx4 {vr(uu + 12, 4)}, {b}, {sWS}, {sT1} offen sc1")
        t["y"], t["conv_epi"] = [s0, s1], e

    @staticmethod
    def behead(q):
        n = next(i for i, it in enumerate(q.items) if it.kind in ("mfma32", "mfma16"))
        while q.items[n - 1].kind == "wait":
            n -= 1
        head, body = Seq(), Seq()
        head.items, body.items = q.items[:n], q.items[n:]
        return head, body

    def p3_phase(self, base, accA, accB, cs):
        q = Seq()
        regs = [(vXr[0], vXr[1]), (vXr[2], vXr[3])]

        def setblk(blk):
            r0, r1 = regs[blk & 1]
            q(f"s_lshl_b32 {sT0}, {sR[blk]}, 7")
            q(f"s_add_u32 {sT0}, {sT0}, {base}")
            q(f"v_add_u32 {r0}, {sT0}, {vTr0}")
            q(f"v_xor_b32 {r1}, 64, {r0}")

        def rd(ks, half):
            if ks < 32:
                tok[ks] = self.a_reads(q, V_A + 8 * (ks % 4) + 4 * half, regs[(ks >> 3) & 1][half], (ks & 7) * 2048)

        tok = {}
        setblk(0)
        ra = self.opt.get("ra2", 3)
        for ks in range(ra):
            rd(ks, 0)
            rd(ks, 1)
        setblk(1)
        for ks in range(32):
            A = V_A + 8 * (ks % 4)
            z = ks == 0
            q.wait(lg=tok[ks])
            q(f"v_mfma_f32_32x32x16_bf16 {vr(accA, 16)}, {vr(A, 4)}, {ar(4 * ks, 4)}, {'0' if z else vr(accA, 16)}")
            rd(ks + ra, 0)
            q(f"v_mfma_f32_32x32x16_bf16 {vr(accB, 16)}, {vr(A + 4, 4)}, {ar(4 * ks, 4)}, {'0' if z else vr(accB, 16)}")
            rd(ks + ra, 1)
            if ks < 8:
                q(f"v_mfma_f32_16x16x32_bf16 {vr(cs, 4)}, {vr(V_ONES, 4)}, {vr(A, 4)}, {'0' if z else vr(cs, 4)}")
                q(f"v_mfma_f32_16x16x32_bf16 {vr(cs, 4)}, {vr(V_SSM, 4)}, {vr(A + 4, 4)}, {vr(cs, 4)}")
            if ks in (8, 16):
                setblk(ks // 8 + 1)
        return q

    def p3_tile(self, base, half, acc, cs=None):
        q = Seq()
        regs = [vXr[0], vXr[2]]
        tok = {}

        def setblk(blk):
            q(f"s_lshl_b32 {sT0}, {sR[blk]}, 7")
            q(f"s_add_u32 {sT0}, {sT0}, {base}")
            q(f"v_add_u32 {regs[blk & 1]}, {sT0}, {vTr0}")
            if half:
                q(f"v_xor_b32 {regs[blk & 1]}, 64, {regs[blk & 1]}")

        def rd(ks):
            if ks < 32:
                tok[ks] = self.a_reads(q, V_A + 4 * (ks % 6), regs[(ks >> 3) & 1], (ks & 7) * 2048)

        setblk(0)
        X = V_ACC + 32
        if cs is not None:
            q(f"v_xor_b32 {vXr[1]}, 64, {vXr[0]}")
            for ks in range(3):
                self.a_reads(q, X + 4 * ks, vXr[1], ks * 2048)
        ra = self.opt.get("ra1", 5)
        for ks in range(ra):
            rd(ks)
        setblk(1)
        for ks in range(32):
            A = V_A + 4 * (ks % 6)
            q(f"v_mfma_f32_32x32x16_bf16 {vr(acc, 16)}, {vr(A, 4)}, {ar(4 * ks, 4)}, {'0' if ks == 0 else vr(acc, 16)}")
            rd(ks + ra)
            if cs is not None and ks < 8:
                q(f"v_mfma_f32_16x16x32_bf16 {vr(cs, 4)}, {vr(V_ONES, 4)}, {vr(A, 4)}, {'0' if ks == 0 else vr(cs, 4)}")
            if cs is not None and ks < 8:
                if ks + 3 < 8:
                    self.a_reads(q, X + 4 * ((ks + 3) % 4), vXr[1], (ks + 3) * 2048)
                q(f"v_mfma_f32_16x16x32_bf16 {vr(cs, 4)}, {vr(V_SSM, 4)}, {vr(X + 4 * (ks % 4), 4)}, {vr(cs, 4)}")
            if ks in (6, 14):
                setblk(ks // 8 + 2)
            if half:
                q.mark(f"t3_{ks}")
        return q

    def cs_exchange(self, table, cs, dstA, dstB):
        w, r, a, b = Seq(), Seq(), Seq(), Seq()
        tok = w(f"ds_write_b32 {vT[6]}, {vr(cs)} offset:{table - ST}")
        r.wait(lg=tok)
        r("s_barrier")
        for n in range(4):
            r(f"ds_read_b32 {vr(cs + n)}, {vT[5]} offset:{table - ST + n * 256}")
        r(f"v_add_f32 {vr(cs)}, {vr(cs)}, {vr(cs + 1)}")
        r(f"v_add_f32 {vr(cs + 2)}, {vr(cs + 2)}, {vr(cs + 3)}")
        r(f"v_add_f32 {vr(cs)}, {vr(cs)}, {vr(cs + 2)}")
        r(f"ds_write_b32 {vT[6]}, {vr(cs)} offset:3072")
        for n in range(4):
            a(f"ds_read_b128 {vr(dstA + 4 * n, 4)}, {vCsA} offset:{n * 32}")
            b(f"ds_read_b128 {vr(dstB + 4 * n, 4)}, {vCsA} offset:{128 + n * 32}")
        return w, r, a, b

    def gelu_plain(self, p, acc, cs, tmp, out):
        K1, K2, SD, NM = vr(V_KK), vr(V_KK + 1), vr(V_SM), vr(V_SM + 1)
        for b in range(0, 16, 4):
            xs = range(b, b + 4)
            T = lambda x: vr(tmp + (x & 7))
            for x in xs:
                p(f"v_fmac_f32 {vr(acc + x)}, {vr(cs + x)}, {NM}")
            for x in xs:
                p(f"v_mul_f32 {T(x)}, {vr(acc + x)}, {vr(acc + x)}")
            for x in xs:
                p(f"v_fma_f32 {T(x)}, {T(x)}, {K2}, {K1}")
            for x in xs:
                p(f"v_mul_f32 {T(x)}, {T(x)}, {vr(acc + x)}")
            for x in xs:
                p(f"v_exp_f32 {T(x)}, {T(x)}")
            for x in xs:
                p(f"v_fma_f32 {T(x)}, {T(x)}, {SD}, {SD}")
            for x in xs:
                p(f"v_rcp_f32 {T(x)}, {T(x)}")
            for x in xs:
                p(f"v_mul_f32 {T(x)}, {T(x)}, {vr(acc + x)}")
            for x in (b, b + 2):
                p(f"v_cvt_pk_bf16_f32 {vr(out + x // 2)}, {T(x)}, {T(x + 1)}")

    def h2_tile(self, acc, cs16, out, plain=False):
        q = Seq()
        (self.gelu_plain if plain else self.gelu_packed)(q, acc, cs16, V_TMP + 16, out)
        s0 = q(f"buffer_store_dwordx4 {vr(out, 4)}, {vL16}, {sWS}, {sH2st} offen sc1")
        s1 = q(f"buffer_store_dwordx4 {vr(out + 4, 4)}, {vL16}, {sWS}, {sH2st} offen offset:2048 sc1")
        q(f"s_add_u32 {sH2st}, {sH2st}, 57344")
        q("s_nop 0")
        return q, [s0, s1]

    def h2_loads(self, piece, reg, prio, freed=None):
        for u in range(7):
            g = Seq()
            g(f"s_add_u32 {sB}, {sH2ld}, {piece * 57344 + u * 2048}")
            for i in range(2):
                g(f"buffer_load_dwordx4 {reg(8 * u + 4 * i)}, {vXs[1 + i]}, {sWS}, {sB} offen sc1")
            self.bg(g, "hand", (f"h2_seen{piece}", f"t3_{freed + 2 * u + 1}") if freed is not None else f"h2_seen{piece}", prio)

    def late_addrs(self, p):
        a, b = vT[0], vT[1]
        o = self.opt
        p(f"""
        s_lshl_b32 {sYfl}, {sj2}, 9
        s_lshr_b32 {sT1}, {sc}, 4
        s_lshl_b32 {sT1}, {sT1}, 8
        s_add_u32 {sYfl}, {sYfl}, {sT1}
        s_add_u32 {sYfl}, {sYfl}, {FLAG1}
        v_and_b32 {a}, 3, {vL}
        s_mul_i32 {sT1}, {sth}, 3
        v_add_u32 {a}, {sT1}, {a}
        v_add_u32 {b}, {8 - self.idle}, {a}
        v_lshrrev_b32 {b}, 3, {b}
        v_add_u32 {a}, {a}, {b}
        v_bfe_u32 {b}, {vL}, 2, 1
        v_lshlrev_b32 {a}, 9, {a}
        v_lshl_add_u32 {vH2fl}, {b}, 7, {a}
        s_lshr_b32 {sT2}, {sc}, 3
        s_lshl_b32 {sT2}, {sT2}, 3
        s_lshl_b32 {sT1}, {skh}, 2
        s_add_u32 {sT2}, {sT2}, {sT1}
        s_bfe_u32 {sT1}, {sc}, 0x20001
        s_add_u32 {sT2}, {sT2}, {sT1}
        {"" if o.get("pair", 1) else f"s_and_b32 {sT2}, {sc}, 30"}
        {"" if o.get("pair", 1) else f"s_add_u32 {sT2}, {sT2}, {skh}"}
        s_lshl_b32 {sT2}, {sT2}, 12
        s_and_b32 {sT1}, {sc}, 1
        s_lshl_b32 {sT1}, {sT1}, 8
        s_add_u32 {sH2fl}, {sT2}, {sT1}
        s_mul_i32 {sT2}, {sw}, {7 * 2048}
        s_mul_i32 {sT1}, {sc}, 229376
        s_add_u32 {sT1}, {sT1}, {sT2}
        s_add_u32 {sH2ld}, {sT1}, {WS_H2 + (WS_SIZE if o.get("dbg_noh2") else 0)}
        s_lshl_b32 {sT2}, {skh}, 15
        s_sub_u32 {sT2}, {sPriv}, {sT2}
        v_add_u32 {vTrX}, {sT2}, {vTrX}
        v_add_u32 {vTrY}, {sT2}, {vTrY}
        v_lshrrev_b32 {a}, 5, {vL}
        v_lshl_add_u32 {vKv}, {a}, 7, {vKv}
        v_lshlrev_b32 {a}, 10, {a}
        v_bfe_u32 {b}, {vL}, 2, 2
        v_lshl_add_u32 {a}, {b}, 7, {a}
        v_bfe_u32 {b}, {vL}, 4, 1
        v_lshl_add_u32 {a}, {b}, 5, {a}
        v_and_b32 {b}, 3, {vL}
        v_lshl_add_u32 {a}, {b}, 3, {a}
        s_lshl_b32 {sT2}, {snh}, 12
        s_lshl_b32 {sT1}, {sth}, 6
        s_add_u32 {sT2}, {sT2}, {sT1}
        s_add_u32 {sT2}, {sT2}, {YB}
        v_add_u32 {vY}, {sT2}, {a}
        s_lshl_b32 {sYld}, {sj2}, 5
        s_add_u32 {sYld}, {sYld}, {sc}
        s_lshl_b32 {sYld}, {sYld}, 13
        s_lshl_b32 {sT1}, {sw}, 11
        s_add_u32 {sYld}, {sYld}, {sT1}
        s_add_u32 {sYld}, {sYld}, {WS_YT}
        s_add_u32 {sYlds}, {sT1}, {YB}
        s_lshl_b32 {sGld}, {sc}, 1
        s_add_u32 {sGld}, {sGld}, {sth}
        s_lshl_b32 {sGld}, {sGld}, 11
        s_add_u32 {sGld}, {sGld}, {WS_GATE}
        """)

    def p3(self, p, t):
        o = self.opt
        T0, T1, T2, T3 = V_ACC, V_ACC + 16, V_ACC, V_ACC + 32
        cs, stt = V_TMP, V_B
        a, b = vT[0], vT[1]
        p.mark("p3", depth=o.get("depth3", 10))
        for i in range(0, 8, 2):
            g = Seq()
            for x in (i, i + 1):
                g(f"buffer_load_dwordx2 {vr(stt + 2 * x, 2)}, {vKh}, {sWS}, {sStld} offen offset:{x * 512} sc1")
            self.bg(g, "few", "p3", o.get("prio_stats", 11))
        ypub, lim, ln = Seq(), Seq(), Seq()
        self.publish(ypub, t["y"], 2, FLAG1)
        lim.mark(limit=o.get("lim_g0", 1400))
        for x in (0, 1):
            ln(f"v_add_f32 {vr(stt + x)}, {vr(stt + x)}, {vr(stt + 2 + x)}")
        for i in range(1, 4):
            for x in (0, 1):
                ln(f"v_add_f32 {vr(stt + x)}, {vr(stt + x)}, {vr(stt + 4 * i + x)}")
                ln(f"v_add_f32 {vr(stt + x)}, {vr(stt + x)}, {vr(stt + 4 * i + 2 + x)}")
        self.half_sum(ln, vr(stt), vr(stt + 2))
        self.half_sum(ln, vr(stt + 1), vr(stt + 3))
        self.ln_consts(ln, vr(stt), vr(stt + 1))
        csA, csB = V_B + 44, V_ACC + 48
        cw, cr, ca, cb = self.cs_exchange(ST + 2048, cs, csA, csB)
        q = t["ph1"][1]
        fixed = [(36, cw), (o.get("ypub_at", 76), ypub), (o.get("lim_g0_at", 66), lim)] + self.dense("i", range(1, 80, self.opt.get("dstep", 8)))
        streams = [(2, o.get("epi_end", 46), split(t["conv_epi"])), (47, 53, split(cr)), (54, 72, split(ln)), (73, 78, split(ca) + split(cb))]
        p.extend(weave(q, fill(q, streams, fixed)))
        self.stamp(p, "p3 t01")
        q0, st0 = self.h2_tile(T0, csA, V_TMP)
        p.extend(q0)
        p.mark(limit=o.get("lim_g1b", 1100))
        self.stamp(p, "h2 p0 st")
        p.wait(vm=t["l1"])
        p("s_barrier")
        p.mark("B3", depth=o.get("depth4", 10))
        head2, body2 = self.behead(self.p3_tile(R0, 0, V_ACC, cs))
        p.extend(head2)
        q1, st1 = self.h2_tile(T1, csB, V_TMP + 8)
        p.extend(q1)
        p.mark(limit=self.opt.get("lim_def", 1300))
        p(f"""
        s_lshl_b32 {sT2}, {sth}, 10
        v_add_u32 {vXs[1]}, {sT2}, {vL16}
        v_xor_b32 {vXs[2]}, 1024, {vXs[1]}
        v_add_u32 {vXs[3]}, {sPriv}, {vL16}
        v_lshlrev_b32 {b}, 2, {vL}
        """)
        self.stamp(p, "h2 p1 st")
        w0t = self.w4_loads(0, R2, "B3", 32)
        self.w4_park(2, A_PARK + 56, o.get("park3_after", "conv2"), 41)
        pub0, pub1, pub2, ypl, ypk, hpl, hpk, yd, gl, lim, lim2 = (Seq() for _ in range(11))
        self.publish(pub0, st0, 3, FLAG0)
        if o.get("rb_h2"):
            pub0(f"s_sub_u32 {sE}, {sH2st}, 114688")
            self.readback(pub0, "rb_h2", f"buffer_load_dword v255, {vL128}, {sWS}, {sE} offen sc1", "0xff00ff")
        self.stamp(pub0, "h2 p0 flag")
        self.publish(pub1, st0 + st1, 4, FLAG0)
        if o.get("rb_h2"):
            pub1(f"s_sub_u32 {sE}, {sH2st}, 57344")
            self.readback(pub1, "rb_h2", f"buffer_load_dword v255, {vL128}, {sWS}, {sE} offen sc1", "0xff00ff")
        self.poll_issue(ypl, vPw, vKv, sYfl)
        self.poll_check(ypk, vPw, vKv, sYfl, 2)
        yd(f"s_mov_b32 m0, {sYlds}")
        self.dma(yd, vL16, sWS, sYld, 0, "sc1")
        ytok = self.dma(yd, vL16, sWS, sYld, 1024, "sc1")
        ypk.atomic(yd)
        T2, T3, csA2, csB2 = V_ACC, V_ACC + 16, V_ACC + 32, V_ACC + 48
        cw, cr, ca, cb = self.cs_exchange(ST, cs, csA2, csB2)
        q = body2
        lim.mark(limit=o.get("lim_g2", 1100))
        fixed = [(o.get("pub0_at", 6), pub0 if o.get("pub0", 1) else Seq()), (o.get("pub1_at", 22), pub1), (28, cw), (o.get("lim_g2_at", 36), lim)]
        streams = [(32, 38, split(cr)), (40, 47, split(ca) + split(cb))]
        p.extend(weave(q, fill(q, streams, fixed + self.dense("j", range(1, 48, self.opt.get("dstep", 6))))))
        self.stamp(p, "p3 t2")
        self.poll_issue(hpl, vPv, vH2fl, sH2fl)
        hmid = o.get("h2_poll_mid", 30)
        if not hmid:
            p.extend(hpl)
        if not o.get("y_poll_at"):
            p.extend(ypl)
        head3, body3 = self.behead(self.p3_tile(R0, 1, T3))
        p.extend(head3)
        q2, st2 = self.h2_tile(T2, csA2, V_TMP)
        p.extend(weave(q2, [(hmid, hpl)], kinds=("trans",)) if hmid else q2)
        self.stamp(p, "g2 done")
        p.mark(limit=self.opt.get("lim_def", 1300))
        self.publish(pub2, st2, 5, FLAG0)
        if o.get("rb_h2"):
            pub2(f"s_sub_u32 {sE}, {sH2st}, 57344")
            self.readback(pub2, "rb_h2", f"buffer_load_dword v255, {vL128}, {sWS}, {sE} offen sc1", "0xff00ff")
        self.poll_check(hpk, vPv, vH2fl, sH2fl, 4)
        hpk.mark("h2_seen0")
        self.stamp(hpk, "h2 seen")
        self.h2_loads(0, lambda r: vr(V_B + r, 4), 20)
        hpk.mark("h2_seen1")
        hpk("s_nop 0")
        self.h2_loads(1, lambda r: ar(r, 4), 21, freed=0)
        gt = V_B + 56
        for i in range(8):
            gl(f"buffer_load_dword {vr(gt + i)}, {b}, {sWS}, {sGld} offen offset:{i * 256} sc1").note = "few"
        q = body3
        lim2.mark(limit=o.get("lim_g3", 1100))
        fixed = [(o.get("h2_check_at", 14), hpk), (o.get("y_check_at", 16), ypk), (o.get("pub2_at", 28), pub2), (o.get("lim_g3_at", 26), lim2)]
        if o.get("y_poll_at"):
            fixed.append((o["y_poll_at"], ypl))
        p.extend(weave(q, fill(q, [], fixed + self.dense("k", range(1, 32, 4)))))
        self.stamp(p, "p3 t23")
        p.wait(vm=ytok)
        p("s_barrier")
        p.mark("B4", depth=o.get("depth5", 10))
        w1t = self.w4_loads(3, R0, "B4", o.get("prio_p3", 22.5))
        p(f"v_add_u32 {vXr[0]}, {R2}, {vTrX}")
        p(f"v_add_u32 {vXr[1]}, {R2}, {vTrY}")
        p(f"v_add_u32 {vXr[2]}, {R2}, {vXs[3]}")
        for n in range(o.get("ra4", 3)):
            p.wait(vm=w0t[n])
            for h in range(2):
                self.a_reads(p, V_A + 8 * n + 4 * h, vXr[h], n * 2048)
        q3, st3 = self.h2_tile(T3, csB2, V_TMP + 8)
        p.extend(q3)
        p.mark(limit=self.opt.get("lim_def", 1300))
        self.poll_issue(p, vPv, vH2fl, sH2fl)
        t["gl"] = gl
        a = vY
        self.stamp(p, "p3 done")
        bs = Seq()
        yy, base = V_TMP, V_TMP + 16
        for i in range(4):
            bs(f"ds_read_b64_tr_b16 {vr(yy + 2 * i, 2)}, {a} offset:{(i >> 1) * 2048 + (i & 1) * 512}")
        for i in range(1, 8):
            bs(f"v_add_f32 {vr(gt)}, {vr(gt)}, {vr(gt + i)}")
        self.half_sum(bs, vr(gt), vr(gt + 1))
        G, OM = vr(V_KK), vr(V_KK + 1)
        bs(f"v_mul_f32 {vr(gt)}, {fbits(-math.log2(math.e))}, {vr(gt)}")
        bs(f"v_exp_f32 {vr(gt)}, {vr(gt)}")
        bs(f"v_add_f32 {vr(gt)}, 1.0, {vr(gt)}")
        bs(f"v_rcp_f32 {G}, {vr(gt)}")
        bs(f"v_sub_f32 {OM}, 1.0, {G}")
        for i in range(8):
            for h, un in ((0, "v_lshlrev_b32 {d}, 16, {s}"), (1, "v_and_b32 {d}, " + sHi + ", {s}")):
                t0, t1, d = vr(gt + 2 * h), vr(gt + 2 * h + 1), vr(base + 2 * i + h)
                bs(un.format(d=t0, s=vr(yy + i)))
                bs(un.format(d=t1, s=vr(V_XRES + i)))
                bs(un.format(d=d, s=vr(V_X1P + i)))
                bs(f"v_mul_f32 {t0}, {t0}, {t1}")
                bs(f"v_mul_f32 {d}, {d}, {OM}")
                bs(f"v_fmac_f32 {d}, {t0}, {G}")
        t.update(st3=st3, w0t=w0t, w1t=w1t, base=base, bs=bs)

    def p4(self, p, t):
        o = self.opt
        acc = [V_ACC + 16 * i for i in range(4)]
        breg = [lambda r: vr(V_B + r, 4), lambda r: ar(r, 4), lambda r: ar(56 + r, 4), lambda r: vr(V_B + r, 4)]
        areg = [(vXr[0], vXr[1])] * 3 + [(vTrX, vTrY)]
        pub3 = Seq()
        self.publish(pub3, t["st3"], 6, FLAG0)
        if o.get("rb_h2"):
            pub3(f"s_sub_u32 {sE}, {sH2st}, 57344")
            self.readback(pub3, "rb_h2", f"buffer_load_dword v255, {vL128}, {sWS}, {sE} offen sc1", "0xff00ff")
        un1, _ = self.w4_unpark_groups(A_PARK, vXr[2])
        un2, _ = self.w4_unpark_groups(A_PARK + 56, vXr[2])
        bs = split(t["bs"])
        a = vXr[2]
        q = Seq()
        steps = [(pc, u) for pc in range(4) for u in range(7)]

        def rd(n, halves=(0, 1)):
            pc, u = steps[n]
            if pc in (0, 3) and 0 in halves:
                q.wait(vm=t["w0t" if pc == 0 else "w1t"][u])
            for h in halves:
                self.a_reads(q, V_A + 8 * (n % 4) + 4 * h, areg[pc][h], u * 2048)

        def mfma(n, slot):
            pc, u = steps[n]
            A = V_A + 8 * (n % 4) + 4 * (slot & 1)
            B = breg[pc](8 * u + 4 * (slot >> 1))
            q(f"v_mfma_f32_32x32x16_bf16 {vr(acc[slot], 16)}, {vr(A, 4)}, {B}, {'0' if n == 0 else vr(acc[slot], 16)}")

        ra = o.get("ra4", 3)
        for n in range(24):
            for slot in range(4):
                mfma(n, slot)
                if slot < 2:
                    rd(n + ra, (slot,))
        if ra == 2:
            rd(26)
        mfma(24, 1)
        rd(27)
        for slot in (1, 2, 3, 0):
            for n in range(24, 28):
                if (n, slot) != (24, 1):
                    mfma(n, slot)
        pk2, pl3, pk3 = Seq(), Seq(), Seq()
        self.poll_check(pk2, vPv, vH2fl, sH2fl, 5)
        pk2.mark("h2_seen2")
        self.h2_loads(2, breg[2], 22)
        self.poll_issue(pl3, vPv, vH2fl, sH2fl)
        self.poll_check(pk3, vPv, vH2fl, sH2fl, 6)
        pk3.mark("h2_seen3")
        self.h2_loads(3, breg[3], 23)
        plan = [(o.get("pub3_at", 18), pub3), (o.get("h2p2_check", 16), pk2), (o.get("h2p3_poll", 52), pl3), (o.get("h2p3_check", 68), pk3)]
        plan += spread(split(t["gl"]), o.get("gl_at", 30), o.get("gl_at", 30) + 14)
        for n, gq in enumerate(un1 + un2):
            plan.append((4 * (n // 2) + 3 + (n & 1), gq))
        xa = Seq()
        xa(f"v_xor_b32 {vT[2]}, {2 << 14}, {a}")
        xa(f"v_xor_b32 {vT[3]}, {3 << 14}, {a}")
        xa(f"v_xor_b32 {vT[4]}, {1 << 14}, {a}")
        via_lds = o.get("out_lds", 0)
        (xa if via_lds else Seq())(f"""
        v_and_b32 {vKv}, 31, {vL}
        s_lshl_b32 {sT0}, {sth}, 5
        v_add_u32 {vKv}, {sT0}, {vKv}
        v_mul_u32_u24 {vKv}, 144, {vKv}
        v_lshrrev_b32 {vKh}, 5, {vL}
        v_lshl_add_u32 {vKv}, {vKh}, 4, {vKv}
        s_lshl_b32 {sT0}, {snh}, 6
        v_add_u32 {vKv}, {sT0}, {vKv}
        v_lshrrev_b32 {vKh}, 3, {vL}
        v_and_b32 {vPw}, 7, {vL}
        v_lshlrev_b32 {vPw}, 4, {vPw}
        v_lshl_add_u32 {vOut}, {vKh}, 10, {vPw}
        v_mul_u32_u24 {vKh}, 144, {vKh}
        s_mul_i32 {sT0}, {sw}, {16 * 144}
        v_add3_u32 {vKh}, {vKh}, {vPw}, {sT0}
        s_lshl_b32 {sC}, {sc}, 16
        s_lshl_b32 {sT0}, {sw}, 14
        s_add_u32 {sC}, {sC}, {sT0}
        s_lshl_b32 {sT0}, {sj2}, 7
        s_add_u32 {sC}, {sC}, {sT0}
        s_add_u32 {sD}, {sC}, 8192
        s_nop 0
        """)
        plan += spread(split(xa), 86, 96)
        for s in range(1, 4):
            w = Seq()
            for g in range(4):
                w(f"ds_write_b128 {a}, {vr(acc[s] + 4 * g, 4)} offset:{(s - 1) * 4096 + g * 1024}")
            plan += spread(split(w), 96 + 4 * s + 2, min(96 + 4 * s + 5, 112))
        for pc in range(3):
            sq = Seq()
            self.stamp(sq, f"p4 piece{pc}")
            plan.append((28 * (pc + 1), sq))
        p.extend(weave(q, fill(q, [(o.get("bs_at", 60), o.get("bs_end", 94), bs)], plan + self.dense("p", range(1, 112, 4)))))
        self.stamp(p, "p4 piece3")
        p.wait(lg0=True)
        p("s_barrier")
        for s in range(1, 4):
            for g in range(4):
                p(f"ds_read_b128 {vr(acc[s] + 4 * g, 4)}, {vT[1 + s]} offset:{(s - 1) * 4096 + g * 1024}")
        base = t["base"]
        fl = o.get("out_flags", "")
        for half in (0, 8):
            for s in range(1, 4):
                for x in range(half, half + 8, 2):
                    p(f"v_pk_add_f32 {vr(acc[0] + x, 2)}, {vr(acc[0] + x, 2)}, {vr(acc[s] + x, 2)}")
            for x in range(half, half + 8, 2):
                p(f"v_pk_fma_f32 {vr(acc[0] + x, 2)}, {vr(acc[0] + x, 2)}, {vr(V_KK, 2)}, {vr(base + x, 2)} op_sel:[0,1,0] op_sel_hi:[1,1,1]")
            for i in range(half // 2, half // 2 + 4):
                p(f"v_cvt_pk_bf16_f32 {vr(V_TMP + i)}, {vr(acc[0] + 2 * i)}, {vr(acc[0] + 2 * i + 1)}")
            if via_lds:
                p(f"ds_write_b128 {vKv}, {vr(V_TMP + half // 2, 4)} offset:{R0 + half * 4}")
            else:
                p(f"buffer_store_dwordx4 {vr(V_TMP + half // 2, 4)}, {vOut}, {sOUT}, 0 offen offset:{half * 4} {fl}")
        if via_lds:
            p.wait(lg0=True)
            p("s_barrier")
            p(f"ds_read_b128 {vr(V_TMP + 8, 4)}, {vKh} offset:{R0}")
            p(f"ds_read_b128 {vr(V_TMP + 12, 4)}, {vKh} offset:{R0 + 8 * 144}")
            p(f"buffer_store_dwordx4 {vr(V_TMP + 8, 4)}, {vOut}, {sOUT}, {sC} offen {fl}")
            p(f"buffer_store_dwordx4 {vr(V_TMP + 12, 4)}, {vOut}, {sOUT}, {sD} offen {fl}")
        self.advance_epoch(p)
        self.stamp(p, "out issued")

    def write_stamps(self, p):
        if self.diag:
            p.wait(vm0=True)
            self.stamp(p, "end")
            p(f"""
            s_cmp_lg_u32 s2, {self.opt.get("diag_wg", 73)}
            s_cbranch_scc1 L_end
            s_sub_u32 s98, s98, s96
            s_mul_i32 s98, s98, {self.diag[2]}
            s_lshr_b32 s98, s98, {4 if len(self.diag) > 3 else 0}
            s_memrealtime s[96:97]
            s_waitcnt lgkmcnt(0)
            L_diag:
            s_memrealtime s[100:101]
            s_waitcnt lgkmcnt(0)
            s_sub_u32 s100, s100, s96
            s_cmp_lt_u32 s100, s98
            s_cbranch_scc1 L_diag
            """)
        if not self.profile:
            return
        p.wait(vm0=True)
        self.stamp(p, "end")
        p("s_memrealtime s[100:101]")
        p.wait(lg0=True)
        p("v_writelane_b32 v254, s100, 1")
        p(f"""
        s_lshl_b32 {sT0}, s2, 2
        s_add_u32 {sT0}, {sT0}, {sw}
        s_lshl_b32 {sT0}, {sT0}, 8
        s_add_u32 {sT0}, {sT0}, {WS_STAMP}
        v_lshlrev_b32 {vP2}, 2, {vL}
        """)
        p(f"buffer_store_dword v254, {vP2}, {sWS}, {sT0} offen sc1")

    def build(self):
        p = self.p
        t = {}
        self.prologue(p)
        self.p1(p, t)
        self.a1(p, t)
        self.p2(p, t)
        self.conv(p, t)
        self.p3(p, t)
        self.p4(p, t)
        self.write_stamps(p)
        p("L_end:")
        p("s_endpgm")
        assert len(self.stamps) + self.npoll <= 62, len(self.stamps)
        classes = {"p1cold": (self.opt.get("s_p1cold", 230), self.opt.get("l_p1cold", 1400)), "p1l2": (self.opt.get("s_p1l2", 75), 400)}
        classes.update(mall=(125, 900), hand=(105, 900))
        for k in ("mall", "hand", "cold"):
            if "s_" + k in self.opt:
                classes[k] = (self.opt["s_" + k], self.opt.get("l_" + k, 900))
        self.log = []
        p = schedule(p, [b for _, _, b in sorted(self.bgs, key=lambda e: e[:2])], classes, self.log, self.opt.get("split_bg", 1), self.opt.get("depth", 10))
        body, items = finalize(p)
        head = open(__file__.replace("gen.py", "header.txt")).read()
        text = head + f"; @launch grid=(256,1,1) block=(256,1,1) lds={LDS_SIZE}\n"
        text += f""".amdgcn_target "amdgcn-amd-amdhsa--gfx950"
.text
.globl {NAME}_kernel
.p2align 8
.type {NAME}_kernel,@function
{NAME}_kernel:
.set CODE_BYTES, L_code_end - L_pc - 4
"""
        text += body
        text += f"""L_code_end:
.section .rodata,"a"
.p2align 6
.amdhsa_kernel {NAME}_kernel
  .amdhsa_next_free_vgpr 512
  .amdhsa_next_free_sgpr 102
  .amdhsa_accum_offset 256
  .amdhsa_group_segment_fixed_size 0
  .amdhsa_kernarg_size 120
  .amdhsa_user_sgpr_count 2
  .amdhsa_user_sgpr_kernarg_segment_ptr 1
  .amdhsa_system_sgpr_workgroup_id_x 1
.end_amdhsa_kernel
"""
        return text


if __name__ == "__main__":
    prof = "--profile" in sys.argv
    out = [a for a in sys.argv[1:] if not a.startswith("--")]
    diag = [a[7:].split(",") for a in sys.argv if a.startswith("--diag=")]
    opt = {}
    for a in sys.argv:
        if a.startswith("--o:"):
            k, v = a[4:].split("=")
            opt[k] = int(v) if v.lstrip("-").isdigit() else v
    g = Gen(profile=prof, diag=diag[0] if diag else None, opt=opt)
    text = g.build()
    path = out[0] if out else f"cdna_kernels/{NAME}.s"
    open(path, "w").write(text)
    if prof:
        open(path + ".stamps", "w").write("\n".join(g.stamps))
    print("wrote", path, len(text), "bytes")
    if "--log" in sys.argv:
        print("  ".join(f"{n}={t}" for n, t in g.log))
```

```python
import math
import os
import struct
import sys

from asmdsl import Seq, Bg, finalize, schedule, weave, spread, split, fill

NAME = "gated_mix__ssm_conv_h3__mixer_s_mlp__prompt"

FLAG0, FLAG1, WS_EPOCH = 0x0, 0x20000, 0x40000
WS_H, WS_X1, WS_H2, WS_KVT, WS_YT = 0x100000, 0x300000, 0x500000, 0xC00000, 0xE00000
WS_STATS, WS_GATE, WS_STAMP = 0x1000000, 0x1080000, 0x1100000
WS_SIZE = 0x1200000

R0, R1, R2, R3, R4 = 0, 32768, 65536, 98304, 131072
KB, VB, A1R = R4, R4 + 9216, R4 + 17408
ST = R4 + 28672
ST_STAT, ST_CS, ST_CS3 = ST, ST + 1024, ST + 1536
KCOPY, KCH = 4288, 8576
CK, CU, UCH = R4, R4 + 17152, 4928
EX2, EXC = R2 + 12288, R4
YB = R4
LDS_SIZE = 163840

sX, sK, sV, sSK, sW1, sW2, sW3, sW4, sOUT, sWS, sDBG = [f"s[{4 + 4 * i}:{7 + 4 * i}]" for i in range(11)]
pSH, pD, pG = "s[48:49]", "s[50:51]", "s[52:53]"
sw, sth, skh, snh, sc, sj, sm, ssc = [f"s{i}" for i in range(54, 62)]
srot, sja, sEp, sOnes, sHi = "s62", "s63", "s64", "s65", "s66"
sOneLo, sOneHi = "s44", "s45"
sT0, sT1, sT2, sT3, sCnt = "s67", "s68", "s69", "s70", "s71"
sU = [f"s{i}" for i in range(72, 79)]
sFlag, sPriv = "s79", "s80"
sWsrc, sWlds, sW3b, sB, sC, sD, sE, sOob = [f"s{i}" for i in range(81, 89)]
sR = ["s46", "s47", "s3", "s95"]
sH2st, sH2fl, sH2ld, sX1ld, sStld = [f"s{i}" for i in range(89, 94)]
sj2 = "s94"
sYfl, sYld, sYlds, sGld = "s8", "s9", "s10", "s11"
sW2src, sFlag1 = "s0", "s1"
sIdle, sH = "s96", "s97"
sQ = ["s12", "s13", "s14", "s15"]
sV4 = ["s20", "s21", "s22", "s23"]

vL, vL16, vTrX, vTrY, vTr0, vWs1, vWs, vW3s = [f"v{i}" for i in range(1, 9)]
vW3s1 = "v0"
vXs = [f"v{i}" for i in range(9, 13)]
vXr = [f"v{i}" for i in range(13, 17)]
vPoll, vP2, vZero, vCsA = "v17", "v18", "v19", "v20"
vT = [f"v{i}" for i in range(21, 27)] + ["v253"]
V_KK, V_SM = 28, 30
V_XRES, V_X1P = 32, 40
V_B, V_ACC, V_A, V_TMP = 48, 112, 176, 208
V_ONES = 244
V_SSM = 232
vPv, vPw, vKv, vKh = "v248", "v249", "v250", "v251"
V_SK = 252
vL128 = "v243"
vOut = "v27"
vH2fl, vY = "v252", "v9"
vLane0 = "v255"
A_W2, A_PARK = 0, 128


def vr(b, n=1):
    return f"v{b}" if n == 1 else f"v[{b}:{b + n - 1}]"


def ar(b, n=1):
    return f"a{b}" if n == 1 else f"a[{b}:{b + n - 1}]"


def fbits(x):
    return "0x%08x" % struct.unpack("<I", struct.pack("<f", x))[0]


C0 = math.sqrt(2.0 / math.pi)
GK1 = -2.0 * C0 * math.log2(math.e)
GK2 = GK1 * 0.044715
SPIN_LIMIT = 400000


DESCRIPTION = """\
; Every spin is bounded. Weights reach LDS by DMA and are transposed by ds_read_b64_tr_b16.
"""


class Gen:
    def __init__(self, profile=False, diag=None, opt=None):
        self.profile = profile
        self.opt = opt or {}
        self.diag = diag
        self.p = Seq()
        self.nlabel = 0
        self.npoll = 0
        self.idle = (3 - self.opt.get('j2', 1)) & 7
        self.bgs = []
        self.stamps = []

    def label(self, base):
        self.nlabel += 1
        return f"L_{base}_{self.nlabel}"

    def stamp(self, p, name):
        p.mark("@" + name)
        if self.diag and name in self.diag[:2]:
            r = 96 + 2 * self.diag.index(name)
            p(f"{'s_memtime' if len(self.diag) > 3 else 's_memrealtime'} s[{r}:{r + 1}]")
            p.wait(lg0=True)
        if not self.profile:
            return
        only = self.opt.get("stamps")
        if only and name not in ("start", "end") and name not in only.split(",") and (self.opt.get("nodigit") or not name[-1].isdigit()):
            return
        i = len(self.stamps)
        self.stamps.append(name)
        q = Seq()
        q("s_memrealtime s[100:101]" if self.opt.get("rt") else "s_memtime s[100:101]")
        q.wait(lg0=True)
        q(f"v_writelane_b32 v254, s100, {i + 2}")
        p.atomic(q)

    def dma(self, p, vaddr, srd, soff, imm=0, flags="", count=True):
        off = f" offset:{imm}" if imm else ""
        return p(f"buffer_load_dwordx4 {vaddr}, {srd}, {soff} offen{off} {flags} lds", count)

    def bg(self, seq, cls, after, prio):
        b = Bg(seq, cls, after, prio)
        self.bgs.append((prio, len(self.bgs), b))
        return b

    def dma_pair(self, v0, v1, srd, src_lines, lds_reg, lds, flags=""):
        g = Seq()
        g(f"s_add_u32 m0, {lds_reg}, {lds}")
        g(src_lines)
        self.dma(g, v0, srd, sB, flags=flags)
        return g, self.dma(g, v1, srd, sB, 1024, flags=flags)

    def dense(self, tag, positions):
        plan = []
        if tag[0] in str(self.opt.get("dense", "")):
            for n in positions:
                q = Seq()
                self.stamp(q, f"{tag}{n}")
                plan.append((n, q))
        return plan

    def emit(self, p, groups):
        for g in groups:
            p.extend(g)

    def poll_issue(self, p, dst, vaddr, soff, srd=sWS):
        t = p(f"buffer_load_dword {dst}, {vaddr}, {srd}, {soff} offen sc1")
        t.note = "few"
        return t

    def poll_check(self, p0, dst, vaddr, soff, need):
        p = Seq()
        a, b = self.label("poll"), self.label("pdone")
        if self.profile:
            p(f"s_mov_b32 {sCnt}, {SPIN_LIMIT}")
        p(f"s_add_u32 {sE}, {sEp}, {need}")
        p(f"v_subrev_u32 {dst}, {sE}, {dst}")
        p(f"v_cmp_lt_u32 vcc, {6 - need}, {dst}")
        p(f"s_cbranch_vccz {b}")
        if not self.profile:
            p(f"s_mov_b32 {sCnt}, {SPIN_LIMIT}")
        p(f"{a}:")
        p(f"s_sleep {self.opt.get('poll_sleep', 3)}")
        p(f"s_sub_u32 {sCnt}, {sCnt}, 1")
        p(f"buffer_load_dword {dst}, {vaddr}, {sWS}, {soff} offen sc1", count=False)
        p("s_waitcnt vmcnt(0)")
        p(f"v_subrev_u32 {dst}, {sE}, {dst}")
        p(f"v_cmp_lt_u32 vcc, {6 - need}, {dst}")
        p(f"s_cbranch_vccz {b}")
        p(f"s_cmp_lg_u32 {sCnt}, 0")
        p(f"s_cbranch_scc1 {a}")
        p(f"{b}:")
        if self.profile:
            self.npoll += 1
            p(f"s_sub_u32 {sCnt}, {SPIN_LIMIT}, {sCnt}")
            p(f"v_writelane_b32 v254, {sCnt}, {64 - self.npoll}")
        p0.atomic(p)

    def masked(self, p0, mask, text):
        p = Seq()
        p(f"s_mov_b64 exec, {mask}")
        t = p(text)
        p("s_mov_b64 exec, -1")
        p0.atomic(p)
        return t

    def readback(self, p, key, text, mask="0xffff"):
        if self.opt.get(key):
            self.masked(p, mask, text).note = "few"

    def publish(self, p, toks, value, area):
        p(f"v_add_u32_e64 {vP2}, {sEp}, {value}")
        p.wait(vm=toks)
        text = f"buffer_store_dword {vP2}, {vLane0}, {sWS}, {sFlag if area == FLAG0 else sFlag1} offen sc1"
        return self.masked(p, 1, text) if self.opt.get("pub_exec", 1) else p(text)

    def half_sum(self, p, reg, tmp):
        p(f"v_mov_b32 {tmp}, {reg}")
        p(f"v_permlane32_swap_b32 {reg}, {tmp}")
        p(f"v_add_f32 {reg}, {reg}, {tmp}")

    def a_reads(self, p, dst, vaddr, off, areg=False):
        f = ar if areg else vr
        p(f"ds_read_b64_tr_b16 {f(dst, 2)}, {vaddr} offset:{off}")
        return p(f"ds_read_b64_tr_b16 {f(dst + 2, 2)}, {vaddr} offset:{off + 512}")

    def ln_consts(self, p, vsum, vsq):
        p(f"v_mul_f32 {vr(V_SM + 1)}, {fbits(-1.0 / 512)}, {vsum}")
        p(f"v_mul_f32 {vsq}, {fbits(1.0 / 512)}, {vsq}")
        p(f"v_fma_f32 {vsq}, -{vr(V_SM + 1)}, {vr(V_SM + 1)}, {vsq}")
        p(f"v_max_f32 {vsq}, 0, {vsq}")
        p(f"v_add_f32 {vsq}, {fbits(1e-5)}, {vsq}")
        p(f"v_rsq_f32 {vsum}, {vsq}")
        p(f"v_sqrt_f32 {vr(V_SM)}, {vsq}")
        p(f"v_mul_f32 {vr(V_KK)}, {fbits(GK1)}, {vsum}")
        p(f"v_mul_f32 {vsq}, {vsum}, {vsum}")
        p(f"v_mul_f32 {vsq}, {vsq}, {vsum}")
        p(f"v_mul_f32 {vr(V_KK + 1)}, {fbits(GK2)}, {vsq}")

    def gelu_packed(self, p, acc, cs, tmp, out, n=16):
        KK, SM = vr(V_KK, 2), vr(V_SM, 2)
        for b in range(0, n, 8):
            pr = [b + 2 * i for i in range(4)]
            t = lambda x: tmp + (x - b)
            if self.opt.get("align", 1):
                p(".p2align 3")
            for x in pr:
                p(f"v_pk_fma_f32 {vr(acc + x, 2)}, {vr(cs + x, 2)}, {SM}, {vr(acc + x, 2)} op_sel:[0,1,0] op_sel_hi:[1,1,1]")
            for x in pr:
                p(f"v_pk_mul_f32 {vr(t(x), 2)}, {vr(acc + x, 2)}, {vr(acc + x, 2)}")
            for x in pr:
                p(f"v_pk_fma_f32 {vr(t(x), 2)}, {vr(t(x), 2)}, {KK}, {KK} op_sel:[0,1,0] op_sel_hi:[1,1,0]")
            for x in pr:
                p(f"v_pk_mul_f32 {vr(t(x), 2)}, {vr(t(x), 2)}, {vr(acc + x, 2)}")
            for x in range(b, b + 8):
                p(f"v_exp_f32 {vr(t(x))}, {vr(t(x))}")
            for x in pr:
                p(f"v_pk_fma_f32 {vr(t(x), 2)}, {vr(t(x), 2)}, {SM}, {SM} op_sel:[0,0,0] op_sel_hi:[1,0,0]")
            for x in range(b, b + 8):
                p(f"v_rcp_f32 {vr(t(x))}, {vr(t(x))}")
            for x in pr:
                p(f"v_pk_mul_f32 {vr(t(x), 2)}, {vr(t(x), 2)}, {vr(acc + x, 2)}")
            for x in pr:
                p(f"v_cvt_pk_bf16_f32 {vr(out + x // 2)}, {vr(t(x))}, {vr(t(x) + 1)}")

    def prologue(self, p):
        p("s_cmp_ge_u32 s2, 256")
        p("s_cbranch_scc1 L_end")
        if self.profile:
            p("v_mov_b32 v254, 0")
            p("s_memrealtime s[100:101]")
            p.wait(lg0=True)
            p("v_writelane_b32 v254, s100, 0")
        self.stamp(p, "start")
        p("s_load_dwordx16 s[64:79], s[0:1], 0")
        p("s_getpc_b64 s[48:49]")
        p("L_pc:")
        p("s_lshr_b32 s50, s2, 3")
        p("s_lshl_b32 s50, s50, 10")
        p("v_lshlrev_b32 v1, 7, v0")
        p("v_add_u32 v2, s50, v1")
        p("v_cmp_gt_u32 vcc, 32, v0")
        p("v_cndmask_b32 v1, v2, v1, vcc")
        p("v_min_u32 v1, CODE_BYTES, v1")
        p("v_cmp_gt_u32 vcc, 40, v0")
        p("s_and_saveexec_b64 s[50:51], vcc")
        p("s_cbranch_execz L_nopf")
        p("global_load_dword a255, v1, s[48:49]", count=False)
        p("L_nopf:")
        p("s_mov_b64 exec, s[50:51]")
        row, t1, t2 = vT[0], vT[1], vT[2]
        sT0, sT1 = "s52", "s53"
        p(f"""
        v_lshrrev_b32 {vT[3]}, 6, v0
        v_and_b32 {vL}, 63, v0
        v_readfirstlane_b32 {sw}, {vT[3]}
        v_lshrrev_b32 {row}, 3, {vL}
        v_and_b32 {t2}, 7, {vL}
        s_and_b32 {sT0}, s2, 7
        s_lshr_b32 {sT1}, s2, 6
        s_lshl_b32 {sc}, {sT0}, 2
        s_add_u32 {sc}, {sc}, {sT1}
        s_bfe_u32 {sj}, s2, 0x30003
        s_add_u32 {srot}, {sj}, {sT1}
        s_and_b32 {srot}, {srot}, {self.opt.get("rot1", 3)}
        s_and_b32 {sth}, {sw}, 1
        s_lshr_b32 {skh}, {sw}, 1
        s_lshl_b32 {sPriv}, {sw}, 14
        """)
        p(f"""
        s_lshr_b32 {sT0}, {sj}, 2
        s_add_u32 {sT0}, {sT0}, 1
        s_sub_u32 {sT1}, 0, {sT0}
        s_bitcmp1_b32 {sj}, 1
        s_cselect_b32 {sT0}, {sT0}, {sT1}
        s_lshl_b32 {sT1}, {sc}, 6
        s_add_u32 {sT0}, {sT0}, {sT1}
        s_lshl_b32 {sT1}, {sth}, 5
        s_add_u32 {sT0}, {sT0}, {sT1}
        s_lshl_b32 {sT0}, {sT0}, 10
        s_lshl_b32 {sT1}, {skh}, 9
        s_add_u32 {sT0}, {sT0}, {sT1}
        v_lshrrev_b32 {t1}, 1, {row}
        v_xor_b32 {t1}, {t1}, {t2}
        v_lshlrev_b32 {t1}, 4, {t1}
        v_lshl_add_u32 {t1}, {row}, 10, {t1}
        v_add_u32 {vXs[0]}, {sT0}, {t1}
        v_xor_b32 {t1}, 64, {t1}
        v_add_u32 {t1}, {sT0}, {t1}
        v_add_u32 {vXs[1]}, {8192 - 1024}, {t1}
        v_add_u32 {vXs[2]}, 16384, {vXs[0]}
        v_add_u32 {vXs[3]}, {24576 - 1024}, {t1}
        s_mov_b32 s6, {1 << 21}
        s_mov_b32 s7, 0x20000
        s_mov_b32 s22, {1 << 19}
        s_mov_b32 s23, 0x20000
        s_lshl_b32 {sWlds}, {skh}, 15
        s_lshl_b32 {sT1}, {sth}, 12
        s_add_u32 {sWlds}, {sWlds}, {sT1}
        s_lshl_b32 {sWsrc}, {skh}, 18
        s_lshl_b32 {sT1}, {sth}, 15
        s_add_u32 {sWsrc}, {sWsrc}, {sT1}
        s_lshl_b32 {sT1}, {sj}, 7
        s_add_u32 {sWsrc}, {sWsrc}, {sT1}
        v_lshrrev_b32 {vT[4]}, 2, {vL}
        v_and_b32 {vT[4]}, 4, {vT[4]}
        v_xor_b32 {vT[4]}, {vT[4]}, {t2}
        v_lshlrev_b32 {vT[4]}, 4, {vT[4]}
        v_lshl_add_u32 {vWs}, {row}, 10, {vT[4]}
        v_add_u32 {vWs1}, 7168, {vWs}
        """)
        self.set_rot(p)
        p.wait(lg0=True)
        p("s_mov_b64 s[4:5], s[64:65]")
        p("s_mov_b64 s[20:21], s[78:79]")
        if not self.opt.get("fast_go", 1):
            self.more_kernargs(p)
        self.stamp(p, "karg")

    def more_kernargs(self, p):
        for dst, off in ((40, 112), (24, 64), (28, 72), (32, 80), (52, 88), (36, 96)):
            p(f"s_load_dwordx2 s[{dst}:{dst + 1}], s[0:1], {off}")
        for dst, src in ((8, 66), (12, 68), (48, 70), (16, 72), (50, 74)):
            p(f"s_mov_b64 s[{dst}:{dst + 1}], s[{src}:{src + 1}]")

    def set_rot(self, p):
        for pos in range(4):
            p(f"s_add_u32 {sR[pos]}, {srot}, {pos}")
            p(f"s_and_b32 {sR[pos]}, {sR[pos]}, 3")
            p(f"s_lshl_b32 {sR[pos]}, {sR[pos]}, 7")

    def kernargs2(self, p):
        sizes = (1 << 21, 1 << 21, 1 << 21, 1 << 21, 1 << 19, 1 << 19, 512 * 3584, 1792 * 1024, 1 << 21, WS_SIZE, 256)
        for i, n in enumerate(sizes):
            if i not in (0, 4, 10):
                p(f"s_mov_b32 s{6 + 4 * i}, {n}")
                p(f"s_mov_b32 s{7 + 4 * i}, 0x20000")
        p(f"v_lshlrev_b32 {vL16}, 4, {vL}")
        p(f"v_mov_b32 {vZero}, 0")

    def touch(self, kind, after, prio):
        if after == "none":
            return
        g = Seq()
        srd, lines = {"w2": (sW2, 4), "w3": (sW3, 14), "w4": (sW4, 14)}[kind]
        g(f"s_lshl_b32 {sB}, s2, 2")
        g(f"s_add_u32 {sB}, {sB}, {sw}")
        g(f"s_mul_i32 {sB}, {sB}, {lines * 128}")
        self.masked(g, (1 << lines) - 1, f"buffer_load_dword a255, {vL128}, {srd}, {sB} offen")
        self.bg(g, "fewcold", after, prio)

    def touch_slow(self, kind, after, prio):
        g = Seq()
        srd, lines = {"w2": (sW2, 4), "w4": (sW4, 14)}[kind]
        g(f"s_lshr_b32 {sB}, s2, 3")
        g(f"s_lshl_b32 {sB}, {sB}, 2")
        g(f"s_add_u32 {sB}, {sB}, {sw}")
        g(f"s_mul_i32 {sB}, {sB}, {lines * 1024}")
        g(f"v_lshlrev_b32 {vr(V_TMP + 4)}, 10, {vL}")
        self.masked(g, (1 << lines) - 1, f"buffer_load_dword a255, {vr(V_TMP + 4)}, {srd}, {sB} offen offset:384")
        self.bg(g, "fewcold", after, prio)

    def idle_touch(self, piece, after, prio):
        for n in range(4):
            g = Seq()
            g(f"s_add_u32 {sB}, {sIdle}, {n * 524288 + piece * 32768}")
            g(f"buffer_load_dword a255, {vL128}, {sW4}, {sB} offen")
            self.bg(g, "few", after, prio)

    def warm_flags(self, p):
        for i in range(4):
            p(f"v_mov_b32 {vr(V_TMP + 4 + i)}, {sEp}")
        p(f"s_add_u32 {sFlag1}, {sFlag}, {FLAG1}")
        p(f"v_min_u32 {vLane0}, 1, {vL}")
        p(f"v_lshlrev_b32 {vLane0}, 30, {vLane0}")
        p(f"v_lshrrev_b32 {vP2}, 3, {vL}")
        p(f"v_mul_u32_u24 {vP2}, {FLAG1 - 128}, {vP2}")
        p(f"v_add_u32 {vP2}, {vP2}, {vL16}")
        self.masked(p, "0xffff", f"buffer_store_dwordx4 {vr(V_TMP + 4, 4)}, {vP2}, {sWS}, {sFlag} offen sc1")

    def advance_epoch(self, p):
        p(f"""
        s_or_b32 {sT0}, s2, {sw}
        s_cmp_eq_u32 {sT0}, 0
        s_cselect_b32 {sT0}, 0, {WS_SIZE}
        s_add_u32 {sT0}, {sT0}, {WS_EPOCH}
        s_add_u32 {sT1}, {sEp}, 8
        v_mov_b32 {vP2}, {sT1}
        """)
        self.masked(p, 1, f"buffer_store_dword {vP2}, {vZero}, {sWS}, {sT0} offen sc1")

    def x_loads(self, pos, cls, after, prio):
        for a in (0, 2):
            g = Seq()
            g(f"s_add_u32 m0, {sPriv}, {R2 + (pos * 4 + a) * 1024}")
            fl = self.opt.get("x_nt", "")
            self.dma(g, vXs[a], sX, sR[pos], flags=fl)
            self.dma(g, vXs[a + 1], sX, sR[pos], 1024, flags=fl)
            self.bg(g, cls, after, prio)

    def setup2(self, p):
        row, t1, t2 = vT[0], vT[1], vT[2]
        p(f"""
        s_xor_b32 {snh}, {sth}, {skh}
        s_mov_b32 {sOneLo}, 0x00003f80
        s_mov_b32 {sOneHi}, 0x3f800000
        s_add_u32 {sj2}, {sj}, {self.opt.get("j2", 1)}
        s_and_b32 {sj2}, {sj2}, 7
        s_add_u32 {sja}, {sj}, {self.opt.get("ja", 2)}
        s_and_b32 {sja}, {sja}, 7
        s_mov_b32 {sOnes}, 0x3f803f80
        s_mov_b32 {sHi}, 0xffff0000
        s_lshl_b32 {sFlag}, {sc}, 3
        s_add_u32 {sFlag}, {sFlag}, {sj}
        s_lshl_b32 {sFlag}, {sFlag}, 2
        s_add_u32 {sFlag}, {sFlag}, {sw}
        s_lshl_b32 {sFlag}, {sFlag}, 7
        s_lshr_b32 {sT0}, {sc}, 3
        s_lshl_b32 {ssc}, {sT0}, 2
        s_and_b32 {sT0}, {sc}, 3
        s_add_u32 {ssc}, {ssc}, {sT0}
        {"" if self.opt.get("pair", 1) else f"s_lshr_b32 {ssc}, {sc}, 1"}
        s_bfe_u32 {sT0}, {sc}, {"0x10002" if self.opt.get("pair", 1) else "0x10000"}
        s_mul_i32 {sm}, {sT0}, 7
        s_add_u32 {sm}, {sm}, {sj}
        s_cmp_gt_u32 {sj}, {self.idle}
        s_cselect_b32 {sT0}, 1, 0
        s_sub_u32 {sm}, {sm}, {sT0}
        s_cmp_eq_u32 {sj}, {self.idle}
        s_cselect_b32 {sOob}, {WS_SIZE}, {WS_SIZE if self.opt.get("dbg_noP3") else 0}
        v_lshlrev_b32 {vL128}, 7, {vL}
        v_mul_u32_u24 {vW3s}, 3584, {row}
        v_add_u32 {vW3s}, {vW3s}, {vT[4]}
        v_add_u32 {vW3s1}, {8 * 3584 - 1024}, {vW3s}
        s_mul_i32 {sW3b}, {sw}, {128 * 3584}
        s_lshl_b32 {sT1}, {sm}, 8
        s_add_u32 {sW3b}, {sW3b}, {sT1}
        s_add_u32 {sW3b}, {sW3b}, {sOob}
        s_lshl_b32 {sT1}, {sja}, 7
        s_lshl_b32 {sT0}, {sc}, 16
        s_add_u32 {sT0}, {sT0}, {sT1}
        v_lshlrev_b32 {vKv}, 4, {t2}
        v_lshl_add_u32 {vKv}, {row}, 10, {vKv}
        v_add_u32 {vKv}, {sT0}, {vKv}
        v_subrev_u32 {vKh}, 8192, {vKv}
        """)

    def w12_loads(self, srd, pos, cls, after, prio, sWsrc=sWsrc):
        toks = []
        for i in (0, 2):
            src = f"s_lshl_b32 {sB}, {sR[pos]}, 9\ns_add_u32 {sB}, {sB}, {sWsrc}"
            if i:
                src += f"\ns_add_u32 {sB}, {sB}, 16384"
            g, tk = self.dma_pair(vWs, vWs1, srd, src, sWlds, R0 + pos * 8192 + i * 1024)
            self.bg(g, cls, after, prio)
            toks.append(tk)
        return toks

    def kv_loads(self, t, after, prio):
        g = Seq()
        g(f"s_mul_i32 {sB}, {sw}, 2304")
        g(f"s_add_u32 {sB}, {sB}, {A1R}")
        g(f"s_cmp_eq_u32 {sw}, 0")
        g(f"s_cselect_b32 m0, {KB}, {sB}")
        g(f"s_cselect_b32 {sB}, 0, {1 << 21}")
        self.dma(g, vKh, sK, sB, flags=self.opt.get("kv_nt", "nt"))
        g(f"""
        s_lshl_b32 {sB}, {sja}, 2
        s_add_u32 {sB}, {sB}, {sw}
        s_lshl_b32 {sB}, {sB}, 7
        v_and_b32 {vKh}, 15, {vL}
        v_lshl_add_u32 {vKh}, {vKh}, 3, {sB}
        """)
        g(f"global_load_dwordx2 {vr(V_SK, 2)}, {vKh}, {pSH}")
        self.bg(g, "fewcold", after, prio)
        t["kv"] = []
        for srd, base in ((sK, KB + 1024), (sV, VB)):
            g = Seq()
            g(f"s_lshl_b32 {sB}, {sw}, 11")
            g(f"s_add_u32 m0, {sB}, {base}")
            g(f"s_lshl_b32 {sB}, {sw}, 14")
            self.dma(g, vKv, srd, sB, flags=self.opt.get("kv_nt", "nt"))
            g(f"s_add_u32 {sB}, {sB}, 7168")
            t["kv"].append(self.dma(g, vKv, srd, sB, 1024, flags=self.opt.get("kv_nt", "nt")))
            self.bg(g, "cold", after, prio)

    def small_addrs(self, p):
        p(f"""
        s_lshl_b32 {sT0}, {sc}, 6
        s_lshl_b32 {sT1}, {sth}, 5
        s_add_u32 {sT0}, {sT0}, {sT1}
        s_lshl_b32 {sT0}, {sT0}, 10
        s_lshl_b32 {sT1}, {sj2}, 7
        s_lshl_b32 {sT2}, {snh}, 6
        s_add_u32 {sT1}, {sT1}, {sT2}
        v_and_b32 {vOut}, 31, {vL}
        v_lshrrev_b32 {vPv}, 5, {vL}
        v_lshlrev_b32 {vPv}, 4, {vPv}
        v_add_u32 {vPv}, {sT1}, {vPv}
        v_lshl_add_u32 {vOut}, {vOut}, 10, {vPv}
        v_add_u32 {vOut}, {sT0}, {vOut}
        s_lshl_b32 {sT0}, {sj}, 6
        s_lshl_b32 {sT1}, {sc}, 1
        s_add_u32 {sT0}, {sT0}, {sT1}
        s_add_u32 {sT0}, {sT0}, {sth}
        s_lshl_b32 {sT1}, {sT0}, 1
        v_mov_b32 {vPw}, {sT1}
        s_lshl_b32 {sT0}, {sT0}, 12
        s_lshl_b32 {sT1}, {skh}, 11
        s_add_u32 {sStld}, {sT0}, {sT1}
        """)

    def small_loads(self, after, prio_x, prio_s, after_s):
        nt = self.opt.get("ssm_nt", "nt")
        g = Seq()
        g(f"buffer_load_dwordx4 {vr(V_XRES, 4)}, {vOut}, {sX}, 0 offen")
        g(f"buffer_load_dwordx4 {vr(V_XRES + 4, 4)}, {vOut}, {sX}, 0 offen offset:32")
        self.bg(g, "mall", after, prio_x)
        g = Seq()
        g(f"global_load_dwordx4 {vr(V_X1P, 4)}, {vPv}, {pG}")
        g(f"global_load_dwordx4 {vr(V_X1P + 4, 4)}, {vPv}, {pG} offset:32")
        g(f"global_load_ushort {vr(V_SSM + 5)}, {vPw}, {pD}")
        self.bg(g, "few", after, prio_x)
        g = Seq()
        g(f"buffer_load_dwordx4 {vr(V_SSM, 4)}, {vL16}, {sSK}, {sStld} offen {nt}")
        g(f"buffer_load_dwordx4 {vr(V_SSM + 6, 4)}, {vL16}, {sSK}, {sStld} offen offset:1024 {nt}")
        self.bg(g, "cold", after_s, prio_s)
        g = Seq()
        g(f"buffer_load_dword {vr(V_SSM + 4)}, {vL16}, {sSK}, {sStld} offen offset:16 {nt}")
        g(f"buffer_load_dword {vr(V_SSM + 10)}, {vL16}, {sSK}, {sStld} offen offset:1040 {nt}")
        self.bg(g, "few", after_s, prio_s)

    def lds_addrs(self, p):
        a, b, c = vT[0], vT[1], vT[2]
        p(f"""
        v_lshrrev_b32 {a}, 5, {vL}
        v_lshlrev_b32 {vTr0}, 10, {a}
        v_lshlrev_b32 {vCsA}, 4, {a}
        v_bfe_u32 {a}, {vL}, 2, 2
        v_lshl_add_u32 {vTr0}, {a}, 7, {vTr0}
        v_lshrrev_b32 {a}, 1, {a}
        v_lshl_add_u32 {vTr0}, {a}, 6, {vTr0}
        v_bfe_u32 {a}, {vL}, 4, 1
        v_lshl_add_u32 {vTr0}, {a}, 5, {vTr0}
        v_and_b32 {a}, 1, {vL}
        v_lshl_add_u32 {vTr0}, {a}, 4, {vTr0}
        v_bfe_u32 {a}, {vL}, 1, 1
        v_lshl_add_u32 {vTr0}, {a}, 3, {vTr0}
        s_lshl_b32 {sT0}, {snh}, 6
        s_lshl_b32 {sT1}, {skh}, 15
        v_xor_b32 {vTrX}, {sT0}, {vTr0}
        v_add_u32 {vTrX}, {sT1}, {vTrX}
        v_xor_b32 {vTrY}, 64, {vTrX}
        v_bfe_u32 {a}, {vL}, 3, 2
        v_lshlrev_b32 {a}, 10, {a}
        v_and_b32 {b}, 7, {vL}
        v_lshl_add_u32 {a}, {b}, 7, {a}
        s_add_u32 {sT0}, {sPriv}, {R2}
        v_add_u32 {a}, {sT0}, {a}
        v_bfe_u32 {b}, {vL}, 1, 3
        v_lshrrev_b32 {c}, 5, {vL}
        v_xor_b32 {b}, {b}, {c}
        """)
        for s in range(4):
            p(f"v_xor_b32 {c}, {2 * s}, {b}")
            p(f"v_lshl_add_u32 {vXr[s]}, {c}, 4, {a}")
        p(f"""
        v_and_b32 {a}, 3, {vL}
        v_bfe_u32 {b}, {vL}, 2, 1
        v_bfe_u32 {c}, {vL}, 4, 1
        v_xor_b32 {b}, {b}, {c}
        v_or_b32 {a}, {a}, {b}
        v_cmp_eq_u32 vcc, 0, {a}
        v_mov_b32 {b}, {sOnes}
        v_cndmask_b32 {vr(V_ONES)}, 0, {b}, vcc
        v_cndmask_b32 {vr(V_ONES + 1)}, 0, {b}, vcc
        v_cndmask_b32 {vr(V_ONES + 2)}, 0, {b}, vcc
        v_cndmask_b32 {vr(V_ONES + 3)}, 0, {b}, vcc
        """)

    def dot_stats(self, p, regs, first):
        S, Q, S2, Q2 = vr(V_TMP), vr(V_TMP + 1), vr(V_TMP + 2), vr(V_TMP + 3)
        for n in range(0, len(regs), 2):
            a, b = vr(regs[n]), vr(regs[n + 1])
            if first and n == 0:
                p(f"v_dot2_f32_bf16 {S}, {a}, {sOnes}, 0")
                p(f"v_dot2_f32_bf16 {Q}, {a}, {a}, 0")
                p(f"v_dot2_f32_bf16 {S2}, {b}, {sOnes}, 0")
                p(f"v_dot2_f32_bf16 {Q2}, {b}, {b}, 0")
            else:
                p(f"v_dot2c_f32_bf16 {S}, {sOnes}, {a}")
                p(f"v_dot2c_f32_bf16 {Q}, {a}, {a}")
                p(f"v_dot2c_f32_bf16 {S2}, {sOnes}, {b}")
                p(f"v_dot2c_f32_bf16 {Q2}, {b}, {b}")

    def fold_stats(self, p):
        S, Q, S2, Q2 = vr(V_TMP), vr(V_TMP + 1), vr(V_TMP + 2), vr(V_TMP + 3)
        p(f"v_add_f32 {S}, {S}, {S2}")
        p(f"v_add_f32 {Q}, {Q}, {Q2}")
        p(f"v_mov_b32 {S2}, {S}")
        p(f"v_mov_b32 {Q2}, {Q}")
        p(f"v_permlane32_swap_b32 {S}, {S2}")
        p(f"v_permlane32_swap_b32 {Q}, {Q2}")
        p(f"v_add_f32 {S}, {S}, {S2}")
        p(f"v_add_f32 {Q}, {Q}, {Q2}")

    def p1(self, p, t):
        o = self.opt
        w1 = []
        rot = o.get("rot1", 3)
        for pos in range(4):
            cls = "cold" if pos < o.get("p1_ncold", 4 // (bin(rot).count("1") * 2 or 1)) else "l2"
            self.x_loads(pos, "p1" + cls, "go2" if pos else "go", 0)
            w1.append(self.w12_loads(sW1, pos, "p1" + cls, "go2" if pos else "go", 0))
        p.mark("go", limit=5000, depth=o.get("depth0", 8))
        p("s_nop 0")
        if o.get("fast_go", 1):
            self.more_kernargs(p)
        self.kernargs2(p)
        p.mark("go2")
        self.setup2(p)
        p(f"s_load_dword {sEp}, s[40:41], {WS_EPOCH}")
        self.lds_addrs(p)
        self.small_addrs(p)
        p(f"""
        v_and_b32 {vT[0]}, 31, {vL}
        s_lshl_b32 {sT0}, {sw}, 8
        s_add_u32 {sT0}, {sT0}, {ST_STAT}
        v_lshl_add_u32 {vT[1]}, {vT[0]}, 3, {sT0}
        v_xor_b32 {vPoll}, 512, {vT[1]}
        s_add_u32 {sT0}, {sPriv}, {R2}
        v_add_u32 {vT[2]}, {sT0}, {vL16}
        v_xor_b32 {vT[5]}, 32768, {vT[2]}
        s_lshl_b32 {sT0}, {snh}, 8
        s_lshl_b32 {sT1}, {skh}, 7
        s_add_u32 {sT1}, {sT1}, {sT0}
        s_add_u32 {sT1}, {sT1}, {ST_CS}
        v_lshl_add_u32 {vT[3]}, {vT[0]}, 2, {sT1}
        s_add_u32 {sT0}, {sT0}, {ST_CS}
        v_add_u32 {vT[4]}, {sT0}, {vCsA}
        s_lshl_b32 {sT0}, {sc}, 1
        s_add_u32 {sT0}, {sT0}, {sth}
        s_lshl_b32 {sT0}, {sT0}, 15
        s_lshl_b32 {sT1}, {sj}, 12
        s_add_u32 {sT1}, {sT0}, {sT1}
        s_lshl_b32 {sT2}, {snh}, 11
        s_add_u32 {sH2st}, {sT1}, {sT2}
        s_lshl_b32 {sT1}, {skh}, 14
        s_add_u32 {sT0}, {sT0}, {sT1}
        s_add_u32 {sX1ld}, {sT0}, {WS_H}
        """)
        self.w4_offsets(p)
        p(f"s_sub_u32 {sT0}, {sj2}, {sj}")
        p(f"s_lshl_b32 {sT0}, {sT0}, 7")
        p(f"s_add_u32 {sW2src}, {sWsrc}, {sT0}")
        self.warm_flags(p)
        p.mark("setup")
        self.stamp(p, "setup")
        self.kv_loads(t, "setup", 1)
        self.touch("w2", o.get("touch_w2", "setup"), 2)
        if o.get("slow_w2", 1):
            self.touch_slow("w2", "setup", 2)
        if o.get("slow_w4", 1):
            self.touch_slow("w4", o.get("slow_w4_at", "conv"), 7)
        self.small_loads("setup", 3, 4, o.get("ssm_after", "setup"))
        self.touch("w3", o.get("touch_w3", "setup"), 5)
        self.touch("w4", o.get("touch_w4", "conv"), 6)
        accX, accY, cs = V_ACC, V_ACC + 16, V_ACC + 32
        AB = [V_A, V_B + 32]

        def reads(q, pos):
            q.wait(vm=w1[pos][-1])
            q("s_barrier")
            q.mark(f"P1b{pos}")
            for s in range(4):
                q(f"ds_read_b128 {vr(V_B + 16 * (pos & 1) + 4 * s, 4)}, {vXr[s]} offset:{pos * 4096}")
            for s in range(4):
                self.a_reads(q, AB[pos & 1] + 8 * s + 4, vTrY, pos * 8192 + s * 2048)
            for s in range(4):
                self.a_reads(q, AB[pos & 1] + 8 * s, vTrX, pos * 8192 + s * 2048)

        reads(p, 0)
        self.stamp(p, "x0 landed")
        for pos in range(4):
            B0, A0 = V_B + 16 * (pos & 1), AB[pos & 1]
            self.dot_stats(p, list(range(B0, B0 + 16)), pos == 0)
            q = Seq()
            for s in range(4):
                q(f"v_mfma_f32_32x32x16_bf16 {vr(accY, 16)}, {vr(A0 + 8 * s + 4, 4)}, {vr(B0 + 4 * s, 4)}, {'0' if pos + s == 0 else vr(accY, 16)}")
            for s in range(4):
                q(f"v_mfma_f32_16x16x32_bf16 {vr(cs, 4)}, {vr(V_ONES, 4)}, {vr(A0 + 8 * s, 4)}, {'0' if pos + s == 0 else vr(cs, 4)}")
            for s in range(4):
                q(f"v_mfma_f32_32x32x16_bf16 {vr(accX, 16)}, {vr(A0 + 8 * s, 4)}, {vr(B0 + 4 * s, 4)}, {'0' if pos + s == 0 else vr(accX, 16)}")
            plan = []
            if pos < 3:
                r = Seq()
                reads(r, pos + 1)
                plan += spread(split(r), o.get("p1_rd0", 2), 11)
            if pos == 3:
                st = Seq()
                self.fold_stats(st)
                st(f"ds_write_b64 {vT[1]}, {vr(V_TMP, 2)}")
                wr = Seq()
                for g in range(4):
                    wr(f"ds_write_b128 {vT[2]}, {vr(accY + 4 * g, 4)} offset:{g * 1024}")
                wr(f"ds_write_b32 {vT[3]}, {vr(cs)}")
                plan += spread(split(st), 1, 4) + spread(split(wr), 9, 12)
            p.extend(weave(q, plan + self.dense(f"a{pos}_", (0, 4, 8, 12))))
        p.mark(force=9)
        self.stamp(p, "p1 mfma")
        p.wait(lg0=True)
        p("s_barrier")
        c0, c1 = V_A, V_A + 16
        S, Q, S2, Q2 = vr(V_TMP), vr(V_TMP + 1), vr(V_TMP + 2), vr(V_TMP + 3)
        p(f"ds_read_b64 {vr(V_TMP + 2, 2)}, {vPoll}")
        for g in range(4):
            p(f"ds_read_b128 {vr(accY + 4 * g, 4)}, {vT[5]} offset:{g * 1024}")
        for g in range(4):
            p(f"ds_read_b128 {vr(c0 + 4 * g, 4)}, {vT[4]} offset:{g * 32}")
            p(f"ds_read_b128 {vr(c1 + 4 * g, 4)}, {vT[4]} offset:{128 + g * 32}")
        p.mark("B1", limit=o.get("lim_g1", 0), depth=o.get("depth", 10))
        p(f"v_add_f32 {S}, {S}, {S2}")
        p(f"v_add_f32 {Q}, {Q}, {Q2}")
        self.ln_consts(p, S, Q)
        for x in range(0, 16, 2):
            p(f"v_pk_add_f32 {vr(accX + x, 2)}, {vr(accX + x, 2)}, {vr(accY + x, 2)}")
        for x in range(0, 16, 2):
            p(f"v_pk_add_f32 {vr(c0 + x, 2)}, {vr(c0 + x, 2)}, {vr(c1 + x, 2)}")
        out = V_TMP + 8
        self.gelu_packed(p, accX, c0, V_TMP + 16, out)
        p(f"s_add_u32 {sT0}, {sH2st}, {WS_H}")
        s0 = p(f"buffer_store_dwordx4 {vr(out, 4)}, {vL16}, {sWS}, {sT0} offen sc1")
        s1 = p(f"buffer_store_dwordx4 {vr(out + 4, 4)}, {vL16}, {sWS}, {sT0} offen offset:1024 sc1")
        t["h"] = [s0, s1]
        p.mark("h_st", limit=o.get("lim_w2", 2000))
        self.stamp(p, "h stored")
        t["w2"] = []
        for pos in range(4):
            early = pos < o.get("w2_early", 0)
            t["w2"] += self.w12_loads(sW2, pos, "mall", f"P1b{pos + 2}" if early else "B1", o.get("prio_w2e", 3.5) if early else 11, sW2src)

    def h_flag(self, p, t):
        self.publish(p, t["h"], 1, FLAG0)
        if self.opt.get("rb_h", 0):
            p(f"s_add_u32 {sT0}, {sH2st}, {WS_H}")
            self.masked(p, "0xffff", f"buffer_load_dword a255, {vL128}, {sWS}, {sT0} offen sc1").note = "few"
        p.mark("h_flag", limit=self.opt.get("lim_hflag", 1500))
        self.stamp(p, "h flag")

    def a1(self, p, t):
        kk, vv, o = V_B, V_B + 12, V_TMP
        sk = V_SK
        a, b = vT[0], vT[1]
        p(f"""
        v_lshrrev_b32 {a}, 4, {vL}
        v_lshlrev_b32 {a}, 11, {a}
        v_bfe_u32 {b}, {vL}, 2, 2
        v_lshl_add_u32 {a}, {b}, 7, {a}
        v_and_b32 {b}, 3, {vL}
        v_lshl_add_u32 {a}, {b}, 3, {a}
        s_lshl_b32 {sT0}, {sw}, 5
        s_add_u32 {sT0}, {sT0}, {KB}
        v_add_u32 {a}, {sT0}, {a}
        """)
        p.wait(vm=t["kv"])
        p("s_barrier")
        p.mark("Bkv")
        for rd in range(5):
            p(f"ds_read_b64_tr_b16 {vr(kk + 2 * rd, 2)}, {a} offset:{(4 + 4 * rd) * 128}")
        for rd in range(4):
            p(f"ds_read_b64_tr_b16 {vr(vv + 2 * rd, 2)}, {a} offset:{(VB - KB) + 4 * rd * 128}")
        c10, c32, c0, c21, c3 = V_A, V_A + 1, V_A + 2, V_A + 3, V_A + 4
        p(f"v_alignbit_b32 {vr(c10)}, {vr(sk)}, {vr(sk)}, 16")
        p(f"v_alignbit_b32 {vr(c32)}, {vr(sk + 1)}, {vr(sk + 1)}, 16")
        p(f"v_and_b32 {vr(c0)}, 0xffff, {vr(sk)}")
        p(f"v_and_b32 {vr(c3)}, {sHi}, {vr(sk + 1)}")
        p(f"v_and_b32 {vr(c21)}, 0xffff, {vr(sk + 1)}")
        p(f"v_and_or_b32 {vr(c21)}, {vr(sk)}, {sHi}, {vr(c21)}")
        p(f"""
        v_and_b32 {vT[3]}, 3, {vL}
        v_bfe_u32 {vT[2]}, {vL}, 2, 1
        v_lshlrev_b32 {vT[3]}, 9, {vT[3]}
        v_lshl_add_u32 {vPoll}, {vT[2]}, 8, {vT[3]}
        s_lshl_b32 {sC}, {sc}, 12
        s_lshl_b32 {sT1}, {skh}, 11
        s_add_u32 {sC}, {sC}, {sT1}
        s_lshl_b32 {sT1}, {sth}, 7
        s_add_u32 {sC}, {sC}, {sT1}
        """)
        f = V_ACC
        q = Seq()
        for i in range(8):
            q(f"v_dot2_f32_bf16 {vr(f + 2 * i)}, {vr(kk + i)}, {vr(c3)}, 0")
            q(f"v_dot2_f32_bf16 {vr(f + 2 * i + 1)}, {vr(kk + i + 1)}, {vr(c32)}, 0")
        for i in range(8):
            q(f"v_dot2_f32_bf16 {vr(f + 2 * i)}, {vr(kk + i + 1)}, {vr(c21)}, {vr(f + 2 * i)}")
            q(f"v_dot2_f32_bf16 {vr(f + 2 * i + 1)}, {vr(kk + i + 2)}, {vr(c10)}, {vr(f + 2 * i + 1)}")
        for i in range(8):
            q(f"v_dot2_f32_bf16 {vr(f + 2 * i)}, {vr(kk + i + 2)}, {vr(c0)}, {vr(f + 2 * i)}")
        for i in range(8):
            q(f"v_lshlrev_b32 {vr(f + 16 + 2 * i)}, 16, {vr(vv + i)}")
            q(f"v_and_b32 {vr(f + 17 + 2 * i)}, {sHi}, {vr(vv + i)}")
        for i in range(8):
            q(f"v_pk_mul_f32 {vr(f + 2 * i, 2)}, {vr(f + 2 * i, 2)}, {vr(f + 16 + 2 * i, 2)}")
        for i in range(8):
            q(f"v_cvt_pk_bf16_f32 {vr(o + i)}, {vr(f + 15 - 2 * i)}, {vr(f + 14 - 2 * i)}")
        mode = self.opt.get("a1_first", 60)
        if mode > 1:
            hf = Seq()
            self.h_flag(hf, t)
            q = weave(q, [(mode, hf)], kinds=("valu",))
        p.extend(q)
        if mode == 0:
            self.h_flag(p, t)
        p(f"""
        v_and_b32 {a}, 15, {vL}
        v_mul_u32_u24 {a}, 144, {a}
        v_lshrrev_b32 {b}, 4, {vL}
        v_sub_u32 {b}, 3, {b}
        v_lshl_add_u32 {a}, {b}, 5, {a}
        s_mul_i32 {sT0}, {sw}, 2304
        s_add_u32 {sT0}, {sT0}, {A1R}
        v_add_u32 {a}, {sT0}, {a}
        """)
        p(f"ds_write_b128 {a}, {vr(o, 4)}")
        w2 = p(f"ds_write_b128 {a}, {vr(o + 4, 4)} offset:16")
        p(f"""
        v_lshrrev_b32 {a}, 3, {vL}
        v_and_b32 {b}, 7, {vL}
        v_lshlrev_b32 {b}, 4, {b}
        v_lshl_add_u32 {vT[2]}, {a}, 12, {b}
        v_mul_u32_u24 {a}, 144, {a}
        v_add3_u32 {a}, {a}, {b}, {sT0}
        s_lshl_b32 {sT0}, {sja}, 18
        s_lshl_b32 {sT1}, {sw}, 16
        s_add_u32 {sT0}, {sT0}, {sT1}
        s_sub_u32 {sT1}, 31, {sc}
        s_lshl_b32 {sT1}, {sT1}, 7
        s_add_u32 {sT0}, {sT0}, {sT1}
        s_add_u32 {sT0}, {sT0}, {WS_KVT}
        s_add_u32 {sT1}, {sT0}, 32768
        """)
        p.wait(lg=w2)
        p(f"ds_read_b128 {vr(o + 8, 4)}, {a}")
        p(f"ds_read_b128 {vr(o + 12, 4)}, {a} offset:{8 * 144}")
        s0 = p(f"buffer_store_dwordx4 {vr(o + 8, 4)}, {vT[2]}, {sWS}, {sT0} offen sc1")
        s1 = p(f"buffer_store_dwordx4 {vr(o + 12, 4)}, {vT[2]}, {sWS}, {sT1} offen sc1")
        t["kvt"] = [s0, s1]
        self.stamp(p, "a1 done")
        if self.opt.get("a1_first", 60) == 1:
            self.h_flag(p, t)

    def w3_loads(self, line, lds, after, prio, blocks=range(0, 16, 2)):
        toks = []
        for i in blocks:
            g, tk = self.dma_pair(vW3s, vW3s1, sW3, f"s_add_u32 {sB}, {sW3b}, {line * 128 + i * 8 * 3584}", sPriv, lds + i * 1024)
            self.bg(g, "mall", after, prio)
            toks.append(tk)
        return toks

    def w4_offsets(self, p):
        p(f"s_mul_i32 {sT0}, {sw}, 7")
        p(f"s_lshl_b32 {sT2}, {sj2}, 7")
        if self.opt.get("dbg_now4"):
            p(f"s_add_u32 {sT2}, {sT2}, {WS_SIZE}")
        for u in range(7):
            p(f"""
            s_add_u32 {sT1}, {sT0}, {u}
            s_lshr_b32 {sU[u]}, {sT1}, 1
            s_lshl_b32 {sU[u]}, {sU[u]}, 17
            s_and_b32 {sT1}, {sT1}, 1
            s_lshl_b32 {sT1}, {sT1}, 14
            s_add_u32 {sU[u]}, {sU[u]}, {sT1}
            s_add_u32 {sU[u]}, {sU[u]}, {sT2}
            """)

    def w4_loads(self, piece, lds, after, prio):
        toks = []
        for u in range(7):
            oob = WS_SIZE if piece == 3 and u < self.opt.get("dbg_p3", 0) else 0
            g, tk = self.dma_pair(vWs, vWs1, sW4, f"s_add_u32 {sB}, {sU[u]}, {piece * 32768 + oob}", sPriv, lds + u * 2048)
            self.bg(g, "mall", after, prio)
            toks.append(tk)
        return toks

    def w4_park(self, piece, areg, after, prio):
        for u in range(7):
            g = Seq()
            g(f"s_add_u32 {sB}, {sU[u]}, {piece * 32768}")
            g(f"buffer_load_dwordx4 {ar(areg + 8 * u, 4)}, {vWs}, {sW4}, {sB} offen")
            g(f"buffer_load_dwordx4 {ar(areg + 8 * u + 4, 4)}, {vWs1}, {sW4}, {sB} offen offset:1024")
            self.bg(g, "mall", after, prio)

    def w4_unpark_groups(self, areg, vaddr):
        groups, toks = [], []
        for n in range(14):
            g = Seq()
            toks.append(g(f"ds_write_b128 {vaddr}, {ar(areg + 4 * n, 4)} offset:{n * 1024}"))
            groups.append(g)
        return groups, toks

    def gate_partial(self, p):
        g, g2 = vr(V_TMP), vr(V_TMP + 1)
        for i in range(0, 8, 2):
            p(f"v_dot2_f32_bf16 {g}, {vr(V_XRES + i)}, {vr(V_X1P + i)}, {'0' if i == 0 else g}")
            p(f"v_dot2_f32_bf16 {g2}, {vr(V_XRES + i + 1)}, {vr(V_X1P + i + 1)}, {'0' if i == 0 else g2}")
        p(f"""
        s_lshl_b32 {sT3}, {sc}, 1
        s_add_u32 {sT3}, {sT3}, {sth}
        s_lshl_b32 {sD}, {sT3}, 11
        s_lshl_b32 {sT1}, {sj2}, 1
        s_add_u32 {sT1}, {sT1}, {snh}
        s_lshl_b32 {sT1}, {sT1}, 7
        s_add_u32 {sD}, {sD}, {sT1}
        v_lshlrev_b32 {vT[5]}, 2, {vL}
        s_add_u32 {sD}, {sD}, {WS_GATE}
        """)
        p(f"v_add_f32 {g}, {g}, {g2}")
        self.half_sum(p, g, g2)
        self.masked(p, "0xffffffff", f"buffer_store_dword {g}, {vT[5]}, {sWS}, {sD} offen sc1")

    def stage_conv_k(self, p):
        a, b = vT[0], vT[1]
        d = V_SSM
        o = V_TMP + 8
        p(f"""
        s_mul_i32 {sT0}, {sth}, {KCH}
        s_add_u32 {sT0}, {sT0}, {CK}
        s_lshl_b32 {sT1}, {skh}, 11
        s_add_u32 {sT1}, {sT1}, {sT0}
        v_add_u32 {a}, {sT1}, {vL16}
        v_cmp_eq_u32 vcc, 63, {vL}
        s_cmp_eq_u32 {skh}, 1
        s_cselect_b64 vcc, vcc, 0
        v_cndmask_b32 {vr(d + 10)}, {vr(d + 10)}, {vZero}, vcc
        """)
        p(f"ds_write_b128 {a}, {vr(d, 4)} offset:64")
        p(f"ds_write_b128 {a}, {vr(d + 6, 4)} offset:{64 + 1024}")
        for i in range(4):
            p(f"v_alignbit_b32 {vr(o + i)}, {vr(d + i + 1)}, {vr(d + i)}, 16")
            p(f"v_alignbit_b32 {vr(o + 4 + i)}, {vr(d + 7 + i)}, {vr(d + 6 + i)}, 16")
        p(f"ds_write_b128 {a}, {vr(o, 4)} offset:{KCOPY + 64}")
        p(f"ds_write_b128 {a}, {vr(o + 4, 4)} offset:{KCOPY + 64 + 1024}")
        p(f"""
        s_mul_i32 {sT1}, {skh}, {64 + 4096}
        s_add_u32 {sT1}, {sT1}, {sT0}
        v_and_b32 {b}, 15, {vL}
        v_lshl_add_u32 {a}, {b}, 2, {sT1}
        v_readfirstlane_b32 {sT2}, {vr(d)}
        s_lshl_b32 {sT2}, {sT2}, 16
        s_cmp_eq_u32 {skh}, 0
        s_cselect_b32 {sT2}, {sT2}, 0
        v_cmp_eq_u32 vcc, 15, {b}
        v_mov_b32 {b}, {sT2}
        v_cndmask_b32 {b}, 0, {b}, vcc
        """)
        p(f"ds_write_b32 {a}, {vZero}")
        p(f"ds_write_b32 {a}, {b} offset:{KCOPY}")
        p(f"""
        s_mul_i32 {sT0}, {sth}, {UCH}
        s_add_u32 {sT0}, {sT0}, {CU}
        s_lshl_b32 {sT1}, {skh}, 8
        s_add_u32 {sT1}, {sT1}, {sT0}
        v_lshl_add_u32 {a}, {vL}, 2, {sT1}
        v_and_b32 {b}, 7, {vL}
        v_lshl_add_u32 {b}, {b}, 2, {sT0}
        """)
        p(f"ds_write_b32 {a}, {vZero} offset:{32 + 4096}")
        p(f"ds_write_b32 {a}, {vZero} offset:{32 + 4096 + 256}")
        p(f"ds_write_b32 {b}, {vZero}")

    def p2(self, p, t):
        o = self.opt
        self.gate_partial(p)
        for pos in range(4):
            p(f"s_lshl_b32 {sQ[pos]}, {sR[pos]}, 5")
            p(f"s_add_u32 {sQ[pos]}, {sQ[pos]}, {sX1ld}")
        self.publish(p, t["kvt"], 1, FLAG1)
        p.wait(vm=t["w2"][o.get("hpoll_wait", 7)])
        self.poll_issue(p, vPv, vPoll, sC)
        self.poll_check(p, vPv, vPoll, sC, 1)
        p.mark("h_seen", depth=o.get("depth_h", 10), limit=self.opt.get("lim_def", 1300))
        self.stamp(p, "h seen")
        for pos in range(4):
            for s in (0, 2):
                g = Seq()
                for x in (s, s + 1):
                    g(f"buffer_load_dwordx4 {vr(V_B + 16 * pos + 4 * x, 4)}, {vL16}, {sWS}, {sQ[pos]} offen offset:{x * 1024} sc1")
                self.bg(g, "hand", "h_seen", 10)
        p(f"""
        v_and_b32 {vKv}, 31, {vL}
        v_lshlrev_b32 {vKv}, 12, {vKv}
        s_sub_u32 {sD}, {sj}, {self.opt.get("ja", 2)}
        s_and_b32 {sD}, {sD}, 7
        s_lshl_b32 {sD}, {sD}, 9
        s_lshr_b32 {sT3}, {sc}, 3
        s_lshl_b32 {sT3}, {sT3}, 7
        s_add_u32 {sD}, {sD}, {sT3}
        s_add_u32 {sD}, {sD}, {FLAG1}
        s_add_u32 {sT3}, {sPriv}, {EX2}
        v_add_u32 {vT[2]}, {sT3}, {vL16}
        v_xor_b32 {vT[3]}, 32768, {vT[2]}
        s_sub_u32 {sT0}, {sj2}, {sj}
        s_lshl_b32 {sT0}, {sT0}, 12
        s_add_u32 {sT0}, {sT0}, {sH2st}
        s_add_u32 {sH2st}, {sT0}, {WS_X1}
        s_lshl_b32 {sT3}, {sc}, 1
        s_add_u32 {sT3}, {sT3}, {sth}
        s_lshl_b32 {sC}, {sT3}, 12
        s_lshl_b32 {sT1}, {sj2}, 9
        s_add_u32 {sC}, {sC}, {sT1}
        s_lshl_b32 {sT1}, {snh}, 8
        s_add_u32 {sC}, {sC}, {sT1}
        s_add_u32 {sC}, {sC}, {WS_STATS}
        v_lshlrev_b32 {vKh}, 3, {vL}
        """)
        p.wait(vm=t["w2"], lg0=True)
        p("s_barrier")
        p.mark("Bp2")
        t["l0"] = self.w3_loads(0, R2, o.get("l0_after", "Bp2"), 30, range(0, 12, 2)) + self.w3_loads(0, R2, "conv", 29, (12, 14))
        accX, accY = V_ACC, V_ACC + 16
        q = Seq()

        for ks in range(3):
            self.a_reads(q, V_A + 8 * ks + 4, vTrY, ks * 2048)
            self.a_reads(q, V_A + 8 * ks, vTrX, ks * 2048)
        self.stage_conv_k(q)
        for ks in range(13):
            z = ks == 0
            A, B, N = V_A + 8 * (ks % 4), V_B + 4 * ks, V_A + 8 * ((ks + 3) % 4)
            q(f"v_mfma_f32_32x32x16_bf16 {vr(accY, 16)}, {vr(A + 4, 4)}, {vr(B, 4)}, {'0' if z else vr(accY, 16)}")
            self.a_reads(q, N + 4, vTrY, (ks + 3) * 2048)
            q(f"v_mfma_f32_32x32x16_bf16 {vr(accX, 16)}, {vr(A, 4)}, {vr(B, 4)}, {'0' if z else vr(accX, 16)}")
            self.a_reads(q, N, vTrX, (ks + 3) * 2048)
        for ks in range(13, 16):
            q(f"v_mfma_f32_32x32x16_bf16 {vr(accY, 16)}, {vr(V_A + 8 * (ks % 4) + 4, 4)}, {vr(V_B + 4 * ks, 4)}, {vr(accY, 16)}")
        for ks in range(13, 16):
            q(f"v_mfma_f32_32x32x16_bf16 {vr(accX, 16)}, {vr(V_A + 8 * (ks % 4), 4)}, {vr(V_B + 4 * ks, 4)}, {vr(accX, 16)}")
        pub, pl, lim = Seq(), Seq(), Seq()
        lim.mark(limit=o.get("lim_p2", 1300))
        self.poll_issue(pl, vPw, vKv, sD)
        p.extend(weave(q, [(16, lim), (o.get("kvt_poll_at", 26), Seq() if o.get("kvt_late", 0) else pl)] + self.dense("a5_", (0, 1, 8, 16, 24, 32))))
        for g in range(4):
            p(f"ds_write_b128 {vT[2]}, {vr(accY + 4 * g, 4)} offset:{g * 1024}")
        p.mark(limit=o.get("lim_e2", 1100))
        self.stamp(p, "p2 mfma")
        p.wait(lg0=True)
        p("s_barrier")
        p.mark("B2")
        t["l1"] = self.w3_loads(1, R0, "B2", 31)
        for g in range(4):
            p(f"ds_read_b128 {vr(accY + 4 * g, 4)}, {vT[3]} offset:{g * 1024}")
        for i in range(8):
            p(f"v_dot2c_f32_bf16 {vr(accX + 2 * i)}, {sOneLo}, {vr(V_XRES + i)}")
            p(f"v_dot2c_f32_bf16 {vr(accX + 2 * i + 1)}, {sOneHi}, {vr(V_XRES + i)}")
        for x in range(0, 16, 2):
            p(f"v_pk_add_f32 {vr(accX + x, 2)}, {vr(accX + x, 2)}, {vr(accY + x, 2)}")
        for i in range(8):
            p(f"v_cvt_pk_bf16_f32 {vr(V_X1P + i)}, {vr(accX + 2 * i)}, {vr(accX + 2 * i + 1)}")
        if o.get("rb_x1"):
            p(f"s_mov_b32 {sIdle}, {sH2st}")
        s0 = p(f"buffer_store_dwordx4 {vr(V_X1P, 4)}, {vL16}, {sWS}, {sH2st} offen sc1")
        s1 = p(f"buffer_store_dwordx4 {vr(V_X1P + 4, 4)}, {vL16}, {sWS}, {sH2st} offen offset:1024 sc1")
        self.dot_stats(p, list(range(V_X1P, V_X1P + 8)), True)
        self.fold_stats(p)
        s2 = self.masked(p, "0xffffffff", f"buffer_store_dwordx2 {vr(V_TMP, 2)}, {vKh}, {sWS}, {sC} offen sc1")
        t["x1"] = [s0, s1, s2]
        self.stamp(p, "x1 stored")

    def conv(self, p, t):
        o = self.opt
        p(f"""
        s_lshl_b32 {sT0}, {sj}, 6
        s_lshl_b32 {sT1}, {sc}, 1
        s_add_u32 {sT0}, {sT0}, {sT1}
        s_add_u32 {sT0}, {sT0}, {sth}
        s_lshl_b32 {sT0}, {sT0}, 12
        s_lshl_b32 {sT1}, {skh}, 11
        s_add_u32 {sT0}, {sT0}, {sT1}
        s_add_u32 {sT0}, {sT0}, {WS_KVT}
        s_mul_i32 {sT2}, {sth}, {UCH}
        s_add_u32 {sT1}, {sT1}, {sT2}
        """)
        def kvt_part(p):
            p(f"s_mov_b32 {sT0}, {sYld}")
            p(f"s_mov_b32 {sT1}, {sYlds}")
            self.poll_check(p, vPw, vKv, sD, 1)
            self.stamp(p, "kvt seen")
            g = Seq()
            g(f"s_add_u32 m0, {sT1}, {CU + 32}")
            self.dma(g, vL16, sWS, sT0, 0, "sc1").note = "hand"
            u = self.dma(g, vL16, sWS, sT0, 1024, "sc1")
            u.note = "hand"
            p.atomic(g)
            return u

        late = o.get("kvt_late", 0)
        p(f"s_mov_b32 {sYld}, {sT0}")
        p(f"s_mov_b32 {sYlds}, {sT1}")
        if late:
            self.poll_issue(p, vPw, vKv, sD)
        else:
            u = kvt_part(p)
        p.mark("x1_st", limit=o.get("lim_conv", 1500), depth=o.get("depth2", 10))
        vA = [vXs[1], vXs[2], vXs[3], vXr[0], vXr[1]]
        vB = vXr[2]
        a, b = vT[0], vT[1]
        p(f"""
        v_and_b32 {a}, 15, {vL}
        v_lshrrev_b32 {b}, 4, {vL}
        v_lshlrev_b32 {b}, 4, {b}
        s_lshl_b32 {sT1}, {skh}, 8
        s_add_u32 {sT2}, {sT2}, {sT1}
        s_add_u32 {sT2}, {sT2}, {CU + 480}
        v_lshlrev_b32 {vB}, 5, {a}
        v_sub_u32 {vB}, {b}, {vB}
        v_add_u32 {vB}, {sT2}, {vB}
        v_add_u32 {vA[0]}, 1, {a}
        v_and_b32 {vA[0]}, 30, {vA[0]}
        v_lshl_add_u32 {vA[0]}, {vA[0]}, 1, {b}
        v_and_b32 {a}, 1, {a}
        v_xor_b32 {a}, 1, {a}
        v_mul_u32_u24 {a}, {KCOPY}, {a}
        s_mul_i32 {sT0}, {sth}, {KCH}
        s_add_u32 {sT0}, {sT0}, {sT1}
        s_add_u32 {sT0}, {sT0}, {CK}
        v_add3_u32 {vA[0]}, {vA[0]}, {a}, {sT0}
        """)
        for i in range(1, 4):
            p(f"v_add_u32 {vA[i]}, {1024 * i}, {vA[0]}")
        p(f"s_cmp_eq_u32 {skh}, 0")
        p(f"s_cselect_b32 {sT0}, 4096, 0")
        p(f"v_add_u32 {vA[4]}, {sT0}, {vA[0]}")
        p(f"""
        v_and_b32 {vT[3]}, 7, {vL}
        v_bfe_u32 {vT[4]}, {vL}, 3, 1
        v_lshlrev_b32 {vT[3]}, 9, {vT[3]}
        v_lshl_add_u32 {vPoll}, {vT[4]}, 8, {vT[3]}
        s_lshl_b32 {sT2}, {ssc}, 1
        s_add_u32 {sT2}, {sT2}, {skh}
        s_lshl_b32 {sC}, {sT2}, 12
        s_lshl_b32 {sT1}, {sth}, 7
        s_add_u32 {sC}, {sC}, {sT1}
        s_mul_i32 {sH2st}, {sT2}, 229376
        s_lshl_b32 {sT1}, {sm}, 12
        s_add_u32 {sH2st}, {sH2st}, {sT1}
        s_lshl_b32 {sT1}, {sth}, 10
        s_add_u32 {sH2st}, {sH2st}, {sT1}
        s_add_u32 {sH2st}, {sH2st}, {WS_H2}
        s_add_u32 {sH2st}, {sH2st}, {sOob}
        s_lshl_b32 {sT2}, {ssc}, 2
        s_add_u32 {sT2}, {sT2}, {sw}
        s_lshl_b32 {sX1ld}, {sT2}, 15
        s_add_u32 {sX1ld}, {sX1ld}, {WS_X1}
        s_add_u32 {sX1ld}, {sX1ld}, {sOob}
        s_lshl_b32 {sStld}, {sT2}, 12
        s_add_u32 {sStld}, {sStld}, {WS_STATS}
        s_add_u32 {sStld}, {sStld}, {sOob}
        s_add_u32 {srot}, {sw}, {sj}
        s_and_b32 {srot}, {srot}, 3
        """)
        self.set_rot(p)
        for pos in range(4):
            p(f"s_lshl_b32 {sQ[pos]}, {sR[pos]}, 6")
            p(f"s_add_u32 {sQ[pos]}, {sQ[pos]}, {sX1ld}")
            p(f"s_add_u32 {sV4[pos]}, {sQ[pos]}, 4096")
        if not late:
            self.late_addrs(p)
        self.publish(p, t["x1"], 2, FLAG0)
        self.readback(p, "rb_x1", f"buffer_load_dword a255, {vL128}, {sWS}, {sIdle} offen sc1")
        if late:
            u = kvt_part(p)
            self.late_addrs(p)
        p.mark("x1_flag")
        self.stamp(p, "x1 flag")
        p.wait(vm=u, lg0=True)
        p("s_barrier")
        p.mark("conv")
        self.stamp(p, "conv start")
        self.w4_park(1, A_PARK, o.get("park2_after", "conv2"), 40)
        acc, AF = V_ACC + 32, V_A
        BF = [V_B, V_B + 32]
        BX = V_TMP
        q = Seq()
        order = (0, 7, 1, 6, 2, 5, 3, 4)
        rows = [(0, 8)] + [(rho, aa) for rho in range(4) for aa in order]

        def rdA(n):
            rho, aa = rows[n]
            of = (64 * rho + 512 * (aa & 1)) // 4
            q(f"ds_read2_b32 {vr(AF + 4 * (n % 8), 2)}, {vA[aa >> 1]} offset0:{of} offset1:{of + 1}")
            q(f"ds_read2_b32 {vr(AF + 4 * (n % 8) + 2, 2)}, {vA[aa >> 1]} offset0:{of + 2} offset1:{of + 3}")

        def rdB(bb, rho):
            d = BX if bb < 0 else BF[rho & 1] + 4 * bb
            q(f"ds_read_b128 {vr(d, 4)}, {vB} offset:{3584 - 512 * bb + 64 * rho}")

        rdA(0)
        rdB(-1, 0)
        rdA(1)
        for bb in range(7, 1, -1):
            rdB(bb, 0)
        late = [lambda: rdB(1, 0), lambda: rdB(0, 0), lambda: rdA(2), lambda: rdA(3), lambda: rdA(4)]
        started = set()
        for n, (rho, aa) in enumerate(rows):
            bs = list(range(7 - aa, -1, -1)) + ([-1] if rho == 0 and aa > 0 else [])
            for k, bb in enumerate(bs):
                d = vr(acc + 4 * (aa + bb), 4)
                B = BX if bb < 0 else BF[rho & 1] + 4 * bb
                q(f"v_mfma_f32_16x16x32_bf16 {d}, {vr(AF + 4 * (n % 8), 4)}, {vr(B, 4)}, {d if aa + bb in started else '0'}")
                started.add(aa + bb)
                if late:
                    late.pop(0)()
                if k == 0 and n + 5 < len(rows):
                    rdA(n + 5)
                if k == len(bs) // 2 and n > 0 and rho < 3:
                    rdB(7 - (n - 1) % 8, rho + 1)
        pl, pk, m2 = Seq(), Seq(), Seq()
        pl.mark(limit=o.get("lim_x1poll", 1400))
        pp = o.get("x1_poll_at", 80)
        pl2 = Seq()
        self.poll_issue(pl2, vPv, vPoll, sC)
        pl2.mark(limit=o.get("lim_x1poll2", 1100))
        self.poll_check(pk, vPv, vPoll, sC, 2)
        pk.mark("x1_seen", depth=o.get("depth_x", 10), limit=self.opt.get("lim_def", 1300))
        self.stamp(pk, "x1 seen")
        m2.mark("conv2")
        for ks in range(0, 32, 2):
            g = Seq()
            base = (sV4 if ks % 8 >= 4 else sQ)[ks // 8]
            for x in (ks, ks + 1):
                g(f"buffer_load_dwordx4 {ar(4 * x, 4)}, {vL16}, {sWS}, {base} offen offset:{(x % 4) * 1024} sc1")
            self.bg(g, "hand", "x1_seen", 12)
        plan = [(max(pp - 20, 1), pl), (pp, pl2), (o.get("x1_check_at", 116), pk), (o.get("conv2_at", 1), m2)] + self.dense("c", range(1, 152, 12))
        ad = Seq()
        ad(f"""
        s_lshl_b32 {sT0}, {sw}, 12
        s_add_u32 {sT0}, {sT0}, {EXC}
        v_add_u32 {vT[3]}, {sT0}, {vL16}
        v_xor_b32 {a}, 8192, {vT[3]}
        v_and_b32 {b}, 15, {vL}
        v_lshlrev_b32 {b}, 5, {b}
        v_lshrrev_b32 {vT[2]}, 4, {vL}
        v_lshl_add_u32 {b}, {vT[2]}, 3, {b}
        s_mul_i32 {sT1}, {sth}, {UCH}
        s_add_u32 {sT1}, {sT1}, {CU + 4120 - 1536}
        s_lshl_b32 {sT2}, {skh}, 11
        s_sub_u32 {sT1}, {sT1}, {sT2}
        v_sub_u32 {vT[2]}, {sT1}, {b}
        s_xor_b32 {sT0}, {sT0}, 8192
        v_add_u32 {b}, {sT0}, {b}
        v_lshlrev_b32 {vr(V_SSM + 5)}, 16, {vr(V_SSM + 5)}
        v_and_b32 {vT[4]}, 8, {vL}
        v_cmp_eq_u32 vcc, 0, {vT[4]}
        """)
        sel = Seq()
        sel(f"v_and_b32 {vT[4]}, 8, {vL}")
        sel(f"v_cmp_eq_u32 vcc, 0, {vT[4]}")
        for n in range(4):
            sel(f"v_cndmask_b32 {vr(V_SSM + n)}, {vr(V_ONES + n)}, {vZero}, vcc")
        for n in range(4):
            sel(f"v_cndmask_b32 {vr(V_ONES + n)}, {vZero}, {vr(V_ONES + n)}, vcc")
        sel(f"""
        v_lshlrev_b32 {vT[5]}, 2, {vL}
        v_add_u32 {vT[5]}, {ST}, {vT[5]}
        s_lshl_b32 {sT0}, {sw}, 8
        v_add_u32 {vT[6]}, {sT0}, {vT[5]}
        s_add_u32 {sT0}, {sT0}, {ST + 3072}
        v_add_u32 {vCsA}, {sT0}, {vCsA}
        """)
        ad.items = ad.items[:-2]
        p.extend(weave(q, fill(q, [(104, 126, split(ad)), (128, 150, split(sel))], plan)))
        self.stamp(p, "conv mfma")
        p.wait(vm=t["l0"])
        x = Seq()
        hi, join = self.label("convhi"), self.label("convjoin")
        x("s_barrier")
        t["ph1"] = self.behead(self.p3_phase(R2, V_ACC, V_ACC + 16, V_TMP))
        x.extend(t["ph1"][0])
        x(f"s_cmp_lg_u32 {skh}, 0")
        x(f"s_cbranch_scc1 {hi}")
        for half, tail in ((16, f"s_branch {join}\n{hi}:"), (0, f"{join}:")):
            for n in range(4):
                x(f"ds_write_b128 {vT[3]}, {vr(acc + half + 4 * n, 4)} offset:{n * 1024}", count=(half == 0))
            x("s_waitcnt lgkmcnt(0)")
            x("s_barrier")
            for n in range(4):
                x(f"ds_read_b128 {vr(acc + half + 4 * n, 4)}, {a} offset:{n * 1024}", count=(half == 0))
            x(tail)
        t["cx"] = x.items[-2]
        p.atomic(x)
        p.mark("conv_end")
        self.stamp(p, "conv done")
        e = Seq()
        uu, tmp = V_B + 16, V_B + 32
        for n in range(4):
            e(f"ds_read_b64 {vr(uu + 2 * n, 2)}, {vT[2]} offset:{1536 - 512 * n}")
        e.wait(lg=t["cx"])
        for n in range(16):
            e(f"v_add_f32 {vr(acc + n)}, {vr(acc + n)}, {vr(acc + 16 + n)}")
        for n in range(4):
            e(f"v_and_b32 {vr(tmp)}, {sHi}, {vr(uu + 2 * n + 1)}")
            e(f"v_lshlrev_b32 {vr(tmp + 1)}, 16, {vr(uu + 2 * n + 1)}")
            e(f"v_and_b32 {vr(tmp + 2)}, {sHi}, {vr(uu + 2 * n)}")
            e(f"v_lshlrev_b32 {vr(tmp + 3)}, 16, {vr(uu + 2 * n)}")
            for r in range(4):
                e(f"v_fmac_f32 {vr(acc + 4 * n + r)}, {vr(V_SSM + 5)}, {vr(tmp + r)}")
        for n in range(8):
            e(f"v_cvt_pk_bf16_f32 {vr(uu + n)}, {vr(acc + 2 * n)}, {vr(acc + 2 * n + 1)}")
        for n in range(4):
            e(f"ds_write_b64 {b}, {vr(uu + 2 * n, 2)} offset:{n * 512}")
        e(f"ds_read_b128 {vr(uu + 8, 4)}, {a}")
        e(f"ds_read_b128 {vr(uu + 12, 4)}, {a} offset:1024")
        e(f"""
        v_lshrrev_b32 {b}, 3, {vL}
        v_and_b32 {vT[2]}, 7, {vL}
        v_lshlrev_b32 {vT[2]}, 4, {vT[2]}
        v_lshl_add_u32 {b}, {b}, 13, {vT[2]}
        s_lshl_b32 {sT2}, {sj}, 18
        s_lshl_b32 {sT1}, {skh}, 17
        s_add_u32 {sT2}, {sT2}, {sT1}
        s_lshl_b32 {sT1}, {sc}, 1
        s_add_u32 {sT1}, {sT1}, {sth}
        s_lshl_b32 {sT1}, {sT1}, 7
        s_add_u32 {sT2}, {sT2}, {sT1}
        s_add_u32 {sT2}, {sT2}, {WS_YT}
        s_add_u32 {sT1}, {sT2}, 65536
        """)
        s0 = e(f"buffer_store_dwordx4 {vr(uu + 8, 4)}, {b}, {sWS}, {sT2} offen sc1")
        s1 = e(f"buffer_store_dwordx4 {vr(uu + 12, 4)}, {b}, {sWS}, {sT1} offen sc1")
        t["y"], t["conv_epi"] = [s0, s1], e

    @staticmethod
    def behead(q):
        n = next(i for i, it in enumerate(q.items) if it.kind in ("mfma32", "mfma16"))
        while q.items[n - 1].kind == "wait":
            n -= 1
        head, body = Seq(), Seq()
        head.items, body.items = q.items[:n], q.items[n:]
        return head, body

    def p3_phase(self, base, accA, accB, cs):
        q = Seq()
        regs = [(vXr[0], vXr[1]), (vXr[2], vXr[3])]

        def setblk(blk):
            r0, r1 = regs[blk & 1]
            q(f"s_lshl_b32 {sT0}, {sR[blk]}, 7")
            q(f"s_add_u32 {sT0}, {sT0}, {base}")
            q(f"v_add_u32 {r0}, {sT0}, {vTr0}")
            q(f"v_xor_b32 {r1}, 64, {r0}")

        def rd(ks, half):
            if ks < 32:
                tok[ks] = self.a_reads(q, V_A + 8 * (ks % 4) + 4 * half, regs[(ks >> 3) & 1][half], (ks & 7) * 2048)

        tok = {}
        setblk(0)
        ra = self.opt.get("ra2", 3)
        for ks in range(ra):
            rd(ks, 0)
            rd(ks, 1)
        setblk(1)
        for ks in range(32):
            A = V_A + 8 * (ks % 4)
            z = ks == 0
            q.wait(lg=tok[ks])
            q(f"v_mfma_f32_32x32x16_bf16 {vr(accA, 16)}, {vr(A, 4)}, {ar(4 * ks, 4)}, {'0' if z else vr(accA, 16)}")
            rd(ks + ra, 0)
            q(f"v_mfma_f32_32x32x16_bf16 {vr(accB, 16)}, {vr(A + 4, 4)}, {ar(4 * ks, 4)}, {'0' if z else vr(accB, 16)}")
            rd(ks + ra, 1)
            if ks < 8:
                q(f"v_mfma_f32_16x16x32_bf16 {vr(cs, 4)}, {vr(V_ONES, 4)}, {vr(A, 4)}, {'0' if z else vr(cs, 4)}")
                q(f"v_mfma_f32_16x16x32_bf16 {vr(cs, 4)}, {vr(V_SSM, 4)}, {vr(A + 4, 4)}, {vr(cs, 4)}")
            if ks in (8, 16):
                setblk(ks // 8 + 1)
        return q

    def p3_tile(self, base, half, acc, cs=None):
        q = Seq()
        regs = [vXr[0], vXr[2]]
        tok = {}

        def setblk(blk):
            q(f"s_lshl_b32 {sT0}, {sR[blk]}, 7")
            q(f"s_add_u32 {sT0}, {sT0}, {base}")
            q(f"v_add_u32 {regs[blk & 1]}, {sT0}, {vTr0}")
            if half:
                q(f"v_xor_b32 {regs[blk & 1]}, 64, {regs[blk & 1]}")

        def rd(ks):
            if ks < 32:
                tok[ks] = self.a_reads(q, V_A + 4 * (ks % 6), regs[(ks >> 3) & 1], (ks & 7) * 2048)

        setblk(0)
        X = V_ACC + 32
        if cs is not None:
            q(f"v_xor_b32 {vXr[1]}, 64, {vXr[0]}")
            for ks in range(3):
                self.a_reads(q, X + 4 * ks, vXr[1], ks * 2048)
        ra = self.opt.get("ra1", 5)
        for ks in range(ra):
            rd(ks)
        setblk(1)
        for ks in range(32):
            A = V_A + 4 * (ks % 6)
            q(f"v_mfma_f32_32x32x16_bf16 {vr(acc, 16)}, {vr(A, 4)}, {ar(4 * ks, 4)}, {'0' if ks == 0 else vr(acc, 16)}")
            rd(ks + ra)
            if cs is not None and ks < 8:
                q(f"v_mfma_f32_16x16x32_bf16 {vr(cs, 4)}, {vr(V_ONES, 4)}, {vr(A, 4)}, {'0' if ks == 0 else vr(cs, 4)}")
            if cs is not None and ks < 8:
                if ks + 3 < 8:
                    self.a_reads(q, X + 4 * ((ks + 3) % 4), vXr[1], (ks + 3) * 2048)
                q(f"v_mfma_f32_16x16x32_bf16 {vr(cs, 4)}, {vr(V_SSM, 4)}, {vr(X + 4 * (ks % 4), 4)}, {vr(cs, 4)}")
            if ks in (6, 14):
                setblk(ks // 8 + 2)
            if half:
                q.mark(f"t3_{ks}")
        return q

    def cs_exchange(self, table, cs, dstA, dstB):
        w, r, a, b = Seq(), Seq(), Seq(), Seq()
        tok = w(f"ds_write_b32 {vT[6]}, {vr(cs)} offset:{table - ST}")
        r.wait(lg=tok)
        r("s_barrier")
        for n in range(4):
            r(f"ds_read_b32 {vr(cs + n)}, {vT[5]} offset:{table - ST + n * 256}")
        r(f"v_add_f32 {vr(cs)}, {vr(cs)}, {vr(cs + 1)}")
        r(f"v_add_f32 {vr(cs + 2)}, {vr(cs + 2)}, {vr(cs + 3)}")
        r(f"v_add_f32 {vr(cs)}, {vr(cs)}, {vr(cs + 2)}")
        r(f"ds_write_b32 {vT[6]}, {vr(cs)} offset:3072")
        for n in range(4):
            a(f"ds_read_b128 {vr(dstA + 4 * n, 4)}, {vCsA} offset:{n * 32}")
            b(f"ds_read_b128 {vr(dstB + 4 * n, 4)}, {vCsA} offset:{128 + n * 32}")
        return w, r, a, b

    def gelu_plain(self, p, acc, cs, tmp, out):
        K1, K2, SD, NM = vr(V_KK), vr(V_KK + 1), vr(V_SM), vr(V_SM + 1)
        for b in range(0, 16, 4):
            xs = range(b, b + 4)
            T = lambda x: vr(tmp + (x & 7))
            for x in xs:
                p(f"v_fmac_f32 {vr(acc + x)}, {vr(cs + x)}, {NM}")
            for x in xs:
                p(f"v_mul_f32 {T(x)}, {vr(acc + x)}, {vr(acc + x)}")
            for x in xs:
                p(f"v_fma_f32 {T(x)}, {T(x)}, {K2}, {K1}")
            for x in xs:
                p(f"v_mul_f32 {T(x)}, {T(x)}, {vr(acc + x)}")
            for x in xs:
                p(f"v_exp_f32 {T(x)}, {T(x)}")
            for x in xs:
                p(f"v_fma_f32 {T(x)}, {T(x)}, {SD}, {SD}")
            for x in xs:
                p(f"v_rcp_f32 {T(x)}, {T(x)}")
            for x in xs:
                p(f"v_mul_f32 {T(x)}, {T(x)}, {vr(acc + x)}")
            for x in (b, b + 2):
                p(f"v_cvt_pk_bf16_f32 {vr(out + x // 2)}, {T(x)}, {T(x + 1)}")

    def h2_tile(self, acc, cs16, out, plain=False):
        q = Seq()
        (self.gelu_plain if plain else self.gelu_packed)(q, acc, cs16, V_TMP + 16, out)
        s0 = q(f"buffer_store_dwordx4 {vr(out, 4)}, {vL16}, {sWS}, {sH2st} offen sc1")
        s1 = q(f"buffer_store_dwordx4 {vr(out + 4, 4)}, {vL16}, {sWS}, {sH2st} offen offset:2048 sc1")
        q(f"s_add_u32 {sH2st}, {sH2st}, 57344")
        q("s_nop 0")
        return q, [s0, s1]

    def h2_loads(self, piece, reg, prio, freed=None):
        for u in range(7):
            g = Seq()
            sP = (sH, sX1ld)[piece & 1]
            if u % 2 == 0 or not self.opt.get("h2_trim", 1):
                g(f"s_add_u32 {sP}, {sH2ld}, {piece * 57344 + (u & ~1) * 2048}")
            for i in range(2):
                g(f"buffer_load_dwordx4 {reg(8 * u + 4 * i)}, {vXs[1 + i]}, {sWS}, {sP} offen offset:{(u % 2) * 2048} sc1")
            self.bg(g, "hand", (f"h2_seen{piece}", f"t3_{freed + 2 * u + 1}") if freed is not None else f"h2_seen{piece}", prio)

    def late_addrs(self, p):
        a, b = vT[0], vT[1]
        o = self.opt
        p(f"""
        s_lshl_b32 {sYfl}, {sj2}, 9
        s_lshr_b32 {sT1}, {sc}, 4
        s_lshl_b32 {sT1}, {sT1}, 8
        s_add_u32 {sYfl}, {sYfl}, {sT1}
        s_add_u32 {sYfl}, {sYfl}, {FLAG1}
        v_and_b32 {a}, 3, {vL}
        s_mul_i32 {sT1}, {sth}, 3
        v_add_u32 {a}, {sT1}, {a}
        v_add_u32 {b}, {8 - self.idle}, {a}
        v_lshrrev_b32 {b}, 3, {b}
        v_add_u32 {a}, {a}, {b}
        v_bfe_u32 {b}, {vL}, 2, 1
        v_lshlrev_b32 {a}, 9, {a}
        v_lshl_add_u32 {vH2fl}, {b}, 7, {a}
        s_lshr_b32 {sT2}, {sc}, 3
        s_lshl_b32 {sT2}, {sT2}, 3
        s_lshl_b32 {sT1}, {skh}, 2
        s_add_u32 {sT2}, {sT2}, {sT1}
        s_bfe_u32 {sT1}, {sc}, 0x20001
        s_add_u32 {sT2}, {sT2}, {sT1}
        {"" if o.get("pair", 1) else f"s_and_b32 {sT2}, {sc}, 30"}
        {"" if o.get("pair", 1) else f"s_add_u32 {sT2}, {sT2}, {skh}"}
        s_lshl_b32 {sT2}, {sT2}, 12
        s_and_b32 {sT1}, {sc}, 1
        s_lshl_b32 {sT1}, {sT1}, 8
        s_add_u32 {sH2fl}, {sT2}, {sT1}
        s_mul_i32 {sT2}, {sw}, {7 * 2048}
        s_mul_i32 {sT1}, {sc}, 229376
        s_add_u32 {sT1}, {sT1}, {sT2}
        s_add_u32 {sH2ld}, {sT1}, {WS_H2 + (WS_SIZE if o.get("dbg_noh2") else 0)}
        s_lshl_b32 {sT2}, {skh}, 15
        s_sub_u32 {sT2}, {sPriv}, {sT2}
        v_add_u32 {vTrX}, {sT2}, {vTrX}
        v_add_u32 {vTrY}, {sT2}, {vTrY}
        v_lshrrev_b32 {a}, 5, {vL}
        v_lshl_add_u32 {vKv}, {a}, 7, {vKv}
        v_lshlrev_b32 {a}, 10, {a}
        v_bfe_u32 {b}, {vL}, 2, 2
        v_lshl_add_u32 {a}, {b}, 7, {a}
        v_bfe_u32 {b}, {vL}, 4, 1
        v_lshl_add_u32 {a}, {b}, 5, {a}
        v_and_b32 {b}, 3, {vL}
        v_lshl_add_u32 {a}, {b}, 3, {a}
        s_lshl_b32 {sT2}, {snh}, 12
        s_lshl_b32 {sT1}, {sth}, 6
        s_add_u32 {sT2}, {sT2}, {sT1}
        s_add_u32 {sT2}, {sT2}, {YB}
        v_add_u32 {vY}, {sT2}, {a}
        s_lshl_b32 {sYld}, {sj2}, 5
        s_add_u32 {sYld}, {sYld}, {sc}
        s_lshl_b32 {sYld}, {sYld}, 13
        s_lshl_b32 {sT1}, {sw}, 11
        s_add_u32 {sYld}, {sYld}, {sT1}
        s_add_u32 {sYld}, {sYld}, {WS_YT}
        s_add_u32 {sYlds}, {sT1}, {YB}
        s_lshl_b32 {sGld}, {sc}, 1
        s_add_u32 {sGld}, {sGld}, {sth}
        s_lshl_b32 {sGld}, {sGld}, 11
        s_add_u32 {sGld}, {sGld}, {WS_GATE}
        """)

    def p3(self, p, t):
        o = self.opt
        T0, T1, T2, T3 = V_ACC, V_ACC + 16, V_ACC, V_ACC + 32
        cs, stt = V_TMP, V_B
        a, b = vT[0], vT[1]
        p.mark("p3", depth=o.get("depth3", 10))
        for i in range(0, 8, 2):
            g = Seq()
            for x in (i, i + 1):
                g(f"buffer_load_dwordx2 {vr(stt + 2 * x, 2)}, {vKh}, {sWS}, {sStld} offen offset:{x * 512} sc1")
            self.bg(g, "few", "p3", o.get("prio_stats", 11))
        ypub, lim, ln = Seq(), Seq(), Seq()
        self.publish(ypub, t["y"], 2, FLAG1)
        lim.mark(limit=o.get("lim_g0", 1400))
        for x in (0, 1):
            ln(f"v_add_f32 {vr(stt + x)}, {vr(stt + x)}, {vr(stt + 2 + x)}")
        for i in range(1, 4):
            for x in (0, 1):
                ln(f"v_add_f32 {vr(stt + x)}, {vr(stt + x)}, {vr(stt + 4 * i + x)}")
                ln(f"v_add_f32 {vr(stt + x)}, {vr(stt + x)}, {vr(stt + 4 * i + 2 + x)}")
        self.half_sum(ln, vr(stt), vr(stt + 2))
        self.half_sum(ln, vr(stt + 1), vr(stt + 3))
        self.ln_consts(ln, vr(stt), vr(stt + 1))
        csA, csB = V_B + 44, V_ACC + 48
        cw, cr, ca, cb = self.cs_exchange(ST + 2048, cs, csA, csB)
        q = t["ph1"][1]
        fixed = [(36, cw), (o.get("ypub_at", 76), ypub), (o.get("lim_g0_at", 66), lim)] + self.dense("i", range(1, 80, self.opt.get("dstep", 8)))
        streams = [(2, o.get("epi_end", 46), split(t["conv_epi"])), (47, 53, split(cr)), (54, 72, split(ln)), (73, 78, split(ca) + split(cb))]
        p.extend(weave(q, fill(q, streams, fixed)))
        self.stamp(p, "p3 t01")
        q0, st0 = self.h2_tile(T0, csA, V_TMP)
        p.extend(q0)
        p.mark(limit=o.get("lim_g1b", 1100))
        self.stamp(p, "h2 p0 st")
        p.wait(vm=t["l1"])
        p("s_barrier")
        p.mark("B3", depth=o.get("depth4", 10))
        head2, body2 = self.behead(self.p3_tile(R0, 0, V_ACC, cs))
        p.extend(head2)
        w1, w2 = o.get("g1_weave", 0), o.get("g2_weave", 0)
        q1, st1 = self.h2_tile(T1, csB, V_TMP + 8, plain=bool(w1))
        if not w1:
            p.extend(q1)
        p.mark(limit=self.opt.get("lim_def", 1300))
        p(f"""
        s_lshl_b32 {sT2}, {sth}, 10
        v_add_u32 {vXs[1]}, {sT2}, {vL16}
        v_xor_b32 {vXs[2]}, 1024, {vXs[1]}
        v_add_u32 {vXs[3]}, {sPriv}, {vL16}
        v_lshlrev_b32 {b}, 2, {vL}
        """)
        self.stamp(p, "h2 p1 st")
        w0t = self.w4_loads(0, R2, "B3", 32)
        self.w4_park(2, A_PARK + 56, o.get("park3_after", "conv2"), 41)
        pub0, pub1, pub2, ypl, ypk, hpl, hpk, yd, gl, lim, lim2 = (Seq() for _ in range(11))
        self.publish(pub0, st0, 3, FLAG0)
        if o.get("rb_h2"):
            pub0(f"s_sub_u32 {sE}, {sH2st}, 114688")
            self.readback(pub0, "rb_h2", f"buffer_load_dword a255, {vL128}, {sWS}, {sE} offen sc1", "0xff00ff")
        self.stamp(pub0, "h2 p0 flag")
        self.publish(pub1, st0 + st1, 4, FLAG0)
        if o.get("rb_h2"):
            pub1(f"s_sub_u32 {sE}, {sH2st}, 57344")
            self.readback(pub1, "rb_h2", f"buffer_load_dword a255, {vL128}, {sWS}, {sE} offen sc1", "0xff00ff")
        self.poll_issue(ypl, vPw, vKv, sYfl)
        self.poll_check(ypk, vPw, vKv, sYfl, 2)
        yd(f"s_mov_b32 m0, {sYlds}")
        self.dma(yd, vL16, sWS, sYld, 0, "sc1")
        ytok = self.dma(yd, vL16, sWS, sYld, 1024, "sc1")
        ypk.atomic(yd)
        T2, T3, csA2, csB2 = V_ACC, V_ACC + 16, V_ACC + 32, V_ACC + 48
        cw, cr, ca, cb = self.cs_exchange(ST, cs, csA2, csB2)
        q = body2
        lim.mark(limit=o.get("lim_g2", 1100))
        fixed = [(o.get("pub0_at", 6), pub0 if o.get("pub0", 1) else Seq()), (o.get("pub1_at", 22), pub1), (28, cw), (o.get("lim_g2_at", 36), lim)]
        streams = [(32, 38, split(cr)), (40, 47, split(ca) + ([] if w1 else split(cb)))]
        if w1:
            streams.append((2, 44, split(q1)))
            fixed = [x for x in fixed if x[1] is not pub1]
        p.extend(weave(q, fill(q, streams, fixed + self.dense("j", range(1, 48, self.opt.get("dstep", 6))))))
        self.stamp(p, "p3 t2")
        self.poll_issue(hpl, vPv, vH2fl, sH2fl)
        hmid = o.get("h2_poll_mid", 30)
        if not hmid:
            p.extend(hpl)
        if not o.get("y_poll_at"):
            p.extend(ypl)
        head3, body3 = self.behead(self.p3_tile(R0, 1, T3))
        p.extend(head3)
        q2, st2 = self.h2_tile(T2, csA2, V_TMP, plain=bool(w2))
        if w1:
            p.extend(cb)
        if not w2:
            plan = ([(hmid, hpl)] if hmid else []) + ([(o.get("pub1_mid", 12), pub1)] if w1 else [])
            p.extend(weave(q2, plan, kinds=("trans",)))
        self.stamp(p, "g2 done")
        p.mark(limit=self.opt.get("lim_def", 1300))
        self.publish(pub2, st2, 5, FLAG0)
        if o.get("rb_h2"):
            pub2(f"s_sub_u32 {sE}, {sH2st}, 57344")
            self.readback(pub2, "rb_h2", f"buffer_load_dword a255, {vL128}, {sWS}, {sE} offen sc1", "0xff00ff")
        self.poll_check(hpk, vPv, vH2fl, sH2fl, 4)
        hpk.mark("h2_seen0")
        self.stamp(hpk, "h2 seen")
        self.h2_loads(0, lambda r: vr(V_B + r, 4), 20)
        hpk.mark("h2_seen1")
        hpk("s_nop 0")
        self.h2_loads(1, lambda r: ar(r, 4), 21, freed=0)
        gt = V_B + 56
        for i in range(8):
            gl(f"buffer_load_dword {vr(gt + i)}, {b}, {sWS}, {sGld} offen offset:{i * 256} sc1").note = "few"
        q = body3
        lim2.mark(limit=o.get("lim_g3", 1100))
        fixed = [(o.get("h2_check_at", 14), hpk), (o.get("y_check_at", 16), ypk), (o.get("pub2_at", 28), pub2), (o.get("lim_g3_at", 26), lim2)]
        if o.get("y_poll_at"):
            fixed.append((o["y_poll_at"], ypl))
        streams = []
        if w2:
            streams = [(2, 30, split(q2))]
            fixed = [x for x in fixed if x[1] is not pub2]
            if hmid:
                fixed = [x for x in fixed if x[1] is not hpk and x[1] is not ypk]
                fixed += [(o.get("hp_w2", 6), hpl), (o.get("hc_w2", 24), hpk), (o.get("hc_w2", 24) + 2, ypk)]
            if w1:
                fixed.append((1, pub1))
        p.extend(weave(q, fill(q, streams, fixed + self.dense("k", range(1, 32, 4)))))
        self.stamp(p, "p3 t23")
        p.wait(vm=ytok)
        p("s_barrier")
        p.mark("B4", depth=o.get("depth5", 10))
        w1t = self.w4_loads(3, R0, "B4", o.get("prio_p3", 22.5))
        p(f"v_add_u32 {vXr[0]}, {R2}, {vTrX}")
        p(f"v_add_u32 {vXr[1]}, {R2}, {vTrY}")
        p(f"v_add_u32 {vXr[2]}, {R2}, {vXs[3]}")
        for n in range(o.get("ra4", 3)):
            p.wait(vm=w0t[n])
            for h in range(2):
                self.a_reads(p, V_A + 8 * n + 4 * h, vXr[h], n * 2048)
        q3, st3 = self.h2_tile(T3, csB2, V_TMP + 8)
        p.extend(weave(q3, [(o.get("pub2_mid", 24), pub2)], kinds=("trans",)) if w2 else q3)
        p.mark(limit=self.opt.get("lim_def", 1300))
        self.poll_issue(p, vPv, vH2fl, sH2fl)
        t["gl"] = gl
        a = vY
        self.stamp(p, "p3 done")
        bs = Seq()
        yy, base = V_TMP, V_TMP + 16
        for i in range(4):
            bs(f"ds_read_b64_tr_b16 {vr(yy + 2 * i, 2)}, {a} offset:{(i >> 1) * 2048 + (i & 1) * 512}")
        for i in range(1, 8):
            bs(f"v_add_f32 {vr(gt)}, {vr(gt)}, {vr(gt + i)}")
        self.half_sum(bs, vr(gt), vr(gt + 1))
        G, OM = vr(V_KK), vr(V_KK + 1)
        bs(f"v_mul_f32 {vr(gt)}, {fbits(-math.log2(math.e))}, {vr(gt)}")
        bs(f"v_exp_f32 {vr(gt)}, {vr(gt)}")
        bs(f"v_add_f32 {vr(gt)}, 1.0, {vr(gt)}")
        bs(f"v_rcp_f32 {G}, {vr(gt)}")
        bs(f"v_sub_f32 {OM}, 1.0, {G}")
        for i in range(8):
            for h, un in ((0, "v_lshlrev_b32 {d}, 16, {s}"), (1, "v_and_b32 {d}, " + sHi + ", {s}")):
                t0, t1, d = vr(gt + 2 * h), vr(gt + 2 * h + 1), vr(base + 2 * i + h)
                bs(un.format(d=t0, s=vr(yy + i)))
                bs(un.format(d=t1, s=vr(V_XRES + i)))
                bs(un.format(d=d, s=vr(V_X1P + i)))
                bs(f"v_mul_f32 {t0}, {t0}, {t1}")
                bs(f"v_mul_f32 {d}, {d}, {OM}")
                bs(f"v_fmac_f32 {d}, {t0}, {G}")
        t.update(st3=st3, w0t=w0t, w1t=w1t, base=base, bs=bs)

    def p4(self, p, t):
        o = self.opt
        acc = [V_ACC + 16 * i for i in range(4)]
        breg = [lambda r: vr(V_B + r, 4), lambda r: ar(r, 4), lambda r: ar(56 + r, 4), lambda r: vr(V_B + r, 4)]
        areg = [(vXr[0], vXr[1])] * 3 + [(vTrX, vTrY)]
        pub3 = Seq()
        self.publish(pub3, t["st3"], 6, FLAG0)
        if o.get("rb_h2"):
            pub3(f"s_sub_u32 {sE}, {sH2st}, 57344")
            self.readback(pub3, "rb_h2", f"buffer_load_dword a255, {vL128}, {sWS}, {sE} offen sc1", "0xff00ff")
        un1, _ = self.w4_unpark_groups(A_PARK, vXr[2])
        un2, _ = self.w4_unpark_groups(A_PARK + 56, vXr[2])
        bs = split(t["bs"])
        a = vXr[2]
        q = Seq()
        steps = [(pc, u) for pc in range(4) for u in range(7)]

        def rd(n, halves=(0, 1)):
            pc, u = steps[n]
            if pc in (0, 3) and 0 in halves:
                q.wait(vm=t["w0t" if pc == 0 else "w1t"][u])
            for h in halves:
                self.a_reads(q, V_A + 8 * (n % 4) + 4 * h, areg[pc][h], u * 2048)

        def mfma(n, slot):
            pc, u = steps[n]
            A = V_A + 8 * (n % 4) + 4 * (slot & 1)
            B = breg[pc](8 * u + 4 * (slot >> 1))
            q(f"v_mfma_f32_32x32x16_bf16 {vr(acc[slot], 16)}, {vr(A, 4)}, {B}, {'0' if n == 0 else vr(acc[slot], 16)}")

        ra = o.get("ra4", 3)
        for n in range(24):
            for slot in range(4):
                mfma(n, slot)
                if slot < 2:
                    rd(n + ra, (slot,))
        if ra == 2:
            rd(26)
        mfma(24, 1)
        rd(27)
        for slot in (1, 2, 3, 0):
            for n in range(24, 28):
                if (n, slot) != (24, 1):
                    mfma(n, slot)
        pk2, pl3, pk3 = Seq(), Seq(), Seq()
        self.poll_check(pk2, vPv, vH2fl, sH2fl, 5)
        pk2.mark("h2_seen2")
        self.h2_loads(2, breg[2], 22)
        self.poll_issue(pl3, vPv, vH2fl, sH2fl)
        self.poll_check(pk3, vPv, vH2fl, sH2fl, 6)
        pk3.mark("h2_seen3")
        self.h2_loads(3, breg[3], 23)
        plan = [(o.get("pub3_at", 18), pub3), (o.get("h2p2_check", 16), pk2), (o.get("h2p3_poll", 52), pl3), (o.get("h2p3_check", 68), pk3)]
        plan += spread(split(t["gl"]), o.get("gl_at", 30), o.get("gl_at", 30) + 14)
        for n, gq in enumerate(un1 + un2):
            plan.append((4 * (n // 2) + 3 + (n & 1), gq))
        xa = Seq()
        xa(f"v_xor_b32 {vT[2]}, {2 << 14}, {a}")
        xa(f"v_xor_b32 {vT[3]}, {3 << 14}, {a}")
        xa(f"v_xor_b32 {vT[4]}, {1 << 14}, {a}")
        via_lds = o.get("out_lds", 0)
        (xa if via_lds else Seq())(f"""
        v_and_b32 {vKv}, 31, {vL}
        s_lshl_b32 {sT0}, {sth}, 5
        v_add_u32 {vKv}, {sT0}, {vKv}
        v_mul_u32_u24 {vKv}, 144, {vKv}
        v_lshrrev_b32 {vKh}, 5, {vL}
        v_lshl_add_u32 {vKv}, {vKh}, 4, {vKv}
        s_lshl_b32 {sT0}, {snh}, 6
        v_add_u32 {vKv}, {sT0}, {vKv}
        v_lshrrev_b32 {vKh}, 3, {vL}
        v_and_b32 {vPw}, 7, {vL}
        v_lshlrev_b32 {vPw}, 4, {vPw}
        v_lshl_add_u32 {vOut}, {vKh}, 10, {vPw}
        v_mul_u32_u24 {vKh}, 144, {vKh}
        s_mul_i32 {sT0}, {sw}, {16 * 144}
        v_add3_u32 {vKh}, {vKh}, {vPw}, {sT0}
        s_lshl_b32 {sC}, {sc}, 16
        s_lshl_b32 {sT0}, {sw}, 14
        s_add_u32 {sC}, {sC}, {sT0}
        s_lshl_b32 {sT0}, {sj2}, 7
        s_add_u32 {sC}, {sC}, {sT0}
        s_add_u32 {sD}, {sC}, 8192
        s_nop 0
        """)
        plan += spread(split(xa), 86, 96)
        for s in range(1, 4):
            w = Seq()
            for g in range(4):
                w(f"ds_write_b128 {a}, {vr(acc[s] + 4 * g, 4)} offset:{(s - 1) * 4096 + g * 1024}")
            plan += spread(split(w), 96 + 4 * s + 2, min(96 + 4 * s + 5, 112))
        for pc in range(3):
            sq = Seq()
            self.stamp(sq, f"p4 piece{pc}")
            plan.append((28 * (pc + 1), sq))
        p.extend(weave(q, fill(q, [(o.get("bs_at", 60), o.get("bs_end", 94), bs)], plan + self.dense("p", range(1, 112, 4)))))
        self.stamp(p, "p4 piece3")
        p.wait(lg0=True)
        p("s_barrier")
        for s in range(1, 4):
            for g in range(4):
                p(f"ds_read_b128 {vr(acc[s] + 4 * g, 4)}, {vT[1 + s]} offset:{(s - 1) * 4096 + g * 1024}")
        base = t["base"]
        fl = o.get("out_flags", "")
        for half in (0, 8):
            for s in range(1, 4):
                for x in range(half, half + 8, 2):
                    p(f"v_pk_add_f32 {vr(acc[0] + x, 2)}, {vr(acc[0] + x, 2)}, {vr(acc[s] + x, 2)}")
            for x in range(half, half + 8, 2):
                p(f"v_pk_fma_f32 {vr(acc[0] + x, 2)}, {vr(acc[0] + x, 2)}, {vr(V_KK, 2)}, {vr(base + x, 2)} op_sel:[0,1,0] op_sel_hi:[1,1,1]")
            for i in range(half // 2, half // 2 + 4):
                p(f"v_cvt_pk_bf16_f32 {vr(V_TMP + i)}, {vr(acc[0] + 2 * i)}, {vr(acc[0] + 2 * i + 1)}")
            if via_lds:
                p(f"ds_write_b128 {vKv}, {vr(V_TMP + half // 2, 4)} offset:{R0 + half * 4}")
            else:
                p(f"buffer_store_dwordx4 {vr(V_TMP + half // 2, 4)}, {vOut}, {sOUT}, 0 offen offset:{half * 4} {fl}")
        if via_lds:
            p.wait(lg0=True)
            p("s_barrier")
            p(f"ds_read_b128 {vr(V_TMP + 8, 4)}, {vKh} offset:{R0}")
            p(f"ds_read_b128 {vr(V_TMP + 12, 4)}, {vKh} offset:{R0 + 8 * 144}")
            p(f"buffer_store_dwordx4 {vr(V_TMP + 8, 4)}, {vOut}, {sOUT}, {sC} offen {fl}")
            p(f"buffer_store_dwordx4 {vr(V_TMP + 12, 4)}, {vOut}, {sOUT}, {sD} offen {fl}")
        self.advance_epoch(p)
        self.stamp(p, "out issued")

    def write_stamps(self, p):
        if self.diag:
            p.wait(vm0=True)
            self.stamp(p, "end")
            p(f"""
            s_cmp_lg_u32 s2, {self.opt.get("diag_wg", 73)}
            s_cbranch_scc1 L_end
            s_sub_u32 s98, s98, s96
            s_mul_i32 s98, s98, {self.diag[2]}
            s_lshr_b32 s98, s98, {4 if len(self.diag) > 3 else 0}
            s_memrealtime s[96:97]
            s_waitcnt lgkmcnt(0)
            L_diag:
            s_memrealtime s[100:101]
            s_waitcnt lgkmcnt(0)
            s_sub_u32 s100, s100, s96
            s_cmp_lt_u32 s100, s98
            s_cbranch_scc1 L_diag
            """)
        if not self.profile:
            return
        p.wait(vm0=True)
        self.stamp(p, "end")
        p("s_memrealtime s[100:101]")
        p.wait(lg0=True)
        p("v_writelane_b32 v254, s100, 1")
        p(f"""
        s_lshl_b32 {sT0}, s2, 2
        s_add_u32 {sT0}, {sT0}, {sw}
        s_lshl_b32 {sT0}, {sT0}, 8
        s_add_u32 {sT0}, {sT0}, {WS_STAMP}
        v_lshlrev_b32 {vP2}, 2, {vL}
        """)
        p(f"buffer_store_dword v254, {vP2}, {sWS}, {sT0} offen sc1")

    def build(self):
        p = self.p
        t = {}
        self.prologue(p)
        self.p1(p, t)
        self.a1(p, t)
        self.p2(p, t)
        self.conv(p, t)
        self.p3(p, t)
        self.p4(p, t)
        self.write_stamps(p)
        p("L_end:")
        p("s_endpgm")
        assert len(self.stamps) + self.npoll <= 62, len(self.stamps)
        classes = {"p1cold": (self.opt.get("s_p1cold", 230), self.opt.get("l_p1cold", 1400)), "p1l2": (self.opt.get("s_p1l2", 75), 400)}
        classes.update(mall=(125, 900), hand=(105, 900))
        for k in ("mall", "hand", "cold"):
            if "s_" + k in self.opt:
                classes[k] = (self.opt["s_" + k], self.opt.get("l_" + k, 900))
        self.log = []
        p = schedule(p, [b for _, _, b in sorted(self.bgs, key=lambda e: e[:2])], classes, self.log, self.opt.get("split_bg", 1), self.opt.get("depth", 10))
        body, items = finalize(p)
        head = open(os.path.join(os.path.dirname(os.path.abspath(__file__)), "header.txt")).read()
        text = head + f"; @launch grid=(256,1,1) block=(256,1,1) lds={LDS_SIZE}\n" + DESCRIPTION
        text += f""".amdgcn_target "amdgcn-amd-amdhsa--gfx950"
.text
.globl {NAME}_kernel
.p2align 8
.type {NAME}_kernel,@function
{NAME}_kernel:
.set CODE_BYTES, L_code_end - L_pc - 4
"""
        text += body
        text += f"""L_code_end:
.section .rodata,"a"
.p2align 6
.amdhsa_kernel {NAME}_kernel
  .amdhsa_next_free_vgpr 512
  .amdhsa_next_free_sgpr 102
  .amdhsa_accum_offset 256
  .amdhsa_group_segment_fixed_size 0
  .amdhsa_kernarg_size 120
  .amdhsa_user_sgpr_count 2
  .amdhsa_user_sgpr_kernarg_segment_ptr 1
  .amdhsa_system_sgpr_workgroup_id_x 1
.end_amdhsa_kernel
"""
        return text


if __name__ == "__main__":
    prof = "--profile" in sys.argv
    out = [a for a in sys.argv[1:] if not a.startswith("--")]
    diag = [a[7:].split(",") for a in sys.argv if a.startswith("--diag=")]
    opt = {}
    for a in sys.argv:
        if a.startswith("--o:"):
            k, v = a[4:].split("=")
            opt[k] = int(v) if v.lstrip("-").isdigit() else v
    g = Gen(profile=prof, diag=diag[0] if diag else None, opt=opt)
    text = g.build()
    path = out[0] if out else f"cdna_kernels/{NAME}.s"
    open(path, "w").write(text)
    if prof:
        open(path + ".stamps", "w").write("\n".join(g.stamps))
    print("wrote", path, len(text), "bytes")
    if "--log" in sys.argv:
        print("  ".join(f"{n}={t}" for n, t in g.log))
```

```python
import math
import struct
import sys

from asmdsl import Seq, Bg, finalize, schedule, weave, spread, split, fill

NAME = "gated_mix__ssm_conv_h3__mixer_s_mlp__prompt"

FLAG0, FLAG1, WS_EPOCH = 0x0, 0x20000, 0x40000
WS_H, WS_X1, WS_H2, WS_KVT, WS_YT = 0x100000, 0x300000, 0x500000, 0xC00000, 0xE00000
WS_STATS, WS_GATE, WS_STAMP = 0x1000000, 0x1080000, 0x1100000
WS_SIZE = 0x1200000

R0, R1, R2, R3, R4 = 0, 32768, 65536, 98304, 131072
KB, VB, A1R = R4, R4 + 9216, R4 + 17408
ST = R4 + 28672
ST_STAT, ST_CS, ST_CS3 = ST, ST + 1024, ST + 1536
KCOPY, KCH = 4288, 8576
CK, CU, UCH = R4, R4 + 17152, 4928
EX2, EXC = R2 + 12288, R4
YB = R4
LDS_SIZE = 163840

sX, sK, sV, sSK, sW1, sW2, sW3, sW4, sOUT, sWS, sDBG = [f"s[{4 + 4 * i}:{7 + 4 * i}]" for i in range(11)]
pSH, pD, pG = "s[48:49]", "s[50:51]", "s[52:53]"
sw, sth, skh, snh, sc, sj, sm, ssc = [f"s{i}" for i in range(54, 62)]
srot, sja, sEp, sOnes, sHi = "s62", "s63", "s64", "s65", "s66"
sOneLo, sOneHi = "s44", "s45"
sT0, sT1, sT2, sT3, sCnt = "s67", "s68", "s69", "s70", "s71"
sU = [f"s{i}" for i in range(72, 79)]
sFlag, sPriv = "s79", "s80"
sWsrc, sWlds, sW3b, sB, sC, sD, sE, sOob = [f"s{i}" for i in range(81, 89)]
sR = ["s46", "s47", "s3", "s95"]
sH2st, sH2fl, sH2ld, sX1ld, sStld = [f"s{i}" for i in range(89, 94)]
sj2 = "s94"
sYfl, sYld, sYlds, sGld = "s8", "s9", "s10", "s11"
sW2src, sIdle = "s0", "s1"
sQ = ["s12", "s13", "s14", "s15"]
sV4 = ["s20", "s21", "s22", "s23"]

vL, vL16, vTrX, vTrY, vTr0, vWs1, vWs, vW3s = [f"v{i}" for i in range(1, 9)]
vW3s1 = "v0"
vXs = [f"v{i}" for i in range(9, 13)]
vXr = [f"v{i}" for i in range(13, 17)]
vPoll, vP2, vZero, vCsA = "v17", "v18", "v19", "v20"
vT = [f"v{i}" for i in range(21, 27)] + ["v253"]
V_KK, V_SM = 28, 30
V_XRES, V_X1P = 32, 40
V_B, V_ACC, V_A, V_TMP = 48, 112, 176, 208
V_ONES = 244
V_SSM = 232
vPv, vPw, vKv, vKh = "v248", "v249", "v250", "v251"
V_SK = 252
vL128 = "v243"
vOut = "v27"
vH2fl, vY = "v252", "v9"
A_W2, A_PARK = 0, 128


def vr(b, n=1):
    return f"v{b}" if n == 1 else f"v[{b}:{b + n - 1}]"


def ar(b, n=1):
    return f"a{b}" if n == 1 else f"a[{b}:{b + n - 1}]"


def fbits(x):
    return "0x%08x" % struct.unpack("<I", struct.pack("<f", x))[0]


C0 = math.sqrt(2.0 / math.pi)
GK1 = -2.0 * C0 * math.log2(math.e)
GK2 = GK1 * 0.044715
SPIN_LIMIT = 400000


class Gen:
    def __init__(self, profile=False, diag=None, opt=None):
        self.profile = profile
        self.opt = opt or {}
        self.diag = diag
        self.p = Seq()
        self.nlabel = 0
        self.npoll = 0
        self.idle = (3 - self.opt.get('j2', 1)) & 7
        self.bgs = []
        self.stamps = []

    def label(self, base):
        self.nlabel += 1
        return f"L_{base}_{self.nlabel}"

    def stamp(self, p, name):
        p.mark("@" + name)
        if self.diag and name in self.diag[:2]:
            r = 96 + 2 * self.diag.index(name)
            p(f"{'s_memtime' if len(self.diag) > 3 else 's_memrealtime'} s[{r}:{r + 1}]")
            p.wait(lg0=True)
        if not self.profile:
            return
        only = self.opt.get("stamps")
        if only and name not in ("start", "end") and name not in only.split(",") and (self.opt.get("nodigit") or not name[-1].isdigit()):
            return
        i = len(self.stamps)
        self.stamps.append(name)
        q = Seq()
        q("s_memrealtime s[100:101]" if self.opt.get("rt") else "s_memtime s[100:101]")
        q.wait(lg0=True)
        q(f"v_writelane_b32 v254, s100, {i + 2}")
        p.atomic(q)

    def dma(self, p, vaddr, srd, soff, imm=0, flags="", count=True):
        off = f" offset:{imm}" if imm else ""
        return p(f"buffer_load_dwordx4 {vaddr}, {srd}, {soff} offen{off} {flags} lds", count)

    def bg(self, seq, cls, after, prio):
        b = Bg(seq, cls, after, prio)
        self.bgs.append((prio, len(self.bgs), b))
        return b

    def dma_pair(self, v0, v1, srd, src_lines, lds_reg, lds, flags=""):
        g = Seq()
        g(f"s_add_u32 m0, {lds_reg}, {lds}")
        g(src_lines)
        self.dma(g, v0, srd, sB, flags=flags)
        return g, self.dma(g, v1, srd, sB, 1024, flags=flags)

    def dense(self, tag, positions):
        plan = []
        if tag[0] in str(self.opt.get("dense", "")):
            for n in positions:
                q = Seq()
                self.stamp(q, f"{tag}{n}")
                plan.append((n, q))
        return plan

    def emit(self, p, groups):
        for g in groups:
            p.extend(g)

    def poll_issue(self, p, dst, vaddr, soff, srd=sWS):
        t = p(f"buffer_load_dword {dst}, {vaddr}, {srd}, {soff} offen sc1")
        t.note = "few"
        return t

    def poll_check(self, p0, dst, vaddr, soff, need):
        p = Seq()
        a, b = self.label("poll"), self.label("pdone")
        p(f"s_mov_b32 {sCnt}, {SPIN_LIMIT}")
        p(f"s_add_u32 {sE}, {sEp}, {need}")
        p(f"v_subrev_u32 {dst}, {sE}, {dst}")
        p(f"v_cmp_lt_u32 vcc, {6 - need}, {dst}")
        p(f"s_cbranch_vccz {b}")
        p(f"{a}:")
        p(f"s_sleep {self.opt.get('poll_sleep', 3)}")
        p(f"s_sub_u32 {sCnt}, {sCnt}, 1")
        p(f"buffer_load_dword {dst}, {vaddr}, {sWS}, {soff} offen sc1", count=False)
        p("s_waitcnt vmcnt(0)")
        p(f"v_subrev_u32 {dst}, {sE}, {dst}")
        p(f"v_cmp_lt_u32 vcc, {6 - need}, {dst}")
        p(f"s_cbranch_vccz {b}")
        p(f"s_cmp_lg_u32 {sCnt}, 0")
        p(f"s_cbranch_scc1 {a}")
        p(f"{b}:")
        if self.profile:
            self.npoll += 1
            p(f"s_sub_u32 {sCnt}, {SPIN_LIMIT}, {sCnt}")
            p(f"v_writelane_b32 v254, {sCnt}, {64 - self.npoll}")
        p0.atomic(p)

    def masked(self, p0, mask, text):
        p = Seq()
        p(f"s_mov_b64 exec, {mask}")
        t = p(text)
        p("s_mov_b64 exec, -1")
        p0.atomic(p)
        return t

    def readback(self, p, key, text, mask="0xffff"):
        if self.opt.get(key):
            self.masked(p, mask, text).note = "few"

    def publish(self, p, toks, value, area):
        p(f"s_add_u32 {sE}, {sEp}, {value}")
        p(f"v_mov_b32 {vP2}, {sE}")
        p(f"s_add_u32 {sE}, {sFlag}, {area}")
        p.wait(vm=toks)
        return self.masked(p, 1, f"buffer_store_dword {vP2}, {vZero}, {sWS}, {sE} offen sc1")

    def half_sum(self, p, reg, tmp):
        p(f"v_mov_b32 {tmp}, {reg}")
        p(f"v_permlane32_swap_b32 {reg}, {tmp}")
        p(f"v_add_f32 {reg}, {reg}, {tmp}")

    def a_reads(self, p, dst, vaddr, off, areg=False):
        f = ar if areg else vr
        p(f"ds_read_b64_tr_b16 {f(dst, 2)}, {vaddr} offset:{off}")
        return p(f"ds_read_b64_tr_b16 {f(dst + 2, 2)}, {vaddr} offset:{off + 512}")

    def ln_consts(self, p, vsum, vsq):
        p(f"v_mul_f32 {vr(V_SM + 1)}, {fbits(-1.0 / 512)}, {vsum}")
        p(f"v_mul_f32 {vsq}, {fbits(1.0 / 512)}, {vsq}")
        p(f"v_fma_f32 {vsq}, -{vr(V_SM + 1)}, {vr(V_SM + 1)}, {vsq}")
        p(f"v_max_f32 {vsq}, 0, {vsq}")
        p(f"v_add_f32 {vsq}, {fbits(1e-5)}, {vsq}")
        p(f"v_rsq_f32 {vsum}, {vsq}")
        p(f"v_sqrt_f32 {vr(V_SM)}, {vsq}")
        p(f"v_mul_f32 {vr(V_KK)}, {fbits(GK1)}, {vsum}")
        p(f"v_mul_f32 {vsq}, {vsum}, {vsum}")
        p(f"v_mul_f32 {vsq}, {vsq}, {vsum}")
        p(f"v_mul_f32 {vr(V_KK + 1)}, {fbits(GK2)}, {vsq}")

    def gelu_packed(self, p, acc, cs, tmp, out, n=16):
        KK, SM = vr(V_KK, 2), vr(V_SM, 2)
        for b in range(0, n, 8):
            pr = [b + 2 * i for i in range(4)]
            t = lambda x: tmp + (x - b)
            if self.opt.get("align", 1):
                p(".p2align 3")
            for x in pr:
                p(f"v_pk_fma_f32 {vr(acc + x, 2)}, {vr(cs + x, 2)}, {SM}, {vr(acc + x, 2)} op_sel:[0,1,0] op_sel_hi:[1,1,1]")
            for x in pr:
                p(f"v_pk_mul_f32 {vr(t(x), 2)}, {vr(acc + x, 2)}, {vr(acc + x, 2)}")
            for x in pr:
                p(f"v_pk_fma_f32 {vr(t(x), 2)}, {vr(t(x), 2)}, {KK}, {KK} op_sel:[0,1,0] op_sel_hi:[1,1,0]")
            for x in pr:
                p(f"v_pk_mul_f32 {vr(t(x), 2)}, {vr(t(x), 2)}, {vr(acc + x, 2)}")
            for x in range(b, b + 8):
                p(f"v_exp_f32 {vr(t(x))}, {vr(t(x))}")
            for x in pr:
                p(f"v_pk_fma_f32 {vr(t(x), 2)}, {vr(t(x), 2)}, {SM}, {SM} op_sel:[0,0,0] op_sel_hi:[1,0,0]")
            for x in range(b, b + 8):
                p(f"v_rcp_f32 {vr(t(x))}, {vr(t(x))}")
            for x in pr:
                p(f"v_pk_mul_f32 {vr(t(x), 2)}, {vr(t(x), 2)}, {vr(acc + x, 2)}")
            for x in pr:
                p(f"v_cvt_pk_bf16_f32 {vr(out + x // 2)}, {vr(t(x))}, {vr(t(x) + 1)}")

    def prologue(self, p):
        p("s_cmp_ge_u32 s2, 256")
        p("s_cbranch_scc1 L_end")
        if self.profile:
            p("v_mov_b32 v254, 0")
            p("s_memrealtime s[100:101]")
            p.wait(lg0=True)
            p("v_writelane_b32 v254, s100, 0")
        self.stamp(p, "start")
        p("s_load_dwordx16 s[64:79], s[0:1], 0")
        p("s_getpc_b64 s[48:49]")
        p("L_pc:")
        p("s_lshr_b32 s50, s2, 3")
        p("s_lshl_b32 s50, s50, 10")
        p("v_lshlrev_b32 v1, 7, v0")
        p("v_add_u32 v2, s50, v1")
        p("v_cmp_gt_u32 vcc, 32, v0")
        p("v_cndmask_b32 v1, v2, v1, vcc")
        p("v_min_u32 v1, CODE_BYTES, v1")
        p("v_cmp_gt_u32 vcc, 40, v0")
        p("s_and_saveexec_b64 s[50:51], vcc")
        p("s_cbranch_execz L_nopf")
        p("global_load_dword v255, v1, s[48:49]", count=False)
        p("L_nopf:")
        p("s_mov_b64 exec, s[50:51]")
        row, t1, t2 = vT[0], vT[1], vT[2]
        sT0, sT1 = "s52", "s53"
        p(f"""
        v_lshrrev_b32 {vT[3]}, 6, v0
        v_and_b32 {vL}, 63, v0
        v_readfirstlane_b32 {sw}, {vT[3]}
        v_lshrrev_b32 {row}, 3, {vL}
        v_and_b32 {t2}, 7, {vL}
        s_and_b32 {sT0}, s2, 7
        s_lshr_b32 {sT1}, s2, 6
        s_lshl_b32 {sc}, {sT0}, 2
        s_add_u32 {sc}, {sc}, {sT1}
        s_bfe_u32 {sj}, s2, 0x30003
        s_add_u32 {srot}, {sj}, {sT1}
        s_and_b32 {srot}, {srot}, {self.opt.get("rot1", 3)}
        s_and_b32 {sth}, {sw}, 1
        s_lshr_b32 {skh}, {sw}, 1
        s_lshl_b32 {sPriv}, {sw}, 14
        """)
        p(f"""
        s_lshr_b32 {sT0}, {sj}, 2
        s_add_u32 {sT0}, {sT0}, 1
        s_sub_u32 {sT1}, 0, {sT0}
        s_bitcmp1_b32 {sj}, 1
        s_cselect_b32 {sT0}, {sT0}, {sT1}
        s_lshl_b32 {sT1}, {sc}, 6
        s_add_u32 {sT0}, {sT0}, {sT1}
        s_lshl_b32 {sT1}, {sth}, 5
        s_add_u32 {sT0}, {sT0}, {sT1}
        s_lshl_b32 {sT0}, {sT0}, 10
        s_lshl_b32 {sT1}, {skh}, 9
        s_add_u32 {sT0}, {sT0}, {sT1}
        v_lshrrev_b32 {t1}, 1, {row}
        v_xor_b32 {t1}, {t1}, {t2}
        v_lshlrev_b32 {t1}, 4, {t1}
        v_lshl_add_u32 {t1}, {row}, 10, {t1}
        v_add_u32 {vXs[0]}, {sT0}, {t1}
        v_xor_b32 {t1}, 64, {t1}
        v_add_u32 {t1}, {sT0}, {t1}
        v_add_u32 {vXs[1]}, {8192 - 1024}, {t1}
        v_add_u32 {vXs[2]}, 16384, {vXs[0]}
        v_add_u32 {vXs[3]}, {24576 - 1024}, {t1}
        s_mov_b32 s6, {1 << 21}
        s_mov_b32 s7, 0x20000
        s_mov_b32 s22, {1 << 19}
        s_mov_b32 s23, 0x20000
        s_lshl_b32 {sWlds}, {skh}, 15
        s_lshl_b32 {sT1}, {sth}, 12
        s_add_u32 {sWlds}, {sWlds}, {sT1}
        s_lshl_b32 {sWsrc}, {skh}, 18
        s_lshl_b32 {sT1}, {sth}, 15
        s_add_u32 {sWsrc}, {sWsrc}, {sT1}
        s_lshl_b32 {sT1}, {sj}, 7
        s_add_u32 {sWsrc}, {sWsrc}, {sT1}
        v_lshrrev_b32 {vT[4]}, 2, {vL}
        v_and_b32 {vT[4]}, 4, {vT[4]}
        v_xor_b32 {vT[4]}, {vT[4]}, {t2}
        v_lshlrev_b32 {vT[4]}, 4, {vT[4]}
        v_lshl_add_u32 {vWs}, {row}, 10, {vT[4]}
        v_add_u32 {vWs1}, 7168, {vWs}
        """)
        p.wait(lg0=True)
        p("s_mov_b64 s[4:5], s[64:65]")
        p("s_mov_b64 s[20:21], s[78:79]")
        for dst, off in ((40, 112), (24, 64), (28, 72), (32, 80), (52, 88), (36, 96)):
            p(f"s_load_dwordx2 s[{dst}:{dst + 1}], s[0:1], {off}")
        for dst, src in ((8, 66), (12, 68), (48, 70), (16, 72), (50, 74)):
            p(f"s_mov_b64 s[{dst}:{dst + 1}], s[{src}:{src + 1}]")
        self.set_rot(p)
        self.stamp(p, "karg")

    def set_rot(self, p):
        for pos in range(4):
            p(f"s_add_u32 {sR[pos]}, {srot}, {pos}")
            p(f"s_and_b32 {sR[pos]}, {sR[pos]}, 3")
            p(f"s_lshl_b32 {sR[pos]}, {sR[pos]}, 7")

    def kernargs2(self, p):
        sizes = (1 << 21, 1 << 21, 1 << 21, 1 << 21, 1 << 19, 1 << 19, 512 * 3584, 1792 * 1024, 1 << 21, WS_SIZE, 256)
        for i, n in enumerate(sizes):
            if i not in (0, 4, 10):
                p(f"s_mov_b32 s{6 + 4 * i}, {n}")
                p(f"s_mov_b32 s{7 + 4 * i}, 0x20000")
        p(f"v_lshlrev_b32 {vL16}, 4, {vL}")
        p(f"v_mov_b32 {vZero}, 0")

    def touch(self, kind, after, prio):
        if after == "none":
            return
        g = Seq()
        srd, lines = {"w2": (sW2, 4), "w3": (sW3, 14), "w4": (sW4, 14)}[kind]
        g(f"s_lshl_b32 {sB}, s2, 2")
        g(f"s_add_u32 {sB}, {sB}, {sw}")
        g(f"s_mul_i32 {sB}, {sB}, {lines * 128}")
        self.masked(g, (1 << lines) - 1, f"buffer_load_dword v255, {vL128}, {srd}, {sB} offen")
        self.bg(g, "fewcold", after, prio)

    def touch_slow(self, kind, after, prio):
        g = Seq()
        srd, lines = {"w2": (sW2, 4), "w4": (sW4, 14)}[kind]
        g(f"s_lshr_b32 {sB}, s2, 3")
        g(f"s_lshl_b32 {sB}, {sB}, 2")
        g(f"s_add_u32 {sB}, {sB}, {sw}")
        g(f"s_mul_i32 {sB}, {sB}, {lines * 1024}")
        g(f"v_lshlrev_b32 {vr(V_TMP + 4)}, 10, {vL}")
        self.masked(g, (1 << lines) - 1, f"buffer_load_dword v255, {vr(V_TMP + 4)}, {srd}, {sB} offen offset:384")
        self.bg(g, "fewcold", after, prio)

    def idle_touch(self, piece, after, prio):
        for n in range(4):
            g = Seq()
            g(f"s_add_u32 {sB}, {sIdle}, {n * 524288 + piece * 32768}")
            g(f"buffer_load_dword v255, {vL128}, {sW4}, {sB} offen")
            self.bg(g, "few", after, prio)

    def warm_flags(self, p):
        for i in range(4):
            p(f"v_mov_b32 {vr(V_TMP + 4 + i)}, {sEp}")
        p(f"v_lshrrev_b32 {vP2}, 3, {vL}")
        p(f"v_mul_u32_u24 {vP2}, {FLAG1 - 128}, {vP2}")
        p(f"v_add_u32 {vP2}, {vP2}, {vL16}")
        self.masked(p, "0xffff", f"buffer_store_dwordx4 {vr(V_TMP + 4, 4)}, {vP2}, {sWS}, {sFlag} offen sc1")

    def advance_epoch(self, p):
        p(f"""
        s_or_b32 {sT0}, s2, {sw}
        s_cmp_eq_u32 {sT0}, 0
        s_cselect_b32 {sT0}, 0, {WS_SIZE}
        s_add_u32 {sT0}, {sT0}, {WS_EPOCH}
        s_add_u32 {sT1}, {sEp}, 8
        v_mov_b32 {vP2}, {sT1}
        """)
        self.masked(p, 1, f"buffer_store_dword {vP2}, {vZero}, {sWS}, {sT0} offen sc1")

    def x_loads(self, pos, cls, after, prio):
        for a in (0, 2):
            g = Seq()
            g(f"s_add_u32 m0, {sPriv}, {R2 + (pos * 4 + a) * 1024}")
            fl = self.opt.get("x_nt", "")
            self.dma(g, vXs[a], sX, sR[pos], flags=fl)
            self.dma(g, vXs[a + 1], sX, sR[pos], 1024, flags=fl)
            self.bg(g, cls, after, prio)

    def setup2(self, p):
        row, t1, t2 = vT[0], vT[1], vT[2]
        p(f"""
        s_xor_b32 {snh}, {sth}, {skh}
        s_mov_b32 {sOneLo}, 0x00003f80
        s_mov_b32 {sOneHi}, 0x3f800000
        s_add_u32 {sj2}, {sj}, {self.opt.get("j2", 1)}
        s_and_b32 {sj2}, {sj2}, 7
        s_add_u32 {sja}, {sj}, {self.opt.get("ja", 2)}
        s_and_b32 {sja}, {sja}, 7
        s_mov_b32 {sOnes}, 0x3f803f80
        s_mov_b32 {sHi}, 0xffff0000
        s_lshl_b32 {sFlag}, {sc}, 3
        s_add_u32 {sFlag}, {sFlag}, {sj}
        s_lshl_b32 {sFlag}, {sFlag}, 2
        s_add_u32 {sFlag}, {sFlag}, {sw}
        s_lshl_b32 {sFlag}, {sFlag}, 7
        s_lshr_b32 {sT0}, {sc}, 3
        s_lshl_b32 {ssc}, {sT0}, 2
        s_and_b32 {sT0}, {sc}, 3
        s_add_u32 {ssc}, {ssc}, {sT0}
        {"" if self.opt.get("pair", 1) else f"s_lshr_b32 {ssc}, {sc}, 1"}
        s_bfe_u32 {sT0}, {sc}, {"0x10002" if self.opt.get("pair", 1) else "0x10000"}
        s_mul_i32 {sm}, {sT0}, 7
        s_add_u32 {sm}, {sm}, {sj}
        s_cmp_gt_u32 {sj}, {self.idle}
        s_cselect_b32 {sT0}, 1, 0
        s_sub_u32 {sm}, {sm}, {sT0}
        s_cmp_eq_u32 {sj}, {self.idle}
        s_cselect_b32 {sOob}, {WS_SIZE}, {WS_SIZE if self.opt.get("dbg_noP3") else 0}
        v_lshlrev_b32 {vL128}, 7, {vL}
        v_mul_u32_u24 {vW3s}, 3584, {row}
        v_add_u32 {vW3s}, {vW3s}, {vT[4]}
        v_add_u32 {vW3s1}, {8 * 3584 - 1024}, {vW3s}
        s_mul_i32 {sW3b}, {sw}, {128 * 3584}
        s_lshl_b32 {sT1}, {sm}, 8
        s_add_u32 {sW3b}, {sW3b}, {sT1}
        s_add_u32 {sW3b}, {sW3b}, {sOob}
        s_lshl_b32 {sT1}, {sja}, 7
        s_lshl_b32 {sT0}, {sc}, 16
        s_add_u32 {sT0}, {sT0}, {sT1}
        v_lshlrev_b32 {vKv}, 4, {t2}
        v_lshl_add_u32 {vKv}, {row}, 10, {vKv}
        v_add_u32 {vKv}, {sT0}, {vKv}
        v_subrev_u32 {vKh}, 8192, {vKv}
        """)

    def w12_loads(self, srd, pos, cls, after, prio, sWsrc=sWsrc):
        toks = []
        for i in (0, 2):
            src = f"s_lshl_b32 {sB}, {sR[pos]}, 9\ns_add_u32 {sB}, {sB}, {sWsrc}"
            if i:
                src += f"\ns_add_u32 {sB}, {sB}, 16384"
            g, tk = self.dma_pair(vWs, vWs1, srd, src, sWlds, R0 + pos * 8192 + i * 1024)
            self.bg(g, cls, after, prio)
            toks.append(tk)
        return toks

    def kv_loads(self, t, after, prio):
        g = Seq()
        g(f"s_mul_i32 {sB}, {sw}, 2304")
        g(f"s_add_u32 {sB}, {sB}, {A1R}")
        g(f"s_cmp_eq_u32 {sw}, 0")
        g(f"s_cselect_b32 m0, {KB}, {sB}")
        g(f"s_cselect_b32 {sB}, 0, {1 << 21}")
        self.dma(g, vKh, sK, sB, flags=self.opt.get("kv_nt", "nt"))
        g(f"""
        s_lshl_b32 {sB}, {sja}, 2
        s_add_u32 {sB}, {sB}, {sw}
        s_lshl_b32 {sB}, {sB}, 7
        v_and_b32 {vKh}, 15, {vL}
        v_lshl_add_u32 {vKh}, {vKh}, 3, {sB}
        """)
        g(f"global_load_dwordx2 {vr(V_SK, 2)}, {vKh}, {pSH}")
        self.bg(g, "fewcold", after, prio)
        t["kv"] = []
        for srd, base in ((sK, KB + 1024), (sV, VB)):
            g = Seq()
            g(f"s_lshl_b32 {sB}, {sw}, 11")
            g(f"s_add_u32 m0, {sB}, {base}")
            g(f"s_lshl_b32 {sB}, {sw}, 14")
            self.dma(g, vKv, srd, sB, flags=self.opt.get("kv_nt", "nt"))
            g(f"s_add_u32 {sB}, {sB}, 7168")
            t["kv"].append(self.dma(g, vKv, srd, sB, 1024, flags=self.opt.get("kv_nt", "nt")))
            self.bg(g, "cold", after, prio)

    def small_addrs(self, p):
        p(f"""
        s_lshl_b32 {sT0}, {sc}, 6
        s_lshl_b32 {sT1}, {sth}, 5
        s_add_u32 {sT0}, {sT0}, {sT1}
        s_lshl_b32 {sT0}, {sT0}, 10
        s_lshl_b32 {sT1}, {sj2}, 7
        s_lshl_b32 {sT2}, {snh}, 6
        s_add_u32 {sT1}, {sT1}, {sT2}
        v_and_b32 {vOut}, 31, {vL}
        v_lshrrev_b32 {vPv}, 5, {vL}
        v_lshlrev_b32 {vPv}, 4, {vPv}
        v_add_u32 {vPv}, {sT1}, {vPv}
        v_lshl_add_u32 {vOut}, {vOut}, 10, {vPv}
        v_add_u32 {vOut}, {sT0}, {vOut}
        s_lshl_b32 {sT0}, {sj}, 6
        s_lshl_b32 {sT1}, {sc}, 1
        s_add_u32 {sT0}, {sT0}, {sT1}
        s_add_u32 {sT0}, {sT0}, {sth}
        s_lshl_b32 {sT1}, {sT0}, 1
        v_mov_b32 {vPw}, {sT1}
        s_lshl_b32 {sT0}, {sT0}, 12
        s_lshl_b32 {sT1}, {skh}, 11
        s_add_u32 {sStld}, {sT0}, {sT1}
        """)

    def small_loads(self, after, prio_x, prio_s, after_s):
        nt = self.opt.get("ssm_nt", "nt")
        g = Seq()
        g(f"buffer_load_dwordx4 {vr(V_XRES, 4)}, {vOut}, {sX}, 0 offen")
        g(f"buffer_load_dwordx4 {vr(V_XRES + 4, 4)}, {vOut}, {sX}, 0 offen offset:32")
        self.bg(g, "mall", after, prio_x)
        g = Seq()
        g(f"global_load_dwordx4 {vr(V_X1P, 4)}, {vPv}, {pG}")
        g(f"global_load_dwordx4 {vr(V_X1P + 4, 4)}, {vPv}, {pG} offset:32")
        g(f"global_load_ushort {vr(V_SSM + 5)}, {vPw}, {pD}")
        self.bg(g, "few", after, prio_x)
        g = Seq()
        g(f"buffer_load_dwordx4 {vr(V_SSM, 4)}, {vL16}, {sSK}, {sStld} offen {nt}")
        g(f"buffer_load_dwordx4 {vr(V_SSM + 6, 4)}, {vL16}, {sSK}, {sStld} offen offset:1024 {nt}")
        self.bg(g, "cold", after_s, prio_s)
        g = Seq()
        g(f"buffer_load_dword {vr(V_SSM + 4)}, {vL16}, {sSK}, {sStld} offen offset:16 {nt}")
        g(f"buffer_load_dword {vr(V_SSM + 10)}, {vL16}, {sSK}, {sStld} offen offset:1040 {nt}")
        self.bg(g, "few", after_s, prio_s)

    def lds_addrs(self, p):
        a, b, c = vT[0], vT[1], vT[2]
        p(f"""
        v_lshrrev_b32 {a}, 5, {vL}
        v_lshlrev_b32 {vTr0}, 10, {a}
        v_lshlrev_b32 {vCsA}, 4, {a}
        v_bfe_u32 {a}, {vL}, 2, 2
        v_lshl_add_u32 {vTr0}, {a}, 7, {vTr0}
        v_lshrrev_b32 {a}, 1, {a}
        v_lshl_add_u32 {vTr0}, {a}, 6, {vTr0}
        v_bfe_u32 {a}, {vL}, 4, 1
        v_lshl_add_u32 {vTr0}, {a}, 5, {vTr0}
        v_and_b32 {a}, 1, {vL}
        v_lshl_add_u32 {vTr0}, {a}, 4, {vTr0}
        v_bfe_u32 {a}, {vL}, 1, 1
        v_lshl_add_u32 {vTr0}, {a}, 3, {vTr0}
        s_lshl_b32 {sT0}, {snh}, 6
        s_lshl_b32 {sT1}, {skh}, 15
        v_xor_b32 {vTrX}, {sT0}, {vTr0}
        v_add_u32 {vTrX}, {sT1}, {vTrX}
        v_xor_b32 {vTrY}, 64, {vTrX}
        v_bfe_u32 {a}, {vL}, 3, 2
        v_lshlrev_b32 {a}, 10, {a}
        v_and_b32 {b}, 7, {vL}
        v_lshl_add_u32 {a}, {b}, 7, {a}
        s_add_u32 {sT0}, {sPriv}, {R2}
        v_add_u32 {a}, {sT0}, {a}
        v_bfe_u32 {b}, {vL}, 1, 3
        v_lshrrev_b32 {c}, 5, {vL}
        v_xor_b32 {b}, {b}, {c}
        """)
        for s in range(4):
            p(f"v_xor_b32 {c}, {2 * s}, {b}")
            p(f"v_lshl_add_u32 {vXr[s]}, {c}, 4, {a}")
        p(f"""
        v_and_b32 {a}, 3, {vL}
        v_bfe_u32 {b}, {vL}, 2, 1
        v_bfe_u32 {c}, {vL}, 4, 1
        v_xor_b32 {b}, {b}, {c}
        v_or_b32 {a}, {a}, {b}
        v_cmp_eq_u32 vcc, 0, {a}
        v_mov_b32 {b}, {sOnes}
        v_cndmask_b32 {vr(V_ONES)}, 0, {b}, vcc
        v_cndmask_b32 {vr(V_ONES + 1)}, 0, {b}, vcc
        v_cndmask_b32 {vr(V_ONES + 2)}, 0, {b}, vcc
        v_cndmask_b32 {vr(V_ONES + 3)}, 0, {b}, vcc
        """)

    def dot_stats(self, p, regs, first):
        S, Q, S2, Q2 = vr(V_TMP), vr(V_TMP + 1), vr(V_TMP + 2), vr(V_TMP + 3)
        for n in range(0, len(regs), 2):
            a, b = vr(regs[n]), vr(regs[n + 1])
            if first and n == 0:
                p(f"v_dot2_f32_bf16 {S}, {a}, {sOnes}, 0")
                p(f"v_dot2_f32_bf16 {Q}, {a}, {a}, 0")
                p(f"v_dot2_f32_bf16 {S2}, {b}, {sOnes}, 0")
                p(f"v_dot2_f32_bf16 {Q2}, {b}, {b}, 0")
            else:
                p(f"v_dot2c_f32_bf16 {S}, {sOnes}, {a}")
                p(f"v_dot2c_f32_bf16 {Q}, {a}, {a}")
                p(f"v_dot2c_f32_bf16 {S2}, {sOnes}, {b}")
                p(f"v_dot2c_f32_bf16 {Q2}, {b}, {b}")

    def fold_stats(self, p):
        S, Q, S2, Q2 = vr(V_TMP), vr(V_TMP + 1), vr(V_TMP + 2), vr(V_TMP + 3)
        p(f"v_add_f32 {S}, {S}, {S2}")
        p(f"v_add_f32 {Q}, {Q}, {Q2}")
        p(f"v_mov_b32 {S2}, {S}")
        p(f"v_mov_b32 {Q2}, {Q}")
        p(f"v_permlane32_swap_b32 {S}, {S2}")
        p(f"v_permlane32_swap_b32 {Q}, {Q2}")
        p(f"v_add_f32 {S}, {S}, {S2}")
        p(f"v_add_f32 {Q}, {Q}, {Q2}")

    def p1(self, p, t):
        o = self.opt
        w1 = []
        rot = o.get("rot1", 3)
        for pos in range(4):
            cls = "cold" if pos < o.get("p1_ncold", 4 // (bin(rot).count("1") * 2 or 1)) else "l2"
            self.x_loads(pos, "p1" + cls, "go2" if pos else "go", 0)
            w1.append(self.w12_loads(sW1, pos, "p1" + cls, "go2" if pos else "go", 0))
        p.mark("go", limit=5000, depth=o.get("depth0", 8))
        p("s_nop 0")
        self.kernargs2(p)
        p.mark("go2")
        self.setup2(p)
        p(f"s_load_dword {sEp}, s[40:41], {WS_EPOCH}")
        self.lds_addrs(p)
        self.small_addrs(p)
        p(f"""
        v_and_b32 {vT[0]}, 31, {vL}
        s_lshl_b32 {sT0}, {sw}, 8
        s_add_u32 {sT0}, {sT0}, {ST_STAT}
        v_lshl_add_u32 {vT[1]}, {vT[0]}, 3, {sT0}
        v_xor_b32 {vPoll}, 512, {vT[1]}
        s_add_u32 {sT0}, {sPriv}, {R2}
        v_add_u32 {vT[2]}, {sT0}, {vL16}
        v_xor_b32 {vT[5]}, 32768, {vT[2]}
        s_lshl_b32 {sT0}, {snh}, 8
        s_lshl_b32 {sT1}, {skh}, 7
        s_add_u32 {sT1}, {sT1}, {sT0}
        s_add_u32 {sT1}, {sT1}, {ST_CS}
        v_lshl_add_u32 {vT[3]}, {vT[0]}, 2, {sT1}
        s_add_u32 {sT0}, {sT0}, {ST_CS}
        v_add_u32 {vT[4]}, {sT0}, {vCsA}
        s_lshl_b32 {sT0}, {sc}, 1
        s_add_u32 {sT0}, {sT0}, {sth}
        s_lshl_b32 {sT0}, {sT0}, 15
        s_lshl_b32 {sT1}, {sj}, 12
        s_add_u32 {sT1}, {sT0}, {sT1}
        s_lshl_b32 {sT2}, {snh}, 11
        s_add_u32 {sH2st}, {sT1}, {sT2}
        s_lshl_b32 {sT1}, {skh}, 14
        s_add_u32 {sT0}, {sT0}, {sT1}
        s_add_u32 {sX1ld}, {sT0}, {WS_H}
        """)
        self.w4_offsets(p)
        p(f"s_sub_u32 {sT0}, {sj2}, {sj}")
        p(f"s_lshl_b32 {sT0}, {sT0}, 7")
        p(f"s_add_u32 {sW2src}, {sWsrc}, {sT0}")
        p(f"""
        s_lshr_b32 {sT0}, s2, 6
        s_lshl_b32 {sT0}, {sT0}, 17
        s_lshl_b32 {sT1}, {sw}, 13
        s_add_u32 {sT0}, {sT0}, {sT1}
        s_sub_u32 {sT1}, {WS_SIZE}, {sOob}
        s_add_u32 {sIdle}, {sT0}, {sT1}
        """)
        for piece, key in ((1, "it1"), (2, "it2"), (0, "it0"), (3, "it3")):
            if o.get(key):
                self.idle_touch(piece, o[key], 8)
        self.warm_flags(p)
        p.mark("setup")
        self.stamp(p, "setup")
        self.kv_loads(t, "setup", 1)
        self.touch("w2", o.get("touch_w2", "setup"), 2)
        if o.get("slow_w2", 1):
            self.touch_slow("w2", "setup", 2)
        if o.get("slow_w4", 1):
            self.touch_slow("w4", o.get("slow_w4_at", "conv"), 7)
        self.small_loads("setup", 3, 4, o.get("ssm_after", "setup"))
        self.touch("w3", o.get("touch_w3", "setup"), 5)
        self.touch("w4", o.get("touch_w4", "conv"), 6)
        accX, accY, cs = V_ACC, V_ACC + 16, V_ACC + 32
        AB = [V_A, V_B + 32]

        def reads(q, pos):
            q.wait(vm=w1[pos][-1])
            q("s_barrier")
            q.mark(f"P1b{pos}")
            for s in range(4):
                q(f"ds_read_b128 {vr(V_B + 16 * (pos & 1) + 4 * s, 4)}, {vXr[s]} offset:{pos * 4096}")
            for s in range(4):
                self.a_reads(q, AB[pos & 1] + 8 * s + 4, vTrY, pos * 8192 + s * 2048)
            for s in range(4):
                self.a_reads(q, AB[pos & 1] + 8 * s, vTrX, pos * 8192 + s * 2048)

        reads(p, 0)
        self.stamp(p, "x0 landed")
        for pos in range(4):
            B0, A0 = V_B + 16 * (pos & 1), AB[pos & 1]
            self.dot_stats(p, list(range(B0, B0 + 16)), pos == 0)
            q = Seq()
            for s in range(4):
                q(f"v_mfma_f32_32x32x16_bf16 {vr(accY, 16)}, {vr(A0 + 8 * s + 4, 4)}, {vr(B0 + 4 * s, 4)}, {'0' if pos + s == 0 else vr(accY, 16)}")
            for s in range(4):
                q(f"v_mfma_f32_16x16x32_bf16 {vr(cs, 4)}, {vr(V_ONES, 4)}, {vr(A0 + 8 * s, 4)}, {'0' if pos + s == 0 else vr(cs, 4)}")
            for s in range(4):
                q(f"v_mfma_f32_32x32x16_bf16 {vr(accX, 16)}, {vr(A0 + 8 * s, 4)}, {vr(B0 + 4 * s, 4)}, {'0' if pos + s == 0 else vr(accX, 16)}")
            plan = []
            if pos < 3:
                r = Seq()
                reads(r, pos + 1)
                plan += spread(split(r), o.get("p1_rd0", 2), 11)
            if pos == 3:
                st = Seq()
                self.fold_stats(st)
                st(f"ds_write_b64 {vT[1]}, {vr(V_TMP, 2)}")
                wr = Seq()
                for g in range(4):
                    wr(f"ds_write_b128 {vT[2]}, {vr(accY + 4 * g, 4)} offset:{g * 1024}")
                wr(f"ds_write_b32 {vT[3]}, {vr(cs)}")
                plan += spread(split(st), 1, 4) + spread(split(wr), 9, 12)
            p.extend(weave(q, plan + self.dense(f"a{pos}_", (0, 4, 8, 12))))
        p.mark(force=9)
        self.stamp(p, "p1 mfma")
        p.wait(lg0=True)
        p("s_barrier")
        c0, c1 = V_A, V_A + 16
        S, Q, S2, Q2 = vr(V_TMP), vr(V_TMP + 1), vr(V_TMP + 2), vr(V_TMP + 3)
        p(f"ds_read_b64 {vr(V_TMP + 2, 2)}, {vPoll}")
        for g in range(4):
            p(f"ds_read_b128 {vr(accY + 4 * g, 4)}, {vT[5]} offset:{g * 1024}")
        for g in range(4):
            p(f"ds_read_b128 {vr(c0 + 4 * g, 4)}, {vT[4]} offset:{g * 32}")
            p(f"ds_read_b128 {vr(c1 + 4 * g, 4)}, {vT[4]} offset:{128 + g * 32}")
        p.mark("B1", limit=o.get("lim_g1", 0), depth=o.get("depth", 10))
        p(f"v_add_f32 {S}, {S}, {S2}")
        p(f"v_add_f32 {Q}, {Q}, {Q2}")
        self.ln_consts(p, S, Q)
        for x in range(0, 16, 2):
            p(f"v_pk_add_f32 {vr(accX + x, 2)}, {vr(accX + x, 2)}, {vr(accY + x, 2)}")
        for x in range(0, 16, 2):
            p(f"v_pk_add_f32 {vr(c0 + x, 2)}, {vr(c0 + x, 2)}, {vr(c1 + x, 2)}")
        out = V_TMP + 8
        self.gelu_packed(p, accX, c0, V_TMP + 16, out)
        p(f"s_add_u32 {sT0}, {sH2st}, {WS_H}")
        s0 = p(f"buffer_store_dwordx4 {vr(out, 4)}, {vL16}, {sWS}, {sT0} offen sc1")
        s1 = p(f"buffer_store_dwordx4 {vr(out + 4, 4)}, {vL16}, {sWS}, {sT0} offen offset:1024 sc1")
        t["h"] = [s0, s1]
        p.mark("h_st", limit=o.get("lim_w2", 2000))
        self.stamp(p, "h stored")
        t["w2"] = []
        for pos in range(4):
            early = pos < o.get("w2_early", 0)
            t["w2"] += self.w12_loads(sW2, pos, "mall", f"P1b{pos + 2}" if early else "B1", o.get("prio_w2e", 3.5) if early else 11, sW2src)

    def h_flag(self, p, t):
        self.publish(p, t["h"], 1, FLAG0)
        if self.opt.get("rb_h", 0):
            p(f"s_add_u32 {sT0}, {sH2st}, {WS_H}")
            self.masked(p, "0xffff", f"buffer_load_dword v255, {vL128}, {sWS}, {sT0} offen sc1").note = "few"
        p.mark("h_flag", limit=self.opt.get("lim_hflag", 1500))
        self.stamp(p, "h flag")

    def a1(self, p, t):
        kk, vv, o = V_B, V_B + 12, V_TMP
        sk = V_SK
        a, b = vT[0], vT[1]
        p(f"""
        v_lshrrev_b32 {a}, 4, {vL}
        v_lshlrev_b32 {a}, 11, {a}
        v_bfe_u32 {b}, {vL}, 2, 2
        v_lshl_add_u32 {a}, {b}, 7, {a}
        v_and_b32 {b}, 3, {vL}
        v_lshl_add_u32 {a}, {b}, 3, {a}
        s_lshl_b32 {sT0}, {sw}, 5
        s_add_u32 {sT0}, {sT0}, {KB}
        v_add_u32 {a}, {sT0}, {a}
        """)
        p.wait(vm=t["kv"])
        p("s_barrier")
        p.mark("Bkv")
        for rd in range(5):
            p(f"ds_read_b64_tr_b16 {vr(kk + 2 * rd, 2)}, {a} offset:{(4 + 4 * rd) * 128}")
        for rd in range(4):
            p(f"ds_read_b64_tr_b16 {vr(vv + 2 * rd, 2)}, {a} offset:{(VB - KB) + 4 * rd * 128}")
        c10, c32, c0, c21, c3 = V_A, V_A + 1, V_A + 2, V_A + 3, V_A + 4
        p(f"v_alignbit_b32 {vr(c10)}, {vr(sk)}, {vr(sk)}, 16")
        p(f"v_alignbit_b32 {vr(c32)}, {vr(sk + 1)}, {vr(sk + 1)}, 16")
        p(f"v_and_b32 {vr(c0)}, 0xffff, {vr(sk)}")
        p(f"v_and_b32 {vr(c3)}, {sHi}, {vr(sk + 1)}")
        p(f"v_and_b32 {vr(c21)}, 0xffff, {vr(sk + 1)}")
        p(f"v_and_or_b32 {vr(c21)}, {vr(sk)}, {sHi}, {vr(c21)}")
        p(f"""
        v_and_b32 {vT[3]}, 3, {vL}
        v_bfe_u32 {vT[2]}, {vL}, 2, 1
        v_lshlrev_b32 {vT[3]}, 9, {vT[3]}
        v_lshl_add_u32 {vPoll}, {vT[2]}, 8, {vT[3]}
        s_lshl_b32 {sC}, {sc}, 12
        s_lshl_b32 {sT1}, {skh}, 11
        s_add_u32 {sC}, {sC}, {sT1}
        s_lshl_b32 {sT1}, {sth}, 7
        s_add_u32 {sC}, {sC}, {sT1}
        """)
        f = V_ACC
        q = Seq()
        for i in range(8):
            q(f"v_dot2_f32_bf16 {vr(f + 2 * i)}, {vr(kk + i)}, {vr(c3)}, 0")
            q(f"v_dot2_f32_bf16 {vr(f + 2 * i + 1)}, {vr(kk + i + 1)}, {vr(c32)}, 0")
        for i in range(8):
            q(f"v_dot2_f32_bf16 {vr(f + 2 * i)}, {vr(kk + i + 1)}, {vr(c21)}, {vr(f + 2 * i)}")
            q(f"v_dot2_f32_bf16 {vr(f + 2 * i + 1)}, {vr(kk + i + 2)}, {vr(c10)}, {vr(f + 2 * i + 1)}")
        for i in range(8):
            q(f"v_dot2_f32_bf16 {vr(f + 2 * i)}, {vr(kk + i + 2)}, {vr(c0)}, {vr(f + 2 * i)}")
        for i in range(8):
            q(f"v_lshlrev_b32 {vr(f + 16 + 2 * i)}, 16, {vr(vv + i)}")
            q(f"v_and_b32 {vr(f + 17 + 2 * i)}, {sHi}, {vr(vv + i)}")
        for i in range(8):
            q(f"v_pk_mul_f32 {vr(f + 2 * i, 2)}, {vr(f + 2 * i, 2)}, {vr(f + 16 + 2 * i, 2)}")
        for i in range(8):
            q(f"v_cvt_pk_bf16_f32 {vr(o + i)}, {vr(f + 15 - 2 * i)}, {vr(f + 14 - 2 * i)}")
        mode = self.opt.get("a1_first", 60)
        if mode > 1:
            hf = Seq()
            self.h_flag(hf, t)
            q = weave(q, [(mode, hf)], kinds=("valu",))
        p.extend(q)
        if mode == 0:
            self.h_flag(p, t)
        p(f"""
        v_and_b32 {a}, 15, {vL}
        v_mul_u32_u24 {a}, 144, {a}
        v_lshrrev_b32 {b}, 4, {vL}
        v_sub_u32 {b}, 3, {b}
        v_lshl_add_u32 {a}, {b}, 5, {a}
        s_mul_i32 {sT0}, {sw}, 2304
        s_add_u32 {sT0}, {sT0}, {A1R}
        v_add_u32 {a}, {sT0}, {a}
        """)
        p(f"ds_write_b128 {a}, {vr(o, 4)}")
        w2 = p(f"ds_write_b128 {a}, {vr(o + 4, 4)} offset:16")
        p(f"""
        v_lshrrev_b32 {a}, 3, {vL}
        v_and_b32 {b}, 7, {vL}
        v_lshlrev_b32 {b}, 4, {b}
        v_lshl_add_u32 {vT[2]}, {a}, 12, {b}
        v_mul_u32_u24 {a}, 144, {a}
        v_add3_u32 {a}, {a}, {b}, {sT0}
        s_lshl_b32 {sT0}, {sja}, 18
        s_lshl_b32 {sT1}, {sw}, 16
        s_add_u32 {sT0}, {sT0}, {sT1}
        s_sub_u32 {sT1}, 31, {sc}
        s_lshl_b32 {sT1}, {sT1}, 7
        s_add_u32 {sT0}, {sT0}, {sT1}
        s_add_u32 {sT0}, {sT0}, {WS_KVT}
        s_add_u32 {sT1}, {sT0}, 32768
        """)
        p.wait(lg=w2)
        p(f"ds_read_b128 {vr(o + 8, 4)}, {a}")
        p(f"ds_read_b128 {vr(o + 12, 4)}, {a} offset:{8 * 144}")
        s0 = p(f"buffer_store_dwordx4 {vr(o + 8, 4)}, {vT[2]}, {sWS}, {sT0} offen sc1")
        s1 = p(f"buffer_store_dwordx4 {vr(o + 12, 4)}, {vT[2]}, {sWS}, {sT1} offen sc1")
        t["kvt"] = [s0, s1]
        self.stamp(p, "a1 done")
        if self.opt.get("a1_first", 60) == 1:
            self.h_flag(p, t)

    def w3_loads(self, line, lds, after, prio, blocks=range(0, 16, 2)):
        toks = []
        for i in blocks:
            g, tk = self.dma_pair(vW3s, vW3s1, sW3, f"s_add_u32 {sB}, {sW3b}, {line * 128 + i * 8 * 3584}", sPriv, lds + i * 1024)
            self.bg(g, "mall", after, prio)
            toks.append(tk)
        return toks

    def w4_offsets(self, p):
        p(f"s_mul_i32 {sT0}, {sw}, 7")
        p(f"s_lshl_b32 {sT2}, {sj2}, 7")
        if self.opt.get("dbg_now4"):
            p(f"s_add_u32 {sT2}, {sT2}, {WS_SIZE}")
        for u in range(7):
            p(f"""
            s_add_u32 {sT1}, {sT0}, {u}
            s_lshr_b32 {sU[u]}, {sT1}, 1
            s_lshl_b32 {sU[u]}, {sU[u]}, 17
            s_and_b32 {sT1}, {sT1}, 1
            s_lshl_b32 {sT1}, {sT1}, 14
            s_add_u32 {sU[u]}, {sU[u]}, {sT1}
            s_add_u32 {sU[u]}, {sU[u]}, {sT2}
            """)

    def w4_loads(self, piece, lds, after, prio):
        toks = []
        for u in range(7):
            oob = WS_SIZE if piece == 3 and u < self.opt.get("dbg_p3", 0) else 0
            g, tk = self.dma_pair(vWs, vWs1, sW4, f"s_add_u32 {sB}, {sU[u]}, {piece * 32768 + oob}", sPriv, lds + u * 2048)
            self.bg(g, "mall", after, prio)
            toks.append(tk)
        return toks

    def w4_park(self, piece, areg, after, prio):
        for u in range(7):
            g = Seq()
            g(f"s_add_u32 {sB}, {sU[u]}, {piece * 32768}")
            g(f"buffer_load_dwordx4 {ar(areg + 8 * u, 4)}, {vWs}, {sW4}, {sB} offen")
            g(f"buffer_load_dwordx4 {ar(areg + 8 * u + 4, 4)}, {vWs1}, {sW4}, {sB} offen offset:1024")
            self.bg(g, "mall", after, prio)

    def w4_unpark_groups(self, areg, vaddr):
        groups, toks = [], []
        for n in range(14):
            g = Seq()
            toks.append(g(f"ds_write_b128 {vaddr}, {ar(areg + 4 * n, 4)} offset:{n * 1024}"))
            groups.append(g)
        return groups, toks

    def gate_partial(self, p):
        g, g2 = vr(V_TMP), vr(V_TMP + 1)
        for i in range(0, 8, 2):
            p(f"v_dot2_f32_bf16 {g}, {vr(V_XRES + i)}, {vr(V_X1P + i)}, {'0' if i == 0 else g}")
            p(f"v_dot2_f32_bf16 {g2}, {vr(V_XRES + i + 1)}, {vr(V_X1P + i + 1)}, {'0' if i == 0 else g2}")
        p(f"""
        s_lshl_b32 {sT3}, {sc}, 1
        s_add_u32 {sT3}, {sT3}, {sth}
        s_lshl_b32 {sD}, {sT3}, 11
        s_lshl_b32 {sT1}, {sj2}, 1
        s_add_u32 {sT1}, {sT1}, {snh}
        s_lshl_b32 {sT1}, {sT1}, 7
        s_add_u32 {sD}, {sD}, {sT1}
        v_lshlrev_b32 {vT[5]}, 2, {vL}
        s_add_u32 {sD}, {sD}, {WS_GATE}
        """)
        p(f"v_add_f32 {g}, {g}, {g2}")
        self.half_sum(p, g, g2)
        self.masked(p, "0xffffffff", f"buffer_store_dword {g}, {vT[5]}, {sWS}, {sD} offen sc1")

    def stage_conv_k(self, p):
        a, b = vT[0], vT[1]
        d = V_SSM
        o = V_TMP + 8
        p(f"""
        s_mul_i32 {sT0}, {sth}, {KCH}
        s_add_u32 {sT0}, {sT0}, {CK}
        s_lshl_b32 {sT1}, {skh}, 11
        s_add_u32 {sT1}, {sT1}, {sT0}
        v_add_u32 {a}, {sT1}, {vL16}
        v_cmp_eq_u32 vcc, 63, {vL}
        s_cmp_eq_u32 {skh}, 1
        s_cselect_b64 vcc, vcc, 0
        v_cndmask_b32 {vr(d + 10)}, {vr(d + 10)}, {vZero}, vcc
        """)
        p(f"ds_write_b128 {a}, {vr(d, 4)} offset:64")
        p(f"ds_write_b128 {a}, {vr(d + 6, 4)} offset:{64 + 1024}")
        for i in range(4):
            p(f"v_alignbit_b32 {vr(o + i)}, {vr(d + i + 1)}, {vr(d + i)}, 16")
            p(f"v_alignbit_b32 {vr(o + 4 + i)}, {vr(d + 7 + i)}, {vr(d + 6 + i)}, 16")
        p(f"ds_write_b128 {a}, {vr(o, 4)} offset:{KCOPY + 64}")
        p(f"ds_write_b128 {a}, {vr(o + 4, 4)} offset:{KCOPY + 64 + 1024}")
        p(f"""
        s_mul_i32 {sT1}, {skh}, {64 + 4096}
        s_add_u32 {sT1}, {sT1}, {sT0}
        v_and_b32 {b}, 15, {vL}
        v_lshl_add_u32 {a}, {b}, 2, {sT1}
        v_readfirstlane_b32 {sT2}, {vr(d)}
        s_lshl_b32 {sT2}, {sT2}, 16
        s_cmp_eq_u32 {skh}, 0
        s_cselect_b32 {sT2}, {sT2}, 0
        v_cmp_eq_u32 vcc, 15, {b}
        v_mov_b32 {b}, {sT2}
        v_cndmask_b32 {b}, 0, {b}, vcc
        """)
        p(f"ds_write_b32 {a}, {vZero}")
        p(f"ds_write_b32 {a}, {b} offset:{KCOPY}")
        p(f"""
        s_mul_i32 {sT0}, {sth}, {UCH}
        s_add_u32 {sT0}, {sT0}, {CU}
        s_lshl_b32 {sT1}, {skh}, 8
        s_add_u32 {sT1}, {sT1}, {sT0}
        v_lshl_add_u32 {a}, {vL}, 2, {sT1}
        v_and_b32 {b}, 7, {vL}
        v_lshl_add_u32 {b}, {b}, 2, {sT0}
        """)
        p(f"ds_write_b32 {a}, {vZero} offset:{32 + 4096}")
        p(f"ds_write_b32 {a}, {vZero} offset:{32 + 4096 + 256}")
        p(f"ds_write_b32 {b}, {vZero}")

    def p2(self, p, t):
        o = self.opt
        self.gate_partial(p)
        for pos in range(4):
            p(f"s_lshl_b32 {sQ[pos]}, {sR[pos]}, 5")
            p(f"s_add_u32 {sQ[pos]}, {sQ[pos]}, {sX1ld}")
        self.publish(p, t["kvt"], 1, FLAG1)
        p.wait(vm=t["w2"][o.get("hpoll_wait", 7)])
        self.poll_issue(p, vPv, vPoll, sC)
        self.poll_check(p, vPv, vPoll, sC, 1)
        p.mark("h_seen", limit=self.opt.get("lim_def", 1300))
        self.stamp(p, "h seen")
        for pos in range(4):
            for s in (0, 2):
                g = Seq()
                for x in (s, s + 1):
                    g(f"buffer_load_dwordx4 {vr(V_B + 16 * pos + 4 * x, 4)}, {vL16}, {sWS}, {sQ[pos]} offen offset:{x * 1024} sc1")
                self.bg(g, "hand", "h_seen", 10)
        p(f"""
        v_and_b32 {vKv}, 31, {vL}
        v_lshlrev_b32 {vKv}, 12, {vKv}
        s_sub_u32 {sD}, {sj}, {self.opt.get("ja", 2)}
        s_and_b32 {sD}, {sD}, 7
        s_lshl_b32 {sD}, {sD}, 9
        s_lshr_b32 {sT3}, {sc}, 3
        s_lshl_b32 {sT3}, {sT3}, 7
        s_add_u32 {sD}, {sD}, {sT3}
        s_add_u32 {sD}, {sD}, {FLAG1}
        s_add_u32 {sT3}, {sPriv}, {EX2}
        v_add_u32 {vT[2]}, {sT3}, {vL16}
        v_xor_b32 {vT[3]}, 32768, {vT[2]}
        s_sub_u32 {sT0}, {sj2}, {sj}
        s_lshl_b32 {sT0}, {sT0}, 12
        s_add_u32 {sT0}, {sT0}, {sH2st}
        s_add_u32 {sH2st}, {sT0}, {WS_X1}
        s_lshl_b32 {sT3}, {sc}, 1
        s_add_u32 {sT3}, {sT3}, {sth}
        s_lshl_b32 {sC}, {sT3}, 12
        s_lshl_b32 {sT1}, {sj2}, 9
        s_add_u32 {sC}, {sC}, {sT1}
        s_lshl_b32 {sT1}, {snh}, 8
        s_add_u32 {sC}, {sC}, {sT1}
        s_add_u32 {sC}, {sC}, {WS_STATS}
        v_lshlrev_b32 {vKh}, 3, {vL}
        """)
        p.wait(vm=t["w2"], lg0=True)
        p("s_barrier")
        p.mark("Bp2")
        t["l0"] = self.w3_loads(0, R2, o.get("l0_after", "Bp2"), 30, range(0, 12, 2)) + self.w3_loads(0, R2, "conv", 29, (12, 14))
        accX, accY = V_ACC, V_ACC + 16
        q = Seq()

        for ks in range(3):
            self.a_reads(q, V_A + 8 * ks + 4, vTrY, ks * 2048)
            self.a_reads(q, V_A + 8 * ks, vTrX, ks * 2048)
        self.stage_conv_k(q)
        for ks in range(13):
            z = ks == 0
            A, B, N = V_A + 8 * (ks % 4), V_B + 4 * ks, V_A + 8 * ((ks + 3) % 4)
            q(f"v_mfma_f32_32x32x16_bf16 {vr(accY, 16)}, {vr(A + 4, 4)}, {vr(B, 4)}, {'0' if z else vr(accY, 16)}")
            self.a_reads(q, N + 4, vTrY, (ks + 3) * 2048)
            q(f"v_mfma_f32_32x32x16_bf16 {vr(accX, 16)}, {vr(A, 4)}, {vr(B, 4)}, {'0' if z else vr(accX, 16)}")
            self.a_reads(q, N, vTrX, (ks + 3) * 2048)
        for ks in range(13, 16):
            q(f"v_mfma_f32_32x32x16_bf16 {vr(accY, 16)}, {vr(V_A + 8 * (ks % 4) + 4, 4)}, {vr(V_B + 4 * ks, 4)}, {vr(accY, 16)}")
        for ks in range(13, 16):
            q(f"v_mfma_f32_32x32x16_bf16 {vr(accX, 16)}, {vr(V_A + 8 * (ks % 4), 4)}, {vr(V_B + 4 * ks, 4)}, {vr(accX, 16)}")
        pub, pl, lim = Seq(), Seq(), Seq()
        lim.mark(limit=o.get("lim_p2", 1300))
        self.poll_issue(pl, vPw, vKv, sD)
        p.extend(weave(q, [(16, lim), (o.get("kvt_poll_at", 26), Seq() if o.get("kvt_late", 0) else pl)] + self.dense("a5_", (0, 1, 8, 16, 24, 32))))
        for g in range(4):
            p(f"ds_write_b128 {vT[2]}, {vr(accY + 4 * g, 4)} offset:{g * 1024}")
        p.mark(limit=o.get("lim_e2", 1100))
        self.stamp(p, "p2 mfma")
        p.wait(lg0=True)
        p("s_barrier")
        p.mark("B2")
        t["l1"] = self.w3_loads(1, R0, "B2", 31)
        for g in range(4):
            p(f"ds_read_b128 {vr(accY + 4 * g, 4)}, {vT[3]} offset:{g * 1024}")
        for i in range(8):
            p(f"v_dot2c_f32_bf16 {vr(accX + 2 * i)}, {sOneLo}, {vr(V_XRES + i)}")
            p(f"v_dot2c_f32_bf16 {vr(accX + 2 * i + 1)}, {sOneHi}, {vr(V_XRES + i)}")
        for x in range(0, 16, 2):
            p(f"v_pk_add_f32 {vr(accX + x, 2)}, {vr(accX + x, 2)}, {vr(accY + x, 2)}")
        for i in range(8):
            p(f"v_cvt_pk_bf16_f32 {vr(V_X1P + i)}, {vr(accX + 2 * i)}, {vr(accX + 2 * i + 1)}")
        if o.get("rb_x1"):
            p(f"s_mov_b32 {sIdle}, {sH2st}")
        s0 = p(f"buffer_store_dwordx4 {vr(V_X1P, 4)}, {vL16}, {sWS}, {sH2st} offen sc1")
        s1 = p(f"buffer_store_dwordx4 {vr(V_X1P + 4, 4)}, {vL16}, {sWS}, {sH2st} offen offset:1024 sc1")
        self.dot_stats(p, list(range(V_X1P, V_X1P + 8)), True)
        self.fold_stats(p)
        s2 = self.masked(p, "0xffffffff", f"buffer_store_dwordx2 {vr(V_TMP, 2)}, {vKh}, {sWS}, {sC} offen sc1")
        t["x1"] = [s0, s1, s2]
        self.stamp(p, "x1 stored")

    def conv(self, p, t):
        o = self.opt
        p(f"""
        s_lshl_b32 {sT0}, {sj}, 6
        s_lshl_b32 {sT1}, {sc}, 1
        s_add_u32 {sT0}, {sT0}, {sT1}
        s_add_u32 {sT0}, {sT0}, {sth}
        s_lshl_b32 {sT0}, {sT0}, 12
        s_lshl_b32 {sT1}, {skh}, 11
        s_add_u32 {sT0}, {sT0}, {sT1}
        s_add_u32 {sT0}, {sT0}, {WS_KVT}
        s_mul_i32 {sT2}, {sth}, {UCH}
        s_add_u32 {sT1}, {sT1}, {sT2}
        """)
        def kvt_part(p):
            p(f"s_mov_b32 {sT0}, {sYld}")
            p(f"s_mov_b32 {sT1}, {sYlds}")
            self.poll_check(p, vPw, vKv, sD, 1)
            self.stamp(p, "kvt seen")
            g = Seq()
            g(f"s_add_u32 m0, {sT1}, {CU + 32}")
            self.dma(g, vL16, sWS, sT0, 0, "sc1").note = "hand"
            u = self.dma(g, vL16, sWS, sT0, 1024, "sc1")
            u.note = "hand"
            p.atomic(g)
            return u

        late = o.get("kvt_late", 0)
        p(f"s_mov_b32 {sYld}, {sT0}")
        p(f"s_mov_b32 {sYlds}, {sT1}")
        if late:
            self.poll_issue(p, vPw, vKv, sD)
        else:
            u = kvt_part(p)
        p.mark("x1_st", limit=o.get("lim_conv", 1500), depth=o.get("depth2", 10))
        vA = [vXs[1], vXs[2], vXs[3], vXr[0], vXr[1]]
        vB = vXr[2]
        a, b = vT[0], vT[1]
        p(f"""
        v_and_b32 {a}, 15, {vL}
        v_lshrrev_b32 {b}, 4, {vL}
        v_lshlrev_b32 {b}, 4, {b}
        s_lshl_b32 {sT1}, {skh}, 8
        s_add_u32 {sT2}, {sT2}, {sT1}
        s_add_u32 {sT2}, {sT2}, {CU + 480}
        v_lshlrev_b32 {vB}, 5, {a}
        v_sub_u32 {vB}, {b}, {vB}
        v_add_u32 {vB}, {sT2}, {vB}
        v_add_u32 {vA[0]}, 1, {a}
        v_and_b32 {vA[0]}, 30, {vA[0]}
        v_lshl_add_u32 {vA[0]}, {vA[0]}, 1, {b}
        v_and_b32 {a}, 1, {a}
        v_xor_b32 {a}, 1, {a}
        v_mul_u32_u24 {a}, {KCOPY}, {a}
        s_mul_i32 {sT0}, {sth}, {KCH}
        s_add_u32 {sT0}, {sT0}, {sT1}
        s_add_u32 {sT0}, {sT0}, {CK}
        v_add3_u32 {vA[0]}, {vA[0]}, {a}, {sT0}
        """)
        for i in range(1, 4):
            p(f"v_add_u32 {vA[i]}, {1024 * i}, {vA[0]}")
        p(f"s_cmp_eq_u32 {skh}, 0")
        p(f"s_cselect_b32 {sT0}, 4096, 0")
        p(f"v_add_u32 {vA[4]}, {sT0}, {vA[0]}")
        p(f"""
        v_and_b32 {vT[3]}, 7, {vL}
        v_bfe_u32 {vT[4]}, {vL}, 3, 1
        v_lshlrev_b32 {vT[3]}, 9, {vT[3]}
        v_lshl_add_u32 {vPoll}, {vT[4]}, 8, {vT[3]}
        s_lshl_b32 {sT2}, {ssc}, 1
        s_add_u32 {sT2}, {sT2}, {skh}
        s_lshl_b32 {sC}, {sT2}, 12
        s_lshl_b32 {sT1}, {sth}, 7
        s_add_u32 {sC}, {sC}, {sT1}
        s_mul_i32 {sH2st}, {sT2}, 229376
        s_lshl_b32 {sT1}, {sm}, 12
        s_add_u32 {sH2st}, {sH2st}, {sT1}
        s_lshl_b32 {sT1}, {sth}, 10
        s_add_u32 {sH2st}, {sH2st}, {sT1}
        s_add_u32 {sH2st}, {sH2st}, {WS_H2}
        s_add_u32 {sH2st}, {sH2st}, {sOob}
        s_lshl_b32 {sT2}, {ssc}, 2
        s_add_u32 {sT2}, {sT2}, {sw}
        s_lshl_b32 {sX1ld}, {sT2}, 15
        s_add_u32 {sX1ld}, {sX1ld}, {WS_X1}
        s_add_u32 {sX1ld}, {sX1ld}, {sOob}
        s_lshl_b32 {sStld}, {sT2}, 12
        s_add_u32 {sStld}, {sStld}, {WS_STATS}
        s_add_u32 {sStld}, {sStld}, {sOob}
        s_add_u32 {srot}, {sw}, {sj}
        s_and_b32 {srot}, {srot}, 3
        """)
        self.set_rot(p)
        for pos in range(4):
            p(f"s_lshl_b32 {sQ[pos]}, {sR[pos]}, 6")
            p(f"s_add_u32 {sQ[pos]}, {sQ[pos]}, {sX1ld}")
            p(f"s_add_u32 {sV4[pos]}, {sQ[pos]}, 4096")
        if not late:
            self.late_addrs(p)
        self.publish(p, t["x1"], 2, FLAG0)
        self.readback(p, "rb_x1", f"buffer_load_dword v255, {vL128}, {sWS}, {sIdle} offen sc1")
        if late:
            u = kvt_part(p)
            self.late_addrs(p)
        p.mark("x1_flag")
        self.stamp(p, "x1 flag")
        p.wait(vm=u, lg0=True)
        p("s_barrier")
        p.mark("conv")
        self.stamp(p, "conv start")
        self.w4_park(1, A_PARK, o.get("park2_after", "conv2"), 40)
        acc, AF = V_ACC + 32, V_A
        BF = [V_B, V_B + 32]
        BX = V_TMP
        q = Seq()
        order = (0, 7, 1, 6, 2, 5, 3, 4)
        rows = [(0, 8)] + [(rho, aa) for rho in range(4) for aa in order]

        def rdA(n):
            rho, aa = rows[n]
            of = (64 * rho + 512 * (aa & 1)) // 4
            q(f"ds_read2_b32 {vr(AF + 4 * (n % 8), 2)}, {vA[aa >> 1]} offset0:{of} offset1:{of + 1}")
            q(f"ds_read2_b32 {vr(AF + 4 * (n % 8) + 2, 2)}, {vA[aa >> 1]} offset0:{of + 2} offset1:{of + 3}")

        def rdB(bb, rho):
            d = BX if bb < 0 else BF[rho & 1] + 4 * bb
            q(f"ds_read_b128 {vr(d, 4)}, {vB} offset:{3584 - 512 * bb + 64 * rho}")

        rdA(0)
        rdB(-1, 0)
        rdA(1)
        for bb in range(7, 1, -1):
            rdB(bb, 0)
        late = [lambda: rdB(1, 0), lambda: rdB(0, 0), lambda: rdA(2), lambda: rdA(3), lambda: rdA(4)]
        started = set()
        for n, (rho, aa) in enumerate(rows):
            bs = list(range(7 - aa, -1, -1)) + ([-1] if rho == 0 and aa > 0 else [])
            for k, bb in enumerate(bs):
                d = vr(acc + 4 * (aa + bb), 4)
                B = BX if bb < 0 else BF[rho & 1] + 4 * bb
                q(f"v_mfma_f32_16x16x32_bf16 {d}, {vr(AF + 4 * (n % 8), 4)}, {vr(B, 4)}, {d if aa + bb in started else '0'}")
                started.add(aa + bb)
                if late:
                    late.pop(0)()
                if k == 0 and n + 5 < len(rows):
                    rdA(n + 5)
                if k == len(bs) // 2 and n > 0 and rho < 3:
                    rdB(7 - (n - 1) % 8, rho + 1)
        pl, pk, m2 = Seq(), Seq(), Seq()
        pl.mark(limit=o.get("lim_x1poll", 1400))
        pp = o.get("x1_poll_at", 80)
        pl2 = Seq()
        self.poll_issue(pl2, vPv, vPoll, sC)
        pl2.mark(limit=o.get("lim_x1poll2", 1100))
        self.poll_check(pk, vPv, vPoll, sC, 2)
        pk.mark("x1_seen", limit=self.opt.get("lim_def", 1300))
        self.stamp(pk, "x1 seen")
        m2.mark("conv2")
        for ks in range(0, 32, 2):
            g = Seq()
            base = (sV4 if ks % 8 >= 4 else sQ)[ks // 8]
            for x in (ks, ks + 1):
                g(f"buffer_load_dwordx4 {ar(4 * x, 4)}, {vL16}, {sWS}, {base} offen offset:{(x % 4) * 1024} sc1")
            self.bg(g, "hand", "x1_seen", 12)
        plan = [(max(pp - 20, 1), pl), (pp, pl2), (o.get("x1_check_at", 116), pk), (o.get("conv2_at", 1), m2)] + self.dense("c", range(1, 152, 12))
        ad = Seq()
        ad(f"""
        s_lshl_b32 {sT0}, {sw}, 12
        s_add_u32 {sT0}, {sT0}, {EXC}
        v_add_u32 {vT[3]}, {sT0}, {vL16}
        v_xor_b32 {a}, 8192, {vT[3]}
        v_and_b32 {b}, 15, {vL}
        v_lshlrev_b32 {b}, 5, {b}
        v_lshrrev_b32 {vT[2]}, 4, {vL}
        v_lshl_add_u32 {b}, {vT[2]}, 3, {b}
        s_mul_i32 {sT1}, {sth}, {UCH}
        s_add_u32 {sT1}, {sT1}, {CU + 4120 - 1536}
        s_lshl_b32 {sT2}, {skh}, 11
        s_sub_u32 {sT1}, {sT1}, {sT2}
        v_sub_u32 {vT[2]}, {sT1}, {b}
        s_xor_b32 {sT0}, {sT0}, 8192
        v_add_u32 {b}, {sT0}, {b}
        v_lshlrev_b32 {vr(V_SSM + 5)}, 16, {vr(V_SSM + 5)}
        v_and_b32 {vT[4]}, 8, {vL}
        v_cmp_eq_u32 vcc, 0, {vT[4]}
        """)
        sel = Seq()
        sel(f"v_and_b32 {vT[4]}, 8, {vL}")
        sel(f"v_cmp_eq_u32 vcc, 0, {vT[4]}")
        for n in range(4):
            sel(f"v_cndmask_b32 {vr(V_SSM + n)}, {vr(V_ONES + n)}, {vZero}, vcc")
        for n in range(4):
            sel(f"v_cndmask_b32 {vr(V_ONES + n)}, {vZero}, {vr(V_ONES + n)}, vcc")
        sel(f"""
        v_lshlrev_b32 {vT[5]}, 2, {vL}
        v_add_u32 {vT[5]}, {ST}, {vT[5]}
        s_lshl_b32 {sT0}, {sw}, 8
        v_add_u32 {vT[6]}, {sT0}, {vT[5]}
        s_add_u32 {sT0}, {sT0}, {ST + 3072}
        v_add_u32 {vCsA}, {sT0}, {vCsA}
        """)
        ad.items = ad.items[:-2]
        p.extend(weave(q, fill(q, [(104, 126, split(ad)), (128, 150, split(sel))], plan)))
        self.stamp(p, "conv mfma")
        p.wait(vm=t["l0"])
        x = Seq()
        hi, join = self.label("convhi"), self.label("convjoin")
        x("s_barrier")
        t["ph1"] = self.behead(self.p3_phase(R2, V_ACC, V_ACC + 16, V_TMP))
        x.extend(t["ph1"][0])
        x(f"s_cmp_lg_u32 {skh}, 0")
        x(f"s_cbranch_scc1 {hi}")
        for half, tail in ((16, f"s_branch {join}\n{hi}:"), (0, f"{join}:")):
            for n in range(4):
                x(f"ds_write_b128 {vT[3]}, {vr(acc + half + 4 * n, 4)} offset:{n * 1024}", count=(half == 0))
            x("s_waitcnt lgkmcnt(0)")
            x("s_barrier")
            for n in range(4):
                x(f"ds_read_b128 {vr(acc + half + 4 * n, 4)}, {a} offset:{n * 1024}", count=(half == 0))
            x(tail)
        t["cx"] = x.items[-2]
        p.atomic(x)
        p.mark("conv_end")
        self.stamp(p, "conv done")
        e = Seq()
        uu, tmp = V_B + 16, V_B + 32
        for n in range(4):
            e(f"ds_read_b64 {vr(uu + 2 * n, 2)}, {vT[2]} offset:{1536 - 512 * n}")
        e.wait(lg=t["cx"])
        for n in range(16):
            e(f"v_add_f32 {vr(acc + n)}, {vr(acc + n)}, {vr(acc + 16 + n)}")
        for n in range(4):
            e(f"v_and_b32 {vr(tmp)}, {sHi}, {vr(uu + 2 * n + 1)}")
            e(f"v_lshlrev_b32 {vr(tmp + 1)}, 16, {vr(uu + 2 * n + 1)}")
            e(f"v_and_b32 {vr(tmp + 2)}, {sHi}, {vr(uu + 2 * n)}")
            e(f"v_lshlrev_b32 {vr(tmp + 3)}, 16, {vr(uu + 2 * n)}")
            for r in range(4):
                e(f"v_fmac_f32 {vr(acc + 4 * n + r)}, {vr(V_SSM + 5)}, {vr(tmp + r)}")
        for n in range(8):
            e(f"v_cvt_pk_bf16_f32 {vr(uu + n)}, {vr(acc + 2 * n)}, {vr(acc + 2 * n + 1)}")
        for n in range(4):
            e(f"ds_write_b64 {b}, {vr(uu + 2 * n, 2)} offset:{n * 512}")
        e(f"ds_read_b128 {vr(uu + 8, 4)}, {a}")
        e(f"ds_read_b128 {vr(uu + 12, 4)}, {a} offset:1024")
        e(f"""
        v_lshrrev_b32 {b}, 3, {vL}
        v_and_b32 {vT[2]}, 7, {vL}
        v_lshlrev_b32 {vT[2]}, 4, {vT[2]}
        v_lshl_add_u32 {b}, {b}, 13, {vT[2]}
        s_lshl_b32 {sT2}, {sj}, 18
        s_lshl_b32 {sT1}, {skh}, 17
        s_add_u32 {sT2}, {sT2}, {sT1}
        s_lshl_b32 {sT1}, {sc}, 1
        s_add_u32 {sT1}, {sT1}, {sth}
        s_lshl_b32 {sT1}, {sT1}, 7
        s_add_u32 {sT2}, {sT2}, {sT1}
        s_add_u32 {sT2}, {sT2}, {WS_YT}
        s_add_u32 {sT1}, {sT2}, 65536
        """)
        s0 = e(f"buffer_store_dwordx4 {vr(uu + 8, 4)}, {b}, {sWS}, {sT2} offen sc1")
        s1 = e(f"buffer_store_dwordx4 {vr(uu + 12, 4)}, {b}, {sWS}, {sT1} offen sc1")
        t["y"], t["conv_epi"] = [s0, s1], e

    @staticmethod
    def behead(q):
        n = next(i for i, it in enumerate(q.items) if it.kind in ("mfma32", "mfma16"))
        while q.items[n - 1].kind == "wait":
            n -= 1
        head, body = Seq(), Seq()
        head.items, body.items = q.items[:n], q.items[n:]
        return head, body

    def p3_phase(self, base, accA, accB, cs):
        q = Seq()
        regs = [(vXr[0], vXr[1]), (vXr[2], vXr[3])]

        def setblk(blk):
            r0, r1 = regs[blk & 1]
            q(f"s_lshl_b32 {sT0}, {sR[blk]}, 7")
            q(f"s_add_u32 {sT0}, {sT0}, {base}")
            q(f"v_add_u32 {r0}, {sT0}, {vTr0}")
            q(f"v_xor_b32 {r1}, 64, {r0}")

        def rd(ks, half):
            if ks < 32:
                tok[ks] = self.a_reads(q, V_A + 8 * (ks % 4) + 4 * half, regs[(ks >> 3) & 1][half], (ks & 7) * 2048)

        tok = {}
        setblk(0)
        ra = self.opt.get("ra2", 3)
        for ks in range(ra):
            rd(ks, 0)
            rd(ks, 1)
        setblk(1)
        for ks in range(32):
            A = V_A + 8 * (ks % 4)
            z = ks == 0
            q.wait(lg=tok[ks])
            q(f"v_mfma_f32_32x32x16_bf16 {vr(accA, 16)}, {vr(A, 4)}, {ar(4 * ks, 4)}, {'0' if z else vr(accA, 16)}")
            rd(ks + ra, 0)
            q(f"v_mfma_f32_32x32x16_bf16 {vr(accB, 16)}, {vr(A + 4, 4)}, {ar(4 * ks, 4)}, {'0' if z else vr(accB, 16)}")
            rd(ks + ra, 1)
            if ks < 8:
                q(f"v_mfma_f32_16x16x32_bf16 {vr(cs, 4)}, {vr(V_ONES, 4)}, {vr(A, 4)}, {'0' if z else vr(cs, 4)}")
                q(f"v_mfma_f32_16x16x32_bf16 {vr(cs, 4)}, {vr(V_SSM, 4)}, {vr(A + 4, 4)}, {vr(cs, 4)}")
            if ks in (8, 16):
                setblk(ks // 8 + 1)
        return q

    def p3_tile(self, base, half, acc, cs=None):
        q = Seq()
        regs = [vXr[0], vXr[2]]
        tok = {}

        def setblk(blk):
            q(f"s_lshl_b32 {sT0}, {sR[blk]}, 7")
            q(f"s_add_u32 {sT0}, {sT0}, {base}")
            q(f"v_add_u32 {regs[blk & 1]}, {sT0}, {vTr0}")
            if half:
                q(f"v_xor_b32 {regs[blk & 1]}, 64, {regs[blk & 1]}")

        def rd(ks):
            if ks < 32:
                tok[ks] = self.a_reads(q, V_A + 4 * (ks % 6), regs[(ks >> 3) & 1], (ks & 7) * 2048)

        setblk(0)
        X = V_ACC + 32
        if cs is not None:
            q(f"v_xor_b32 {vXr[1]}, 64, {vXr[0]}")
            for ks in range(3):
                self.a_reads(q, X + 4 * ks, vXr[1], ks * 2048)
        ra = self.opt.get("ra1", 5)
        for ks in range(ra):
            rd(ks)
        setblk(1)
        for ks in range(32):
            A = V_A + 4 * (ks % 6)
            q(f"v_mfma_f32_32x32x16_bf16 {vr(acc, 16)}, {vr(A, 4)}, {ar(4 * ks, 4)}, {'0' if ks == 0 else vr(acc, 16)}")
            rd(ks + ra)
            if cs is not None and ks < 8:
                q(f"v_mfma_f32_16x16x32_bf16 {vr(cs, 4)}, {vr(V_ONES, 4)}, {vr(A, 4)}, {'0' if ks == 0 else vr(cs, 4)}")
            if cs is not None and ks < 8:
                if ks + 3 < 8:
                    self.a_reads(q, X + 4 * ((ks + 3) % 4), vXr[1], (ks + 3) * 2048)
                q(f"v_mfma_f32_16x16x32_bf16 {vr(cs, 4)}, {vr(V_SSM, 4)}, {vr(X + 4 * (ks % 4), 4)}, {vr(cs, 4)}")
            if ks in (6, 14):
                setblk(ks // 8 + 2)
            if half:
                q.mark(f"t3_{ks}")
        return q

    def cs_exchange(self, table, cs, dstA, dstB):
        w, r, a, b = Seq(), Seq(), Seq(), Seq()
        tok = w(f"ds_write_b32 {vT[6]}, {vr(cs)} offset:{table - ST}")
        r.wait(lg=tok)
        r("s_barrier")
        for n in range(4):
            r(f"ds_read_b32 {vr(cs + n)}, {vT[5]} offset:{table - ST + n * 256}")
        r(f"v_add_f32 {vr(cs)}, {vr(cs)}, {vr(cs + 1)}")
        r(f"v_add_f32 {vr(cs + 2)}, {vr(cs + 2)}, {vr(cs + 3)}")
        r(f"v_add_f32 {vr(cs)}, {vr(cs)}, {vr(cs + 2)}")
        r(f"ds_write_b32 {vT[6]}, {vr(cs)} offset:3072")
        for n in range(4):
            a(f"ds_read_b128 {vr(dstA + 4 * n, 4)}, {vCsA} offset:{n * 32}")
            b(f"ds_read_b128 {vr(dstB + 4 * n, 4)}, {vCsA} offset:{128 + n * 32}")
        return w, r, a, b

    def gelu_plain(self, p, acc, cs, tmp, out):
        K1, K2, SD, NM = vr(V_KK), vr(V_KK + 1), vr(V_SM), vr(V_SM + 1)
        for b in range(0, 16, 4):
            xs = range(b, b + 4)
            T = lambda x: vr(tmp + (x & 7))
            for x in xs:
                p(f"v_fmac_f32 {vr(acc + x)}, {vr(cs + x)}, {NM}")
            for x in xs:
                p(f"v_mul_f32 {T(x)}, {vr(acc + x)}, {vr(acc + x)}")
            for x in xs:
                p(f"v_fma_f32 {T(x)}, {T(x)}, {K2}, {K1}")
            for x in xs:
                p(f"v_mul_f32 {T(x)}, {T(x)}, {vr(acc + x)}")
            for x in xs:
                p(f"v_exp_f32 {T(x)}, {T(x)}")
            for x in xs:
                p(f"v_fma_f32 {T(x)}, {T(x)}, {SD}, {SD}")
            for x in xs:
                p(f"v_rcp_f32 {T(x)}, {T(x)}")
            for x in xs:
                p(f"v_mul_f32 {T(x)}, {T(x)}, {vr(acc + x)}")
            for x in (b, b + 2):
                p(f"v_cvt_pk_bf16_f32 {vr(out + x // 2)}, {T(x)}, {T(x + 1)}")

    def h2_tile(self, acc, cs16, out, plain=False):
        q = Seq()
        (self.gelu_plain if plain else self.gelu_packed)(q, acc, cs16, V_TMP + 16, out)
        s0 = q(f"buffer_store_dwordx4 {vr(out, 4)}, {vL16}, {sWS}, {sH2st} offen sc1")
        s1 = q(f"buffer_store_dwordx4 {vr(out + 4, 4)}, {vL16}, {sWS}, {sH2st} offen offset:2048 sc1")
        q(f"s_add_u32 {sH2st}, {sH2st}, 57344")
        q("s_nop 0")
        return q, [s0, s1]

    def h2_loads(self, piece, reg, prio, freed=None):
        for u in range(7):
            g = Seq()
            g(f"s_add_u32 {sB}, {sH2ld}, {piece * 57344 + u * 2048}")
            for i in range(2):
                g(f"buffer_load_dwordx4 {reg(8 * u + 4 * i)}, {vXs[1 + i]}, {sWS}, {sB} offen sc1")
            self.bg(g, "hand", (f"h2_seen{piece}", f"t3_{freed + 2 * u + 1}") if freed is not None else f"h2_seen{piece}", prio)

    def late_addrs(self, p):
        a, b = vT[0], vT[1]
        o = self.opt
        p(f"""
        s_lshl_b32 {sYfl}, {sj2}, 9
        s_lshr_b32 {sT1}, {sc}, 4
        s_lshl_b32 {sT1}, {sT1}, 8
        s_add_u32 {sYfl}, {sYfl}, {sT1}
        s_add_u32 {sYfl}, {sYfl}, {FLAG1}
        v_and_b32 {a}, 3, {vL}
        s_mul_i32 {sT1}, {sth}, 3
        v_add_u32 {a}, {sT1}, {a}
        v_add_u32 {b}, {8 - self.idle}, {a}
        v_lshrrev_b32 {b}, 3, {b}
        v_add_u32 {a}, {a}, {b}
        v_bfe_u32 {b}, {vL}, 2, 1
        v_lshlrev_b32 {a}, 9, {a}
        v_lshl_add_u32 {vH2fl}, {b}, 7, {a}
        s_lshr_b32 {sT2}, {sc}, 3
        s_lshl_b32 {sT2}, {sT2}, 3
        s_lshl_b32 {sT1}, {skh}, 2
        s_add_u32 {sT2}, {sT2}, {sT1}
        s_bfe_u32 {sT1}, {sc}, 0x20001
        s_add_u32 {sT2}, {sT2}, {sT1}
        {"" if o.get("pair", 1) else f"s_and_b32 {sT2}, {sc}, 30"}
        {"" if o.get("pair", 1) else f"s_add_u32 {sT2}, {sT2}, {skh}"}
        s_lshl_b32 {sT2}, {sT2}, 12
        s_and_b32 {sT1}, {sc}, 1
        s_lshl_b32 {sT1}, {sT1}, 8
        s_add_u32 {sH2fl}, {sT2}, {sT1}
        s_mul_i32 {sT2}, {sw}, {7 * 2048}
        s_mul_i32 {sT1}, {sc}, 229376
        s_add_u32 {sT1}, {sT1}, {sT2}
        s_add_u32 {sH2ld}, {sT1}, {WS_H2 + (WS_SIZE if o.get("dbg_noh2") else 0)}
        s_lshl_b32 {sT2}, {skh}, 15
        s_sub_u32 {sT2}, {sPriv}, {sT2}
        v_add_u32 {vTrX}, {sT2}, {vTrX}
        v_add_u32 {vTrY}, {sT2}, {vTrY}
        v_lshrrev_b32 {a}, 5, {vL}
        v_lshl_add_u32 {vKv}, {a}, 7, {vKv}
        v_lshlrev_b32 {a}, 10, {a}
        v_bfe_u32 {b}, {vL}, 2, 2
        v_lshl_add_u32 {a}, {b}, 7, {a}
        v_bfe_u32 {b}, {vL}, 4, 1
        v_lshl_add_u32 {a}, {b}, 5, {a}
        v_and_b32 {b}, 3, {vL}
        v_lshl_add_u32 {a}, {b}, 3, {a}
        s_lshl_b32 {sT2}, {snh}, 12
        s_lshl_b32 {sT1}, {sth}, 6
        s_add_u32 {sT2}, {sT2}, {sT1}
        s_add_u32 {sT2}, {sT2}, {YB}
        v_add_u32 {vY}, {sT2}, {a}
        s_lshl_b32 {sYld}, {sj2}, 5
        s_add_u32 {sYld}, {sYld}, {sc}
        s_lshl_b32 {sYld}, {sYld}, 13
        s_lshl_b32 {sT1}, {sw}, 11
        s_add_u32 {sYld}, {sYld}, {sT1}
        s_add_u32 {sYld}, {sYld}, {WS_YT}
        s_add_u32 {sYlds}, {sT1}, {YB}
        s_lshl_b32 {sGld}, {sc}, 1
        s_add_u32 {sGld}, {sGld}, {sth}
        s_lshl_b32 {sGld}, {sGld}, 11
        s_add_u32 {sGld}, {sGld}, {WS_GATE}
        """)

    def p3(self, p, t):
        o = self.opt
        T0, T1, T2, T3 = V_ACC, V_ACC + 16, V_ACC, V_ACC + 32
        cs, stt = V_TMP, V_B
        a, b = vT[0], vT[1]
        p.mark("p3")
        for i in range(0, 8, 2):
            g = Seq()
            for x in (i, i + 1):
                g(f"buffer_load_dwordx2 {vr(stt + 2 * x, 2)}, {vKh}, {sWS}, {sStld} offen offset:{x * 512} sc1")
            self.bg(g, "few", "p3", o.get("prio_stats", 11))
        ypub, lim, ln = Seq(), Seq(), Seq()
        self.publish(ypub, t["y"], 2, FLAG1)
        lim.mark(limit=o.get("lim_g0", 1400))
        for x in (0, 1):
            ln(f"v_add_f32 {vr(stt + x)}, {vr(stt + x)}, {vr(stt + 2 + x)}")
        for i in range(1, 4):
            for x in (0, 1):
                ln(f"v_add_f32 {vr(stt + x)}, {vr(stt + x)}, {vr(stt + 4 * i + x)}")
                ln(f"v_add_f32 {vr(stt + x)}, {vr(stt + x)}, {vr(stt + 4 * i + 2 + x)}")
        self.half_sum(ln, vr(stt), vr(stt + 2))
        self.half_sum(ln, vr(stt + 1), vr(stt + 3))
        self.ln_consts(ln, vr(stt), vr(stt + 1))
        csA, csB = V_B + 44, V_ACC + 48
        cw, cr, ca, cb = self.cs_exchange(ST + 2048, cs, csA, csB)
        q = t["ph1"][1]
        fixed = [(36, cw), (o.get("ypub_at", 76), ypub), (o.get("lim_g0_at", 66), lim)] + self.dense("i", range(1, 80, self.opt.get("dstep", 8)))
        streams = [(2, 46, split(t["conv_epi"])), (47, 53, split(cr)), (54, 72, split(ln)), (73, 78, split(ca) + split(cb))]
        p.extend(weave(q, fill(q, streams, fixed)))
        self.stamp(p, "p3 t01")
        q0, st0 = self.h2_tile(T0, csA, V_TMP)
        p.extend(q0)
        p.mark(limit=o.get("lim_g1b", 1100))
        self.stamp(p, "h2 p0 st")
        p.wait(vm=t["l1"])
        p("s_barrier")
        p.mark("B3")
        head2, body2 = self.behead(self.p3_tile(R0, 0, V_ACC, cs))
        p.extend(head2)
        q1, st1 = self.h2_tile(T1, csB, V_TMP + 8)
        p.extend(q1)
        p.mark(limit=self.opt.get("lim_def", 1300))
        p(f"""
        s_lshl_b32 {sT2}, {sth}, 10
        v_add_u32 {vXs[1]}, {sT2}, {vL16}
        v_xor_b32 {vXs[2]}, 1024, {vXs[1]}
        v_add_u32 {vXs[3]}, {sPriv}, {vL16}
        v_lshlrev_b32 {b}, 2, {vL}
        """)
        self.stamp(p, "h2 p1 st")
        w0t = self.w4_loads(0, R2, "B3", 32)
        self.w4_park(2, A_PARK + 56, o.get("park3_after", "conv2"), 41)
        pub0, pub1, pub2, ypl, ypk, hpl, hpk, yd, gl, lim, lim2 = (Seq() for _ in range(11))
        self.publish(pub0, st0, 3, FLAG0)
        if o.get("rb_h2"):
            pub0(f"s_sub_u32 {sE}, {sH2st}, 114688")
            self.readback(pub0, "rb_h2", f"buffer_load_dword v255, {vL128}, {sWS}, {sE} offen sc1", "0xff00ff")
        self.stamp(pub0, "h2 p0 flag")
        self.publish(pub1, st1, 4, FLAG0)
        if o.get("rb_h2"):
            pub1(f"s_sub_u32 {sE}, {sH2st}, 57344")
            self.readback(pub1, "rb_h2", f"buffer_load_dword v255, {vL128}, {sWS}, {sE} offen sc1", "0xff00ff")
        self.poll_issue(ypl, vPw, vKv, sYfl)
        self.poll_check(ypk, vPw, vKv, sYfl, 2)
        yd(f"s_mov_b32 m0, {sYlds}")
        self.dma(yd, vL16, sWS, sYld, 0, "sc1")
        ytok = self.dma(yd, vL16, sWS, sYld, 1024, "sc1")
        ypk.atomic(yd)
        T2, T3, csA2, csB2 = V_ACC, V_ACC + 16, V_ACC + 32, V_ACC + 48
        cw, cr, ca, cb = self.cs_exchange(ST, cs, csA2, csB2)
        q = body2
        lim.mark(limit=o.get("lim_g2", 1100))
        fixed = [(o.get("pub0_at", 6), pub0), (o.get("pub1_at", 22), pub1), (28, cw), (o.get("lim_g2_at", 36), lim)]
        streams = [(32, 38, split(cr)), (40, 47, split(ca) + split(cb))]
        p.extend(weave(q, fill(q, streams, fixed + self.dense("j", range(1, 48, self.opt.get("dstep", 6))))))
        self.stamp(p, "p3 t2")
        self.poll_issue(hpl, vPv, vH2fl, sH2fl)
        hmid = o.get("h2_poll_mid", 30)
        if not hmid:
            p.extend(hpl)
        if not o.get("y_poll_at"):
            p.extend(ypl)
        head3, body3 = self.behead(self.p3_tile(R0, 1, T3))
        p.extend(head3)
        q2, st2 = self.h2_tile(T2, csA2, V_TMP)
        p.extend(weave(q2, [(hmid, hpl)], kinds=("trans",)) if hmid else q2)
        self.stamp(p, "g2 done")
        p.mark(limit=self.opt.get("lim_def", 1300))
        self.publish(pub2, st2, 5, FLAG0)
        if o.get("rb_h2"):
            pub2(f"s_sub_u32 {sE}, {sH2st}, 57344")
            self.readback(pub2, "rb_h2", f"buffer_load_dword v255, {vL128}, {sWS}, {sE} offen sc1", "0xff00ff")
        self.poll_check(hpk, vPv, vH2fl, sH2fl, 4)
        hpk.mark("h2_seen0")
        self.stamp(hpk, "h2 seen")
        self.h2_loads(0, lambda r: vr(V_B + r, 4), 20)
        hpk.mark("h2_seen1")
        hpk("s_nop 0")
        self.h2_loads(1, lambda r: ar(r, 4), 21, freed=0)
        gt = V_B + 56
        for i in range(8):
            gl(f"buffer_load_dword {vr(gt + i)}, {b}, {sWS}, {sGld} offen offset:{i * 256} sc1").note = "few"
        q = body3
        lim2.mark(limit=o.get("lim_g3", 1100))
        fixed = [(o.get("h2_check_at", 14), hpk), (o.get("y_check_at", 16), ypk), (o.get("pub2_at", 28), pub2), (o.get("lim_g3_at", 26), lim2)]
        if o.get("y_poll_at"):
            fixed.append((o["y_poll_at"], ypl))
        p.extend(weave(q, fill(q, [], fixed + self.dense("k", range(1, 32, 4)))))
        self.stamp(p, "p3 t23")
        p.wait(vm=ytok)
        p("s_barrier")
        p.mark("B4")
        w1t = self.w4_loads(3, R0, "B4", o.get("prio_p3", 22.5))
        p(f"v_add_u32 {vXr[0]}, {R2}, {vTrX}")
        p(f"v_add_u32 {vXr[1]}, {R2}, {vTrY}")
        p(f"v_add_u32 {vXr[2]}, {R2}, {vXs[3]}")
        for n in range(o.get("ra4", 3)):
            p.wait(vm=w0t[n])
            for h in range(2):
                self.a_reads(p, V_A + 8 * n + 4 * h, vXr[h], n * 2048)
        q3, st3 = self.h2_tile(T3, csB2, V_TMP + 8)
        p.extend(q3)
        p.mark(limit=self.opt.get("lim_def", 1300))
        self.poll_issue(p, vPv, vH2fl, sH2fl)
        t["gl"] = gl
        a = vY
        self.stamp(p, "p3 done")
        bs = Seq()
        yy, base = V_TMP, V_TMP + 16
        for i in range(4):
            bs(f"ds_read_b64_tr_b16 {vr(yy + 2 * i, 2)}, {a} offset:{(i >> 1) * 2048 + (i & 1) * 512}")
        for i in range(1, 8):
            bs(f"v_add_f32 {vr(gt)}, {vr(gt)}, {vr(gt + i)}")
        self.half_sum(bs, vr(gt), vr(gt + 1))
        G, OM = vr(V_KK), vr(V_KK + 1)
        bs(f"v_mul_f32 {vr(gt)}, {fbits(-math.log2(math.e))}, {vr(gt)}")
        bs(f"v_exp_f32 {vr(gt)}, {vr(gt)}")
        bs(f"v_add_f32 {vr(gt)}, 1.0, {vr(gt)}")
        bs(f"v_rcp_f32 {G}, {vr(gt)}")
        bs(f"v_sub_f32 {OM}, 1.0, {G}")
        for i in range(8):
            for h, un in ((0, "v_lshlrev_b32 {d}, 16, {s}"), (1, "v_and_b32 {d}, " + sHi + ", {s}")):
                t0, t1, d = vr(gt + 2 * h), vr(gt + 2 * h + 1), vr(base + 2 * i + h)
                bs(un.format(d=t0, s=vr(yy + i)))
                bs(un.format(d=t1, s=vr(V_XRES + i)))
                bs(un.format(d=d, s=vr(V_X1P + i)))
                bs(f"v_mul_f32 {t0}, {t0}, {t1}")
                bs(f"v_mul_f32 {d}, {d}, {OM}")
                bs(f"v_fmac_f32 {d}, {t0}, {G}")
        t.update(st3=st3, w0t=w0t, w1t=w1t, base=base, bs=bs)

    def p4(self, p, t):
        o = self.opt
        acc = [V_ACC + 16 * i for i in range(4)]
        breg = [lambda r: vr(V_B + r, 4), lambda r: ar(r, 4), lambda r: ar(56 + r, 4), lambda r: vr(V_B + r, 4)]
        areg = [(vXr[0], vXr[1])] * 3 + [(vTrX, vTrY)]
        pub3 = Seq()
        self.publish(pub3, t["st3"], 6, FLAG0)
        if o.get("rb_h2"):
            pub3(f"s_sub_u32 {sE}, {sH2st}, 57344")
            self.readback(pub3, "rb_h2", f"buffer_load_dword v255, {vL128}, {sWS}, {sE} offen sc1", "0xff00ff")
        un1, _ = self.w4_unpark_groups(A_PARK, vXr[2])
        un2, _ = self.w4_unpark_groups(A_PARK + 56, vXr[2])
        bs = split(t["bs"])
        a = vXr[2]
        q = Seq()
        steps = [(pc, u) for pc in range(4) for u in range(7)]

        def rd(n, halves=(0, 1)):
            pc, u = steps[n]
            if pc in (0, 3) and 0 in halves:
                q.wait(vm=t["w0t" if pc == 0 else "w1t"][u])
            for h in halves:
                self.a_reads(q, V_A + 8 * (n % 4) + 4 * h, areg[pc][h], u * 2048)

        def mfma(n, slot):
            pc, u = steps[n]
            A = V_A + 8 * (n % 4) + 4 * (slot & 1)
            B = breg[pc](8 * u + 4 * (slot >> 1))
            q(f"v_mfma_f32_32x32x16_bf16 {vr(acc[slot], 16)}, {vr(A, 4)}, {B}, {'0' if n == 0 else vr(acc[slot], 16)}")

        ra = o.get("ra4", 3)
        for n in range(24):
            for slot in range(4):
                mfma(n, slot)
                if slot < 2:
                    rd(n + ra, (slot,))
        if ra == 2:
            rd(26)
        mfma(24, 1)
        rd(27)
        for slot in (1, 2, 3, 0):
            for n in range(24, 28):
                if (n, slot) != (24, 1):
                    mfma(n, slot)
        pk2, pl3, pk3 = Seq(), Seq(), Seq()
        self.poll_check(pk2, vPv, vH2fl, sH2fl, 5)
        pk2.mark("h2_seen2")
        self.h2_loads(2, breg[2], 22)
        self.poll_issue(pl3, vPv, vH2fl, sH2fl)
        self.poll_check(pk3, vPv, vH2fl, sH2fl, 6)
        pk3.mark("h2_seen3")
        self.h2_loads(3, breg[3], 23)
        plan = [(o.get("pub3_at", 18), pub3), (o.get("h2p2_check", 16), pk2), (o.get("h2p3_poll", 52), pl3), (o.get("h2p3_check", 68), pk3)]
        plan += spread(split(t["gl"]), 30, 44)
        for n, gq in enumerate(un1 + un2):
            plan.append((4 * (n // 2) + 3 + (n & 1), gq))
        xa = Seq()
        xa(f"v_xor_b32 {vT[2]}, {2 << 14}, {a}")
        xa(f"v_xor_b32 {vT[3]}, {3 << 14}, {a}")
        xa(f"v_xor_b32 {vT[4]}, {1 << 14}, {a}")
        via_lds = o.get("out_lds", 0)
        (xa if via_lds else Seq())(f"""
        v_and_b32 {vKv}, 31, {vL}
        s_lshl_b32 {sT0}, {sth}, 5
        v_add_u32 {vKv}, {sT0}, {vKv}
        v_mul_u32_u24 {vKv}, 144, {vKv}
        v_lshrrev_b32 {vKh}, 5, {vL}
        v_lshl_add_u32 {vKv}, {vKh}, 4, {vKv}
        s_lshl_b32 {sT0}, {snh}, 6
        v_add_u32 {vKv}, {sT0}, {vKv}
        v_lshrrev_b32 {vKh}, 3, {vL}
        v_and_b32 {vPw}, 7, {vL}
        v_lshlrev_b32 {vPw}, 4, {vPw}
        v_lshl_add_u32 {vOut}, {vKh}, 10, {vPw}
        v_mul_u32_u24 {vKh}, 144, {vKh}
        s_mul_i32 {sT0}, {sw}, {16 * 144}
        v_add3_u32 {vKh}, {vKh}, {vPw}, {sT0}
        s_lshl_b32 {sC}, {sc}, 16
        s_lshl_b32 {sT0}, {sw}, 14
        s_add_u32 {sC}, {sC}, {sT0}
        s_lshl_b32 {sT0}, {sj2}, 7
        s_add_u32 {sC}, {sC}, {sT0}
        s_add_u32 {sD}, {sC}, 8192
        s_nop 0
        """)
        plan += spread(split(xa), 86, 96)
        for s in range(1, 4):
            w = Seq()
            for g in range(4):
                w(f"ds_write_b128 {a}, {vr(acc[s] + 4 * g, 4)} offset:{(s - 1) * 4096 + g * 1024}")
            plan += spread(split(w), 96 + 4 * s + 2, min(96 + 4 * s + 5, 112))
        for pc in range(3):
            sq = Seq()
            self.stamp(sq, f"p4 piece{pc}")
            plan.append((28 * (pc + 1), sq))
        p.extend(weave(q, fill(q, [(60, 94, bs)], plan + self.dense("p", range(1, 112, 4)))))
        self.stamp(p, "p4 piece3")
        p.wait(lg0=True)
        p("s_barrier")
        for s in range(1, 4):
            for g in range(4):
                p(f"ds_read_b128 {vr(acc[s] + 4 * g, 4)}, {vT[1 + s]} offset:{(s - 1) * 4096 + g * 1024}")
        base = t["base"]
        fl = o.get("out_flags", "")
        for half in (0, 8):
            for s in range(1, 4):
                for x in range(half, half + 8, 2):
                    p(f"v_pk_add_f32 {vr(acc[0] + x, 2)}, {vr(acc[0] + x, 2)}, {vr(acc[s] + x, 2)}")
            for x in range(half, half + 8, 2):
                p(f"v_pk_fma_f32 {vr(acc[0] + x, 2)}, {vr(acc[0] + x, 2)}, {vr(V_KK, 2)}, {vr(base + x, 2)} op_sel:[0,1,0] op_sel_hi:[1,1,1]")
            for i in range(half // 2, half // 2 + 4):
                p(f"v_cvt_pk_bf16_f32 {vr(V_TMP + i)}, {vr(acc[0] + 2 * i)}, {vr(acc[0] + 2 * i + 1)}")
            if via_lds:
                p(f"ds_write_b128 {vKv}, {vr(V_TMP + half // 2, 4)} offset:{R0 + half * 4}")
            else:
                p(f"buffer_store_dwordx4 {vr(V_TMP + half // 2, 4)}, {vOut}, {sOUT}, 0 offen offset:{half * 4} {fl}")
        if via_lds:
            p.wait(lg0=True)
            p("s_barrier")
            p(f"ds_read_b128 {vr(V_TMP + 8, 4)}, {vKh} offset:{R0}")
            p(f"ds_read_b128 {vr(V_TMP + 12, 4)}, {vKh} offset:{R0 + 8 * 144}")
            p(f"buffer_store_dwordx4 {vr(V_TMP + 8, 4)}, {vOut}, {sOUT}, {sC} offen {fl}")
            p(f"buffer_store_dwordx4 {vr(V_TMP + 12, 4)}, {vOut}, {sOUT}, {sD} offen {fl}")
        self.advance_epoch(p)
        self.stamp(p, "out issued")

    def write_stamps(self, p):
        if self.diag:
            p.wait(vm0=True)
            self.stamp(p, "end")
            p(f"""
            s_cmp_lg_u32 s2, {self.opt.get("diag_wg", 73)}
            s_cbranch_scc1 L_end
            s_sub_u32 s98, s98, s96
            s_mul_i32 s98, s98, {self.diag[2]}
            s_lshr_b32 s98, s98, {4 if len(self.diag) > 3 else 0}
            s_memrealtime s[96:97]
            s_waitcnt lgkmcnt(0)
            L_diag:
            s_memrealtime s[100:101]
            s_waitcnt lgkmcnt(0)
            s_sub_u32 s100, s100, s96
            s_cmp_lt_u32 s100, s98
            s_cbranch_scc1 L_diag
            """)
        if not self.profile:
            return
        p.wait(vm0=True)
        self.stamp(p, "end")
        p("s_memrealtime s[100:101]")
        p.wait(lg0=True)
        p("v_writelane_b32 v254, s100, 1")
        p(f"""
        s_lshl_b32 {sT0}, s2, 2
        s_add_u32 {sT0}, {sT0}, {sw}
        s_lshl_b32 {sT0}, {sT0}, 8
        s_add_u32 {sT0}, {sT0}, {WS_STAMP}
        v_lshlrev_b32 {vP2}, 2, {vL}
        """)
        p(f"buffer_store_dword v254, {vP2}, {sWS}, {sT0} offen sc1")

    def build(self):
        p = self.p
        t = {}
        self.prologue(p)
        self.p1(p, t)
        self.a1(p, t)
        self.p2(p, t)
        self.conv(p, t)
        self.p3(p, t)
        self.p4(p, t)
        self.write_stamps(p)
        p("L_end:")
        p("s_endpgm")
        assert len(self.stamps) + self.npoll <= 62, len(self.stamps)
        classes = {"p1cold": (self.opt.get("s_p1cold", 230), self.opt.get("l_p1cold", 1400)), "p1l2": (self.opt.get("s_p1l2", 75), 400)}
        classes.update(mall=(125, 900), hand=(105, 900))
        for k in ("mall", "hand", "cold"):
            if "s_" + k in self.opt:
                classes[k] = (self.opt["s_" + k], self.opt.get("l_" + k, 900))
        self.log = []
        p = schedule(p, [b for _, _, b in sorted(self.bgs, key=lambda e: e[:2])], classes, self.log, self.opt.get("split_bg", 1), self.opt.get("depth", 10))
        body, items = finalize(p)
        head = open(__file__.replace("gen.py", "header.txt")).read()
        text = head + f"; @launch grid=(256,1,1) block=(256,1,1) lds={LDS_SIZE}\n"
        text += f""".amdgcn_target "amdgcn-amd-amdhsa--gfx950"
.text
.globl {NAME}_kernel
.p2align 8
.type {NAME}_kernel,@function
{NAME}_kernel:
.set CODE_BYTES, L_code_end - L_pc - 4
"""
        text += body
        text += f"""L_code_end:
.section .rodata,"a"
.p2align 6
.amdhsa_kernel {NAME}_kernel
  .amdhsa_next_free_vgpr 512
  .amdhsa_next_free_sgpr 102
  .amdhsa_accum_offset 256
  .amdhsa_group_segment_fixed_size 0
  .amdhsa_kernarg_size 120
  .amdhsa_user_sgpr_count 2
  .amdhsa_user_sgpr_kernarg_segment_ptr 1
  .amdhsa_system_sgpr_workgroup_id_x 1
.end_amdhsa_kernel
"""
        return text


if __name__ == "__main__":
    prof = "--profile" in sys.argv
    out = [a for a in sys.argv[1:] if not a.startswith("--")]
    diag = [a[7:].split(",") for a in sys.argv if a.startswith("--diag=")]
    opt = {}
    for a in sys.argv:
        if a.startswith("--o:"):
            k, v = a[4:].split("=")
            opt[k] = int(v) if v.lstrip("-").isdigit() else v
    g = Gen(profile=prof, diag=diag[0] if diag else None, opt=opt)
    text = g.build()
    path = out[0] if out else f"cdna_kernels/{NAME}.s"
    open(path, "w").write(text)
    if prof:
        open(path + ".stamps", "w").write("\n".join(g.stamps))
    print("wrote", path, len(text), "bytes")
    if "--log" in sys.argv:
        print("  ".join(f"{n}={t}" for n, t in g.log))
```

```python
import math
import os
import struct
import sys

from asmdsl import Seq, Bg, finalize, schedule, weave, spread, split, fill

NAME = "gated_mix__ssm_conv_h3__mixer_s_mlp__prompt"

FLAG0, FLAG1, WS_EPOCH = 0x0, 0x20000, 0x40000
WS_H, WS_X1, WS_H2, WS_KVT, WS_YT = 0x100000, 0x300000, 0x500000, 0xC00000, 0xE00000
WS_STATS, WS_GATE, WS_STAMP = 0x1000000, 0x1080000, 0x1100000
WS_SIZE = 0x1200000

R0, R1, R2, R3, R4 = 0, 32768, 65536, 98304, 131072
KB, VB, A1R = R4, R4 + 9216, R4 + 17408
ST = R4 + 28672
ST_STAT, ST_CS, ST_CS3 = ST, ST + 1024, ST + 1536
KCOPY, KCH = 4288, 8576
CK, CU, UCH = R4, R4 + 17152, 4928
EX2, EXC = R2 + 12288, R4
YB = R4
LDS_SIZE = 163840

sX, sK, sV, sSK, sW1, sW2, sW3, sW4, sOUT, sWS, sDBG = [f"s[{4 + 4 * i}:{7 + 4 * i}]" for i in range(11)]
pSH, pD, pG = "s[48:49]", "s[50:51]", "s[52:53]"
sw, sth, skh, snh, sc, sj, sm, ssc = [f"s{i}" for i in range(54, 62)]
srot, sja, sEp, sOnes, sHi = "s62", "s63", "s64", "s65", "s66"
sOneLo, sOneHi = "s44", "s45"
sT0, sT1, sT2, sT3, sCnt = "s67", "s68", "s69", "s70", "s71"
sU = [f"s{i}" for i in range(72, 79)]
sFlag, sPriv = "s79", "s80"
sWsrc, sWlds, sW3b, sB, sC, sD, sE, sOob = [f"s{i}" for i in range(81, 89)]
sR = ["s46", "s47", "s3", "s95"]
sH2st, sH2fl, sH2ld, sX1ld, sStld = [f"s{i}" for i in range(89, 94)]
sj2 = "s94"
sYfl, sYld, sYlds, sGld = "s8", "s9", "s10", "s11"
sW2src, sFlag1 = "s0", "s1"
sIdle, sH = "s96", "s97"
sQ = ["s12", "s13", "s14", "s15"]
sV4 = ["s20", "s21", "s22", "s23"]

vL, vL16, vTrX, vTrY, vTr0, vWs1, vWs, vW3s = [f"v{i}" for i in range(1, 9)]
vW3s1 = "v0"
vXs = [f"v{i}" for i in range(9, 13)]
vXr = [f"v{i}" for i in range(13, 17)]
vPoll, vP2, vZero, vCsA = "v17", "v18", "v19", "v20"
vT = [f"v{i}" for i in range(21, 27)] + ["v253"]
V_KK, V_SM = 28, 30
V_XRES, V_X1P = 32, 40
V_B, V_ACC, V_A, V_TMP = 48, 112, 176, 208
V_ONES = 244
V_SSM = 232
vPv, vPw, vKv, vKh = "v248", "v249", "v250", "v251"
V_SK = 252
vL128 = "v243"
vOut = "v27"
vH2fl, vY = "v252", "v9"
vLane0 = "v255"
A_W2, A_PARK = 0, 128


def vr(b, n=1):
    return f"v{b}" if n == 1 else f"v[{b}:{b + n - 1}]"


def ar(b, n=1):
    return f"a{b}" if n == 1 else f"a[{b}:{b + n - 1}]"


def fbits(x):
    return "0x%08x" % struct.unpack("<I", struct.pack("<f", x))[0]


C0 = math.sqrt(2.0 / math.pi)
GK1 = -2.0 * C0 * math.log2(math.e)
GK2 = GK1 * 0.044715
SPIN_LIMIT = 400000


DESCRIPTION = """\
; Every spin is bounded. Weights reach LDS by DMA and are transposed by ds_read_b64_tr_b16.
"""


class Gen:
    def __init__(self, profile=False, diag=None, opt=None):
        self.profile = profile
        self.opt = opt or {}
        self.diag = diag
        self.p = Seq()
        self.nlabel = 0
        self.npoll = 0
        self.idle = (3 - self.opt.get('j2', 1)) & 7
        self.bgs = []
        self.stamps = []

    def label(self, base):
        self.nlabel += 1
        return f"L_{base}_{self.nlabel}"

    def stamp(self, p, name):
        p.mark("@" + name)
        if self.diag and name in self.diag[:2]:
            r = 96 + 2 * self.diag.index(name)
            p(f"{'s_memtime' if len(self.diag) > 3 else 's_memrealtime'} s[{r}:{r + 1}]")
            p.wait(lg0=True)
        if not self.profile:
            return
        only = self.opt.get("stamps")
        if only and name not in ("start", "end") and name not in only.split(",") and (self.opt.get("nodigit") or not name[-1].isdigit()):
            return
        i = len(self.stamps)
        self.stamps.append(name)
        q = Seq()
        q("s_memrealtime s[100:101]" if self.opt.get("rt") else "s_memtime s[100:101]")
        q.wait(lg0=True)
        q(f"v_writelane_b32 v254, s100, {i + 2}")
        p.atomic(q)

    def dma(self, p, vaddr, srd, soff, imm=0, flags="", count=True):
        off = f" offset:{imm}" if imm else ""
        return p(f"buffer_load_dwordx4 {vaddr}, {srd}, {soff} offen{off} {flags} lds", count)

    def bg(self, seq, cls, after, prio):
        b = Bg(seq, cls, after, prio)
        self.bgs.append((prio, len(self.bgs), b))
        return b

    def dma_pair(self, v0, v1, srd, src_lines, lds_reg, lds, flags=""):
        g = Seq()
        g(f"s_add_u32 m0, {lds_reg}, {lds}")
        g(src_lines)
        self.dma(g, v0, srd, sB, flags=flags)
        return g, self.dma(g, v1, srd, sB, 1024, flags=flags)

    def dense(self, tag, positions):
        plan = []
        if tag[0] in str(self.opt.get("dense", "")):
            for n in positions:
                q = Seq()
                self.stamp(q, f"{tag}{n}")
                plan.append((n, q))
        return plan

    def emit(self, p, groups):
        for g in groups:
            p.extend(g)

    def poll_issue(self, p, dst, vaddr, soff, srd=sWS):
        t = p(f"buffer_load_dword {dst}, {vaddr}, {srd}, {soff} offen sc1")
        t.note = "few"
        return t

    def poll_check(self, p0, dst, vaddr, soff, need):
        p = Seq()
        a, b = self.label("poll"), self.label("pdone")
        if self.profile:
            p(f"s_mov_b32 {sCnt}, {SPIN_LIMIT}")
        p(f"s_add_u32 {sE}, {sEp}, {need}")
        p(f"v_subrev_u32 {dst}, {sE}, {dst}")
        p(f"v_cmp_lt_u32 vcc, {6 - need}, {dst}")
        p(f"s_cbranch_vccz {b}")
        if not self.profile:
            p(f"s_mov_b32 {sCnt}, {SPIN_LIMIT}")
        p(f"{a}:")
        p(f"s_sleep {self.opt.get('poll_sleep', 3)}")
        p(f"s_sub_u32 {sCnt}, {sCnt}, 1")
        p(f"buffer_load_dword {dst}, {vaddr}, {sWS}, {soff} offen sc1", count=False)
        p("s_waitcnt vmcnt(0)")
        p(f"v_subrev_u32 {dst}, {sE}, {dst}")
        p(f"v_cmp_lt_u32 vcc, {6 - need}, {dst}")
        p(f"s_cbranch_vccz {b}")
        p(f"s_cmp_lg_u32 {sCnt}, 0")
        p(f"s_cbranch_scc1 {a}")
        p(f"{b}:")
        if self.profile:
            self.npoll += 1
            p(f"s_sub_u32 {sCnt}, {SPIN_LIMIT}, {sCnt}")
            p(f"v_writelane_b32 v254, {sCnt}, {64 - self.npoll}")
        p0.atomic(p)

    def masked(self, p0, mask, text):
        p = Seq()
        p(f"s_mov_b64 exec, {mask}")
        t = p(text)
        p("s_mov_b64 exec, -1")
        p0.atomic(p)
        return t

    def readback(self, p, key, text, mask="0xffff"):
        if self.opt.get(key):
            self.masked(p, mask, text).note = "few"

    def publish(self, p, toks, value, area):
        p(f"v_add_u32_e64 {vP2}, {sEp}, {value}")
        p.wait(vm=toks)
        text = f"buffer_store_dword {vP2}, {vLane0}, {sWS}, {sFlag if area == FLAG0 else sFlag1} offen sc1"
        return self.masked(p, 1, text) if self.opt.get("pub_exec", 1) else p(text)

    def half_sum(self, p, reg, tmp):
        p(f"v_mov_b32 {tmp}, {reg}")
        p(f"v_permlane32_swap_b32 {reg}, {tmp}")
        p(f"v_add_f32 {reg}, {reg}, {tmp}")

    def a_reads(self, p, dst, vaddr, off, areg=False):
        f = ar if areg else vr
        p(f"ds_read_b64_tr_b16 {f(dst, 2)}, {vaddr} offset:{off}")
        return p(f"ds_read_b64_tr_b16 {f(dst + 2, 2)}, {vaddr} offset:{off + 512}")

    def ln_consts(self, p, vsum, vsq):
        p(f"v_mul_f32 {vr(V_SM + 1)}, {fbits(-1.0 / 512)}, {vsum}")
        p(f"v_mul_f32 {vsq}, {fbits(1.0 / 512)}, {vsq}")
        p(f"v_fma_f32 {vsq}, -{vr(V_SM + 1)}, {vr(V_SM + 1)}, {vsq}")
        p(f"v_max_f32 {vsq}, 0, {vsq}")
        p(f"v_add_f32 {vsq}, {fbits(1e-5)}, {vsq}")
        p(f"v_rsq_f32 {vsum}, {vsq}")
        p(f"v_sqrt_f32 {vr(V_SM)}, {vsq}")
        p(f"v_mul_f32 {vr(V_KK)}, {fbits(GK1)}, {vsum}")
        p(f"v_mul_f32 {vsq}, {vsum}, {vsum}")
        p(f"v_mul_f32 {vsq}, {vsq}, {vsum}")
        p(f"v_mul_f32 {vr(V_KK + 1)}, {fbits(GK2)}, {vsq}")

    def gelu_packed(self, p, acc, cs, tmp, out, n=16):
        KK, SM = vr(V_KK, 2), vr(V_SM, 2)
        for b in range(0, n, 8):
            pr = [b + 2 * i for i in range(4)]
            t = lambda x: tmp + (x - b)
            if self.opt.get("align", 1):
                p(".p2align 3")
            for x in pr:
                p(f"v_pk_fma_f32 {vr(acc + x, 2)}, {vr(cs + x, 2)}, {SM}, {vr(acc + x, 2)} op_sel:[0,1,0] op_sel_hi:[1,1,1]")
            for x in pr:
                p(f"v_pk_mul_f32 {vr(t(x), 2)}, {vr(acc + x, 2)}, {vr(acc + x, 2)}")
            for x in pr:
                p(f"v_pk_fma_f32 {vr(t(x), 2)}, {vr(t(x), 2)}, {KK}, {KK} op_sel:[0,1,0] op_sel_hi:[1,1,0]")
            for x in pr:
                p(f"v_pk_mul_f32 {vr(t(x), 2)}, {vr(t(x), 2)}, {vr(acc + x, 2)}")
            for x in range(b, b + 8):
                p(f"v_exp_f32 {vr(t(x))}, {vr(t(x))}")
            for x in pr:
                p(f"v_pk_fma_f32 {vr(t(x), 2)}, {vr(t(x), 2)}, {SM}, {SM} op_sel:[0,0,0] op_sel_hi:[1,0,0]")
            for x in range(b, b + 8):
                p(f"v_rcp_f32 {vr(t(x))}, {vr(t(x))}")
            for x in pr:
                p(f"v_pk_mul_f32 {vr(t(x), 2)}, {vr(t(x), 2)}, {vr(acc + x, 2)}")
            for x in pr:
                p(f"v_cvt_pk_bf16_f32 {vr(out + x // 2)}, {vr(t(x))}, {vr(t(x) + 1)}")

    def prologue(self, p):
        p("s_cmp_ge_u32 s2, 256")
        p("s_cbranch_scc1 L_end")
        if self.profile:
            p("v_mov_b32 v254, 0")
            p("s_memrealtime s[100:101]")
            p.wait(lg0=True)
            p("v_writelane_b32 v254, s100, 0")
        self.stamp(p, "start")
        p("s_load_dwordx16 s[64:79], s[0:1], 0")
        p("s_getpc_b64 s[48:49]")
        p("L_pc:")
        p("s_lshr_b32 s50, s2, 3")
        p("s_lshl_b32 s50, s50, 10")
        p("v_lshlrev_b32 v1, 7, v0")
        p("v_add_u32 v2, s50, v1")
        p("v_cmp_gt_u32 vcc, 32, v0")
        p("v_cndmask_b32 v1, v2, v1, vcc")
        p("v_min_u32 v1, CODE_BYTES, v1")
        p("v_cmp_gt_u32 vcc, 40, v0")
        p("s_and_saveexec_b64 s[50:51], vcc")
        p("s_cbranch_execz L_nopf")
        p("global_load_dword a255, v1, s[48:49]", count=False)
        p("L_nopf:")
        p("s_mov_b64 exec, s[50:51]")
        row, t1, t2 = vT[0], vT[1], vT[2]
        sT0, sT1 = "s52", "s53"
        p(f"""
        v_lshrrev_b32 {vT[3]}, 6, v0
        v_and_b32 {vL}, 63, v0
        v_readfirstlane_b32 {sw}, {vT[3]}
        v_lshrrev_b32 {row}, 3, {vL}
        v_and_b32 {t2}, 7, {vL}
        s_and_b32 {sT0}, s2, 7
        s_lshr_b32 {sT1}, s2, 6
        s_lshl_b32 {sc}, {sT0}, 2
        s_add_u32 {sc}, {sc}, {sT1}
        s_bfe_u32 {sj}, s2, 0x30003
        s_add_u32 {srot}, {sj}, {sT1}
        s_and_b32 {srot}, {srot}, {self.opt.get("rot1", 3)}
        s_and_b32 {sth}, {sw}, 1
        s_lshr_b32 {skh}, {sw}, 1
        s_lshl_b32 {sPriv}, {sw}, 14
        """)
        p(f"""
        s_lshr_b32 {sT0}, {sj}, 2
        s_add_u32 {sT0}, {sT0}, 1
        s_sub_u32 {sT1}, 0, {sT0}
        s_bitcmp1_b32 {sj}, 1
        s_cselect_b32 {sT0}, {sT0}, {sT1}
        s_lshl_b32 {sT1}, {sc}, 6
        s_add_u32 {sT0}, {sT0}, {sT1}
        s_lshl_b32 {sT1}, {sth}, 5
        s_add_u32 {sT0}, {sT0}, {sT1}
        s_lshl_b32 {sT0}, {sT0}, 10
        s_lshl_b32 {sT1}, {skh}, 9
        s_add_u32 {sT0}, {sT0}, {sT1}
        v_lshrrev_b32 {t1}, 1, {row}
        v_xor_b32 {t1}, {t1}, {t2}
        v_lshlrev_b32 {t1}, 4, {t1}
        v_lshl_add_u32 {t1}, {row}, 10, {t1}
        v_add_u32 {vXs[0]}, {sT0}, {t1}
        v_xor_b32 {t1}, 64, {t1}
        v_add_u32 {t1}, {sT0}, {t1}
        v_add_u32 {vXs[1]}, {8192 - 1024}, {t1}
        v_add_u32 {vXs[2]}, 16384, {vXs[0]}
        v_add_u32 {vXs[3]}, {24576 - 1024}, {t1}
        s_mov_b32 s6, {1 << 21}
        s_mov_b32 s7, 0x20000
        s_mov_b32 s22, {1 << 19}
        s_mov_b32 s23, 0x20000
        s_lshl_b32 {sWlds}, {skh}, 15
        s_lshl_b32 {sT1}, {sth}, 12
        s_add_u32 {sWlds}, {sWlds}, {sT1}
        s_lshl_b32 {sWsrc}, {skh}, 18
        s_lshl_b32 {sT1}, {sth}, 15
        s_add_u32 {sWsrc}, {sWsrc}, {sT1}
        s_lshl_b32 {sT1}, {sj}, 7
        s_add_u32 {sWsrc}, {sWsrc}, {sT1}
        v_lshrrev_b32 {vT[4]}, 2, {vL}
        v_and_b32 {vT[4]}, 4, {vT[4]}
        v_xor_b32 {vT[4]}, {vT[4]}, {t2}
        v_lshlrev_b32 {vT[4]}, 4, {vT[4]}
        v_lshl_add_u32 {vWs}, {row}, 10, {vT[4]}
        v_add_u32 {vWs1}, 7168, {vWs}
        """)
        self.set_rot(p)
        p.wait(lg0=True)
        p("s_mov_b64 s[4:5], s[64:65]")
        p("s_mov_b64 s[20:21], s[78:79]")
        if not self.opt.get("fast_go", 1):
            self.more_kernargs(p)
        self.stamp(p, "karg")

    def more_kernargs(self, p):
        for dst, off in ((40, 112), (24, 64), (28, 72), (32, 80), (52, 88), (36, 96)):
            p(f"s_load_dwordx2 s[{dst}:{dst + 1}], s[0:1], {off}")
        for dst, src in ((8, 66), (12, 68), (48, 70), (16, 72), (50, 74)):
            p(f"s_mov_b64 s[{dst}:{dst + 1}], s[{src}:{src + 1}]")

    def set_rot(self, p):
        for pos in range(4):
            p(f"s_add_u32 {sR[pos]}, {srot}, {pos}")
            p(f"s_and_b32 {sR[pos]}, {sR[pos]}, 3")
            p(f"s_lshl_b32 {sR[pos]}, {sR[pos]}, 7")

    def kernargs2(self, p):
        sizes = (1 << 21, 1 << 21, 1 << 21, 1 << 21, 1 << 19, 1 << 19, 512 * 3584, 1792 * 1024, 1 << 21, WS_SIZE, 256)
        for i, n in enumerate(sizes):
            if i not in (0, 4, 10):
                p(f"s_mov_b32 s{6 + 4 * i}, {n}")
                p(f"s_mov_b32 s{7 + 4 * i}, 0x20000")
        p(f"v_lshlrev_b32 {vL16}, 4, {vL}")
        p(f"v_mov_b32 {vZero}, 0")

    def touch(self, kind, after, prio):
        if after == "none":
            return
        g = Seq()
        srd, lines = {"w2": (sW2, 4), "w3": (sW3, 14), "w4": (sW4, 14)}[kind]
        g(f"s_lshl_b32 {sB}, s2, 2")
        g(f"s_add_u32 {sB}, {sB}, {sw}")
        g(f"s_mul_i32 {sB}, {sB}, {lines * 128}")
        self.masked(g, (1 << lines) - 1, f"buffer_load_dword a255, {vL128}, {srd}, {sB} offen")
        self.bg(g, "fewcold", after, prio)

    def touch_slow(self, kind, after, prio):
        g = Seq()
        srd, lines = {"w2": (sW2, 4), "w4": (sW4, 14)}[kind]
        g(f"s_lshr_b32 {sB}, s2, 3")
        g(f"s_lshl_b32 {sB}, {sB}, 2")
        g(f"s_add_u32 {sB}, {sB}, {sw}")
        g(f"s_mul_i32 {sB}, {sB}, {lines * 1024}")
        g(f"v_lshlrev_b32 {vr(V_TMP + 4)}, 10, {vL}")
        self.masked(g, (1 << lines) - 1, f"buffer_load_dword a255, {vr(V_TMP + 4)}, {srd}, {sB} offen offset:384")
        self.bg(g, "fewcold", after, prio)

    def idle_touch(self, piece, after, prio):
        for n in range(4):
            g = Seq()
            g(f"s_add_u32 {sB}, {sIdle}, {n * 524288 + piece * 32768}")
            g(f"buffer_load_dword a255, {vL128}, {sW4}, {sB} offen")
            self.bg(g, "few", after, prio)

    def warm_flags(self, p):
        for i in range(4):
            p(f"v_mov_b32 {vr(V_TMP + 4 + i)}, {sEp}")
        p(f"s_add_u32 {sFlag1}, {sFlag}, {FLAG1}")
        p(f"v_min_u32 {vLane0}, 1, {vL}")
        p(f"v_lshlrev_b32 {vLane0}, 30, {vLane0}")
        p(f"v_lshrrev_b32 {vP2}, 3, {vL}")
        p(f"v_mul_u32_u24 {vP2}, {FLAG1 - 128}, {vP2}")
        p(f"v_add_u32 {vP2}, {vP2}, {vL16}")
        self.masked(p, "0xffff", f"buffer_store_dwordx4 {vr(V_TMP + 4, 4)}, {vP2}, {sWS}, {sFlag} offen sc1")

    def advance_epoch(self, p):
        p(f"""
        s_or_b32 {sT0}, s2, {sw}
        s_cmp_eq_u32 {sT0}, 0
        s_cselect_b32 {sT0}, 0, {WS_SIZE}
        s_add_u32 {sT0}, {sT0}, {WS_EPOCH}
        s_add_u32 {sT1}, {sEp}, 8
        v_mov_b32 {vP2}, {sT1}
        """)
        self.masked(p, 1, f"buffer_store_dword {vP2}, {vZero}, {sWS}, {sT0} offen sc1")

    def x_loads(self, pos, cls, after, prio):
        for a in (0, 2):
            g = Seq()
            g(f"s_add_u32 m0, {sPriv}, {R2 + (pos * 4 + a) * 1024}")
            fl = self.opt.get("x_nt", "")
            self.dma(g, vXs[a], sX, sR[pos], flags=fl)
            self.dma(g, vXs[a + 1], sX, sR[pos], 1024, flags=fl)
            self.bg(g, cls, after, prio)

    def setup2(self, p):
        row, t1, t2 = vT[0], vT[1], vT[2]
        p(f"""
        s_xor_b32 {snh}, {sth}, {skh}
        s_mov_b32 {sOneLo}, 0x00003f80
        s_mov_b32 {sOneHi}, 0x3f800000
        s_add_u32 {sj2}, {sj}, {self.opt.get("j2", 1)}
        s_and_b32 {sj2}, {sj2}, 7
        s_add_u32 {sja}, {sj}, {self.opt.get("ja", 2)}
        s_and_b32 {sja}, {sja}, 7
        s_mov_b32 {sOnes}, 0x3f803f80
        s_mov_b32 {sHi}, 0xffff0000
        s_lshl_b32 {sFlag}, {sc}, 3
        s_add_u32 {sFlag}, {sFlag}, {sj}
        s_lshl_b32 {sFlag}, {sFlag}, 2
        s_add_u32 {sFlag}, {sFlag}, {sw}
        s_lshl_b32 {sFlag}, {sFlag}, 7
        s_lshr_b32 {sT0}, {sc}, 3
        s_lshl_b32 {ssc}, {sT0}, 2
        s_and_b32 {sT0}, {sc}, 3
        s_add_u32 {ssc}, {ssc}, {sT0}
        {"" if self.opt.get("pair", 1) else f"s_lshr_b32 {ssc}, {sc}, 1"}
        s_bfe_u32 {sT0}, {sc}, {"0x10002" if self.opt.get("pair", 1) else "0x10000"}
        s_mul_i32 {sm}, {sT0}, 7
        s_add_u32 {sm}, {sm}, {sj}
        s_cmp_gt_u32 {sj}, {self.idle}
        s_cselect_b32 {sT0}, 1, 0
        s_sub_u32 {sm}, {sm}, {sT0}
        s_cmp_eq_u32 {sj}, {self.idle}
        s_cselect_b32 {sOob}, {WS_SIZE}, {WS_SIZE if self.opt.get("dbg_noP3") else 0}
        v_lshlrev_b32 {vL128}, 7, {vL}
        v_mul_u32_u24 {vW3s}, 3584, {row}
        v_add_u32 {vW3s}, {vW3s}, {vT[4]}
        v_add_u32 {vW3s1}, {8 * 3584 - 1024}, {vW3s}
        s_mul_i32 {sW3b}, {sw}, {128 * 3584}
        s_lshl_b32 {sT1}, {sm}, 8
        s_add_u32 {sW3b}, {sW3b}, {sT1}
        s_add_u32 {sW3b}, {sW3b}, {sOob}
        s_lshl_b32 {sT1}, {sja}, 7
        s_lshl_b32 {sT0}, {sc}, 16
        s_add_u32 {sT0}, {sT0}, {sT1}
        v_lshlrev_b32 {vKv}, 4, {t2}
        v_lshl_add_u32 {vKv}, {row}, 10, {vKv}
        v_add_u32 {vKv}, {sT0}, {vKv}
        v_subrev_u32 {vKh}, 8192, {vKv}
        """)

    def w12_loads(self, srd, pos, cls, after, prio, sWsrc=sWsrc):
        toks = []
        for i in (0, 2):
            src = f"s_lshl_b32 {sB}, {sR[pos]}, 9\ns_add_u32 {sB}, {sB}, {sWsrc}"
            if i:
                src += f"\ns_add_u32 {sB}, {sB}, 16384"
            g, tk = self.dma_pair(vWs, vWs1, srd, src, sWlds, R0 + pos * 8192 + i * 1024)
            self.bg(g, cls, after, prio)
            toks.append(tk)
        return toks

    def kv_loads(self, t, after, prio):
        g = Seq()
        g(f"s_mul_i32 {sB}, {sw}, 2304")
        g(f"s_add_u32 {sB}, {sB}, {A1R}")
        g(f"s_cmp_eq_u32 {sw}, 0")
        g(f"s_cselect_b32 m0, {KB}, {sB}")
        g(f"s_cselect_b32 {sB}, 0, {1 << 21}")
        self.dma(g, vKh, sK, sB, flags=self.opt.get("kv_nt", "nt"))
        g(f"""
        s_lshl_b32 {sB}, {sja}, 2
        s_add_u32 {sB}, {sB}, {sw}
        s_lshl_b32 {sB}, {sB}, 7
        v_and_b32 {vKh}, 15, {vL}
        v_lshl_add_u32 {vKh}, {vKh}, 3, {sB}
        """)
        g(f"global_load_dwordx2 {vr(V_SK, 2)}, {vKh}, {pSH}")
        self.bg(g, "fewcold", after, prio)
        t["kv"] = []
        for srd, base in ((sK, KB + 1024), (sV, VB)):
            g = Seq()
            g(f"s_lshl_b32 {sB}, {sw}, 11")
            g(f"s_add_u32 m0, {sB}, {base}")
            g(f"s_lshl_b32 {sB}, {sw}, 14")
            self.dma(g, vKv, srd, sB, flags=self.opt.get("kv_nt", "nt"))
            g(f"s_add_u32 {sB}, {sB}, 7168")
            t["kv"].append(self.dma(g, vKv, srd, sB, 1024, flags=self.opt.get("kv_nt", "nt")))
            self.bg(g, "cold", after, prio)

    def small_addrs(self, p):
        p(f"""
        s_lshl_b32 {sT0}, {sc}, 6
        s_lshl_b32 {sT1}, {sth}, 5
        s_add_u32 {sT0}, {sT0}, {sT1}
        s_lshl_b32 {sT0}, {sT0}, 10
        s_lshl_b32 {sT1}, {sj2}, 7
        s_lshl_b32 {sT2}, {snh}, 6
        s_add_u32 {sT1}, {sT1}, {sT2}
        v_and_b32 {vOut}, 31, {vL}
        v_lshrrev_b32 {vPv}, 5, {vL}
        v_lshlrev_b32 {vPv}, 4, {vPv}
        v_add_u32 {vPv}, {sT1}, {vPv}
        v_lshl_add_u32 {vOut}, {vOut}, 10, {vPv}
        v_add_u32 {vOut}, {sT0}, {vOut}
        s_lshl_b32 {sT0}, {sj}, 6
        s_lshl_b32 {sT1}, {sc}, 1
        s_add_u32 {sT0}, {sT0}, {sT1}
        s_add_u32 {sT0}, {sT0}, {sth}
        s_lshl_b32 {sT1}, {sT0}, 1
        v_mov_b32 {vPw}, {sT1}
        s_lshl_b32 {sT0}, {sT0}, 12
        s_lshl_b32 {sT1}, {skh}, 11
        s_add_u32 {sStld}, {sT0}, {sT1}
        """)

    def small_loads(self, after, prio_x, prio_s, after_s):
        nt = self.opt.get("ssm_nt", "nt")
        g = Seq()
        g(f"buffer_load_dwordx4 {vr(V_XRES, 4)}, {vOut}, {sX}, 0 offen")
        g(f"buffer_load_dwordx4 {vr(V_XRES + 4, 4)}, {vOut}, {sX}, 0 offen offset:32")
        self.bg(g, "mall", after, prio_x)
        g = Seq()
        g(f"global_load_dwordx4 {vr(V_X1P, 4)}, {vPv}, {pG}")
        g(f"global_load_dwordx4 {vr(V_X1P + 4, 4)}, {vPv}, {pG} offset:32")
        g(f"global_load_ushort {vr(V_SSM + 5)}, {vPw}, {pD}")
        self.bg(g, "few", after, prio_x)
        g = Seq()
        g(f"buffer_load_dwordx4 {vr(V_SSM, 4)}, {vL16}, {sSK}, {sStld} offen {nt}")
        g(f"buffer_load_dwordx4 {vr(V_SSM + 6, 4)}, {vL16}, {sSK}, {sStld} offen offset:1024 {nt}")
        self.bg(g, "cold", after_s, prio_s)
        g = Seq()
        g(f"buffer_load_dword {vr(V_SSM + 4)}, {vL16}, {sSK}, {sStld} offen offset:16 {nt}")
        g(f"buffer_load_dword {vr(V_SSM + 10)}, {vL16}, {sSK}, {sStld} offen offset:1040 {nt}")
        self.bg(g, "few", after_s, prio_s)

    def lds_addrs(self, p):
        a, b, c = vT[0], vT[1], vT[2]
        p(f"""
        v_lshrrev_b32 {a}, 5, {vL}
        v_lshlrev_b32 {vTr0}, 10, {a}
        v_lshlrev_b32 {vCsA}, 4, {a}
        v_bfe_u32 {a}, {vL}, 2, 2
        v_lshl_add_u32 {vTr0}, {a}, 7, {vTr0}
        v_lshrrev_b32 {a}, 1, {a}
        v_lshl_add_u32 {vTr0}, {a}, 6, {vTr0}
        v_bfe_u32 {a}, {vL}, 4, 1
        v_lshl_add_u32 {vTr0}, {a}, 5, {vTr0}
        v_and_b32 {a}, 1, {vL}
        v_lshl_add_u32 {vTr0}, {a}, 4, {vTr0}
        v_bfe_u32 {a}, {vL}, 1, 1
        v_lshl_add_u32 {vTr0}, {a}, 3, {vTr0}
        s_lshl_b32 {sT0}, {snh}, 6
        s_lshl_b32 {sT1}, {skh}, 15
        v_xor_b32 {vTrX}, {sT0}, {vTr0}
        v_add_u32 {vTrX}, {sT1}, {vTrX}
        v_xor_b32 {vTrY}, 64, {vTrX}
        v_bfe_u32 {a}, {vL}, 3, 2
        v_lshlrev_b32 {a}, 10, {a}
        v_and_b32 {b}, 7, {vL}
        v_lshl_add_u32 {a}, {b}, 7, {a}
        s_add_u32 {sT0}, {sPriv}, {R2}
        v_add_u32 {a}, {sT0}, {a}
        v_bfe_u32 {b}, {vL}, 1, 3
        v_lshrrev_b32 {c}, 5, {vL}
        v_xor_b32 {b}, {b}, {c}
        """)
        for s in range(4):
            p(f"v_xor_b32 {c}, {2 * s}, {b}")
            p(f"v_lshl_add_u32 {vXr[s]}, {c}, 4, {a}")
        p(f"""
        v_and_b32 {a}, 3, {vL}
        v_bfe_u32 {b}, {vL}, 2, 1
        v_bfe_u32 {c}, {vL}, 4, 1
        v_xor_b32 {b}, {b}, {c}
        v_or_b32 {a}, {a}, {b}
        v_cmp_eq_u32 vcc, 0, {a}
        v_mov_b32 {b}, {sOnes}
        v_cndmask_b32 {vr(V_ONES)}, 0, {b}, vcc
        v_cndmask_b32 {vr(V_ONES + 1)}, 0, {b}, vcc
        v_cndmask_b32 {vr(V_ONES + 2)}, 0, {b}, vcc
        v_cndmask_b32 {vr(V_ONES + 3)}, 0, {b}, vcc
        """)

    def dot_stats(self, p, regs, first):
        S, Q, S2, Q2 = vr(V_TMP), vr(V_TMP + 1), vr(V_TMP + 2), vr(V_TMP + 3)
        for n in range(0, len(regs), 2):
            a, b = vr(regs[n]), vr(regs[n + 1])
            if first and n == 0:
                p(f"v_dot2_f32_bf16 {S}, {a}, {sOnes}, 0")
                p(f"v_dot2_f32_bf16 {Q}, {a}, {a}, 0")
                p(f"v_dot2_f32_bf16 {S2}, {b}, {sOnes}, 0")
                p(f"v_dot2_f32_bf16 {Q2}, {b}, {b}, 0")
            else:
                p(f"v_dot2c_f32_bf16 {S}, {sOnes}, {a}")
                p(f"v_dot2c_f32_bf16 {Q}, {a}, {a}")
                p(f"v_dot2c_f32_bf16 {S2}, {sOnes}, {b}")
                p(f"v_dot2c_f32_bf16 {Q2}, {b}, {b}")

    def fold_stats(self, p):
        S, Q, S2, Q2 = vr(V_TMP), vr(V_TMP + 1), vr(V_TMP + 2), vr(V_TMP + 3)
        p(f"v_add_f32 {S}, {S}, {S2}")
        p(f"v_add_f32 {Q}, {Q}, {Q2}")
        p(f"v_mov_b32 {S2}, {S}")
        p(f"v_mov_b32 {Q2}, {Q}")
        p(f"v_permlane32_swap_b32 {S}, {S2}")
        p(f"v_permlane32_swap_b32 {Q}, {Q2}")
        p(f"v_add_f32 {S}, {S}, {S2}")
        p(f"v_add_f32 {Q}, {Q}, {Q2}")

    def p1(self, p, t):
        o = self.opt
        w1 = []
        rot = o.get("rot1", 3)
        for pos in range(4):
            cls = "cold" if pos < o.get("p1_ncold", 4 // (bin(rot).count("1") * 2 or 1)) else "l2"
            self.x_loads(pos, "p1" + cls, "go2" if pos else "go", 0)
            w1.append(self.w12_loads(sW1, pos, "p1" + cls, "go2" if pos else "go", 0))
        p.mark("go", limit=5000, depth=o.get("depth0", 8))
        p("s_nop 0")
        if o.get("fast_go", 1):
            self.more_kernargs(p)
        self.kernargs2(p)
        p.mark("go2")
        self.setup2(p)
        p(f"s_load_dword {sEp}, s[40:41], {WS_EPOCH}")
        self.lds_addrs(p)
        self.small_addrs(p)
        p(f"""
        v_and_b32 {vT[0]}, 31, {vL}
        s_lshl_b32 {sT0}, {sw}, 8
        s_add_u32 {sT0}, {sT0}, {ST_STAT}
        v_lshl_add_u32 {vT[1]}, {vT[0]}, 3, {sT0}
        v_xor_b32 {vPoll}, 512, {vT[1]}
        s_add_u32 {sT0}, {sPriv}, {R2}
        v_add_u32 {vT[2]}, {sT0}, {vL16}
        v_xor_b32 {vT[5]}, 32768, {vT[2]}
        s_lshl_b32 {sT0}, {snh}, 8
        s_lshl_b32 {sT1}, {skh}, 7
        s_add_u32 {sT1}, {sT1}, {sT0}
        s_add_u32 {sT1}, {sT1}, {ST_CS}
        v_lshl_add_u32 {vT[3]}, {vT[0]}, 2, {sT1}
        s_add_u32 {sT0}, {sT0}, {ST_CS}
        v_add_u32 {vT[4]}, {sT0}, {vCsA}
        s_lshl_b32 {sT0}, {sc}, 1
        s_add_u32 {sT0}, {sT0}, {sth}
        s_lshl_b32 {sT0}, {sT0}, 15
        s_lshl_b32 {sT1}, {sj}, 12
        s_add_u32 {sT1}, {sT0}, {sT1}
        s_lshl_b32 {sT2}, {snh}, 11
        s_add_u32 {sH2st}, {sT1}, {sT2}
        s_lshl_b32 {sT1}, {skh}, 14
        s_add_u32 {sT0}, {sT0}, {sT1}
        s_add_u32 {sX1ld}, {sT0}, {WS_H}
        """)
        self.w4_offsets(p)
        p(f"s_sub_u32 {sT0}, {sj2}, {sj}")
        p(f"s_lshl_b32 {sT0}, {sT0}, 7")
        p(f"s_add_u32 {sW2src}, {sWsrc}, {sT0}")
        self.warm_flags(p)
        p.mark("setup")
        self.stamp(p, "setup")
        self.kv_loads(t, "setup", 1)
        self.touch("w2", o.get("touch_w2", "setup"), 2)
        if o.get("slow_w2", 1):
            self.touch_slow("w2", "setup", 2)
        if o.get("slow_w4", 1):
            self.touch_slow("w4", o.get("slow_w4_at", "conv"), 7)
        self.small_loads("setup", 3, o.get("prio_ssm", 4), o.get("ssm_after", "setup"))
        self.touch("w3", o.get("touch_w3", "setup"), 5)
        self.touch("w4", o.get("touch_w4", "conv"), 6)
        accX, accY, cs = V_ACC, V_ACC + 16, V_ACC + 32
        AB = [V_A, V_B + 32]

        def reads(q, pos):
            q.wait(vm=w1[pos][-1])
            q("s_barrier")
            q.mark(f"P1b{pos}")
            for s in range(4):
                q(f"ds_read_b128 {vr(V_B + 16 * (pos & 1) + 4 * s, 4)}, {vXr[s]} offset:{pos * 4096}")
            for s in range(4):
                self.a_reads(q, AB[pos & 1] + 8 * s + 4, vTrY, pos * 8192 + s * 2048)
            for s in range(4):
                self.a_reads(q, AB[pos & 1] + 8 * s, vTrX, pos * 8192 + s * 2048)

        reads(p, 0)
        self.stamp(p, "x0 landed")
        for pos in range(4):
            B0, A0 = V_B + 16 * (pos & 1), AB[pos & 1]
            self.dot_stats(p, list(range(B0, B0 + 16)), pos == 0)
            q = Seq()
            for s in range(4):
                q(f"v_mfma_f32_32x32x16_bf16 {vr(accY, 16)}, {vr(A0 + 8 * s + 4, 4)}, {vr(B0 + 4 * s, 4)}, {'0' if pos + s == 0 else vr(accY, 16)}")
            for s in range(4):
                q(f"v_mfma_f32_16x16x32_bf16 {vr(cs, 4)}, {vr(V_ONES, 4)}, {vr(A0 + 8 * s, 4)}, {'0' if pos + s == 0 else vr(cs, 4)}")
            for s in range(4):
                q(f"v_mfma_f32_32x32x16_bf16 {vr(accX, 16)}, {vr(A0 + 8 * s, 4)}, {vr(B0 + 4 * s, 4)}, {'0' if pos + s == 0 else vr(accX, 16)}")
            plan = []
            if pos < 3:
                r = Seq()
                reads(r, pos + 1)
                plan += spread(split(r), o.get("p1_rd0", 2), 11)
            if pos == 3:
                st = Seq()
                self.fold_stats(st)
                st(f"ds_write_b64 {vT[1]}, {vr(V_TMP, 2)}")
                wr = Seq()
                for g in range(4):
                    wr(f"ds_write_b128 {vT[2]}, {vr(accY + 4 * g, 4)} offset:{g * 1024}")
                wr(f"ds_write_b32 {vT[3]}, {vr(cs)}")
                plan += spread(split(st), 1, 4) + spread(split(wr), 9, 12)
            p.extend(weave(q, plan + self.dense(f"a{pos}_", (0, 4, 8, 12))))
        p.mark(force=9)
        self.stamp(p, "p1 mfma")
        p.wait(lg0=True)
        p("s_barrier")
        c0, c1 = V_A, V_A + 16
        S, Q, S2, Q2 = vr(V_TMP), vr(V_TMP + 1), vr(V_TMP + 2), vr(V_TMP + 3)
        p(f"ds_read_b64 {vr(V_TMP + 2, 2)}, {vPoll}")
        for g in range(4):
            p(f"ds_read_b128 {vr(accY + 4 * g, 4)}, {vT[5]} offset:{g * 1024}")
        for g in range(4):
            p(f"ds_read_b128 {vr(c0 + 4 * g, 4)}, {vT[4]} offset:{g * 32}")
            p(f"ds_read_b128 {vr(c1 + 4 * g, 4)}, {vT[4]} offset:{128 + g * 32}")
        p.mark("B1", limit=o.get("lim_g1", 0), depth=o.get("depth", 10))
        p(f"v_add_f32 {S}, {S}, {S2}")
        p(f"v_add_f32 {Q}, {Q}, {Q2}")
        self.ln_consts(p, S, Q)
        for x in range(0, 16, 2):
            p(f"v_pk_add_f32 {vr(accX + x, 2)}, {vr(accX + x, 2)}, {vr(accY + x, 2)}")
        for x in range(0, 16, 2):
            p(f"v_pk_add_f32 {vr(c0 + x, 2)}, {vr(c0 + x, 2)}, {vr(c1 + x, 2)}")
        out = V_TMP + 8
        self.gelu_packed(p, accX, c0, V_TMP + 16, out)
        p(f"s_add_u32 {sT0}, {sH2st}, {WS_H}")
        s0 = p(f"buffer_store_dwordx4 {vr(out, 4)}, {vL16}, {sWS}, {sT0} offen sc1")
        s1 = p(f"buffer_store_dwordx4 {vr(out + 4, 4)}, {vL16}, {sWS}, {sT0} offen offset:1024 sc1")
        t["h"] = [s0, s1]
        p.mark("h_st", limit=o.get("lim_w2", 2000))
        self.stamp(p, "h stored")
        t["w2"] = []
        for pos in range(4):
            early = pos < o.get("w2_early", 0)
            t["w2"] += self.w12_loads(sW2, pos, "mall", f"P1b{pos + 2}" if early else "B1", o.get("prio_w2e", 3.5) if early else 11, sW2src)

    def h_flag(self, p, t):
        self.publish(p, t["h"], 1, FLAG0)
        if self.opt.get("rb_h", 0):
            p(f"s_add_u32 {sT0}, {sH2st}, {WS_H}")
            self.masked(p, "0xffff", f"buffer_load_dword a255, {vL128}, {sWS}, {sT0} offen sc1").note = "few"
        p.mark("h_flag", limit=self.opt.get("lim_hflag", 1500))
        self.stamp(p, "h flag")

    def a1(self, p, t):
        kk, vv, o = V_B, V_B + 12, V_TMP
        sk = V_SK
        a, b = vT[0], vT[1]
        p(f"""
        v_lshrrev_b32 {a}, 4, {vL}
        v_lshlrev_b32 {a}, 11, {a}
        v_bfe_u32 {b}, {vL}, 2, 2
        v_lshl_add_u32 {a}, {b}, 7, {a}
        v_and_b32 {b}, 3, {vL}
        v_lshl_add_u32 {a}, {b}, 3, {a}
        s_lshl_b32 {sT0}, {sw}, 5
        s_add_u32 {sT0}, {sT0}, {KB}
        v_add_u32 {a}, {sT0}, {a}
        """)
        p.wait(vm=t["kv"])
        p("s_barrier")
        p.mark("Bkv")
        for rd in range(5):
            p(f"ds_read_b64_tr_b16 {vr(kk + 2 * rd, 2)}, {a} offset:{(4 + 4 * rd) * 128}")
        for rd in range(4):
            p(f"ds_read_b64_tr_b16 {vr(vv + 2 * rd, 2)}, {a} offset:{(VB - KB) + 4 * rd * 128}")
        c10, c32, c0, c21, c3 = V_A, V_A + 1, V_A + 2, V_A + 3, V_A + 4
        p(f"v_alignbit_b32 {vr(c10)}, {vr(sk)}, {vr(sk)}, 16")
        p(f"v_alignbit_b32 {vr(c32)}, {vr(sk + 1)}, {vr(sk + 1)}, 16")
        p(f"v_and_b32 {vr(c0)}, 0xffff, {vr(sk)}")
        p(f"v_and_b32 {vr(c3)}, {sHi}, {vr(sk + 1)}")
        p(f"v_and_b32 {vr(c21)}, 0xffff, {vr(sk + 1)}")
        p(f"v_and_or_b32 {vr(c21)}, {vr(sk)}, {sHi}, {vr(c21)}")
        p(f"""
        v_and_b32 {vT[3]}, 3, {vL}
        v_bfe_u32 {vT[2]}, {vL}, 2, 1
        v_lshlrev_b32 {vT[3]}, 9, {vT[3]}
        v_lshl_add_u32 {vPoll}, {vT[2]}, 8, {vT[3]}
        s_lshl_b32 {sC}, {sc}, 12
        s_lshl_b32 {sT1}, {skh}, 11
        s_add_u32 {sC}, {sC}, {sT1}
        s_lshl_b32 {sT1}, {sth}, 7
        s_add_u32 {sC}, {sC}, {sT1}
        """)
        f = V_ACC
        q = Seq()
        for i in range(8):
            q(f"v_dot2_f32_bf16 {vr(f + 2 * i)}, {vr(kk + i)}, {vr(c3)}, 0")
            q(f"v_dot2_f32_bf16 {vr(f + 2 * i + 1)}, {vr(kk + i + 1)}, {vr(c32)}, 0")
        for i in range(8):
            q(f"v_dot2_f32_bf16 {vr(f + 2 * i)}, {vr(kk + i + 1)}, {vr(c21)}, {vr(f + 2 * i)}")
            q(f"v_dot2_f32_bf16 {vr(f + 2 * i + 1)}, {vr(kk + i + 2)}, {vr(c10)}, {vr(f + 2 * i + 1)}")
        for i in range(8):
            q(f"v_dot2_f32_bf16 {vr(f + 2 * i)}, {vr(kk + i + 2)}, {vr(c0)}, {vr(f + 2 * i)}")
        for i in range(8):
            q(f"v_lshlrev_b32 {vr(f + 16 + 2 * i)}, 16, {vr(vv + i)}")
            q(f"v_and_b32 {vr(f + 17 + 2 * i)}, {sHi}, {vr(vv + i)}")
        for i in range(8):
            q(f"v_pk_mul_f32 {vr(f + 2 * i, 2)}, {vr(f + 2 * i, 2)}, {vr(f + 16 + 2 * i, 2)}")
        for i in range(8):
            q(f"v_cvt_pk_bf16_f32 {vr(o + i)}, {vr(f + 15 - 2 * i)}, {vr(f + 14 - 2 * i)}")
        mode = self.opt.get("a1_first", 60)
        if mode > 1:
            hf = Seq()
            self.h_flag(hf, t)
            q = weave(q, [(mode, hf)], kinds=("valu",))
        p.extend(q)
        if mode == 0:
            self.h_flag(p, t)
        p(f"""
        v_and_b32 {a}, 15, {vL}
        v_mul_u32_u24 {a}, 144, {a}
        v_lshrrev_b32 {b}, 4, {vL}
        v_sub_u32 {b}, 3, {b}
        v_lshl_add_u32 {a}, {b}, 5, {a}
        s_mul_i32 {sT0}, {sw}, 2304
        s_add_u32 {sT0}, {sT0}, {A1R}
        v_add_u32 {a}, {sT0}, {a}
        """)
        p(f"ds_write_b128 {a}, {vr(o, 4)}")
        w2 = p(f"ds_write_b128 {a}, {vr(o + 4, 4)} offset:16")
        p(f"""
        v_lshrrev_b32 {a}, 3, {vL}
        v_and_b32 {b}, 7, {vL}
        v_lshlrev_b32 {b}, 4, {b}
        v_lshl_add_u32 {vT[2]}, {a}, 12, {b}
        v_mul_u32_u24 {a}, 144, {a}
        v_add3_u32 {a}, {a}, {b}, {sT0}
        s_lshl_b32 {sT0}, {sja}, 18
        s_lshl_b32 {sT1}, {sw}, 16
        s_add_u32 {sT0}, {sT0}, {sT1}
        s_sub_u32 {sT1}, 31, {sc}
        s_lshl_b32 {sT1}, {sT1}, 7
        s_add_u32 {sT0}, {sT0}, {sT1}
        s_add_u32 {sT0}, {sT0}, {WS_KVT}
        s_add_u32 {sT1}, {sT0}, 32768
        """)
        p.wait(lg=w2)
        p(f"ds_read_b128 {vr(o + 8, 4)}, {a}")
        p(f"ds_read_b128 {vr(o + 12, 4)}, {a} offset:{8 * 144}")
        s0 = p(f"buffer_store_dwordx4 {vr(o + 8, 4)}, {vT[2]}, {sWS}, {sT0} offen sc1")
        s1 = p(f"buffer_store_dwordx4 {vr(o + 12, 4)}, {vT[2]}, {sWS}, {sT1} offen sc1")
        t["kvt"] = [s0, s1]
        self.stamp(p, "a1 done")
        if self.opt.get("a1_first", 60) == 1:
            self.h_flag(p, t)

    def w3_loads(self, line, lds, after, prio, blocks=range(0, 16, 2)):
        toks = []
        for i in blocks:
            g, tk = self.dma_pair(vW3s, vW3s1, sW3, f"s_add_u32 {sB}, {sW3b}, {line * 128 + i * 8 * 3584}", sPriv, lds + i * 1024)
            self.bg(g, "mall", after, prio)
            toks.append(tk)
        return toks

    def w4_offsets(self, p):
        p(f"s_mul_i32 {sT0}, {sw}, 7")
        p(f"s_lshl_b32 {sT2}, {sj2}, 7")
        if self.opt.get("dbg_now4"):
            p(f"s_add_u32 {sT2}, {sT2}, {WS_SIZE}")
        for u in range(7):
            p(f"""
            s_add_u32 {sT1}, {sT0}, {u}
            s_lshr_b32 {sU[u]}, {sT1}, 1
            s_lshl_b32 {sU[u]}, {sU[u]}, 17
            s_and_b32 {sT1}, {sT1}, 1
            s_lshl_b32 {sT1}, {sT1}, 14
            s_add_u32 {sU[u]}, {sU[u]}, {sT1}
            s_add_u32 {sU[u]}, {sU[u]}, {sT2}
            """)

    def w4_loads(self, piece, lds, after, prio):
        toks = []
        for u in range(7):
            oob = WS_SIZE if piece == 3 and u < self.opt.get("dbg_p3", 0) else 0
            g, tk = self.dma_pair(vWs, vWs1, sW4, f"s_add_u32 {sB}, {sU[u]}, {piece * 32768 + oob}", sPriv, lds + u * 2048)
            self.bg(g, "mall", after, prio)
            toks.append(tk)
        return toks

    def w4_park(self, piece, areg, after, prio):
        for u in range(7):
            g = Seq()
            g(f"s_add_u32 {sB}, {sU[u]}, {piece * 32768}")
            g(f"buffer_load_dwordx4 {ar(areg + 8 * u, 4)}, {vWs}, {sW4}, {sB} offen")
            g(f"buffer_load_dwordx4 {ar(areg + 8 * u + 4, 4)}, {vWs1}, {sW4}, {sB} offen offset:1024")
            self.bg(g, "mall", after, prio)

    def w4_unpark_groups(self, areg, vaddr):
        groups, toks = [], []
        for n in range(14):
            g = Seq()
            toks.append(g(f"ds_write_b128 {vaddr}, {ar(areg + 4 * n, 4)} offset:{n * 1024}"))
            groups.append(g)
        return groups, toks

    def gate_partial(self, p):
        g, g2 = vr(V_TMP), vr(V_TMP + 1)
        for i in range(0, 8, 2):
            p(f"v_dot2_f32_bf16 {g}, {vr(V_XRES + i)}, {vr(V_X1P + i)}, {'0' if i == 0 else g}")
            p(f"v_dot2_f32_bf16 {g2}, {vr(V_XRES + i + 1)}, {vr(V_X1P + i + 1)}, {'0' if i == 0 else g2}")
        p(f"""
        s_lshl_b32 {sT3}, {sc}, 1
        s_add_u32 {sT3}, {sT3}, {sth}
        s_lshl_b32 {sD}, {sT3}, 11
        s_lshl_b32 {sT1}, {sj2}, 1
        s_add_u32 {sT1}, {sT1}, {snh}
        s_lshl_b32 {sT1}, {sT1}, 7
        s_add_u32 {sD}, {sD}, {sT1}
        v_lshlrev_b32 {vT[5]}, 2, {vL}
        s_add_u32 {sD}, {sD}, {WS_GATE}
        """)
        p(f"v_add_f32 {g}, {g}, {g2}")
        self.half_sum(p, g, g2)
        self.masked(p, "0xffffffff", f"buffer_store_dword {g}, {vT[5]}, {sWS}, {sD} offen sc1")

    def stage_conv_k(self, p):
        a, b = vT[0], vT[1]
        d = V_SSM
        o = V_TMP + 8
        p(f"""
        s_mul_i32 {sT0}, {sth}, {KCH}
        s_add_u32 {sT0}, {sT0}, {CK}
        s_lshl_b32 {sT1}, {skh}, 11
        s_add_u32 {sT1}, {sT1}, {sT0}
        v_add_u32 {a}, {sT1}, {vL16}
        v_cmp_eq_u32 vcc, 63, {vL}
        s_cmp_eq_u32 {skh}, 1
        s_cselect_b64 vcc, vcc, 0
        v_cndmask_b32 {vr(d + 10)}, {vr(d + 10)}, {vZero}, vcc
        """)
        p(f"ds_write_b128 {a}, {vr(d, 4)} offset:64")
        p(f"ds_write_b128 {a}, {vr(d + 6, 4)} offset:{64 + 1024}")
        for i in range(4):
            p(f"v_alignbit_b32 {vr(o + i)}, {vr(d + i + 1)}, {vr(d + i)}, 16")
            p(f"v_alignbit_b32 {vr(o + 4 + i)}, {vr(d + 7 + i)}, {vr(d + 6 + i)}, 16")
        p(f"ds_write_b128 {a}, {vr(o, 4)} offset:{KCOPY + 64}")
        p(f"ds_write_b128 {a}, {vr(o + 4, 4)} offset:{KCOPY + 64 + 1024}")
        p(f"""
        s_mul_i32 {sT1}, {skh}, {64 + 4096}
        s_add_u32 {sT1}, {sT1}, {sT0}
        v_and_b32 {b}, 15, {vL}
        v_lshl_add_u32 {a}, {b}, 2, {sT1}
        v_readfirstlane_b32 {sT2}, {vr(d)}
        s_lshl_b32 {sT2}, {sT2}, 16
        s_cmp_eq_u32 {skh}, 0
        s_cselect_b32 {sT2}, {sT2}, 0
        v_cmp_eq_u32 vcc, 15, {b}
        v_mov_b32 {b}, {sT2}
        v_cndmask_b32 {b}, 0, {b}, vcc
        """)
        p(f"ds_write_b32 {a}, {vZero}")
        p(f"ds_write_b32 {a}, {b} offset:{KCOPY}")
        p(f"""
        s_mul_i32 {sT0}, {sth}, {UCH}
        s_add_u32 {sT0}, {sT0}, {CU}
        s_lshl_b32 {sT1}, {skh}, 8
        s_add_u32 {sT1}, {sT1}, {sT0}
        v_lshl_add_u32 {a}, {vL}, 2, {sT1}
        v_and_b32 {b}, 7, {vL}
        v_lshl_add_u32 {b}, {b}, 2, {sT0}
        """)
        p(f"ds_write_b32 {a}, {vZero} offset:{32 + 4096}")
        p(f"ds_write_b32 {a}, {vZero} offset:{32 + 4096 + 256}")
        p(f"ds_write_b32 {b}, {vZero}")

    def p2(self, p, t):
        o = self.opt
        self.gate_partial(p)
        for pos in range(4):
            p(f"s_lshl_b32 {sQ[pos]}, {sR[pos]}, 5")
            p(f"s_add_u32 {sQ[pos]}, {sQ[pos]}, {sX1ld}")
        order = o.get("kvt_pub", 1)
        if order == 0:
            self.publish(p, t["kvt"], 1, FLAG1)
        p.wait(vm=t["w2"][o.get("hpoll_wait", 4)])
        self.poll_issue(p, vPv, vPoll, sC)
        p.mark(force=11)
        if order == 1:
            self.publish(p, t["kvt"], 1, FLAG1)
        self.poll_check(p, vPv, vPoll, sC, 1)
        p.mark("h_seen", depth=o.get("depth_h", 10), limit=self.opt.get("lim_def", 1300))
        self.stamp(p, "h seen")
        for pos in range(4):
            for s in (0, 2):
                g = Seq()
                for x in (s, s + 1):
                    g(f"buffer_load_dwordx4 {vr(V_B + 16 * pos + 4 * x, 4)}, {vL16}, {sWS}, {sQ[pos]} offen offset:{x * 1024} sc1")
                self.bg(g, "hand", "h_seen", 10)
        p(f"""
        v_and_b32 {vKv}, 31, {vL}
        v_lshlrev_b32 {vKv}, 12, {vKv}
        s_sub_u32 {sD}, {sj}, {self.opt.get("ja", 2)}
        s_and_b32 {sD}, {sD}, 7
        s_lshl_b32 {sD}, {sD}, 9
        s_lshr_b32 {sT3}, {sc}, 3
        s_lshl_b32 {sT3}, {sT3}, 7
        s_add_u32 {sD}, {sD}, {sT3}
        s_add_u32 {sD}, {sD}, {FLAG1}
        s_add_u32 {sT3}, {sPriv}, {EX2}
        v_add_u32 {vT[2]}, {sT3}, {vL16}
        v_xor_b32 {vT[3]}, 32768, {vT[2]}
        s_sub_u32 {sT0}, {sj2}, {sj}
        s_lshl_b32 {sT0}, {sT0}, 12
        s_add_u32 {sT0}, {sT0}, {sH2st}
        s_add_u32 {sH2st}, {sT0}, {WS_X1}
        s_lshl_b32 {sT3}, {sc}, 1
        s_add_u32 {sT3}, {sT3}, {sth}
        s_lshl_b32 {sC}, {sT3}, 12
        s_lshl_b32 {sT1}, {sj2}, 9
        s_add_u32 {sC}, {sC}, {sT1}
        s_lshl_b32 {sT1}, {snh}, 8
        s_add_u32 {sC}, {sC}, {sT1}
        s_add_u32 {sC}, {sC}, {WS_STATS}
        v_lshlrev_b32 {vKh}, 3, {vL}
        """)
        p.wait(vm=t["w2"], lg0=True)
        p("s_barrier")
        p.mark("Bp2")
        t["l0"] = self.w3_loads(0, R2, o.get("l0_after", "Bp2"), 30, range(0, 12, 2)) + self.w3_loads(0, R2, "conv", 29, (12, 14))
        accX, accY = V_ACC, V_ACC + 16
        q = Seq()

        for ks in range(3):
            self.a_reads(q, V_A + 8 * ks + 4, vTrY, ks * 2048)
            self.a_reads(q, V_A + 8 * ks, vTrX, ks * 2048)
        if not o.get("stage_late"):
            self.stage_conv_k(q)
        for ks in range(13):
            z = ks == 0
            A, B, N = V_A + 8 * (ks % 4), V_B + 4 * ks, V_A + 8 * ((ks + 3) % 4)
            q(f"v_mfma_f32_32x32x16_bf16 {vr(accY, 16)}, {vr(A + 4, 4)}, {vr(B, 4)}, {'0' if z else vr(accY, 16)}")
            self.a_reads(q, N + 4, vTrY, (ks + 3) * 2048)
            q(f"v_mfma_f32_32x32x16_bf16 {vr(accX, 16)}, {vr(A, 4)}, {vr(B, 4)}, {'0' if z else vr(accX, 16)}")
            self.a_reads(q, N, vTrX, (ks + 3) * 2048)
        for ks in range(13, 16):
            q(f"v_mfma_f32_32x32x16_bf16 {vr(accY, 16)}, {vr(V_A + 8 * (ks % 4) + 4, 4)}, {vr(V_B + 4 * ks, 4)}, {vr(accY, 16)}")
        for ks in range(13, 16):
            q(f"v_mfma_f32_32x32x16_bf16 {vr(accX, 16)}, {vr(V_A + 8 * (ks % 4), 4)}, {vr(V_B + 4 * ks, 4)}, {vr(accX, 16)}")
        pub, pl, lim = Seq(), Seq(), Seq()
        lim.mark(limit=o.get("lim_p2", 1300), force=o.get("p2_force"))
        self.poll_issue(pl, vPw, vKv, sD)
        p.extend(weave(q, [(16, lim), (o.get("kvt_poll_at", 26), Seq() if o.get("kvt_late", 0) else pl)] + self.dense("a5_", (0, 1, 8, 16, 24, 32))))
        for g in range(4):
            p(f"ds_write_b128 {vT[2]}, {vr(accY + 4 * g, 4)} offset:{g * 1024}")
        p.mark(limit=o.get("lim_e2", 1100))
        self.stamp(p, "p2 mfma")
        p.wait(lg0=True)
        p("s_barrier")
        p.mark("B2")
        t["l1"] = self.w3_loads(1, R0, "B2", 31)
        for g in range(4):
            p(f"ds_read_b128 {vr(accY + 4 * g, 4)}, {vT[3]} offset:{g * 1024}")
        for i in range(8):
            p(f"v_dot2c_f32_bf16 {vr(accX + 2 * i)}, {sOneLo}, {vr(V_XRES + i)}")
            p(f"v_dot2c_f32_bf16 {vr(accX + 2 * i + 1)}, {sOneHi}, {vr(V_XRES + i)}")
        for x in range(0, 16, 2):
            p(f"v_pk_add_f32 {vr(accX + x, 2)}, {vr(accX + x, 2)}, {vr(accY + x, 2)}")
        for i in range(8):
            p(f"v_cvt_pk_bf16_f32 {vr(V_X1P + i)}, {vr(accX + 2 * i)}, {vr(accX + 2 * i + 1)}")
        if o.get("rb_x1"):
            p(f"s_mov_b32 {sIdle}, {sH2st}")
        s0 = p(f"buffer_store_dwordx4 {vr(V_X1P, 4)}, {vL16}, {sWS}, {sH2st} offen sc1")
        s1 = p(f"buffer_store_dwordx4 {vr(V_X1P + 4, 4)}, {vL16}, {sWS}, {sH2st} offen offset:1024 sc1")
        self.dot_stats(p, list(range(V_X1P, V_X1P + 8)), True)
        self.fold_stats(p)
        s2 = self.masked(p, "0xffffffff", f"buffer_store_dwordx2 {vr(V_TMP, 2)}, {vKh}, {sWS}, {sC} offen sc1")
        t["x1"] = [s0, s1, s2]
        self.stamp(p, "x1 stored")

    def conv(self, p, t):
        o = self.opt
        p(f"""
        s_lshl_b32 {sT0}, {sj}, 6
        s_lshl_b32 {sT1}, {sc}, 1
        s_add_u32 {sT0}, {sT0}, {sT1}
        s_add_u32 {sT0}, {sT0}, {sth}
        s_lshl_b32 {sT0}, {sT0}, 12
        s_lshl_b32 {sT1}, {skh}, 11
        s_add_u32 {sT0}, {sT0}, {sT1}
        s_add_u32 {sT0}, {sT0}, {WS_KVT}
        s_mul_i32 {sT2}, {sth}, {UCH}
        s_add_u32 {sT1}, {sT1}, {sT2}
        """)
        def kvt_part(p):
            p(f"s_mov_b32 {sT0}, {sYld}")
            p(f"s_mov_b32 {sT1}, {sYlds}")
            self.poll_check(p, vPw, vKv, sD, 1)
            self.stamp(p, "kvt seen")
            g = Seq()
            g(f"s_add_u32 m0, {sT1}, {CU + 32}")
            self.dma(g, vL16, sWS, sT0, 0, "sc1").note = "hand"
            u = self.dma(g, vL16, sWS, sT0, 1024, "sc1")
            u.note = "hand"
            p.atomic(g)
            return u

        late = o.get("kvt_late", 0)
        p(f"s_mov_b32 {sYld}, {sT0}")
        p(f"s_mov_b32 {sYlds}, {sT1}")
        if late:
            self.poll_issue(p, vPw, vKv, sD)
        else:
            u = kvt_part(p)
        p.mark("x1_st", limit=o.get("lim_conv", 1500), depth=o.get("depth2", 10))
        vA = [vXs[1], vXs[2], vXs[3], vXr[0], vXr[1]]
        vB = vXr[2]
        a, b = vT[0], vT[1]
        p(f"""
        v_and_b32 {a}, 15, {vL}
        v_lshrrev_b32 {b}, 4, {vL}
        v_lshlrev_b32 {b}, 4, {b}
        s_lshl_b32 {sT1}, {skh}, 8
        s_add_u32 {sT2}, {sT2}, {sT1}
        s_add_u32 {sT2}, {sT2}, {CU + 480}
        v_lshlrev_b32 {vB}, 5, {a}
        v_sub_u32 {vB}, {b}, {vB}
        v_add_u32 {vB}, {sT2}, {vB}
        v_add_u32 {vA[0]}, 1, {a}
        v_and_b32 {vA[0]}, 30, {vA[0]}
        v_lshl_add_u32 {vA[0]}, {vA[0]}, 1, {b}
        v_and_b32 {a}, 1, {a}
        v_xor_b32 {a}, 1, {a}
        v_mul_u32_u24 {a}, {KCOPY}, {a}
        s_mul_i32 {sT0}, {sth}, {KCH}
        s_add_u32 {sT0}, {sT0}, {sT1}
        s_add_u32 {sT0}, {sT0}, {CK}
        v_add3_u32 {vA[0]}, {vA[0]}, {a}, {sT0}
        """)
        for i in range(1, 4):
            p(f"v_add_u32 {vA[i]}, {1024 * i}, {vA[0]}")
        p(f"s_cmp_eq_u32 {skh}, 0")
        p(f"s_cselect_b32 {sT0}, 4096, 0")
        p(f"v_add_u32 {vA[4]}, {sT0}, {vA[0]}")
        if o.get("stage_late"):
            self.stage_conv_k(p)
        p(f"""
        v_and_b32 {vT[3]}, 7, {vL}
        v_bfe_u32 {vT[4]}, {vL}, 3, 1
        v_lshlrev_b32 {vT[3]}, 9, {vT[3]}
        v_lshl_add_u32 {vPoll}, {vT[4]}, 8, {vT[3]}
        s_lshl_b32 {sT2}, {ssc}, 1
        s_add_u32 {sT2}, {sT2}, {skh}
        s_lshl_b32 {sC}, {sT2}, 12
        s_lshl_b32 {sT1}, {sth}, 7
        s_add_u32 {sC}, {sC}, {sT1}
        s_mul_i32 {sH2st}, {sT2}, 229376
        s_lshl_b32 {sT1}, {sm}, 12
        s_add_u32 {sH2st}, {sH2st}, {sT1}
        s_lshl_b32 {sT1}, {sth}, 10
        s_add_u32 {sH2st}, {sH2st}, {sT1}
        s_add_u32 {sH2st}, {sH2st}, {WS_H2}
        s_add_u32 {sH2st}, {sH2st}, {sOob}
        s_lshl_b32 {sT2}, {ssc}, 2
        s_add_u32 {sT2}, {sT2}, {sw}
        s_lshl_b32 {sX1ld}, {sT2}, 15
        s_add_u32 {sX1ld}, {sX1ld}, {WS_X1}
        s_add_u32 {sX1ld}, {sX1ld}, {sOob}
        s_lshl_b32 {sStld}, {sT2}, 12
        s_add_u32 {sStld}, {sStld}, {WS_STATS}
        s_add_u32 {sStld}, {sStld}, {sOob}
        s_add_u32 {srot}, {sw}, {sj}
        s_and_b32 {srot}, {srot}, 3
        """)
        self.set_rot(p)
        for pos in range(4):
            p(f"s_lshl_b32 {sQ[pos]}, {sR[pos]}, 6")
            p(f"s_add_u32 {sQ[pos]}, {sQ[pos]}, {sX1ld}")
            p(f"s_add_u32 {sV4[pos]}, {sQ[pos]}, 4096")
        if not late:
            self.late_addrs(p)
        self.publish(p, t["x1"], 2, FLAG0)
        self.readback(p, "rb_x1", f"buffer_load_dword a255, {vL128}, {sWS}, {sIdle} offen sc1")
        if late:
            u = kvt_part(p)
            self.late_addrs(p)
        p.mark("x1_flag")
        self.stamp(p, "x1 flag")
        p.wait(vm=u, lg0=True)
        p("s_barrier")
        p.mark("conv")
        self.stamp(p, "conv start")
        self.w4_park(1, A_PARK, o.get("park2_after", "conv2"), 40)
        acc, AF = V_ACC + 32, V_A
        BF = [V_B, V_B + 32]
        BX = V_TMP
        q = Seq()
        order = (0, 7, 1, 6, 2, 5, 3, 4)
        rows = [(0, 8)] + [(rho, aa) for rho in range(4) for aa in order]

        def rdA(n):
            rho, aa = rows[n]
            of = (64 * rho + 512 * (aa & 1)) // 4
            q(f"ds_read2_b32 {vr(AF + 4 * (n % 8), 2)}, {vA[aa >> 1]} offset0:{of} offset1:{of + 1}")
            q(f"ds_read2_b32 {vr(AF + 4 * (n % 8) + 2, 2)}, {vA[aa >> 1]} offset0:{of + 2} offset1:{of + 3}")

        def rdB(bb, rho):
            d = BX if bb < 0 else BF[rho & 1] + 4 * bb
            q(f"ds_read_b128 {vr(d, 4)}, {vB} offset:{3584 - 512 * bb + 64 * rho}")

        rdA(0)
        rdB(-1, 0)
        rdA(1)
        for bb in range(7, 1, -1):
            rdB(bb, 0)
        late = [lambda: rdB(1, 0), lambda: rdB(0, 0), lambda: rdA(2), lambda: rdA(3), lambda: rdA(4)]
        started = set()
        for n, (rho, aa) in enumerate(rows):
            bs = list(range(7 - aa, -1, -1)) + ([-1] if rho == 0 and aa > 0 else [])
            for k, bb in enumerate(bs):
                d = vr(acc + 4 * (aa + bb), 4)
                B = BX if bb < 0 else BF[rho & 1] + 4 * bb
                q(f"v_mfma_f32_16x16x32_bf16 {d}, {vr(AF + 4 * (n % 8), 4)}, {vr(B, 4)}, {d if aa + bb in started else '0'}")
                started.add(aa + bb)
                if late:
                    late.pop(0)()
                if k == 0 and n + 5 < len(rows):
                    rdA(n + 5)
                if k == len(bs) // 2 and n > 0 and rho < 3:
                    rdB(7 - (n - 1) % 8, rho + 1)
        pl, pk, m2 = Seq(), Seq(), Seq()
        pl.mark(limit=o.get("lim_x1poll", 1400))
        pp = o.get("x1_poll_at", 80)
        pl2 = Seq()
        self.poll_issue(pl2, vPv, vPoll, sC)
        pl2.mark(limit=o.get("lim_x1poll2", 1100))
        self.poll_check(pk, vPv, vPoll, sC, 2)
        pk.mark("x1_seen", depth=o.get("depth_x", 10), limit=self.opt.get("lim_def", 1300))
        self.stamp(pk, "x1 seen")
        m2.mark("conv2")
        for ks in range(0, 32, 2):
            g = Seq()
            base = (sV4 if ks % 8 >= 4 else sQ)[ks // 8]
            for x in (ks, ks + 1):
                g(f"buffer_load_dwordx4 {ar(4 * x, 4)}, {vL16}, {sWS}, {base} offen offset:{(x % 4) * 1024} sc1")
            self.bg(g, "hand", "x1_seen", 12)
        plan = [(max(pp - 20, 1), pl), (pp, pl2), (o.get("x1_check_at", 116), pk), (o.get("conv2_at", 1), m2)] + self.dense("c", range(1, 152, 12))
        ad = Seq()
        ad(f"""
        s_lshl_b32 {sT0}, {sw}, 12
        s_add_u32 {sT0}, {sT0}, {EXC}
        v_add_u32 {vT[3]}, {sT0}, {vL16}
        v_xor_b32 {a}, 8192, {vT[3]}
        v_and_b32 {b}, 15, {vL}
        v_lshlrev_b32 {b}, 5, {b}
        v_lshrrev_b32 {vT[2]}, 4, {vL}
        v_lshl_add_u32 {b}, {vT[2]}, 3, {b}
        s_mul_i32 {sT1}, {sth}, {UCH}
        s_add_u32 {sT1}, {sT1}, {CU + 4120 - 1536}
        s_lshl_b32 {sT2}, {skh}, 11
        s_sub_u32 {sT1}, {sT1}, {sT2}
        v_sub_u32 {vT[2]}, {sT1}, {b}
        s_xor_b32 {sT0}, {sT0}, 8192
        v_add_u32 {b}, {sT0}, {b}
        v_lshlrev_b32 {vr(V_SSM + 5)}, 16, {vr(V_SSM + 5)}
        v_and_b32 {vT[4]}, 8, {vL}
        v_cmp_eq_u32 vcc, 0, {vT[4]}
        """)
        sel = Seq()
        sel(f"v_and_b32 {vT[4]}, 8, {vL}")
        sel(f"v_cmp_eq_u32 vcc, 0, {vT[4]}")
        for n in range(4):
            sel(f"v_cndmask_b32 {vr(V_SSM + n)}, {vr(V_ONES + n)}, {vZero}, vcc")
        for n in range(4):
            sel(f"v_cndmask_b32 {vr(V_ONES + n)}, {vZero}, {vr(V_ONES + n)}, vcc")
        sel(f"""
        v_lshlrev_b32 {vT[5]}, 2, {vL}
        v_add_u32 {vT[5]}, {ST}, {vT[5]}
        s_lshl_b32 {sT0}, {sw}, 8
        v_add_u32 {vT[6]}, {sT0}, {vT[5]}
        s_add_u32 {sT0}, {sT0}, {ST + 3072}
        v_add_u32 {vCsA}, {sT0}, {vCsA}
        """)
        ad.items = ad.items[:-2]
        p.extend(weave(q, fill(q, [(104, 126, split(ad)), (128, 150, split(sel))], plan)))
        self.stamp(p, "conv mfma")
        p.wait(vm=t["l0"])
        x = Seq()
        hi, join = self.label("convhi"), self.label("convjoin")
        x("s_barrier")
        t["ph1"] = self.behead(self.p3_phase(R2, V_ACC, V_ACC + 16, V_TMP))
        x.extend(t["ph1"][0])
        x(f"s_cmp_lg_u32 {skh}, 0")
        x(f"s_cbranch_scc1 {hi}")
        for half, tail in ((16, f"s_branch {join}\n{hi}:"), (0, f"{join}:")):
            for n in range(4):
                x(f"ds_write_b128 {vT[3]}, {vr(acc + half + 4 * n, 4)} offset:{n * 1024}", count=(half == 0))
            x("s_waitcnt lgkmcnt(0)")
            x("s_barrier")
            for n in range(4):
                x(f"ds_read_b128 {vr(acc + half + 4 * n, 4)}, {a} offset:{n * 1024}", count=(half == 0))
            x(tail)
        t["cx"] = x.items[-2]
        p.atomic(x)
        p.mark("conv_end")
        self.stamp(p, "conv done")
        e = Seq()
        uu, tmp = V_B + 16, V_B + 32
        for n in range(4):
            e(f"ds_read_b64 {vr(uu + 2 * n, 2)}, {vT[2]} offset:{1536 - 512 * n}")
        e.wait(lg=t["cx"])
        for n in range(16):
            e(f"v_add_f32 {vr(acc + n)}, {vr(acc + n)}, {vr(acc + 16 + n)}")
        for n in range(4):
            e(f"v_and_b32 {vr(tmp)}, {sHi}, {vr(uu + 2 * n + 1)}")
            e(f"v_lshlrev_b32 {vr(tmp + 1)}, 16, {vr(uu + 2 * n + 1)}")
            e(f"v_and_b32 {vr(tmp + 2)}, {sHi}, {vr(uu + 2 * n)}")
            e(f"v_lshlrev_b32 {vr(tmp + 3)}, 16, {vr(uu + 2 * n)}")
            for r in range(4):
                e(f"v_fmac_f32 {vr(acc + 4 * n + r)}, {vr(V_SSM + 5)}, {vr(tmp + r)}")
        for n in range(8):
            e(f"v_cvt_pk_bf16_f32 {vr(uu + n)}, {vr(acc + 2 * n)}, {vr(acc + 2 * n + 1)}")
        for n in range(4):
            e(f"ds_write_b64 {b}, {vr(uu + 2 * n, 2)} offset:{n * 512}")
        e(f"ds_read_b128 {vr(uu + 8, 4)}, {a}")
        e(f"ds_read_b128 {vr(uu + 12, 4)}, {a} offset:1024")
        e(f"""
        v_lshrrev_b32 {b}, 3, {vL}
        v_and_b32 {vT[2]}, 7, {vL}
        v_lshlrev_b32 {vT[2]}, 4, {vT[2]}
        v_lshl_add_u32 {b}, {b}, 13, {vT[2]}
        s_lshl_b32 {sT2}, {sj}, 18
        s_lshl_b32 {sT1}, {skh}, 17
        s_add_u32 {sT2}, {sT2}, {sT1}
        s_lshl_b32 {sT1}, {sc}, 1
        s_add_u32 {sT1}, {sT1}, {sth}
        s_lshl_b32 {sT1}, {sT1}, 7
        s_add_u32 {sT2}, {sT2}, {sT1}
        s_add_u32 {sT2}, {sT2}, {WS_YT}
        s_add_u32 {sT1}, {sT2}, 65536
        """)
        s0 = e(f"buffer_store_dwordx4 {vr(uu + 8, 4)}, {b}, {sWS}, {sT2} offen sc1")
        s1 = e(f"buffer_store_dwordx4 {vr(uu + 12, 4)}, {b}, {sWS}, {sT1} offen sc1")
        t["y"], t["conv_epi"] = [s0, s1], e

    @staticmethod
    def behead(q):
        n = next(i for i, it in enumerate(q.items) if it.kind in ("mfma32", "mfma16"))
        while q.items[n - 1].kind == "wait":
            n -= 1
        head, body = Seq(), Seq()
        head.items, body.items = q.items[:n], q.items[n:]
        return head, body

    def p3_phase(self, base, accA, accB, cs):
        q = Seq()
        regs = [(vXr[0], vXr[1]), (vXr[2], vXr[3])]

        def setblk(blk):
            r0, r1 = regs[blk & 1]
            q(f"s_lshl_b32 {sT0}, {sR[blk]}, 7")
            q(f"s_add_u32 {sT0}, {sT0}, {base}")
            q(f"v_add_u32 {r0}, {sT0}, {vTr0}")
            q(f"v_xor_b32 {r1}, 64, {r0}")

        def rd(ks, half):
            if ks < 32:
                tok[ks] = self.a_reads(q, V_A + 8 * (ks % 4) + 4 * half, regs[(ks >> 3) & 1][half], (ks & 7) * 2048)

        tok = {}
        setblk(0)
        ra = self.opt.get("ra2", 3)
        for ks in range(ra):
            rd(ks, 0)
            rd(ks, 1)
        setblk(1)
        for ks in range(32):
            A = V_A + 8 * (ks % 4)
            z = ks == 0
            q.wait(lg=tok[ks])
            q(f"v_mfma_f32_32x32x16_bf16 {vr(accA, 16)}, {vr(A, 4)}, {ar(4 * ks, 4)}, {'0' if z else vr(accA, 16)}")
            rd(ks + ra, 0)
            q(f"v_mfma_f32_32x32x16_bf16 {vr(accB, 16)}, {vr(A + 4, 4)}, {ar(4 * ks, 4)}, {'0' if z else vr(accB, 16)}")
            rd(ks + ra, 1)
            if ks < 8:
                q(f"v_mfma_f32_16x16x32_bf16 {vr(cs, 4)}, {vr(V_ONES, 4)}, {vr(A, 4)}, {'0' if z else vr(cs, 4)}")
                q(f"v_mfma_f32_16x16x32_bf16 {vr(cs, 4)}, {vr(V_SSM, 4)}, {vr(A + 4, 4)}, {vr(cs, 4)}")
            if ks in (8, 16):
                setblk(ks // 8 + 1)
        return q

    def p3_tile(self, base, half, acc, cs=None):
        q = Seq()
        regs = [vXr[0], vXr[2]]
        tok = {}

        def setblk(blk):
            q(f"s_lshl_b32 {sT0}, {sR[blk]}, 7")
            q(f"s_add_u32 {sT0}, {sT0}, {base}")
            q(f"v_add_u32 {regs[blk & 1]}, {sT0}, {vTr0}")
            if half:
                q(f"v_xor_b32 {regs[blk & 1]}, 64, {regs[blk & 1]}")

        def rd(ks):
            if ks < 32:
                tok[ks] = self.a_reads(q, V_A + 4 * (ks % 6), regs[(ks >> 3) & 1], (ks & 7) * 2048)

        setblk(0)
        X = V_ACC + 32
        if cs is not None:
            q(f"v_xor_b32 {vXr[1]}, 64, {vXr[0]}")
            for ks in range(3):
                self.a_reads(q, X + 4 * ks, vXr[1], ks * 2048)
        ra = self.opt.get("ra1", 5)
        for ks in range(ra):
            rd(ks)
        setblk(1)
        for ks in range(32):
            A = V_A + 4 * (ks % 6)
            q(f"v_mfma_f32_32x32x16_bf16 {vr(acc, 16)}, {vr(A, 4)}, {ar(4 * ks, 4)}, {'0' if ks == 0 else vr(acc, 16)}")
            rd(ks + ra)
            if cs is not None and ks < 8:
                q(f"v_mfma_f32_16x16x32_bf16 {vr(cs, 4)}, {vr(V_ONES, 4)}, {vr(A, 4)}, {'0' if ks == 0 else vr(cs, 4)}")
            if cs is not None and ks < 8:
                if ks + 3 < 8:
                    self.a_reads(q, X + 4 * ((ks + 3) % 4), vXr[1], (ks + 3) * 2048)
                q(f"v_mfma_f32_16x16x32_bf16 {vr(cs, 4)}, {vr(V_SSM, 4)}, {vr(X + 4 * (ks % 4), 4)}, {vr(cs, 4)}")
            if ks in (6, 14):
                setblk(ks // 8 + 2)
            if half:
                q.mark(f"t3_{ks}")
        return q

    def cs_exchange(self, table, cs, dstA, dstB):
        w, r, a, b = Seq(), Seq(), Seq(), Seq()
        tok = w(f"ds_write_b32 {vT[6]}, {vr(cs)} offset:{table - ST}")
        r.wait(lg=tok)
        r("s_barrier")
        for n in range(4):
            r(f"ds_read_b32 {vr(cs + n)}, {vT[5]} offset:{table - ST + n * 256}")
        r(f"v_add_f32 {vr(cs)}, {vr(cs)}, {vr(cs + 1)}")
        r(f"v_add_f32 {vr(cs + 2)}, {vr(cs + 2)}, {vr(cs + 3)}")
        r(f"v_add_f32 {vr(cs)}, {vr(cs)}, {vr(cs + 2)}")
        r(f"ds_write_b32 {vT[6]}, {vr(cs)} offset:3072")
        for n in range(4):
            a(f"ds_read_b128 {vr(dstA + 4 * n, 4)}, {vCsA} offset:{n * 32}")
            b(f"ds_read_b128 {vr(dstB + 4 * n, 4)}, {vCsA} offset:{128 + n * 32}")
        return w, r, a, b

    def gelu_plain(self, p, acc, cs, tmp, out):
        K1, K2, SD, NM = vr(V_KK), vr(V_KK + 1), vr(V_SM), vr(V_SM + 1)
        for b in range(0, 16, 4):
            xs = range(b, b + 4)
            T = lambda x: vr(tmp + (x & 7))
            for x in xs:
                p(f"v_fmac_f32 {vr(acc + x)}, {vr(cs + x)}, {NM}")
            for x in xs:
                p(f"v_mul_f32 {T(x)}, {vr(acc + x)}, {vr(acc + x)}")
            for x in xs:
                p(f"v_fma_f32 {T(x)}, {T(x)}, {K2}, {K1}")
            for x in xs:
                p(f"v_mul_f32 {T(x)}, {T(x)}, {vr(acc + x)}")
            for x in xs:
                p(f"v_exp_f32 {T(x)}, {T(x)}")
            for x in xs:
                p(f"v_fma_f32 {T(x)}, {T(x)}, {SD}, {SD}")
            for x in xs:
                p(f"v_rcp_f32 {T(x)}, {T(x)}")
            for x in xs:
                p(f"v_mul_f32 {T(x)}, {T(x)}, {vr(acc + x)}")
            for x in (b, b + 2):
                p(f"v_cvt_pk_bf16_f32 {vr(out + x // 2)}, {T(x)}, {T(x + 1)}")

    def h2_tile(self, acc, cs16, out, plain=False):
        q = Seq()
        (self.gelu_plain if plain else self.gelu_packed)(q, acc, cs16, V_TMP + 16, out)
        s0 = q(f"buffer_store_dwordx4 {vr(out, 4)}, {vL16}, {sWS}, {sH2st} offen sc1")
        s1 = q(f"buffer_store_dwordx4 {vr(out + 4, 4)}, {vL16}, {sWS}, {sH2st} offen offset:2048 sc1")
        q(f"s_add_u32 {sH2st}, {sH2st}, 57344")
        q("s_nop 0")
        return q, [s0, s1]

    def h2_loads(self, piece, reg, prio, freed=None):
        for u in range(7):
            g = Seq()
            sP = (sH, sX1ld)[piece & 1]
            if u % 2 == 0 or not self.opt.get("h2_trim", 1):
                g(f"s_add_u32 {sP}, {sH2ld}, {piece * 57344 + (u & ~1) * 2048}")
            for i in range(2):
                g(f"buffer_load_dwordx4 {reg(8 * u + 4 * i)}, {vXs[1 + i]}, {sWS}, {sP} offen offset:{(u % 2) * 2048} sc1")
            self.bg(g, "hand", (f"h2_seen{piece}", f"t3_{freed + 2 * u + 1}") if freed is not None else f"h2_seen{piece}", prio)

    def late_addrs(self, p):
        a, b = vT[0], vT[1]
        o = self.opt
        p(f"""
        s_lshl_b32 {sYfl}, {sj2}, 9
        s_lshr_b32 {sT1}, {sc}, 4
        s_lshl_b32 {sT1}, {sT1}, 8
        s_add_u32 {sYfl}, {sYfl}, {sT1}
        s_add_u32 {sYfl}, {sYfl}, {FLAG1}
        v_and_b32 {a}, 3, {vL}
        s_mul_i32 {sT1}, {sth}, 3
        v_add_u32 {a}, {sT1}, {a}
        v_add_u32 {b}, {8 - self.idle}, {a}
        v_lshrrev_b32 {b}, 3, {b}
        v_add_u32 {a}, {a}, {b}
        v_bfe_u32 {b}, {vL}, 2, 1
        v_lshlrev_b32 {a}, 9, {a}
        v_lshl_add_u32 {vH2fl}, {b}, 7, {a}
        s_lshr_b32 {sT2}, {sc}, 3
        s_lshl_b32 {sT2}, {sT2}, 3
        s_lshl_b32 {sT1}, {skh}, 2
        s_add_u32 {sT2}, {sT2}, {sT1}
        s_bfe_u32 {sT1}, {sc}, 0x20001
        s_add_u32 {sT2}, {sT2}, {sT1}
        {"" if o.get("pair", 1) else f"s_and_b32 {sT2}, {sc}, 30"}
        {"" if o.get("pair", 1) else f"s_add_u32 {sT2}, {sT2}, {skh}"}
        s_lshl_b32 {sT2}, {sT2}, 12
        s_and_b32 {sT1}, {sc}, 1
        s_lshl_b32 {sT1}, {sT1}, 8
        s_add_u32 {sH2fl}, {sT2}, {sT1}
        s_mul_i32 {sT2}, {sw}, {7 * 2048}
        s_mul_i32 {sT1}, {sc}, 229376
        s_add_u32 {sT1}, {sT1}, {sT2}
        s_add_u32 {sH2ld}, {sT1}, {WS_H2 + (WS_SIZE if o.get("dbg_noh2") else 0)}
        s_lshl_b32 {sT2}, {skh}, 15
        s_sub_u32 {sT2}, {sPriv}, {sT2}
        v_add_u32 {vTrX}, {sT2}, {vTrX}
        v_add_u32 {vTrY}, {sT2}, {vTrY}
        v_lshrrev_b32 {a}, 5, {vL}
        v_lshl_add_u32 {vKv}, {a}, 7, {vKv}
        v_lshlrev_b32 {a}, 10, {a}
        v_bfe_u32 {b}, {vL}, 2, 2
        v_lshl_add_u32 {a}, {b}, 7, {a}
        v_bfe_u32 {b}, {vL}, 4, 1
        v_lshl_add_u32 {a}, {b}, 5, {a}
        v_and_b32 {b}, 3, {vL}
        v_lshl_add_u32 {a}, {b}, 3, {a}
        s_lshl_b32 {sT2}, {snh}, 12
        s_lshl_b32 {sT1}, {sth}, 6
        s_add_u32 {sT2}, {sT2}, {sT1}
        s_add_u32 {sT2}, {sT2}, {YB}
        v_add_u32 {vY}, {sT2}, {a}
        s_lshl_b32 {sYld}, {sj2}, 5
        s_add_u32 {sYld}, {sYld}, {sc}
        s_lshl_b32 {sYld}, {sYld}, 13
        s_lshl_b32 {sT1}, {sw}, 11
        s_add_u32 {sYld}, {sYld}, {sT1}
        s_add_u32 {sYld}, {sYld}, {WS_YT}
        s_add_u32 {sYlds}, {sT1}, {YB}
        s_lshl_b32 {sGld}, {sc}, 1
        s_add_u32 {sGld}, {sGld}, {sth}
        s_lshl_b32 {sGld}, {sGld}, 11
        s_add_u32 {sGld}, {sGld}, {WS_GATE}
        """)

    def p3(self, p, t):
        o = self.opt
        T0, T1, T2, T3 = V_ACC, V_ACC + 16, V_ACC, V_ACC + 32
        cs, stt = V_TMP, V_B
        a, b = vT[0], vT[1]
        p.mark("p3", depth=o.get("depth3", 10))
        for i in range(0, 8, 2):
            g = Seq()
            for x in (i, i + 1):
                g(f"buffer_load_dwordx2 {vr(stt + 2 * x, 2)}, {vKh}, {sWS}, {sStld} offen offset:{x * 512} sc1")
            self.bg(g, "few", "p3", o.get("prio_stats", 11))
        ypub, lim, ln = Seq(), Seq(), Seq()
        self.publish(ypub, t["y"], 2, FLAG1)
        lim.mark(limit=o.get("lim_g0", 1400))
        for x in (0, 1):
            ln(f"v_add_f32 {vr(stt + x)}, {vr(stt + x)}, {vr(stt + 2 + x)}")
        for i in range(1, 4):
            for x in (0, 1):
                ln(f"v_add_f32 {vr(stt + x)}, {vr(stt + x)}, {vr(stt + 4 * i + x)}")
                ln(f"v_add_f32 {vr(stt + x)}, {vr(stt + x)}, {vr(stt + 4 * i + 2 + x)}")
        self.half_sum(ln, vr(stt), vr(stt + 2))
        self.half_sum(ln, vr(stt + 1), vr(stt + 3))
        self.ln_consts(ln, vr(stt), vr(stt + 1))
        csA, csB = V_B + 44, V_ACC + 48
        cw, cr, ca, cb = self.cs_exchange(ST + 2048, cs, csA, csB)
        q = t["ph1"][1]
        fixed = [(36, cw), (o.get("ypub_at", 76), ypub), (o.get("lim_g0_at", 66), lim)] + self.dense("i", range(1, 80, self.opt.get("dstep", 8)))
        streams = [(2, o.get("epi_end", 46), split(t["conv_epi"])), (47, 53, split(cr)), (54, 72, split(ln)), (73, 78, split(ca) + split(cb))]
        p.extend(weave(q, fill(q, streams, fixed)))
        self.stamp(p, "p3 t01")
        q0, st0 = self.h2_tile(T0, csA, V_TMP)
        p.extend(q0)
        p.mark(limit=o.get("lim_g1b", 1100))
        self.stamp(p, "h2 p0 st")
        p.wait(vm=t["l1"])
        p("s_barrier")
        p.mark("B3", depth=o.get("depth4", 10))
        head2, body2 = self.behead(self.p3_tile(R0, 0, V_ACC, cs))
        p.extend(head2)
        w1, w2 = o.get("g1_weave", 0), o.get("g2_weave", 0)
        q1, st1 = self.h2_tile(T1, csB, V_TMP + 8, plain=bool(w1))
        if not w1:
            p.extend(q1)
        p.mark(limit=self.opt.get("lim_def", 1300))
        p(f"""
        s_lshl_b32 {sT2}, {sth}, 10
        v_add_u32 {vXs[1]}, {sT2}, {vL16}
        v_xor_b32 {vXs[2]}, 1024, {vXs[1]}
        v_add_u32 {vXs[3]}, {sPriv}, {vL16}
        v_lshlrev_b32 {b}, 2, {vL}
        """)
        self.stamp(p, "h2 p1 st")
        w0t = self.w4_loads(0, R2, "B3", 32)
        self.w4_park(2, A_PARK + 56, o.get("park3_after", "conv2"), 41)
        pub0, pub1, pub2, ypl, ypk, hpl, hpk, yd, gl, lim, lim2 = (Seq() for _ in range(11))
        self.publish(pub0, st0, 3, FLAG0)
        if o.get("rb_h2"):
            pub0(f"s_sub_u32 {sE}, {sH2st}, 114688")
            self.readback(pub0, "rb_h2", f"buffer_load_dword a255, {vL128}, {sWS}, {sE} offen sc1", "0xff00ff")
        self.stamp(pub0, "h2 p0 flag")
        self.publish(pub1, st0 + st1, 4, FLAG0)
        if o.get("rb_h2"):
            pub1(f"s_sub_u32 {sE}, {sH2st}, 57344")
            self.readback(pub1, "rb_h2", f"buffer_load_dword a255, {vL128}, {sWS}, {sE} offen sc1", "0xff00ff")
        self.poll_issue(ypl, vPw, vKv, sYfl)
        self.poll_check(ypk, vPw, vKv, sYfl, 2)
        yd(f"s_mov_b32 m0, {sYlds}")
        self.dma(yd, vL16, sWS, sYld, 0, "sc1")
        ytok = self.dma(yd, vL16, sWS, sYld, 1024, "sc1")
        ypk.atomic(yd)
        T2, T3, csA2, csB2 = V_ACC, V_ACC + 16, V_ACC + 32, V_ACC + 48
        cw, cr, ca, cb = self.cs_exchange(ST, cs, csA2, csB2)
        q = body2
        lim.mark(limit=o.get("lim_g2", 1100))
        fixed = [(o.get("pub0_at", 6), pub0 if o.get("pub0", 1) else Seq()), (o.get("pub1_at", 22), pub1), (28, cw), (o.get("lim_g2_at", 36), lim)]
        streams = [(32, 38, split(cr)), (40, 47, split(ca) + ([] if w1 else split(cb)))]
        if w1:
            streams.append((2, 44, split(q1)))
            fixed = [x for x in fixed if x[1] is not pub1]
        p.extend(weave(q, fill(q, streams, fixed + self.dense("j", range(1, 48, self.opt.get("dstep", 6))))))
        self.stamp(p, "p3 t2")
        self.poll_issue(hpl, vPv, vH2fl, sH2fl)
        hmid = o.get("h2_poll_mid", 30)
        if not hmid:
            p.extend(hpl)
        if not o.get("y_poll_at"):
            p.extend(ypl)
        head3, body3 = self.behead(self.p3_tile(R0, 1, T3))
        p.extend(head3)
        q2, st2 = self.h2_tile(T2, csA2, V_TMP, plain=bool(w2))
        if w1:
            p.extend(cb)
        if not w2:
            plan = ([(hmid, hpl)] if hmid else []) + ([(o.get("pub1_mid", 12), pub1)] if w1 else [])
            p.extend(weave(q2, plan, kinds=("trans",)))
        self.stamp(p, "g2 done")
        p.mark(limit=self.opt.get("lim_def", 1300))
        self.publish(pub2, st2, 5, FLAG0)
        if o.get("rb_h2"):
            pub2(f"s_sub_u32 {sE}, {sH2st}, 57344")
            self.readback(pub2, "rb_h2", f"buffer_load_dword a255, {vL128}, {sWS}, {sE} offen sc1", "0xff00ff")
        self.poll_check(hpk, vPv, vH2fl, sH2fl, 4)
        hpk.mark("h2_seen0")
        self.stamp(hpk, "h2 seen")
        self.h2_loads(0, lambda r: vr(V_B + r, 4), 20)
        hpk.mark("h2_seen1")
        hpk("s_nop 0")
        self.h2_loads(1, lambda r: ar(r, 4), 21, freed=0)
        gt = V_B + 56
        for i in range(8):
            gl(f"buffer_load_dword {vr(gt + i)}, {b}, {sWS}, {sGld} offen offset:{i * 256} sc1").note = "few"
        q = body3
        lim2.mark(limit=o.get("lim_g3", 1100))
        fixed = [(o.get("h2_check_at", 14), hpk), (o.get("y_check_at", 16), ypk), (o.get("pub2_at", 28), pub2), (o.get("lim_g3_at", 26), lim2)]
        if o.get("y_poll_at"):
            fixed.append((o["y_poll_at"], ypl))
        streams = []
        if w2:
            streams = [(2, 30, split(q2))]
            fixed = [x for x in fixed if x[1] is not pub2]
            if hmid:
                fixed = [x for x in fixed if x[1] is not hpk and x[1] is not ypk]
                fixed += [(o.get("hp_w2", 6), hpl), (o.get("hc_w2", 24), hpk), (o.get("hc_w2", 24) + 2, ypk)]
            if w1:
                fixed.append((1, pub1))
        p.extend(weave(q, fill(q, streams, fixed + self.dense("k", range(1, 32, 4)))))
        self.stamp(p, "p3 t23")
        p.wait(vm=ytok)
        p("s_barrier")
        p.mark("B4", depth=o.get("depth5", 10))
        w1t = self.w4_loads(3, R0, "B4", o.get("prio_p3", 22.5))
        p(f"v_add_u32 {vXr[0]}, {R2}, {vTrX}")
        p(f"v_add_u32 {vXr[1]}, {R2}, {vTrY}")
        p(f"v_add_u32 {vXr[2]}, {R2}, {vXs[3]}")
        for n in range(o.get("ra4", 3)):
            p.wait(vm=w0t[n])
            for h in range(2):
                self.a_reads(p, V_A + 8 * n + 4 * h, vXr[h], n * 2048)
        q3, st3 = self.h2_tile(T3, csB2, V_TMP + 8)
        p.extend(weave(q3, [(o.get("pub2_mid", 24), pub2)], kinds=("trans",)) if w2 else q3)
        p.mark(limit=self.opt.get("lim_def", 1300))
        self.poll_issue(p, vPv, vH2fl, sH2fl)
        t["gl"] = gl
        a = vY
        self.stamp(p, "p3 done")
        bs = Seq()
        yy, base = V_TMP, V_TMP + 16
        for i in range(4):
            bs(f"ds_read_b64_tr_b16 {vr(yy + 2 * i, 2)}, {a} offset:{(i >> 1) * 2048 + (i & 1) * 512}")
        for i in range(1, 8):
            bs(f"v_add_f32 {vr(gt)}, {vr(gt)}, {vr(gt + i)}")
        self.half_sum(bs, vr(gt), vr(gt + 1))
        G, OM = vr(V_KK), vr(V_KK + 1)
        bs(f"v_mul_f32 {vr(gt)}, {fbits(-math.log2(math.e))}, {vr(gt)}")
        bs(f"v_exp_f32 {vr(gt)}, {vr(gt)}")
        bs(f"v_add_f32 {vr(gt)}, 1.0, {vr(gt)}")
        bs(f"v_rcp_f32 {G}, {vr(gt)}")
        bs(f"v_sub_f32 {OM}, 1.0, {G}")
        for i in range(8):
            for h, un in ((0, "v_lshlrev_b32 {d}, 16, {s}"), (1, "v_and_b32 {d}, " + sHi + ", {s}")):
                t0, t1, d = vr(gt + 2 * h), vr(gt + 2 * h + 1), vr(base + 2 * i + h)
                bs(un.format(d=t0, s=vr(yy + i)))
                bs(un.format(d=t1, s=vr(V_XRES + i)))
                bs(un.format(d=d, s=vr(V_X1P + i)))
                bs(f"v_mul_f32 {t0}, {t0}, {t1}")
                bs(f"v_mul_f32 {d}, {d}, {OM}")
                bs(f"v_fmac_f32 {d}, {t0}, {G}")
        t.update(st3=st3, w0t=w0t, w1t=w1t, base=base, bs=bs)

    def p4(self, p, t):
        o = self.opt
        acc = [V_ACC + 16 * i for i in range(4)]
        breg = [lambda r: vr(V_B + r, 4), lambda r: ar(r, 4), lambda r: ar(56 + r, 4), lambda r: vr(V_B + r, 4)]
        areg = [(vXr[0], vXr[1])] * 3 + [(vTrX, vTrY)]
        pub3 = Seq()
        self.publish(pub3, t["st3"], 6, FLAG0)
        if o.get("rb_h2"):
            pub3(f"s_sub_u32 {sE}, {sH2st}, 57344")
            self.readback(pub3, "rb_h2", f"buffer_load_dword a255, {vL128}, {sWS}, {sE} offen sc1", "0xff00ff")
        un1, _ = self.w4_unpark_groups(A_PARK, vXr[2])
        un2, _ = self.w4_unpark_groups(A_PARK + 56, vXr[2])
        bs = split(t["bs"])
        a = vXr[2]
        q = Seq()
        steps = [(pc, u) for pc in range(4) for u in range(7)]

        def rd(n, halves=(0, 1)):
            pc, u = steps[n]
            if pc in (0, 3) and 0 in halves:
                q.wait(vm=t["w0t" if pc == 0 else "w1t"][u])
            for h in halves:
                self.a_reads(q, V_A + 8 * (n % 4) + 4 * h, areg[pc][h], u * 2048)

        def mfma(n, slot):
            pc, u = steps[n]
            A = V_A + 8 * (n % 4) + 4 * (slot & 1)
            B = breg[pc](8 * u + 4 * (slot >> 1))
            q(f"v_mfma_f32_32x32x16_bf16 {vr(acc[slot], 16)}, {vr(A, 4)}, {B}, {'0' if n == 0 else vr(acc[slot], 16)}")

        ra = o.get("ra4", 3)
        for n in range(24):
            for slot in range(4):
                mfma(n, slot)
                if slot < 2:
                    rd(n + ra, (slot,))
        if ra == 2:
            rd(26)
        mfma(24, 1)
        rd(27)
        for slot in (1, 2, 3, 0):
            for n in range(24, 28):
                if (n, slot) != (24, 1):
                    mfma(n, slot)
        pk2, pl3, pk3 = Seq(), Seq(), Seq()
        self.poll_check(pk2, vPv, vH2fl, sH2fl, 5)
        pk2.mark("h2_seen2")
        self.h2_loads(2, breg[2], 22)
        self.poll_issue(pl3, vPv, vH2fl, sH2fl)
        self.poll_check(pk3, vPv, vH2fl, sH2fl, 6)
        pk3.mark("h2_seen3")
        self.h2_loads(3, breg[3], 23)
        plan = [(o.get("pub3_at", 18), pub3), (o.get("h2p2_check", 16), pk2), (o.get("h2p3_poll", 52), pl3), (o.get("h2p3_check", 68), pk3)]
        plan += spread(split(t["gl"]), o.get("gl_at", 30), o.get("gl_at", 30) + 14)
        for n, gq in enumerate(un1 + un2):
            plan.append((4 * (n // 2) + 3 + (n & 1), gq))
        xa = Seq()
        xa(f"v_xor_b32 {vT[2]}, {2 << 14}, {a}")
        xa(f"v_xor_b32 {vT[3]}, {3 << 14}, {a}")
        xa(f"v_xor_b32 {vT[4]}, {1 << 14}, {a}")
        via_lds = o.get("out_lds", 0)
        (xa if via_lds else Seq())(f"""
        v_and_b32 {vKv}, 31, {vL}
        s_lshl_b32 {sT0}, {sth}, 5
        v_add_u32 {vKv}, {sT0}, {vKv}
        v_mul_u32_u24 {vKv}, 144, {vKv}
        v_lshrrev_b32 {vKh}, 5, {vL}
        v_lshl_add_u32 {vKv}, {vKh}, 4, {vKv}
        s_lshl_b32 {sT0}, {snh}, 6
        v_add_u32 {vKv}, {sT0}, {vKv}
        v_lshrrev_b32 {vKh}, 3, {vL}
        v_and_b32 {vPw}, 7, {vL}
        v_lshlrev_b32 {vPw}, 4, {vPw}
        v_lshl_add_u32 {vOut}, {vKh}, 10, {vPw}
        v_mul_u32_u24 {vKh}, 144, {vKh}
        s_mul_i32 {sT0}, {sw}, {16 * 144}
        v_add3_u32 {vKh}, {vKh}, {vPw}, {sT0}
        s_lshl_b32 {sC}, {sc}, 16
        s_lshl_b32 {sT0}, {sw}, 14
        s_add_u32 {sC}, {sC}, {sT0}
        s_lshl_b32 {sT0}, {sj2}, 7
        s_add_u32 {sC}, {sC}, {sT0}
        s_add_u32 {sD}, {sC}, 8192
        s_nop 0
        """)
        plan += spread(split(xa), 86, 96)
        for s in range(1, 4):
            w = Seq()
            for g in range(4):
                w(f"ds_write_b128 {a}, {vr(acc[s] + 4 * g, 4)} offset:{(s - 1) * 4096 + g * 1024}")
            plan += spread(split(w), 96 + 4 * s + 2, min(96 + 4 * s + 5, 112))
        for pc in range(3):
            sq = Seq()
            self.stamp(sq, f"p4 piece{pc}")
            plan.append((28 * (pc + 1), sq))
        p.extend(weave(q, fill(q, [(o.get("bs_at", 60), o.get("bs_end", 94), bs)], plan + self.dense("p", range(1, 112, 4)))))
        self.stamp(p, "p4 piece3")
        p.wait(lg0=True)
        p("s_barrier")
        for s in range(1, 4):
            for g in range(4):
                p(f"ds_read_b128 {vr(acc[s] + 4 * g, 4)}, {vT[1 + s]} offset:{(s - 1) * 4096 + g * 1024}")
        base = t["base"]
        fl = o.get("out_flags", "")
        for half in (0, 8):
            for s in range(1, 4):
                for x in range(half, half + 8, 2):
                    p(f"v_pk_add_f32 {vr(acc[0] + x, 2)}, {vr(acc[0] + x, 2)}, {vr(acc[s] + x, 2)}")
            for x in range(half, half + 8, 2):
                p(f"v_pk_fma_f32 {vr(acc[0] + x, 2)}, {vr(acc[0] + x, 2)}, {vr(V_KK, 2)}, {vr(base + x, 2)} op_sel:[0,1,0] op_sel_hi:[1,1,1]")
            for i in range(half // 2, half // 2 + 4):
                p(f"v_cvt_pk_bf16_f32 {vr(V_TMP + i)}, {vr(acc[0] + 2 * i)}, {vr(acc[0] + 2 * i + 1)}")
            if via_lds:
                p(f"ds_write_b128 {vKv}, {vr(V_TMP + half // 2, 4)} offset:{R0 + half * 4}")
            else:
                p(f"buffer_store_dwordx4 {vr(V_TMP + half // 2, 4)}, {vOut}, {sOUT}, 0 offen offset:{half * 4} {fl}")
        if via_lds:
            p.wait(lg0=True)
            p("s_barrier")
            p(f"ds_read_b128 {vr(V_TMP + 8, 4)}, {vKh} offset:{R0}")
            p(f"ds_read_b128 {vr(V_TMP + 12, 4)}, {vKh} offset:{R0 + 8 * 144}")
            p(f"buffer_store_dwordx4 {vr(V_TMP + 8, 4)}, {vOut}, {sOUT}, {sC} offen {fl}")
            p(f"buffer_store_dwordx4 {vr(V_TMP + 12, 4)}, {vOut}, {sOUT}, {sD} offen {fl}")
        self.advance_epoch(p)
        self.stamp(p, "out issued")

    def write_stamps(self, p):
        if self.diag:
            p.wait(vm0=True)
            self.stamp(p, "end")
            p(f"""
            s_cmp_lg_u32 s2, {self.opt.get("diag_wg", 73)}
            s_cbranch_scc1 L_end
            s_sub_u32 s98, s98, s96
            s_mul_i32 s98, s98, {self.diag[2]}
            s_lshr_b32 s98, s98, {4 if len(self.diag) > 3 else 0}
            s_memrealtime s[96:97]
            s_waitcnt lgkmcnt(0)
            L_diag:
            s_memrealtime s[100:101]
            s_waitcnt lgkmcnt(0)
            s_sub_u32 s100, s100, s96
            s_cmp_lt_u32 s100, s98
            s_cbranch_scc1 L_diag
            """)
        if not self.profile:
            return
        p.wait(vm0=True)
        self.stamp(p, "end")
        p("s_memrealtime s[100:101]")
        p.wait(lg0=True)
        p("v_writelane_b32 v254, s100, 1")
        p(f"""
        s_lshl_b32 {sT0}, s2, 2
        s_add_u32 {sT0}, {sT0}, {sw}
        s_lshl_b32 {sT0}, {sT0}, 8
        s_add_u32 {sT0}, {sT0}, {WS_STAMP}
        v_lshlrev_b32 {vP2}, 2, {vL}
        """)
        p(f"buffer_store_dword v254, {vP2}, {sWS}, {sT0} offen sc1")

    def build(self):
        p = self.p
        t = {}
        self.prologue(p)
        self.p1(p, t)
        self.a1(p, t)
        self.p2(p, t)
        self.conv(p, t)
        self.p3(p, t)
        self.p4(p, t)
        self.write_stamps(p)
        p("L_end:")
        p("s_endpgm")
        assert len(self.stamps) + self.npoll <= 62, len(self.stamps)
        classes = {"p1cold": (self.opt.get("s_p1cold", 230), self.opt.get("l_p1cold", 1400)), "p1l2": (self.opt.get("s_p1l2", 75), 400)}
        classes.update(mall=(125, 900), hand=(105, 900))
        for k in ("mall", "hand", "cold"):
            if "s_" + k in self.opt:
                classes[k] = (self.opt["s_" + k], self.opt.get("l_" + k, 900))
        self.log = []
        p = schedule(p, [b for _, _, b in sorted(self.bgs, key=lambda e: e[:2])], classes, self.log, self.opt.get("split_bg", 1), self.opt.get("depth", 10))
        body, items = finalize(p)
        head = open(os.path.join(os.path.dirname(os.path.abspath(__file__)), "header.txt")).read()
        text = head + f"; @launch grid=(256,1,1) block=(256,1,1) lds={LDS_SIZE}\n" + DESCRIPTION
        text += f""".amdgcn_target "amdgcn-amd-amdhsa--gfx950"
.text
.globl {NAME}_kernel
.p2align 8
.type {NAME}_kernel,@function
{NAME}_kernel:
.set CODE_BYTES, L_code_end - L_pc - 4
"""
        text += body
        text += f"""L_code_end:
.section .rodata,"a"
.p2align 6
.amdhsa_kernel {NAME}_kernel
  .amdhsa_next_free_vgpr 512
  .amdhsa_next_free_sgpr 102
  .amdhsa_accum_offset 256
  .amdhsa_group_segment_fixed_size 0
  .amdhsa_kernarg_size 120
  .amdhsa_user_sgpr_count 2
  .amdhsa_user_sgpr_kernarg_segment_ptr 1
  .amdhsa_system_sgpr_workgroup_id_x 1
.end_amdhsa_kernel
"""
        return text


if __name__ == "__main__":
    prof = "--profile" in sys.argv
    out = [a for a in sys.argv[1:] if not a.startswith("--")]
    diag = [a[7:].split(",") for a in sys.argv if a.startswith("--diag=")]
    opt = {}
    for a in sys.argv:
        if a.startswith("--o:"):
            k, v = a[4:].split("=")
            opt[k] = int(v) if v.lstrip("-").isdigit() else v
    g = Gen(profile=prof, diag=diag[0] if diag else None, opt=opt)
    text = g.build()
    path = out[0] if out else f"cdna_kernels/{NAME}.s"
    open(path, "w").write(text)
    if prof:
        open(path + ".stamps", "w").write("\n".join(g.stamps))
    print("wrote", path, len(text), "bytes")
    if "--log" in sys.argv:
        print("  ".join(f"{n}={t}" for n, t in g.log))
```
